```python
import torch

def _softmax(x, axis=-1):
    return torch.softmax(x, dim=axis)
def _gelu(x):
    return torch.nn.functional.gelu(x, approximate="tanh")
def _silu(x):
    return torch.nn.functional.silu(x)
def _sigmoid(x):
    return torch.sigmoid(x)
def _layernorm(x, axis=-1, eps=1e-5):
    m = x.mean(dim=axis, keepdim=True)
    v = x.var(dim=axis, keepdim=True, unbiased=False)
    return (x - m) / torch.sqrt(v + eps)
def _scatter_add(tgt, idx, src, axis=0):
    return tgt.clone().index_add_(axis, idx, src)
def _segment_sum(src, seg, n):
    out = torch.zeros((n,) + src.shape[1:], dtype=src.dtype)
    return out.index_add_(0, seg, src)
def _pad(x, pw):
    flat = tuple(v for pair in reversed(pw) for v in pair)
    return torch.nn.functional.pad(x, flat)

kernel_name = 'parallel_sum__linear_attn_block__moe_arch_mod__prompt'

def setup_inputs():

    _w = (lambda a: (lambda t: t.to(torch.bfloat16) if t.is_floating_point() else t)(torch.as_tensor(a)))
    def _A_setup():
        B, S, D = 1, 2048, 1024
        return {
            "x": _w((lambda *s: torch.randn(*s, dtype=torch.bfloat16) * 0.05)(B, S, D)),
            "wqkv": _w((lambda *s: torch.randn(*s, dtype=torch.bfloat16) * 0.4)(D, 3 * D)),
            "wo": _w((lambda *s: torch.randn(*s, dtype=torch.bfloat16) * 0.2)(D, D)),
        }
    _A_in = _A_setup()

    def _B_setup():
        B, S, D, F, C = 1, 2048, 1024, 3584, 1
        return {
            "x": _w((lambda *s: torch.randn(*s, dtype=torch.bfloat16) * 0.05)(B, S, D)),
            "w_r": _w((lambda *s: torch.randn(*s, dtype=torch.bfloat16) * 0.05)(D)),
            "w_gate": _w((lambda *s: torch.randn(*s, dtype=torch.bfloat16) * 0.05)(D, F)),
            "w_up": _w((lambda *s: torch.randn(*s, dtype=torch.bfloat16) * 0.05)(D, F)),
            "w_down": _w((lambda *s: torch.randn(*s, dtype=torch.bfloat16) * 0.05)(F, D)),
        }
    _B_in = _B_setup()

    return {
        "A_x": _A_in["x"],
        "A_wqkv": _A_in["wqkv"],
        "A_wo": _A_in["wo"],
        "B_x": _B_in["x"],
        "B_w_r": _B_in["w_r"],
        "B_w_gate": _B_in["w_gate"],
        "B_w_up": _B_in["w_up"],
        "B_w_down": _B_in["w_down"],
    }

def reference(A_x, A_wqkv, A_wo, B_x, B_w_r, B_w_gate, B_w_up, B_w_down):
    def _A_ref(x, wqkv, wo):
        B, S, D = x.shape
        H = 32; Dh = D // H
        qkv = (lambda x, *d: x.permute(*d))((x @ wqkv).reshape(B, S, 3, H, Dh), 2, 0, 3, 1, 4)
        q, k, v = qkv[0], qkv[1], qkv[2]
        phi = lambda t: torch.where(t > 0, t + 1, torch.exp(t)) + 1e-6
        pq, pk = phi(q), phi(k)
        kv = torch.einsum("bhsd,bhse->bhde", pk, v)
        z = torch.einsum("bhsd->bhd", pk)
        num = torch.einsum("bhqd,bhde->bhqe", pq, kv)
        den = torch.einsum("bhqd,bhd->bhq", pq, z)[..., None] + 1e-6
        o = num / den
        return (lambda x, *d: x.permute(*d))(o, 0, 2, 1, 3).reshape(B, S, D) @ wo

    def _B_ref(x, w_r, w_gate, w_up, w_down):
        B, S, D = x.shape
        C = 1
        r = x @ w_r
        idx = torch.argsort(-r, axis=-1)[:, :C]
        idx_e = (lambda x, n, axis: torch.repeat_interleave(x, n, dim=axis))(idx.reshape(B, C, 1), D, axis=2)
        x_sel = (lambda x, i, axis: torch.take_along_dim(x, i, dim=axis))(x, idx_e, axis=1)
        g = _silu(x_sel @ w_gate)
        u = x_sel @ w_up
        y = (g * u) @ w_down
        r_sel = _sigmoid((lambda x, i, axis: torch.take_along_dim(x, i, dim=axis))(r, idx, axis=1))
        y = y * r_sel.reshape(B, C, 1)
        b_off = (torch.arange(B) * S).reshape(B, 1)
        flat_idx = (idx + b_off).reshape(B * C)
        zero = (x * 0.0).reshape(B * S, D)
        upd = _scatter_add(zero, flat_idx, y.reshape(B * C, D), axis=0)
        return x + upd.reshape(B, S, D)

    x = A_x
    xn = _layernorm(x, axis=-1)
    return x + _A_ref(xn, A_wqkv, A_wo) + _B_ref(xn, B_w_r, B_w_gate, B_w_up, B_w_down)
```

```python
class Asm:
    def __init__(self):
        self.lines = []
    def __call__(self, s):
        for l in s.strip("\n").split("\n"):
            l = l.strip()
            if not l: continue
            if l.endswith(":") or l.startswith(".") or l.startswith(";"):
                self.lines.append(l)
            else:
                self.lines.append("    " + l)
    def label(self, n): self.lines.append(n + ":")
    def text(self): return "\n".join(self.lines) + "\n"

def vr(b, n=1):
    return f"v{b}" if n == 1 else f"v[{b}:{b+n-1}]"
def ar(b, n=1):
    return f"a{b}" if n == 1 else f"a[{b}:{b+n-1}]"
def sr(b, n=1):
    return f"s{b}" if n == 1 else f"s[{b}:{b+n-1}]"

class LgkmTracker:
    def __init__(self, A):
        self.A = A
        self.q = []
    def issue(self, text, tag):
        self.A(text)
        self.q.append(tag)
    def need(self, tags):
        last = -1
        for i, t in enumerate(self.q):
            if t in tags: last = i
        if last < 0: return
        n = len(self.q) - 1 - last
        n = min(n, 15)
        self.A(f"s_waitcnt lgkmcnt({n})")
        self.q = self.q[len(self.q)-n:] if n > 0 else []
    def drain(self):
        if self.q:
            self.A("s_waitcnt lgkmcnt(0)")
            self.q = []

class VmTracker:
    def __init__(self, A):
        self.A = A
        self.q = []
    def issue(self, text, tag=None):
        self.A(text)
        self.q.append(tag)
    def need(self, tags):
        last = -1
        for i, t in enumerate(self.q):
            if t in tags: last = i
        if last < 0: return
        n = len(self.q) - 1 - last
        assert n <= 63, n
        self.A(f"s_waitcnt vmcnt({n})")
        self.q = self.q[len(self.q)-n:] if n > 0 else []
    def drain(self):
        self.A("s_waitcnt vmcnt(0)")
        self.q = []
```

```python
import re

def regs_of(tok):
    tok = tok.strip()
    tok = re.sub(r'^-', '', tok)
    m = re.match(r'^(?:abs|neg)\((.*)\)$', tok)
    if m: tok = m.group(1)
    tok = tok.strip('|')
    m = re.match(r'^([vsa])(\d+)$', tok)
    if m: return {(m.group(1), int(m.group(2)))}
    m = re.match(r'^([vsa])\[(\d+):(\d+)\]$', tok)
    if m: return {(m.group(1), i) for i in range(int(m.group(2)), int(m.group(3))+1)}
    if tok in ('vcc',): return {('x','vcc')}
    if tok in ('vcc_lo','vcc_hi'): return {('x','vcc')}
    if tok in ('exec','exec_lo','exec_hi'): return {('x','exec')}
    if tok == 'm0': return {('x','m0')}
    return set()

TRANS = ('v_exp_f32','v_log_f32','v_rcp_f32','v_rsq_f32','v_sqrt_f32','v_sin_f32','v_cos_f32','v_rcp_iflag_f32')

class Ins:
    def __init__(self, text):
        self.text = text
        t = text.split(';')[0].strip()
        self.op = t.split()[0]
        rest = t[len(self.op):].strip()
        ops, cur, d = [], '', 0
        for ch in rest:
            if ch == '[': d += 1
            if ch == ']': d -= 1
            if ch == ',' and d == 0:
                ops.append(cur.strip()); cur = ''
            else: cur += ch
        if cur.strip(): ops.append(cur.strip())
        mods = ''
        if ops:
            parts = ops[-1].split()
            ops[-1] = parts[0]; mods = ' '.join(parts[1:])
        self.ops, self.mods = ops, mods
        op = re.sub(r'_e32$|_e64$|_dpp$|_sdwa$', '', self.op)
        self.base = op
        self.valu = op.startswith('v_') and not op.startswith('v_mfma')
        self.mfma = op.startswith('v_mfma')
        self.salu = op.startswith('s_')
        self.ds = op.startswith('ds_')
        self.vmem = op.startswith('buffer_') or op.startswith('global_')
        self.dpp = any(k in mods for k in ('row_', 'quad_perm', 'wave_', 'bank_mask')) and self.valu
        self.trans = op in TRANS
        W, R = set(), set()
        o = [regs_of(x) for x in ops]
        if self.mfma:
            W = o[0]; self.A, self.B, self.C = o[1], o[2], o[3]; R = o[1] | o[2] | o[3]
            self.passes = 4 if '16x16x32' in op else 8 if '32x32x16' in op else 16
        elif self.valu:
            if op.startswith('v_cmp'):
                W = set(o[0]); R = set().union(*o[1:])
                if op.startswith('v_cmpx'): W |= {('x','exec')}
            elif op.startswith('v_permlane') and 'swap' in op:
                W = o[0] | o[1]; R = o[0] | o[1]
            elif op in ('v_add_co_u32','v_sub_co_u32','v_addc_co_u32','v_subb_co_u32','v_div_scale_f32','v_mad_u64_u32'):
                W = o[0] | o[1]; R = set().union(*o[2:])
            elif op == 'v_nop':
                pass
            else:
                W = o[0]; R = set().union(*o[1:]) if len(o) > 1 else set()
                if op.startswith('v_fmac') or op.startswith('v_dot2c') or op == 'v_writelane_b32' or self.dpp or op.startswith('v_pk_fmac'):
                    R |= o[0]
                if op == 'v_cndmask_b32' and len(o) == 3: R |= {('x','vcc')}
                if op == 'v_div_fmas_f32': R |= {('x','vcc')}
        elif self.ds:
            if op.startswith('ds_read') or op.startswith('ds_bpermute') or op.startswith('ds_permute') or op.startswith('ds_swizzle') or '_rtn' in op:
                W = o[0]; R = set().union(*o[1:])
            else:
                R = set().union(*o)
        elif self.vmem:
            lds = ' lds' in (' ' + mods)
            isload = '_load' in op
            if isload and not lds:
                W = o[0]; R = set().union(*o[1:])
            else:
                R = set().union(*o)
                if 'atomic' in op and 'sc0' in mods: W = o[0] if op.startswith('buffer') else o[0]
            if lds: R |= {('x','m0')}
            self.lds = lds
            self.wide_store = ('store' in op) and (op.endswith('x3') or op.endswith('x4'))
            if self.wide_store:
                self.sdata = o[0] if op.startswith('buffer') else o[1]
        elif self.salu:
            if op in ('s_waitcnt','s_nop','s_barrier','s_endpgm','s_branch','s_setprio','s_sleep') or op.startswith('s_cbranch'):
                pass
            elif op.startswith('s_cmp') or op.startswith('s_bitcmp'):
                R = set().union(*o)
            else:
                W = o[0]; R = set().union(*o[1:]) if len(o) > 1 else set()
                if 'saveexec' in op: W = W | {('x','exec')}
        self.W, self.R = W, R
    def states(self):
        if self.base == 's_nop': return int(self.ops[0], 0) + 1
        return 1

def need(p, c):
    n = 0
    sw = {r for r in p.W if r[0] == 's' or r == ('x','vcc')}
    vw = {r for r in p.W if r[0] in 'va'}
    if p.valu:
        if c.mfma and (vw & c.R): n = max(n, 2)
        if c.vmem and (sw & c.R): n = max(n, 5)
        if c.valu and (sw & c.R):
            n = max(n, 4 if c.base in ('v_readlane_b32','v_writelane_b32','v_div_fmas_f32') else 2)
        if c.salu and (sw & c.R): n = max(n, 1)
        if c.valu and c.dpp and (vw & c.R): n = max(n, 2)
        if c.valu and c.base in ('v_readlane_b32','v_readfirstlane_b32') and (vw & c.R): n = max(n, 1)
        if c.valu and c.base.startswith('v_permlane') and (vw & c.R): n = max(n, 2)
        if p.trans and c.valu and (vw & c.R): n = max(n, 1)
        if ('op_sel' in p.mods or 'dst_sel' in p.mods) and not p.base.startswith('v_pk_') and c.valu and (vw & (c.R | c.W)): n = max(n, 1)
        if ('x','exec') in p.W:
            if c.mfma: n = max(n, 4)
            if c.valu and c.dpp: n = max(n, 5)
            if c.valu and (c.base.startswith('v_permlane') or c.base in ('v_readlane_b32','v_readfirstlane_b32','v_writelane_b32')): n = max(n, 4)
    if p.salu and ('x','m0') in p.W and ('x','m0') in c.R and (c.vmem or c.ds): n = max(n, 1)
    if p.salu and ('x','m0') in p.W and c.valu and ('x','m0') in c.R: n = max(n, 4)
    if p.salu and ('x','exec') in p.W and c.valu and (c.dpp or c.base.startswith('v_permlane')): n = max(n, 2)
    if p.salu and ('x','exec') in p.W and (c.mfma or (c.ds and '_tr_' in c.base)): n = max(n, 2)
    if p.mfma:
        P = p.passes
        if c.mfma:
            if p.W & (c.A | c.B): n = max(n, {4:8, 8:12, 16:20}[P])
            if p.W & c.C:
                if not (p.W == c.C and c.passes == P): n = max(n, {4:6, 8:10, 16:18}[P])
            elif p.W & c.W: n = max(n, {4:6, 8:10, 16:18}[P])
        elif (c.valu or c.vmem or c.ds) and (p.W & (c.R | c.W)):
            n = max(n, {4:8, 8:12, 16:20}[P])
        if c.valu and (p.C & c.W): n = max(n, {4:3, 8:7, 16:15}[P])
    if p.vmem and getattr(p, 'wide_store', False) and (p.sdata & c.W):
        n = max(n, 2 if c.valu else 1)
    return n

def fix(lines, verbose=False):
    out, hist, added = [], [], 0
    for l in lines:
        s = l.strip()
        if not s or s.startswith(';') or s.startswith('.') or s.endswith(':') or '\n' in l:
            out.append(l); continue
        ins = Ins(s)
        assert not (ins.base.startswith('v_pk_') and re.search(r'op_sel:\[[^\]]*1', s)), s
        req = 0
        dist = 0
        for p in reversed(hist):
            r = need(p, ins) - dist
            if r > req: req = r
            dist += p.states()
            if dist > 24: break
        while req > 0:
            k = min(req, 16)
            out.append(f"    s_nop {k-1}")
            hist.append(Ins(f"s_nop {k-1}")); req -= k; added += 1
        out.append(l); hist.append(ins)
        if ins.base in ('s_branch', 's_endpgm', 's_setpc_b64'): hist = []
        if len(hist) > 40: hist = hist[-40:]
    if verbose: print("hazard nops added:", added)
    return out
```

```python
import sys, os
sys.path.insert(0, os.path.dirname(os.path.abspath(__file__)))
from asmlib import *
import hazard

NAME = "parallel_sum__linear_attn_block__moe_arch_mod__prompt"

WS_O, WS_KVP, WS_ZP, WS_KVF = 0x000000, 0x400000, 0x800000, 0x820000
WS_STAT, WS_KEY, WS_CSP, WS_GUP, WS_YP = 0x830000, 0x834000, 0x840000, 0x880000, 0x900000
WS_DIAG = 0xA00000
WS_SIZE = 0xA20000
OOB = 0x40000000
L_A, L_KV, L_Q = 0, 49152, 98304
L_M, L_RI, L_RL = 131072, 131584, 132096
L_CS = 132608
L_FL = 133376
FL_WO, FL_GU, FL_Y, FL_YF, FL_KEY, FL_SEL = 0, 16, 32, 48, 52, 56
L_GUS = 133632
L_HT = 135680
L_YT = 135936
L_YF = 136960
L_DUMMY = 137216
L_TR = 138240
LDS_SIZE = 138240 + 4*4608
SPIN_MAX = 1 << 15
LOG2E = 0x3fb8aa3b

def order_tables():
    out = []
    for q in range(4):
        seq = [q]
        for g in range(4):
            others = [4*g + p for p in range(4) if p != q]
            oi = 0
            for sl in range(4):
                if sl == q and g < 3: seq.append(4*(g+1)+q)
                elif oi < 3: seq.append(others[oi]); oi += 1
        assert sorted(seq) == list(range(16))
        out.append(seq)
    return out
def pack4(seq):
    v = 0
    for i, c in enumerate(seq): v |= c << (4*i)
    return v

def srd(A, d, lo, size):
    A(f"s_mov_b32 s{d}, s{lo}\ns_mov_b32 s{d+1}, s{lo+1}\ns_mov_b32 s{d+2}, {hex(size)}\ns_mov_b32 s{d+3}, 0x20000")

def red_row(A, v, op="v_add_f32"):
    for r in (8, 4, 2, 1):
        A(f"{op}_dpp v{v}, v{v}, v{v} row_ror:{r} row_mask:0xf bank_mask:0xf")
def red_swap(A, v, t, which, op="v_add_f32"):
    A(f"v_mov_b32 v{t}, v{v}\nv_permlane{which}_swap_b32 v{v}, v{t}\n{op} v{v}, v{v}, v{t}")
def unpack(A, dlo, dhi, s):
    A(f"v_lshlrev_b32 v{dlo}, 16, v{s}\nv_and_b32 v{dhi}, 0xffff0000, v{s}")
def rnd_bf16(A, v):
    A(f"v_cvt_pk_bf16_f32 v{v}, v{v}, v{v}\nv_lshlrev_b32 v{v}, 16, v{v}")

class Gen:
    def __init__(self, diag=False, **kw):
        self.A = Asm()
        self.diag = diag
        self.nlab = 0
        self.opt = kw
    def lab(self, p):
        self.nlab += 1
        return f"L_{p}{self.nlab}"
    def stamp(self, slot):
        if not self.diag: return
        self.A(f"s_memrealtime s[98:99]\ns_waitcnt lgkmcnt(0)\nv_writelane_b32 v255, s98, {slot}")
    def stamp_out(self):
        if not self.diag: return
        A = self.A
        A(f"""
        s_lshl_b32 s56, s2, 3
        s_add_u32 s56, s56, s26
        s_lshl_b32 s56, s56, 6
        s_add_u32 s56, s56, {WS_DIAG}
        v_and_b32 v2, 63, v0
        v_lshlrev_b32 v3, 2, v2
        v_mov_b32 v4, {OOB}
        v_cmp_gt_u32 vcc, 16, v2
        v_cndmask_b32 v3, v4, v3, vcc
        buffer_store_dword v255, v3, s[16:19], s56 offen
        """)

    def spin_vm(self, issue, regs, tmp, cnt="s57"):
        A = self.A
        top, done = self.lab("sp"), self.lab("spd")
        A(f"s_mov_b32 {cnt}, 0")
        A.label(top)
        issue()
        A("s_waitcnt vmcnt(0)")
        r = list(regs)
        A(f"v_max_u32 v{tmp}, v{r[0]}, v{r[1]}" if len(r) > 1 else f"v_mov_b32 v{tmp}, v{r[0]}")
        k = 2
        while k < len(r):
            if k + 1 < len(r):
                A(f"v_max3_u32 v{tmp}, v{tmp}, v{r[k]}, v{r[k+1]}"); k += 2
            else:
                A(f"v_max_u32 v{tmp}, v{tmp}, v{r[k]}"); k += 1
        A(f"""
        v_cmp_eq_u32 vcc, -1, v{tmp}
        s_add_u32 {cnt}, {cnt}, 1
        s_nop 1
        s_cbranch_vccz {done}
        s_cmp_lt_u32 {cnt}, {SPIN_MAX}
        s_cbranch_scc1 {top}
        """)
        A.label(done)

    def spin_lds(self, addr_v, off, nflags, tmp, cnt="s57"):
        A = self.A
        top, done = self.lab("sl"), self.lab("sld")
        A(f"s_mov_b32 {cnt}, 0")
        A.label(top)
        if nflags == 4:
            A(f"""
            ds_read_b128 v[{tmp}:{tmp+3}], v{addr_v} offset:{off}
            s_waitcnt lgkmcnt(0)
            v_min_u32 v{tmp}, v{tmp}, v{tmp+1}
            v_min3_u32 v{tmp}, v{tmp}, v{tmp+2}, v{tmp+3}
            """)
        else:
            A(f"ds_read_b32 v{tmp}, v{addr_v} offset:{off}\ns_waitcnt lgkmcnt(0)")
        A(f"""
        v_cmp_eq_u32 vcc, 0, v{tmp}
        s_add_u32 {cnt}, {cnt}, 1
        s_nop 1
        s_cbranch_vccz {done}
        s_sleep 1
        s_cmp_lt_u32 {cnt}, {SPIN_MAX*8}
        s_cbranch_scc1 {top}
        """)
        A.label(done)

    def prologue(self):
        A = self.A
        A(f"""
        s_cmp_ge_u32 s2, 256
        s_cbranch_scc1 L_end
        s_load_dwordx4 s[4:7], s[0:1], 0
        s_load_dwordx2 s[56:57], s[0:1], 16
        s_load_dwordx8 s[60:67], s[0:1], 32
        s_load_dwordx4 s[68:71], s[0:1], 64
        s_load_dwordx2 s[72:73], s[0:1], 80
        v_lshrrev_b32 v2, 6, v0
        v_and_b32 v1, 63, v0
        s_and_b32 s20, s2, 7
        v_readfirstlane_b32 s26, v2
        s_lshr_b32 s21, s2, 3
        s_and_b32 s24, s21, 7
        s_lshr_b32 s25, s21, 3
        s_and_b32 s30, s20, 1
        s_lshl_b32 s22, s30, 3
        s_add_u32 s22, s22, s24
        s_lshr_b32 s31, s20, 1
        s_lshl_b32 s23, s31, 2
        s_add_u32 s23, s23, s25
        s_and_b32 s27, s26, 3
        s_lshl_b32 s28, s30, 3
        s_and_b32 s58, s31, 1
        s_lshl_b32 s58, s58, 2
        s_add_u32 s28, s28, s58
        s_and_b32 s58, s21, 3
        s_add_u32 s28, s28, s58
        s_lshr_b32 s29, s20, 2
        s_lshl_b32 s29, s29, 3
        s_lshr_b32 s58, s21, 2
        s_add_u32 s29, s29, s58
        s_cmp_ge_u32 s26, 4
        s_waitcnt lgkmcnt(0)
        """)
        srd(A, 8, 4, 0x400000)
        srd(A, 12, 6, 0x600000)
        srd(A, 16, 72, WS_SIZE)
        A("s_cbranch_scc1 L_compute")

    def loader(self):
        A = self.A
        V = VmTracker(A)
        self.stamp(0)
        tabs = [pack4(o) for o in order_tables()]
        VAo, VKVo, VQo, VL16 = 10, 11, 12, 13
        A(f"""
        ; ---- DMA lane offsets ----
        v_lshrrev_b32 v2, 3, v1
        v_lshrrev_b32 v3, 4, v1
        s_and_b32 s58, s27, 1
        s_lshl_b32 s59, s58, 2
        v_add_u32 v3, s59, v3
        v_and_b32 v4, 7, v1
        v_xor_b32 v3, v3, v4
        v_lshlrev_b32 v2, 11, v2
        v_lshl_add_u32 v{VAo}, v3, 4, v2
        v_and_b32 v5, 3, v1
        v_lshlrev_b32 v5, 4, v5
        v_bfe_u32 v6, v1, 4, 1
        v_lshl_add_u32 v5, v6, 6, v5
        v_bfe_u32 v6, v1, 2, 2
        v_lshrrev_b32 v7, 5, v1
        v_mul_u32_u24 v8, 6144, v6
        v_add_u32 v8, v8, v5
        v_lshl_add_u32 v{VKVo}, v7, 11, v8
        v_mul_u32_u24 v7, {4*6144}, v7
        v_add_u32 v{VQo}, v7, v8
        s_lshr_b32 s59, s27, 1
        s_lshl_b32 s59, s59, 5
        v_xor_b32 v{VKVo}, s59, v{VKVo}
        s_lshl_b32 s59, s58, 5
        v_xor_b32 v{VQo}, s59, v{VQo}
        s_sub_u32 s74, s24, s25
        s_and_b32 s74, s74, 3
        s_mov_b32 s76, {tabs[0] & 0xffffffff}
        s_mov_b32 s77, {tabs[0] >> 32}
        """)
        for q in range(1, 4):
            A(f"""
            s_cmp_eq_u32 s74, {q}
            s_cselect_b32 s76, {tabs[q] & 0xffffffff}, s76
            s_cselect_b32 s77, {tabs[q] >> 32}, s77
            """)
        A(f"""
        s_lshl_b32 s75, s30, 1
        s_add_u32 s75, s75, s31
        s_lshl_b32 s75, s75, 2
        s_lshl_b32 s58, s23, 7
        s_mul_i32 s78, s27, {4*6144}
        s_add_u32 s78, s78, s58
        s_add_u32 s78, s78, 2048
        s_mul_i32 s79, s27, {8*6144}
        s_add_u32 s79, s79, s58
        s_lshl_b32 s80, s27, 10
        s_lshl_b32 s81, s22, 7
        s_lshl_b32 s58, s27, 3
        s_add_u32 s81, s81, s58
        s_lshl_b32 s81, s81, 11
        """)
        def issue_stage(s):
            slot = s % 3
            A(f"""
            s_and_b32 s58, s76, 15
            s_lshr_b64 s[76:77], s[76:77], 4
            s_add_u32 s58, s58, s75
            s_and_b32 s58, s58, 15
            s_lshl_b32 s82, s58, 7
            s_add_u32 s82, s82, s81
            s_mul_i32 s59, s58, {64*6144}
            s_add_u32 s83, s59, s78
            s_add_u32 s84, s59, s79
            """)
            for p in range(4):
                A(f"s_add_u32 m0, s80, {L_A + slot*16384 + p*4096}")
                V.issue(f"buffer_load_dwordx4 v{VAo}, s[8:11], s82 offen lds", ("st", s))
                A(f"s_add_u32 s82, s82, {32*2048}\ns_add_u32 m0, s80, {L_KV + slot*16384 + p*4096}")
                V.issue(f"buffer_load_dwordx4 v{VKVo}, s[12:15], s83 offen lds", ("st", s))
                A(f"s_add_u32 s83, s83, {16*6144}")
                if p < 2:
                    A(f"s_add_u32 m0, s80, {L_Q + slot*8192 + p*4096}")
                    V.issue(f"buffer_load_dwordx4 v{VQo}, s[12:15], s84 offen lds", ("st", s))
                    A(f"s_add_u32 s84, s84, {32*6144}")
        issue_stage(0)
        issue_stage(1)
        srd(A, 32, 56, 0x200000)
        srd(A, 52, 60, 2048)
        srd(A, 36, 62, 0x700000)
        srd(A, 40, 64, 0x700000)
        srd(A, 44, 66, 0x700000)
        srd(A, 48, 70, 256)
        X, WR, F, T = 16, 32, 48, 80
        A(f"""
        v_lshlrev_b32 v{VL16}, 4, v1
        v_and_b32 v2, 31, v1
        v_lshlrev_b32 v2, 4, v2
        v_lshrrev_b32 v3, 5, v1
        v_lshl_add_u32 v4, v3, 11, v2
        s_lshl_b32 s85, s22, 7
        s_lshl_b32 s58, s23, 3
        s_add_u32 s85, s85, s58
        s_lshl_b32 s58, s27, 1
        s_add_u32 s85, s85, s58
        s_lshl_b32 s58, s85, 11
        """)
        for t in range(4):
            V.issue(f"buffer_load_dwordx4 {vr(X+4*t,4)}, v4, s[8:11], s58 offen offset:{512*t}", "sx")
        for t in range(4):
            V.issue(f"buffer_load_dwordx4 {vr(WR+4*t,4)}, v2, s[52:55], 0 offen offset:{512*t}", "sx")
        PO = 96
        CF, CA, ONES, VC = 100, 124, 136, 140
        A(f"""
        v_mov_b32 v{PO}, -1
        v_mov_b32 v{PO+1}, -1
        v_mov_b32 v{PO+2}, -1
        v_mov_b32 v{PO+3}, -1
        v_mov_b32 v{ONES}, 0x3f803f80
        v_mov_b32 v{ONES+1}, 0x3f803f80
        v_mov_b32 v{ONES+2}, 0x3f803f80
        v_mov_b32 v{ONES+3}, 0x3f803f80
        v_bfe_u32 v2, v1, 2, 2
        v_lshlrev_b32 v2, 6, v2
        v_and_b32 v3, 3, v1
        v_lshl_add_u32 v2, v3, 3, v2
        v_lshrrev_b32 v3, 4, v1
        v_and_b32 v4, 1, v3
        v_lshl_add_u32 v2, v4, 5, v2
        s_lshl_b32 s58, s27, 8
        s_add_u32 s58, s58, {L_KV}
        v_lshl_add_u32 v{VC}, v3, 11, v2
        v_add_u32 v{VC}, s58, v{VC}
        v_xor_b32 v{VC+1}, 32, v{VC}
        s_lshr_b32 s58, s27, 1
        s_lshl_b32 s58, s58, 8
        s_add_u32 s58, s58, {L_Q}
        s_and_b32 s59, s27, 1
        s_lshl_b32 s59, s59, 5
        v_lshl_add_u32 v{VC+2}, v3, 10, v2
        v_xor_b32 v{VC+2}, s59, v{VC+2}
        v_add_u32 v{VC+2}, s58, v{VC+2}
        s_add_u32 s86, s74, 1
        s_cmp_lt_u32 s24, 4
        s_cselect_b32 s86, 0, s86
        v_mov_b32 v15, {OOB}
        v_cmp_gt_u32 vcc, 8, v1
        v_cndmask_b32 v14, v15, v{VL16}, vcc
        s_lshr_b32 s88, s2, 2
        s_and_b32 s89, s2, 3
        s_cmp_lt_u32 s2, 224
        s_cselect_b32 s87, 0, {OOB}
        """)
        V.need({("st", 0)})
        A("s_barrier")
        self.stamp(1)

        def csum(s):
            skip = self.lab("cs")
            A(f"s_cmp_eq_u32 s86, {s}\ns_cbranch_scc0 {skip}")
            slot = s % 3
            for f in range(3):
                for ks in range(2):
                    for rd in range(2):
                        g = 8*ks + rd
                        off = slot*16384 + g*1024 if f < 2 else slot*8192 + g*512
                        A(f"ds_read_b64_tr_b16 {vr(CF+f*8+ks*4+2*rd,2)}, v{VC+f} offset:{off}")
            A("s_waitcnt lgkmcnt(0)")
            for f in range(3):
                A(f"v_mfma_f32_16x16x32_bf16 {vr(CA+4*f,4)}, {vr(ONES,4)}, {vr(CF+f*8,4)}, 0")
                A(f"v_mfma_f32_16x16x32_bf16 {vr(CA+4*f,4)}, {vr(ONES,4)}, {vr(CF+f*8+4,4)}, {vr(CA+4*f,4)}")
            A.label(skip)

        def poison(part):
            if part == 0:
                A(f"""
                s_lshl_b32 s58, s22, 3
                s_lshl_b32 s59, s27, 1
                s_add_u32 s58, s58, s59
                s_lshl_b32 s58, s58, 5
                s_lshl_b32 s59, s23, 1
                s_add_u32 s58, s58, s59
                s_lshl_b32 s58, s58, 10
                s_add_u32 s59, s58, 32768
                """)
                for sg in ("s58", "s59"):
                    for h in range(2):
                        V.issue(f"buffer_store_dwordx4 {vr(PO,4)}, v{VL16}, s[16:19], {sg} offen offset:{1024*h} sc1", "pub")
            elif part == 1:
                A(f"""
                s_lshl_b32 s58, s23, 1
                s_and_b32 s59, s27, 1
                s_add_u32 s58, s58, s59
                s_lshl_b32 s58, s58, 5
                s_lshl_b32 s59, s22, 1
                s_add_u32 s58, s58, s59
                s_lshr_b32 s59, s27, 1
                s_add_u32 s58, s58, s59
                s_lshl_b32 s90, s58, 7
                s_add_u32 s90, s90, {WS_ZP}
                s_lshl_b32 s58, s58, 12
                s_add_u32 s58, s58, {WS_KVP}
                """)
                for k in range(4):
                    V.issue(f"buffer_store_dwordx4 {vr(PO,4)}, v{VL16}, s[16:19], s58 offen offset:{1024*k} sc1", "pub")
            else:
                V.issue(f"buffer_store_dwordx4 {vr(PO,4)}, v14, s[16:19], s90 offen sc1", "pub")
                A(f"""
                s_lshr_b32 s58, s22, 2
                s_lshl_b32 s59, s23, 2
                s_add_u32 s58, s58, s59
                s_lshl_b32 s58, s58, 10
                s_and_b32 s59, s22, 1
                s_lshl_b32 s59, s59, 9
                s_add_u32 s58, s58, s59
                s_lshl_b32 s59, s27, 7
                s_add_u32 s58, s58, s59
                s_bfe_u32 s59, s22, 0x10001
                s_lshl_b32 s59, s59, 3
                s_add_u32 s58, s58, s59
                s_add_u32 s58, s58, {WS_KVF}
                """)
                V.issue(f"buffer_store_dwordx2 {vr(PO,2)}, v14, s[16:19], s58 offen sc1", "pub")
                A(f"""
                s_lshl_b32 s58, s2, 9
                s_lshl_b32 s59, s27, 7
                s_add_u32 s58, s58, s59
                s_add_u32 s58, s58, {WS_GUP}
                s_add_u32 s58, s58, s87
                s_lshl_b32 s59, s2, 12
                s_add_u32 s59, s59, s80
                s_add_u32 s59, s59, {WS_YP}
                s_add_u32 s59, s59, s87
                """)
                V.issue(f"buffer_store_dwordx4 {vr(PO,4)}, v14, s[16:19], s58 offen sc1", "pub")
                V.issue(f"buffer_store_dwordx4 {vr(PO,4)}, v{VL16}, s[16:19], s59 offen sc1", "pub")

        MEAN, MB, RINV, RACC = 92, 94, 95, 90
        def statsA():
            V.need({"sx"})
            for k in range(16): unpack(A, F+2*k, F+2*k+1, X+k)
            A(f"v_pk_add_f32 {vr(T,2)}, {vr(F,2)}, {vr(F+2,2)}\nv_pk_add_f32 {vr(T+2,2)}, {vr(F+4,2)}, {vr(F+6,2)}")
            for k in range(4, 16):
                a = T + 2*(k & 1)
                A(f"v_pk_add_f32 {vr(a,2)}, {vr(a,2)}, {vr(F+2*k,2)}")
            A(f"v_pk_add_f32 {vr(T,2)}, {vr(T,2)}, {vr(T+2,2)}\nv_add_f32 v{MEAN}, v{T}, v{T+1}")
            red_row(A, MEAN); red_swap(A, MEAN, T, 16)
            A(f"v_mul_f32 v{MEAN}, 0x3a800000, v{MEAN}\nv_mov_b32 v{MB}, v{MEAN}")
            rnd_bf16(A, MB)
        def statsB():
            for k in range(16):
                d = T + 4 + 2*(k & 1); a = T + 2*(k & 1)
                A(f"v_pk_add_f32 {vr(d,2)}, {vr(F+2*k,2)}, {vr(MEAN,2)} op_sel_hi:[1,0] neg_lo:[0,1] neg_hi:[0,1]")
                if k < 2: A(f"v_pk_mul_f32 {vr(a,2)}, {vr(d,2)}, {vr(d,2)}")
                else: A(f"v_pk_fma_f32 {vr(a,2)}, {vr(d,2)}, {vr(d,2)}, {vr(a,2)}")
            A(f"v_pk_add_f32 {vr(T,2)}, {vr(T,2)}, {vr(T+2,2)}\nv_add_f32 v{RINV}, v{T}, v{T+1}")
            red_row(A, RINV); red_swap(A, RINV, T, 16)
            A(f"v_mul_f32 v{RINV}, 0x3a800000, v{RINV}")
            rnd_bf16(A, RINV)
            A(f"v_add_f32 v{RINV}, 0x3727c5ac, v{RINV}")
            rnd_bf16(A, RINV)
            A(f"v_sqrt_f32 v{RINV}, v{RINV}")
            rnd_bf16(A, RINV)
            A(f"v_rcp_f32 v{RINV}, v{RINV}\nv_mov_b32 v{RACC}, 0")
        def statsC(k0, k1):
            for k in range(k0, k1):
                d = T + 2*(k & 3)
                A(f"""
                v_pk_add_f32 {vr(d,2)}, {vr(F+2*k,2)}, {vr(MB,2)} op_sel_hi:[1,0] neg_lo:[0,1] neg_hi:[0,1]
                v_cvt_pk_bf16_f32 v{d+1}, v{d}, v{d+1}
                v_lshlrev_b32 v{d}, 16, v{d+1}
                v_and_b32 v{d+1}, 0xffff0000, v{d+1}
                v_pk_mul_f32 {vr(d,2)}, {vr(d,2)}, {vr(MB,2)} op_sel:[0,1] op_sel_hi:[1,1]
                v_cvt_pk_bf16_f32 v{d}, v{d}, v{d+1}
                v_dot2_f32_bf16 v{RACC}, v{d}, v{WR+k}, v{RACC}
                """)
        def statsD():
            A("s_nop 2")
            red_row(A, RACC); red_swap(A, RACC, T, 16)
            rnd_bf16(A, RACC)
            A(f"""
            v_ashrrev_i32 v{T}, 31, v{RACC}
            v_or_b32 v{T}, 0x80000000, v{T}
            v_xor_b32 v{T}, v{T}, v{RACC}
            v_and_b32 v{T}, 0xffff0000, v{T}
            v_lshrrev_b32 v2, 5, v1
            v_add_u32 v2, s85, v2
            v_sub_u32 v3, 0x7ff, v2
            v_or_b32 v{T}, v{T}, v3
            v_mov_b32 v3, {L_FL + FL_KEY}
            ds_max_u32 v3, v{T}
            v_lshlrev_b32 v2, 3, v2
            v_and_b32 v3, 31, v1
            v_cmp_eq_u32 vcc, 0, v3
            v_cndmask_b32 v2, v15, v2, vcc
            s_mov_b32 s58, {WS_STAT}
            """)
            V.issue(f"buffer_store_dwordx2 {vr(MB,2)}, v2, s[16:19], s58 offen sc1", "pub")
            A("s_waitcnt lgkmcnt(0)")
        def pub_cs_key():
            A(f"""
            v_mov_b32 v3, {L_FL + FL_KEY}
            ds_read_b32 v{T}, v3
            v_lshrrev_b32 v2, 4, v1
            v_cmp_eq_u32 vcc, 1, v2
            v_cndmask_b32 v{CA}, v{CA}, v{CA+4}, vcc
            v_cmp_eq_u32 vcc, 2, v2
            v_cndmask_b32 v{CA}, v{CA}, v{CA+8}, vcc
            s_lshl_b32 s58, s27, 7
            v_lshlrev_b32 v3, 2, v1
            v_add_u32 v3, s58, v3
            s_lshl_b32 s58, s27, 6
            s_add_u32 s58, s58, {512 - 128}
            v_lshlrev_b32 v4, 2, v1
            v_add_u32 v4, s58, v4
            v_cndmask_b32 v3, v3, v4, vcc
            v_cmp_eq_u32 vcc, 3, v2
            v_cndmask_b32 v3, v3, v15, vcc
            s_lshl_b32 s58, s23, 4
            s_add_u32 s58, s58, s22
            s_lshl_b32 s58, s58, 10
            s_add_u32 s58, s58, {WS_CSP}
            """)
            V.issue(f"buffer_store_dword v{CA}, v3, s[16:19], s58 offen sc1", "pub")
            A(f"""
            v_cmp_eq_u32 vcc, 0, v0
            v_mov_b32 v4, 0
            v_cndmask_b32 v5, v15, v4, vcc
            s_lshl_b32 s58, s2, 2
            s_add_u32 s58, s58, {WS_KEY}
            s_waitcnt lgkmcnt(0)
            """)
            V.issue(f"buffer_store_dword v{T}, v5, s[16:19], s58 offen sc1", "pub")
        def flag_s1():
            A(f"v_mov_b32 v4, 1")
            V.issue(f"buffer_store_byte v4, v5, s[48:51], s2 offen sc1", "flag")
        S1R, KEYS = 144, 160
        def poll_s1_issue():
            A(f"v_lshlrev_b32 v6, 2, v1")
            V.issue(f"buffer_load_dword v7, v6, s[48:51], 0 offen sc1", "poll")
        def poll_s1_check():
            V.need({"poll"})
            ok, top = self.lab("s1ok"), self.lab("s1sp")
            A(f"""
            s_mov_b32 s57, 0
            {top}:
            v_cmp_ne_u32 vcc, 0x01010101, v7
            s_add_u32 s57, s57, 1
            s_nop 1
            s_cbranch_vccz {ok}
            s_cmp_ge_u32 s57, {SPIN_MAX}
            s_cbranch_scc1 {ok}
            buffer_load_dword v7, v6, s[48:51], 0 offen sc1
            s_waitcnt vmcnt(0)
            s_branch {top}
            {ok}:
            """)
        def s1_loads():
            A(f"""
            v_and_b32 v2, 15, v1
            v_lshlrev_b32 v2, 4, v2
            v_lshrrev_b32 v3, 4, v1
            v_lshl_add_u32 v2, v3, 10, v2
            s_lshl_b32 s58, s23, 14
            s_lshl_b32 s59, s27, 8
            s_add_u32 s58, s58, s59
            s_add_u32 s58, s58, {WS_CSP}
            s_lshl_b32 s59, s22, 10
            s_add_u32 s59, s59, {WS_STAT}
            s_cmp_eq_u32 s27, 3
            s_cselect_b32 s58, s59, s58
            s_movk_i32 s59, 4096
            s_cselect_b32 s59, {OOB}, s59
            s_cselect_b64 vcc, -1, 0
            v_cndmask_b32 v2, v2, v{VL16}, vcc
            """)
            for t in range(4):
                V.issue(f"buffer_load_dwordx4 {vr(S1R+4*t,4)}, v2, s[16:19], s58 offen sc1", "s1")
                if t < 3: A("s_add_u32 s58, s58, s59")
            A(f"s_mov_b32 s58, {WS_KEY}")
            V.issue(f"buffer_load_dwordx4 {vr(KEYS,4)}, v{VL16}, s[16:19], s58 offen sc1", "s1")
        XSV, XST = 144, 146
        def s1_process():
            V.need({"s1"})
            w3, j = self.lab("w3"), self.lab("w3j")
            A(f"s_cmp_eq_u32 s27, 3\ns_cbranch_scc1 {w3}")
            for h in (0, 2):
                A(f"""
                v_pk_add_f32 {vr(S1R+h,2)}, {vr(S1R+h,2)}, {vr(S1R+4+h,2)}
                v_pk_add_f32 {vr(S1R+8+h,2)}, {vr(S1R+8+h,2)}, {vr(S1R+12+h,2)}
                v_pk_add_f32 {vr(S1R+h,2)}, {vr(S1R+h,2)}, {vr(S1R+8+h,2)}
                """)
            for k in range(4):
                red_swap(A, S1R+k, S1R+4+k, 16); red_swap(A, S1R+k, S1R+4+k, 32)
            A(f"""
            s_lshl_b32 s58, s27, 8
            s_add_u32 s58, s58, {L_CS}
            v_and_b32 v2, 15, v1
            v_lshlrev_b32 v2, 4, v2
            v_add_u32 v2, s58, v2
            ds_write_b128 v2, {vr(S1R,4)}
            s_branch {j}
            {w3}:
            v_mov_b32 v{S1R+4}, v{S1R}
            v_mov_b32 v{S1R+5}, v{S1R+2}
            v_mov_b32 v{S1R+6}, v{S1R+1}
            v_mov_b32 v{S1R+7}, v{S1R+3}
            v_mul_f32 v{S1R+8}, {hex(LOG2E)}, v{S1R+1}
            v_mul_f32 v{S1R+9}, {hex(LOG2E)}, v{S1R+3}
            v_lshlrev_b32 v2, 3, v1
            v_add_u32 v2, {L_M}, v2
            ds_write_b64 v2, {vr(S1R+4,2)}
            ds_write_b64 v2, {vr(S1R+6,2)} offset:{L_RI-L_M}
            ds_write_b64 v2, {vr(S1R+8,2)} offset:{L_RL-L_M}
            {j}:
            v_max_u32 v{KEYS}, v{KEYS}, v{KEYS+1}
            v_max3_u32 v{KEYS}, v{KEYS}, v{KEYS+2}, v{KEYS+3}
            """)
            red_row(A, KEYS, "v_max_u32"); red_swap(A, KEYS, KEYS+1, 16, "v_max_u32"); red_swap(A, KEYS, KEYS+1, 32, "v_max_u32")
            A(f"""
            v_readfirstlane_b32 s91, v{KEYS}
            s_and_b32 s92, s91, 0x7ff
            s_sub_u32 s92, 0x7ff, s92
            v_mov_b32 v2, {L_FL + FL_SEL}
            v_mov_b32 v3, s92
            ds_write_b32 v2, v3
            s_lshl_b32 s58, s92, 11
            s_lshl_b32 s59, s89, 9
            s_add_u32 s58, s58, s59
            s_lshl_b32 s59, s27, 7
            s_add_u32 s58, s58, s59
            v_lshlrev_b32 v2, 1, v1
            s_lshl_b32 s59, s92, 3
            s_add_u32 s59, s59, {WS_STAT}
            v_mov_b32 v3, 0
            s_waitcnt lgkmcnt(0)
            """)
            V.issue(f"buffer_load_ushort v{XSV}, v2, s[8:11], s58 offen", "xs")
            V.issue(f"buffer_load_dwordx2 {vr(XST,2)}, v3, s[16:19], s59 offen sc1", "xs")
        MSK = 228
        def xs_process():
            V.need({"xs"})
            A(f"""
            v_lshlrev_b32 v{XSV}, 16, v{XSV}
            v_sub_f32 v{XSV}, v{XSV}, v{XST}
            """)
            rnd_bf16(A, XSV)
            A(f"""
            v_mul_f32 v{XSV}, v{XSV}, v{XST+1}
            v_cvt_pk_bf16_f32 v{XSV}, v{XSV}, v{XSV}
            v_and_b32 v2, 1, v1
            v_mov_b32 v3, 0xffff
            v_mov_b32 v4, 0xffff0000
            v_cmp_eq_u32 vcc, 1, v2
            v_cndmask_b32 v3, v3, v4, vcc
            v_bfe_u32 v2, v1, 1, 2
            """)
            for r in range(4):
                A(f"v_cmp_eq_u32 vcc, {r}, v2\nv_cndmask_b32 v{MSK+r}, 0, v3, vcc")
        VWO = 9
        def wo_setup():
            A(f"""
            v_lshrrev_b32 v2, 5, v1
            v_bfe_u32 v3, v1, 2, 2
            v_lshl_add_u32 v3, v2, 2, v3
            v_lshlrev_b32 v3, 11, v3
            v_bfe_u32 v4, v1, 4, 1
            v_lshl_add_u32 v3, v4, 6, v3
            v_and_b32 v4, 3, v1
            v_lshlrev_b32 v2, 1, v2
            v_xor_b32 v4, v4, v2
            v_lshl_add_u32 v{VWO}, v4, 4, v3
            s_lshl_b32 s93, s27, 14
            s_lshl_b32 s58, s29, 7
            s_add_u32 s93, s93, s58
            s_and_b32 s94, s29, 7
            s_lshl_b32 s94, s94, 2
            """)
        def wo_issue(ts):
            for t in ts:
                A(f"""
                s_add_u32 s58, s94, {t}
                s_and_b32 s58, s58, 31
                s_lshl_b32 s58, s58, 16
                s_add_u32 s58, s58, s93
                s_add_u32 m0, s80, {t*4096}
                """)
                V.issue(f"buffer_load_dwordx4 v{VWO}, s[32:35], s58 offen lds", "wo")

        extra = {
            0: [lambda: poison(0), lambda: csum(0)],
            1: [lambda: poison(1), lambda: csum(1), statsA],
            2: [lambda: poison(2), lambda: csum(2), statsB],
            3: [lambda: csum(3), lambda: statsC(0, 8)],
            4: [lambda: csum(4), lambda: statsC(8, 16), statsD],
            5: [pub_cs_key],
            7: [flag_s1],
            9: [poll_s1_check],
            10: [s1_loads],
            11: [s1_process],
            12: [xs_process, wo_setup],
            14: [lambda: wo_issue([30, 31, 4, 5, 6, 7, 16, 17, 18, 19, 26, 27])],
            15: [lambda: wo_issue([8, 9, 10, 11, 20, 21, 22, 23, 28, 29])],
        }
        for s in range(16):
            if s == 9: poll_s1_issue()
            if s + 2 < 16: issue_stage(s + 2)
            for f in extra.get(s, []): f()
            tags = {("st", s+1)}
            if s == 6: tags.add("pub")
            V.need(tags)
            A("s_barrier")
        self.stamp(2)
        wo_issue([0, 1, 2, 3, 12, 13, 14, 15, 24, 25])
        GW, DW = 164, 16
        A(f"""
        v_lshrrev_b32 v2, 3, v1
        v_and_b32 v3, 7, v1
        v_lshlrev_b32 v3, 4, v3
        v_mul_u32_u24 v4, 7168, v2
        v_add_u32 v4, v4, v3
        v_lshl_add_u32 v5, v2, 11, v3
        s_lshl_b32 s58, s89, 8
        s_lshl_b32 s59, s27, 6
        s_add_u32 s58, s58, s59
        s_mul_i32 s58, s58, 7168
        s_lshl_b32 s59, s88, 7
        s_add_u32 s58, s58, s59
        s_add_u32 s58, s58, s87
        """)
        for t in range(8):
            V.issue(f"buffer_load_dwordx4 {vr(GW+8*t,4)}, v4, s[36:39], s58 offen nt", ("gu", t))
            V.issue(f"buffer_load_dwordx4 {vr(GW+8*t+4,4)}, v4, s[40:43], s58 offen nt", ("gu", t))
            if t < 7: A(f"s_add_u32 s58, s58, {8*7168}")
        A(f"""
        s_lshl_b32 s58, s88, 6
        s_lshl_b32 s59, s89, 4
        s_add_u32 s58, s58, s59
        s_lshl_b32 s58, s58, 11
        s_lshl_b32 s59, s27, 9
        s_add_u32 s58, s58, s59
        s_add_u32 s58, s58, s87
        s_add_u32 s59, s58, {8*2048}
        """)
        for gq in range(4):
            V.issue(f"buffer_load_dwordx4 {vr(DW+8*gq,4)}, v5, s[44:47], s58 offen offset:{128*gq} nt", "dw")
            V.issue(f"buffer_load_dwordx4 {vr(DW+8*gq+4,4)}, v5, s[44:47], s59 offen offset:{128*gq} nt", "dw")
        AP, DT = 232, 236
        A(f"""
        v_lshrrev_b32 v2, 4, v1
        v_bfe_u32 v3, v1, 3, 1
        v_lshl_add_u32 v8, v2, 1, v3
        v_lshlrev_b32 v8, 2, v8
        v_mov_b32 v6, {L_FL}
        s_lshl_b32 s58, s27, 2
        v_add_u32 v7, s58, v6
        v_mov_b32 v48, 1
        """)
        for t in range(8):
            A(f"ds_bpermute_b32 v{50+t}, v8, v{XSV} offset:{32*t}")
        V.need({"wo"})
        A(f"ds_write_b32 v7, v48 offset:{FL_WO}")
        self.stamp(3)
        A(f"s_cmp_lg_u32 s87, 0\ns_cbranch_scc1 L_moe_done\ns_waitcnt lgkmcnt(0)")
        for t in range(8):
            for r in range(4): A(f"v_and_b32 v{AP+r}, v{50+t}, v{MSK+r}")
            V.need({("gu", t)})
            for m in range(2):
                c = "0" if t == 0 else vr(DT+4*m, 4)
                A(f"v_mfma_f32_16x16x32_bf16 {vr(DT+4*m,4)}, {vr(AP,4)}, {vr(GW+8*t+4*m,4)}, {c}")
            A("s_nop 3")
        def fold(base, n, tmp):
            for k in range(n):
                A(f"v_mov_b32_dpp v{base+k}, v{base+k} row_ror:8 row_mask:0xc bank_mask:0xf")
            for k in range(n):
                red_swap(A, base+k, tmp, 32)
        fold(DT, 8, 60)
        A(f"""
        v_and_b32 v2, 15, v1
        v_lshrrev_b32 v3, 4, v1
        v_lshlrev_b32 v61, 5, v2
        v_lshl_add_u32 v61, v3, 4, v61
        v_and_b32 v4, 0x28, v1
        v_cmp_eq_u32 s[96:97], 0, v4
        s_lshl_b32 s58, s27, 9
        s_add_u32 s58, s58, {L_GUS}
        v_add_u32 v2, s58, v61
        v_mov_b32 v3, {L_DUMMY}
        v_cndmask_b32 v2, v3, v2, s[96:97]
        ds_write_b128 v2, {vr(DT,4)}
        ds_write_b128 v2, {vr(DT+4,4)} offset:256
        s_waitcnt lgkmcnt(0)
        ds_write_b32 v7, v48 offset:{FL_GU}
        s_cmp_lg_u32 s27, 0
        s_cbranch_scc1 L_gu_pub_done
        """)
        self.spin_lds(6, FL_GU, 4, 64)
        A(f"v_and_b32 v2, 31, v1\nv_lshlrev_b32 v2, 4, v2\nv_add_u32 v3, {L_GUS}, v2")
        for w in range(4): A(f"ds_read_b128 {vr(64+4*w,4)}, v3 offset:{512*w}")
        A("s_waitcnt lgkmcnt(0)")
        for h in (0, 2):
            A(f"""
            v_pk_add_f32 {vr(64+h,2)}, {vr(64+h,2)}, {vr(68+h,2)}
            v_pk_add_f32 {vr(72+h,2)}, {vr(72+h,2)}, {vr(76+h,2)}
            v_pk_add_f32 {vr(64+h,2)}, {vr(64+h,2)}, {vr(72+h,2)}
            """)
        A(f"""
        v_cmp_gt_u32 vcc, 32, v1
        v_cndmask_b32 v2, v15, v2, vcc
        s_lshl_b32 s58, s2, 9
        s_add_u32 s58, s58, {WS_GUP}
        buffer_store_dwordx4 {vr(64,4)}, v2, s[16:19], s58 offen sc1
        L_gu_pub_done:
        v_lshrrev_b32 v2, 3, v1
        v_lshlrev_b32 v2, 9, v2
        v_bfe_u32 v3, v1, 2, 1
        v_lshl_add_u32 v2, v3, 8, v2
        v_and_b32 v3, 3, v1
        v_lshl_add_u32 v2, v3, 4, v2
        v_cmp_gt_u32 vcc, 32, v1
        v_cndmask_b32 v2, v15, v2, vcc
        s_lshl_b32 s58, s88, 11
        s_lshl_b32 s59, s89, 6
        s_add_u32 s58, s58, s59
        s_add_u32 s58, s58, {WS_GUP}
        """)
        self.stamp(4)
        self.spin_vm(lambda: A(f"buffer_load_dwordx4 {vr(64,4)}, v2, s[16:19], s58 offen sc1"), range(64, 68), 68)
        V.q = []
        self.stamp(5)
        for k in range(4): A(f"v_add_f32_dpp v{64+k}, v{64+k}, v{64+k} row_ror:8 row_mask:0xf bank_mask:0xf")
        for k in range(4): red_swap(A, 64+k, 68, 16)
        for k in range(4): rnd_bf16(A, 64+k)
        for k in range(4): A(f"v_mov_b32_dpp v{68+k}, v{64+k} row_ror:12 row_mask:0xf bank_mask:0xf")
        for k in range(4):
            A(f"""
            v_mul_f32 v72, {hex(LOG2E | 0x80000000)}, v{64+k}
            v_exp_f32 v72, v72
            v_add_f32 v72, 1.0, v72
            v_rcp_f32 v72, v72
            v_mul_f32 v{64+k}, v{64+k}, v72
            """)
            rnd_bf16(A, 64+k)
            A(f"v_mul_f32 v{64+k}, v{64+k}, v{68+k}\nv_cvt_pk_bf16_f32 v{64+k}, v{64+k}, v{64+k}")
        A(f"""
        s_lshl_b32 s58, s27, 6
        s_add_u32 s58, s58, {L_HT}
        v_add_u32 v2, s58, v{VL16}
        v_mov_b32 v3, {L_DUMMY}
        v_cmp_gt_u32 vcc, 4, v1
        v_cndmask_b32 v2, v3, v2, vcc
        ds_write_b128 v2, {vr(64,4)}
        v_add_u32 v3, s58, v8
        s_waitcnt lgkmcnt(0)
        ds_read_b32 v50, v3
        ds_read_b32 v51, v3 offset:32
        s_waitcnt lgkmcnt(0)
        """)
        for t in range(2):
            for r in range(4): A(f"v_and_b32 v{72+4*t+r}, v{50+t}, v{MSK+r}")
        for gq in range(4):
            A(f"v_mfma_f32_16x16x32_bf16 {vr(DT+4*gq,4)}, {vr(72,4)}, {vr(DW+8*gq,4)}, 0")
            A(f"v_mfma_f32_16x16x32_bf16 {vr(DT+4*gq,4)}, {vr(76,4)}, {vr(DW+8*gq+4,4)}, {vr(DT+4*gq,4)}")
        fold(DT, 16, 60)
        A(f"""
        v_cndmask_b32 v2, v15, v61, s[96:97]
        s_lshl_b32 s58, s2, 12
        s_add_u32 s58, s58, s80
        s_add_u32 s58, s58, {WS_YP}
        """)
        for gq in range(4):
            A(f"buffer_store_dwordx4 {vr(DT+4*gq,4)}, v2, s[16:19], s58 offen offset:{256*gq} sc1")
        A.label("L_moe_done")
        self.stamp(6)
        A(f"""
        s_lshr_b32 s58, s92, 7
        s_cmp_lg_u32 s58, s28
        s_cbranch_scc1 L_loader_end
        v_lshrrev_b32 v2, 4, v1
        v_lshlrev_b32 v2, 12, v2
        v_and_b32 v3, 15, v1
        v_lshl_add_u32 v2, v3, 4, v2
        s_mul_i32 s95, s27, {56*4096}
        s_lshl_b32 s59, s29, 8
        s_add_u32 s95, s95, s59
        s_add_u32 s95, s95, {WS_YP}
        """)
        def yl():
            A("s_mov_b32 s58, s95")
            for t in range(14):
                A(f"buffer_load_dwordx4 {vr(GW+4*t,4)}, v2, s[16:19], s58 offen sc1")
                if t < 13: A(f"s_add_u32 s58, s58, {4*4096}")
        self.spin_vm(yl, range(GW, GW+56), 60)
        for t in range(1, 14):
            for h in (0, 2):
                A(f"v_pk_add_f32 {vr(GW+h,2)}, {vr(GW+h,2)}, {vr(GW+4*t+h,2)}")
        for k in range(4):
            red_swap(A, GW+k, 60, 16); red_swap(A, GW+k, 60, 32)
        A(f"""
        s_lshl_b32 s58, s27, 8
        s_add_u32 s58, s58, {L_YT}
        v_and_b32 v3, 15, v1
        v_lshlrev_b32 v3, 4, v3
        v_add_u32 v2, s58, v3
        ds_write_b128 v2, {vr(GW,4)}
        v_mov_b32 v6, {L_FL}
        s_lshl_b32 s58, s27, 2
        v_add_u32 v7, s58, v6
        v_mov_b32 v48, 1
        s_waitcnt lgkmcnt(0)
        ds_write_b32 v7, v48 offset:{FL_Y}
        s_cmp_lg_u32 s27, 0
        s_cbranch_scc1 L_loader_end
        """)
        self.spin_lds(6, FL_Y, 4, 64)
        A(f"v_add_u32 v2, {L_YT}, v3")
        for w in range(4): A(f"ds_read_b128 {vr(64+4*w,4)}, v2 offset:{256*w}")
        A(f"""
        s_and_b32 s58, s91, 0xffff0000
        s_ashr_i32 s59, s58, 31
        s_not_b32 s59, s59
        s_or_b32 s59, s59, 0x80000000
        s_xor_b32 s58, s58, s59
        s_and_b32 s58, s58, 0xffff0000
        v_mov_b32 v80, s58
        v_mul_f32 v80, {hex(LOG2E | 0x80000000)}, v80
        v_exp_f32 v80, v80
        v_add_f32 v80, 1.0, v80
        v_rcp_f32 v80, v80
        """)
        rnd_bf16(A, 80)
        A("s_waitcnt lgkmcnt(0)")
        for h in (0, 2):
            A(f"""
            v_pk_add_f32 {vr(64+h,2)}, {vr(64+h,2)}, {vr(68+h,2)}
            v_pk_add_f32 {vr(72+h,2)}, {vr(72+h,2)}, {vr(76+h,2)}
            v_pk_add_f32 {vr(64+h,2)}, {vr(64+h,2)}, {vr(72+h,2)}
            """)
        for k in range(4):
            rnd_bf16(A, 64+k)
            A(f"v_mul_f32 v{64+k}, v{64+k}, v80")
            rnd_bf16(A, 64+k)
        A(f"""
        v_add_u32 v2, {L_YF}, v3
        ds_write_b128 v2, {vr(64,4)}
        s_waitcnt lgkmcnt(0)
        ds_write_b32 v6, v48 offset:{FL_YF}
        L_loader_end:
        """)
        self.stamp(7)
        self.stamp_out()
        A("s_endpgm")

    def compute(self):
        A = self.A
        A.label("L_compute")
        self.stamp(0)
        A("s_setprio 2")
        srd(A, 32, 68, 0x400000)
        ACC = 128
        FA = lambda st, rf, ks: 16 + st*32 + (rf*2+ks)*4
        FB = lambda slot, ks: 80 + slot*8 + ks*4
        VA, VKV, VQ = 112, 114, 116
        N15, Q4 = 12, 13
        A(f"""
        s_lshr_b32 s36, s27, 1
        s_and_b32 s37, s27, 1
        v_and_b32 v{N15}, 15, v1
        v_lshrrev_b32 v{Q4}, 4, v1
        v_lshlrev_b32 v2, 2, v1
        v_add_u32 v2, {L_FL}, v2
        v_mov_b32 v3, 0
        ds_write_b32 v2, v3
        s_lshl_b32 s58, s36, 13
        v_lshlrev_b32 v14, 7, v{N15}
        v_add_u32 v14, s58, v14
        v_bfe_u32 v15, v{N15}, 1, 3
        """)
        for ks in range(2):
            A(f"v_add_u32 v2, {4*ks}, v{Q4}\nv_xor_b32 v2, v2, v15\nv_lshl_add_u32 v{VA+ks}, v2, 4, v14")
        A(f"""
        v_bfe_u32 v2, v1, 2, 2
        v_lshlrev_b32 v2, 6, v2
        v_and_b32 v3, 3, v1
        v_lshl_add_u32 v2, v3, 3, v2
        v_and_b32 v3, 1, v{Q4}
        v_lshl_add_u32 v10, v3, 5, v2
        s_lshl_b32 s58, s37, 8
        v_add_u32 v4, s58, v10
        v_lshl_add_u32 v{VKV}, v{Q4}, 11, v4
        v_add_u32 v{VKV}, {L_KV}, v{VKV}
        v_xor_b32 v{VKV+1}, 32, v{VKV}
        v_lshl_add_u32 v{VQ}, v{Q4}, 10, v4
        v_add_u32 v{VQ}, {L_Q}, v{VQ}
        v_xor_b32 v{VQ+1}, 32, v{VQ}
        """)
        L = LgkmTracker(A)
        def areads(s_):
            st = s_ & 1
            return [(f"ds_read_b128 {vr(FA(st,rf,ks),4)}, v{VA+ks} offset:{(s_%3)*16384+rf*2048}", ("A",s_)) for rf in range(4) for ks in range(2)]
        def breads(s_, cf):
            r = []
            slot = (s_*6+cf) % 4
            part, half = cf//2, cf % 2
            for ks in range(2):
                for rd in range(2):
                    g = 8*ks + rd
                    if part < 2:
                        r.append((f"ds_read_b64_tr_b16 {vr(FB(slot,ks)+2*rd,2)}, v{VKV+half} offset:{(s_%3)*16384+g*1024+part*512}", ("B",s_,cf)))
                    else:
                        r.append((f"ds_read_b64_tr_b16 {vr(FB(slot,ks)+2*rd,2)}, v{VQ+half} offset:{(s_%3)*8192+g*512}", ("B",s_,cf)))
            return r
        A("s_waitcnt lgkmcnt(0)\ns_barrier")
        self.stamp(1)
        PAT = [1,1,0,1,1,1,0,0]*2 + [1,1,1,1,1,1,0,0]
        for x in areads(0) + breads(0,0) + breads(0,1): L.issue(*x)
        for s_ in range(16):
            st = s_ & 1
            w1 = breads(s_,2) + breads(s_,3) + breads(s_,4) + breads(s_,5)
            w2 = (areads(s_+1) + breads(s_+1,0) + breads(s_+1,1)) if s_ < 15 else []
            for cf in range(6):
                slot = (s_*6+cf) % 4
                seq = [(rf,ks) for rf in range(4) for ks in ((0,1) if rf % 2 == 0 else (1,0))]
                for j,(rf,ks) in enumerate(seq):
                    g = (cf % 3)*8 + j
                    if j == 0:
                        if cf == 3:
                            L.drain(); A("s_barrier")
                        else:
                            L.need({("A",s_), ("B",s_,cf)})
                    acc = ACC + (rf*6+cf)*4
                    c = "0" if (s_ == 0 and j % 2 == 0) else vr(acc,4)
                    a, b = (FA(st,rf,ks), FB(slot,ks)) if cf < 4 else (FB(slot,ks), FA(st,rf,ks))
                    A(f"v_mfma_f32_16x16x32_bf16 {vr(acc,4)}, {vr(a,4)}, {vr(b,4)}, {c}")
                    w = w1 if cf < 3 else w2
                    if w and PAT[g]: L.issue(*w.pop(0))
            assert not w1 and not w2
        self.stamp(2)
        XR, ST2 = 224, 240
        A(f"""
        v_lshrrev_b32 v2, 3, v1
        v_and_b32 v3, 7, v1
        v_lshlrev_b32 v118, 11, v2
        v_lshl_add_u32 v118, v3, 4, v118
        v_lshlrev_b32 v119, 3, v2
        s_lshl_b32 s38, s28, 7
        s_lshl_b32 s58, s27, 5
        s_add_u32 s38, s38, s58
        s_lshl_b32 s39, s38, 11
        s_lshl_b32 s58, s29, 7
        s_add_u32 s39, s39, s58
        s_lshl_b32 s58, s38, 3
        s_add_u32 s58, s58, {WS_STAT}
        s_mov_b32 s59, s39
        """)
        for t in range(4):
            A(f"buffer_load_dwordx4 {vr(XR+4*t,4)}, v118, s[8:11], s59 offen")
            A(f"buffer_load_dwordx2 {vr(ST2+2*t,2)}, v119, s[16:19], s58 offen offset:{64*t} sc1")
            if t < 3: A(f"s_add_u32 s59, s59, {8*2048}")
        TM, TI, TL, CS = 16, 32, 48, 64
        PK, VV, ON, KT = 68, 84, 100, 20
        U, E = 104, 108
        A(f"""
        s_lshl_b32 s58, s36, 8
        v_lshl_add_u32 v2, v{Q4}, 4, s58
        v_add_u32 v2, {L_M}, v2
        s_lshl_b32 s58, s37, 7
        v_lshl_add_u32 v3, v{N15}, 2, s58
        v_add_u32 v3, {L_CS}, v3
        s_mov_b32 s40, 0x358637bd
        s_mov_b32 s41, 0x358637bd
        """)
        for cf in range(4): A(f"ds_read_b32 v{CS+cf}, v3 offset:{(cf>>1)*256 + (cf&1)*64}")
        for rf in range(4):
            A(f"ds_read_b128 {vr(TM+4*rf,4)}, v2 offset:{64*rf}")
            A(f"ds_read_b128 {vr(TI+4*rf,4)}, v2 offset:{64*rf + L_RI - L_M}")
            A(f"ds_read_b128 {vr(TL+4*rf,4)}, v2 offset:{64*rf + L_RL - L_M}")
        for k in range(4): A(f"v_mov_b32 v{ON+k}, 0x3f803f80")
        A("s_waitcnt lgkmcnt(0)")
        def bsel(reg, pos):
            base = reg & ~1; o = reg & 1
            return vr(base,2), o
        def phi4(a, m, m_b, c, c_b, rl, rl_b, ri, ri_b, dst):
            def opnd(r, b, h):
                if b:
                    p, o = bsel(r, 0); return p, o, o
                return vr(r+h,2), 0, 1
            for h in (0, 2):
                pm, ml, mh = opnd(m, m_b, h); pc, cl, ch = opnd(c, c_b, h)
                A(f"v_pk_fma_f32 {vr(U+h,2)}, {pm}, {pc}, {vr(a+h,2)} op_sel:[{ml},{cl},0] op_sel_hi:[{mh},{ch},1] neg_lo:[1,0,0] neg_hi:[1,0,0]")
            for h in (0, 2):
                p, lo, hi = opnd(rl, rl_b, h)
                A(f"v_pk_mul_f32 {vr(E+h,2)}, {vr(U+h,2)}, {p} op_sel:[0,{lo}] op_sel_hi:[1,{hi}]")
            for k in range(4): A(f"v_exp_f32 v{E+k}, v{E+k} clamp")
            for k in range(4): A(f"v_max_f32 v{U+k}, 0, v{U+k}")
            for h in (0, 2): A(f"v_pk_add_f32 {vr(E+h,2)}, {vr(E+h,2)}, s[40:41]")
            for h in (0, 2):
                p, lo, hi = opnd(ri, ri_b, h)
                A(f"v_pk_fma_f32 {vr(U+h,2)}, {vr(U+h,2)}, {p}, {vr(E+h,2)} op_sel:[0,{lo},0] op_sel_hi:[1,{hi},1]")
            A(f"v_cvt_pk_bf16_f32 v{dst}, v{U}, v{U+1}\nv_cvt_pk_bf16_f32 v{dst+1}, v{U+2}, v{U+3}")
        for rf in range(4):
            for cf in range(2):
                phi4(ACC+(rf*6+cf)*4, TM+4*rf, False, CS+cf, True, TL+4*rf, False, TI+4*rf, False, PK + (rf>>1)*8 + cf*4 + (rf&1)*2)
            for cf in range(2, 4):
                a = ACC+(rf*6+cf)*4
                pc, o = bsel(CS+cf, 0)
                for h in (0, 2):
                    A(f"v_pk_fma_f32 {vr(U+h,2)}, {vr(TM+4*rf+h,2)}, {pc}, {vr(a+h,2)} op_sel:[0,{o},0] op_sel_hi:[1,{o},1] neg_lo:[1,0,0] neg_hi:[1,0,0]")
                for h in (0, 2):
                    A(f"v_pk_mul_f32 {vr(U+h,2)}, {vr(U+h,2)}, {vr(TI+4*rf+h,2)}")
                d = VV + (rf>>1)*8 + (cf-2)*4 + (rf&1)*2
                A(f"v_cvt_pk_bf16_f32 v{d}, v{U}, v{U+1}\nv_cvt_pk_bf16_f32 v{d+1}, v{U+2}, v{U+3}")
        QM, QI, QL, QC = 44, 48, 52, 56
        A(f"""
        s_lshl_b32 s58, s36, 8
        v_lshl_add_u32 v2, v{N15}, 2, s58
        v_add_u32 v2, {L_M}, v2
        s_lshl_b32 s58, s37, 7
        v_lshl_add_u32 v3, v{Q4}, 4, s58
        v_add_u32 v3, {L_CS + 512}, v3
        """)
        for rf in range(4):
            A(f"ds_read_b32 v{QM+rf}, v2 offset:{64*rf}")
            A(f"ds_read_b32 v{QI+rf}, v2 offset:{64*rf + L_RI - L_M}")
            A(f"ds_read_b32 v{QL+rf}, v2 offset:{64*rf + L_RL - L_M}")
        for cf in range(2): A(f"ds_read_b128 {vr(QC+4*cf,4)}, v3 offset:{64*cf}")
        T = lambda eb, db: KT + (eb*2+db)*4
        for eb in range(3):
            for db in range(2):
                for ks2 in range(2):
                    b = vr(VV+ks2*8+eb*4,4) if eb < 2 else vr(ON,4)
                    c = "0" if ks2 == 0 else vr(T(eb,db),4)
                    A(f"v_mfma_f32_16x16x32_bf16 {vr(T(eb,db),4)}, {vr(PK+ks2*8+db*4,4)}, {b}, {c}")
        A(f"""
        s_lshl_b32 s42, s23, 1
        s_add_u32 s42, s42, s37
        s_lshl_b32 s43, s42, 5
        s_lshl_b32 s58, s22, 1
        s_add_u32 s58, s58, s36
        s_add_u32 s58, s58, s43
        s_lshl_b32 s59, s58, 7
        s_add_u32 s59, s59, {WS_ZP}
        s_lshl_b32 s58, s58, 12
        s_add_u32 s58, s58, {WS_KVP}
        v_lshlrev_b32 v120, 4, v1
        v_mov_b32 v121, {OOB}
        v_lshlrev_b32 v2, 4, v{Q4}
        v_cmp_eq_u32 vcc, 0, v{N15}
        v_cndmask_b32 v2, v121, v2, vcc
        """)
        for eb in range(2):
            for db in range(2):
                A(f"buffer_store_dwordx4 {vr(T(eb,db),4)}, v120, s[16:19], s58 offen offset:{(eb*2+db)*1024} sc1")
        for db in range(2):
            A(f"buffer_store_dwordx4 {vr(T(2,db),4)}, v2, s[16:19], s59 offen offset:{64*db} sc1")
        self.stamp(3)
        PQ = 68
        A("s_waitcnt lgkmcnt(0)")
        for rf in range(4):
            for cf in range(2):
                phi4(ACC+(rf*6+4+cf)*4, QM+rf, True, QC+4*cf, False, QL+rf, True, QI+rf, True, PQ + rf*4 + cf*2)
        S = 128
        A("s_waitcnt vmcnt(6)")
        for t in range(4):
            m = ST2 + 2*t
            for k in range(4):
                x = XR + 4*t + k; d = S + 8*t + 2*k
                A(f"""
                v_lshlrev_b32 v{d}, 16, v{x}
                v_and_b32 v{d+1}, 0xffff0000, v{x}
                v_pk_add_f32 {vr(U,2)}, {vr(d,2)}, {vr(m,2)} op_sel_hi:[1,0] neg_lo:[0,1] neg_hi:[0,1]
                v_cvt_pk_bf16_f32 v{U+1}, v{U}, v{U+1}
                v_lshlrev_b32 v{U}, 16, v{U+1}
                v_and_b32 v{U+1}, 0xffff0000, v{U+1}
                v_pk_mul_f32 {vr(U,2)}, {vr(U,2)}, {vr(m,2)} op_sel:[0,1] op_sel_hi:[1,1]
                v_cvt_pk_bf16_f32 v{U+1}, v{U}, v{U+1}
                v_lshlrev_b32 v{U}, 16, v{U+1}
                v_and_b32 v{U+1}, 0xffff0000, v{U+1}
                v_pk_add_f32 {vr(d,2)}, {vr(d,2)}, {vr(U,2)}
                """)
        self.stamp(4)
        H1 = 16
        A(f"""
        v_lshrrev_b32 v2, 3, v1
        v_and_b32 v3, 7, v1
        v_lshlrev_b32 v3, 4, v3
        v_lshl_add_u32 v4, v2, 12, v3
        v_lshl_add_u32 v5, v2, 7, v3
        s_lshr_b32 s58, s22, 3
        s_lshl_b32 s59, s23, 1
        s_add_u32 s58, s58, s59
        s_lshl_b32 s44, s58, 17
        s_bfe_u32 s58, s22, 0x20001
        s_lshl_b32 s58, s58, 10
        s_add_u32 s44, s44, s58
        s_and_b32 s58, s22, 1
        s_lshl_b32 s58, s58, 9
        s_add_u32 s44, s44, s58
        s_lshl_b32 s58, s27, 7
        s_add_u32 s44, s44, s58
        s_add_u32 s44, s44, {WS_KVP}
        s_lshl_b32 s45, s42, 12
        s_add_u32 s45, s45, {WS_ZP}
        """)
        def h1():
            A("s_mov_b32 s58, s44")
            for t in range(4):
                A(f"buffer_load_dwordx4 {vr(H1+4*t,4)}, v4, s[16:19], s58 offen sc1")
                A(f"buffer_load_dwordx4 {vr(H1+16+4*t,4)}, v5, s[16:19], s45 offen offset:{1024*t} sc1")
                if t < 3: A(f"s_add_u32 s58, s58, {8*4096}")
        self.spin_vm(h1, range(H1, H1+32), 48)
        self.stamp(5)
        for b in (H1, H1+16):
            for h in (0, 2):
                A(f"""
                v_pk_add_f32 {vr(b+h,2)}, {vr(b+h,2)}, {vr(b+4+h,2)}
                v_pk_add_f32 {vr(b+8+h,2)}, {vr(b+8+h,2)}, {vr(b+12+h,2)}
                v_pk_add_f32 {vr(b+h,2)}, {vr(b+h,2)}, {vr(b+8+h,2)}
                """)
        def red81632(b):
            for k in range(4): A(f"v_add_f32_dpp v{b+k}, v{b+k}, v{b+k} row_ror:8 row_mask:0xf bank_mask:0xf")
            for wh in (16, 32):
                for k in range(4): A(f"v_mov_b32 v{b+4+k}, v{b+k}")
                for k in range(4): A(f"v_permlane{wh}_swap_b32 v{b+k}, v{b+4+k}")
                for h in (0, 2): A(f"v_pk_add_f32 {vr(b+h,2)}, {vr(b+h,2)}, {vr(b+4+h,2)}")
            A(f"v_cvt_pk_bf16_f32 v{b}, v{b}, v{b+1}\nv_cvt_pk_bf16_f32 v{b+1}, v{b+2}, v{b+3}")
        red81632(H1)
        A(f"""
        s_lshr_b32 s58, s22, 2
        s_lshl_b32 s59, s23, 2
        s_add_u32 s58, s58, s59
        s_lshl_b32 s58, s58, 10
        s_and_b32 s59, s22, 1
        s_lshl_b32 s59, s59, 9
        s_add_u32 s58, s58, s59
        s_lshl_b32 s59, s27, 7
        s_add_u32 s58, s58, s59
        s_bfe_u32 s59, s22, 0x10001
        s_lshl_b32 s59, s59, 3
        s_add_u32 s58, s58, s59
        s_add_u32 s58, s58, {WS_KVF}
        v_cmp_gt_u32 vcc, 8, v1
        v_cndmask_b32 v2, v121, v120, vcc
        buffer_store_dwordx2 {vr(H1,2)}, v2, s[16:19], s58 offen sc1
        """)
        red81632(H1+16)
        ZF, KF = 48, 52
        A(f"""
        v_lshlrev_b32 v2, 2, v{Q4}
        ds_bpermute_b32 v{ZF}, v2, v{H1+16}
        ds_bpermute_b32 v{ZF+1}, v2, v{H1+17}
        ds_bpermute_b32 v{ZF+2}, v2, v{H1+16} offset:16
        ds_bpermute_b32 v{ZF+3}, v2, v{H1+17} offset:16
        s_lshl_b32 s46, s42, 11
        s_add_u32 s46, s46, {WS_KVF}
        """)
        def h2():
            for eb in range(2):
                A(f"buffer_load_dwordx4 {vr(KF+4*eb,4)}, v120, s[16:19], s46 offen offset:{1024*eb} sc1")
        self.spin_vm(h2, range(KF, KF+8), 60)
        self.stamp(6)
        NT = lambda rf, eb: 160 + (rf*3+eb)*4
        A("s_waitcnt lgkmcnt(0)")
        for rf in range(4):
            for eb in (2, 0, 1):
                a = vr(ZF,4) if eb == 2 else vr(KF+4*eb,4)
                A(f"v_mfma_f32_16x16x32_bf16 {vr(NT(rf,eb),4)}, {a}, {vr(PQ+4*rf,4)}, 0")
        A(f"""
        s_lshl_b32 s58, s22, 3
        s_lshl_b32 s59, s36, 2
        s_add_u32 s58, s58, s59
        s_lshl_b32 s58, s58, 5
        s_add_u32 s58, s58, s42
        s_lshl_b32 s58, s58, 10
        """)
        for rf in range(4):
            d = NT(rf,2)
            A(f"v_add_f32 v{d}, s40, v{d}\nv_rcp_f32 v{d}, v{d}")
        for rf in range(4):
            d = NT(rf,2); o = 16 + 4*rf
            for eb in range(2):
                n = NT(rf,eb)
                for h in (0, 2):
                    A(f"v_pk_mul_f32 {vr(n+h,2)}, {vr(n+h,2)}, {vr(d,2)} op_sel_hi:[1,0]")
                A(f"v_cvt_pk_bf16_f32 v{o+2*eb}, v{n}, v{n+1}\nv_cvt_pk_bf16_f32 v{o+2*eb+1}, v{n+2}, v{n+3}")
            A(f"buffer_store_dwordx4 {vr(o,4)}, v120, s[16:19], s58 offen sc1")
            if rf < 3: A(f"s_add_u32 s58, s58, 32768")
        self.stamp(7)
        G2 = 160
        B2 = lambda slot, ks: 80 + slot*8 + ks*4
        OW = [16 + 8*k for k in range(8)] + [192 + 8*k for k in range(7)]
        NW = len(OW)
        VW = 112
        A(f"""
        v_lshl_add_u32 v{VW}, v{Q4}, 9, v10
        v_xor_b32 v{VW+1}, 32, v{VW}
        v_add_u32 v{VW+2}, 0x10000, v{VW}
        v_add_u32 v{VW+3}, 0x10000, v{VW+1}
        v_add_u32 v116, 32768, v120
        s_lshl_b32 s47, s28, 3
        s_lshl_b32 s58, s27, 1
        s_add_u32 s47, s47, s58
        s_lshl_b32 s47, s47, 15
        s_and_b32 s48, s29, 7
        s_lshl_b32 s48, s48, 2
        v_lshlrev_b32 v117, 10, v1
        v_add_u32 v117, 1020, v117
        v_mov_b32 v122, {L_FL}
        s_mov_b32 s50, 0
        """)
        self.spin_lds(122, FL_WO, 4, 4)
        A.label("L_g2_retry")
        self.spin_vm(lambda: A(f"buffer_load_dword v4, v117, s[16:19], s47 offen sc1"), [4], 5)
        self.stamp(8)
        V = VmTracker(A)
        def oload(t):
            r = OW[t % NW]
            A(f"s_add_u32 s58, s48, {t}\ns_and_b32 s58, s58, 31\ns_lshl_b32 s58, s58, 10\ns_add_u32 s58, s58, s47")
            V.issue(f"buffer_load_dwordx4 {vr(r,4)}, v120, s[16:19], s58 offen sc1", ("o", t))
            V.issue(f"buffer_load_dwordx4 {vr(r+4,4)}, v116, s[16:19], s58 offen sc1", ("o", t))
        for t in range(NW): oload(t)
        L = LgkmTracker(A)
        def wreads(pr, nf):
            slot = nf
            r = []
            for ks in range(2):
                t = 2*pr + ks
                for rd in range(2):
                    r.append((f"ds_read_b64_tr_b16 {vr(B2(slot,ks)+2*rd,2)}, v{VW + (nf&1) + 2*(t>>4)} offset:{(t&15)*4096 + rd*2048 + (nf>>1)*256}", ("W",pr,nf)))
            return r
        for nf in range(3):
            for x in wreads(0, nf): L.issue(*x)
        nxt = NW
        for pr in range(16):
            for nf in range(4):
                g = pr*4 + nf + 3
                w = wreads(g//4, g % 4) if g < 64 else []
                if nf == 0: V.need({("o", 2*pr), ("o", 2*pr+1)})
                L.need({("W",pr,nf)})
                for j,(rf,ks) in enumerate(((0,0),(0,1),(1,1),(1,0))):
                    acc = G2 + (rf*4+nf)*4
                    c = "0" if (pr == 0 and j % 2 == 0) else vr(acc,4)
                    A(f"v_mfma_f32_16x16x32_bf16 {vr(acc,4)}, {vr(B2(nf,ks),4)}, {vr(OW[(2*pr+ks) % NW]+4*rf,4)}, {c}")
                    if w: L.issue(*w.pop(0))
            while nxt < 32 and nxt - NW <= 2*pr + 1:
                oload(nxt); nxt += 1
        self.stamp(9)
        A(f"""
        v_cmp_u_f32 vcc, v{G2}, v{G2+16}
        s_add_u32 s50, s50, 1
        s_nop 1
        s_cbranch_vccz L_g2_ok
        s_cmp_lt_u32 s50, 4
        s_cbranch_scc1 L_g2_retry
        L_g2_ok:
        """)
        A(f"""
        s_mul_i32 s58, s27, 4608
        s_add_u32 s58, s58, {L_TR}
        v_mul_u32_u24 v2, 144, v{N15}
        v_lshl_add_u32 v2, v{Q4}, 3, v2
        v_add_u32 v2, s58, v2
        v_lshrrev_b32 v3, 3, v1
        v_mul_u32_u24 v3, 144, v3
        v_and_b32 v4, 7, v1
        v_lshl_add_u32 v3, v4, 4, v3
        v_add_u32 v3, s58, v3
        ds_read_b32 v6, v122 offset:{FL_SEL}
        """)
        for rf in range(2):
            for nf in range(4):
                a = G2 + (rf*4+nf)*4; d = 16 + (rf*4+nf)*2
                A(f"v_cvt_pk_bf16_f32 v{d}, v{a}, v{a+1}\nv_cvt_pk_bf16_f32 v{d+1}, v{a+2}, v{a+3}")
                A(f"ds_write_b64 v2, {vr(d,2)} offset:{rf*16*144 + nf*32}")
        A("s_waitcnt lgkmcnt(0)")
        for t in range(4): A(f"ds_read_b128 {vr(32+4*t,4)}, v3 offset:{t*8*144}")
        A(f"""
        v_readfirstlane_b32 s52, v6
        s_sub_u32 s52, s52, s38
        s_cmp_lt_u32 s52, 32
        s_cbranch_scc0 L_no_moe
        """)
        self.spin_lds(122, FL_YF, 1, 5)
        A(f"""
        v_lshlrev_b32 v4, 5, v4
        v_add_u32 v4, {L_YF}, v4
        ds_read_b128 v[48:51], v4
        ds_read_b128 v[52:55], v4 offset:16
        v_lshrrev_b32 v5, 3, v1
        s_waitcnt lgkmcnt(0)
        """)
        for t in range(4):
            A(f"v_add_u32 v7, {8*t}, v5\nv_cmp_eq_u32 vcc, s52, v7")
            for k in range(8):
                A(f"v_cndmask_b32 v56, 0, v{48+k}, vcc\nv_add_f32 v{S+8*t+k}, v{S+8*t+k}, v56")
        A("L_no_moe:\ns_waitcnt lgkmcnt(0)")
        for t in range(4):
            for k in range(4):
                a = 32 + 4*t + k; s_ = S + 8*t + 2*k
                A(f"""
                v_lshlrev_b32 v{U}, 16, v{a}
                v_and_b32 v{U+1}, 0xffff0000, v{a}
                v_pk_add_f32 {vr(U,2)}, {vr(U,2)}, {vr(s_,2)}
                v_cvt_pk_bf16_f32 v{a}, v{U}, v{U+1}
                """)
            A(f"buffer_store_dwordx4 {vr(32+4*t,4)}, v118, s[32:35], s39 offen")
            if t < 3: A(f"s_add_u32 s39, s39, {8*2048}")
        self.stamp(10)
        self.stamp_out()
        A("L_end:\ns_endpgm")

    def build(self):
        self.prologue()
        self.loader()
        self.compute()
        body = hazard.fix(self.A.lines)
        hdr = open(os.path.join(os.path.dirname(os.path.abspath(__file__)), "header.txt")).read()
        out = hdr + f"; @launch grid=(256,1,1) block=(512,1,1) lds={LDS_SIZE}\n"
        out += f""".amdgcn_target "amdgcn-amd-amdhsa--gfx950"
.text
.globl {NAME}_kernel
.p2align 8
.type {NAME}_kernel,@function
{NAME}_kernel:
"""
        out += "\n".join(body) + "\n"
        out += f""".section .rodata,"a"
.p2align 6
.amdhsa_kernel {NAME}_kernel
  .amdhsa_next_free_vgpr 256
  .amdhsa_next_free_sgpr 102
  .amdhsa_accum_offset 256
  .amdhsa_group_segment_fixed_size 0
  .amdhsa_kernarg_size 88
  .amdhsa_user_sgpr_count 2
  .amdhsa_user_sgpr_kernarg_segment_ptr 1
  .amdhsa_system_sgpr_workgroup_id_x 1
  .amdhsa_float_denorm_mode_32 3
.end_amdhsa_kernel
"""
        return out

if __name__ == "__main__":
    diag = "--diag" in sys.argv
    out = [a for a in sys.argv[1:] if not a.startswith("--")]
    path = out[0] if out else f"cdna_kernels/{NAME}.s"
    open(path, "w").write(Gen(diag=diag).build())
    print("wrote", path)
```

```python
import sys, os
sys.path.insert(0, os.path.dirname(os.path.abspath(__file__)))
from asmlib import *
import hazard

NAME = "parallel_sum__linear_attn_block__moe_arch_mod__prompt"

WS_O, WS_KVP, WS_ZP, WS_KVF = 0x000000, 0x400000, 0x800000, 0x860000
WS_X, WS_OF = 0x838000, 0x839000
WS_STAT, WS_KEY, WS_CSP, WS_GUP, WS_YP = 0x830000, 0x834000, 0x8A0000, 0x880000, 0x900000
WS_DIAG = 0xA00000
WS_SIZE = 0xA80000
OOB = 0x40000000
L_A, L_KV, L_Q = 0, 49152, 98304
L_M, L_RI, L_RL = 131072, 131584, 132096
L_CS = 132608
L_FL = 133376
FL_WO, FL_GU, FL_Y, FL_YF, FL_KEY, FL_SEL = 0, 16, 32, 48, 52, 56
L_GUS = 133632
L_HT = 135680
L_YT = 135936
L_YF = 136960
L_DUMMY = 137216
L_TR = 138240
LDS_SIZE = 138240 + 4*4608
SPIN_MAX = 1 << 15
LOG2E = 0x3fb8aa3b

def order_tables():
    out = []
    for q in range(4):
        seq = [q]
        for g in range(4):
            others = [4*g + p for p in range(4) if p != q]
            oi = 0
            for sl in range(4):
                if sl == q and g < 3: seq.append(4*(g+1)+q)
                elif oi < 3: seq.append(others[oi]); oi += 1
        assert sorted(seq) == list(range(16))
        out.append(seq)
    return out
def pack4(seq):
    v = 0
    for i, c in enumerate(seq): v |= c << (4*i)
    return v

def srd(A, d, lo, size):
    A(f"s_mov_b32 s{d}, s{lo}\ns_mov_b32 s{d+1}, s{lo+1}\ns_mov_b32 s{d+2}, {hex(size)}\ns_mov_b32 s{d+3}, 0x20000")

def red_row(A, v, op="v_add_f32"):
    for r in (8, 4, 2, 1):
        A(f"{op}_dpp v{v}, v{v}, v{v} row_ror:{r} row_mask:0xf bank_mask:0xf")
def red_swap(A, v, t, which, op="v_add_f32"):
    A(f"v_mov_b32 v{t}, v{v}\nv_permlane{which}_swap_b32 v{v}, v{t}\n{op} v{v}, v{v}, v{t}")
def unpack(A, dlo, dhi, s):
    A(f"v_lshlrev_b32 v{dlo}, 16, v{s}\nv_and_b32 v{dhi}, 0xffff0000, v{s}")
def rnd_bf16(A, v):
    A(f"v_cvt_pk_bf16_f32 v{v}, v{v}, v{v}\nv_lshlrev_b32 v{v}, 16, v{v}")

class Gen:
    def __init__(self, diag=False, **kw):
        self.A = Asm()
        self.diag = diag
        self.nlab = 0
        self.opt = kw
    def lab(self, p):
        self.nlab += 1
        return f"L_{p}{self.nlab}"
    def stamp(self, slot):
        if not self.diag: return
        self.A(f"s_memrealtime s[98:99]\ns_waitcnt lgkmcnt(0)\nv_writelane_b32 v{self.sreg}, s98, {slot}")
    def stamp_out(self):
        if not self.diag: return
        A = self.A
        A(f"""
        s_lshl_b32 s56, s2, 3
        s_add_u32 s56, s56, s26
        s_lshl_b32 s56, s56, 8
        s_add_u32 s56, s56, {WS_DIAG}
        v_and_b32 v2, 63, v0
        v_lshlrev_b32 v3, 2, v2
        buffer_store_dword v{self.sreg}, v3, s[16:19], s56 offen
        """)

    def spin_vm(self, issue, regs, tmp, cnt="s57"):
        A = self.A
        top, done = self.lab("sp"), self.lab("spd")
        A(f"s_mov_b32 {cnt}, 0")
        A.label(top)
        issue()
        A("s_waitcnt vmcnt(0)")
        r = list(regs)
        A(f"v_max_u32 v{tmp}, v{r[0]}, v{r[1]}" if len(r) > 1 else f"v_mov_b32 v{tmp}, v{r[0]}")
        k = 2
        while k < len(r):
            if k + 1 < len(r):
                A(f"v_max3_u32 v{tmp}, v{tmp}, v{r[k]}, v{r[k+1]}"); k += 2
            else:
                A(f"v_max_u32 v{tmp}, v{tmp}, v{r[k]}"); k += 1
        A(f"""
        v_cmp_eq_u32 vcc, -1, v{tmp}
        s_add_u32 {cnt}, {cnt}, 1
        s_nop 1
        s_cbranch_vccz {done}
        s_cmp_lt_u32 {cnt}, {SPIN_MAX}
        s_cbranch_scc1 {top}
        """)
        A.label(done)

    def nonce_setup(self, vmask):
        self.A(f"""
        s_add_u32 s60, s3, 1
        s_lshr_b32 s61, s60, 8
        s_lshr_b32 s62, s60, 16
        s_lshr_b32 s63, s60, 24
        s_mov_b32 s64, 0x0c0c0400
        s_mov_b32 s65, 0x04000c0c
        v_mov_b32 v{vmask}, 0xff
        """)
    def tag(self, base, vmask):
        for k in range(4):
            self.A(f"v_bfi_b32 v{base+k}, v{vmask}, s{60+k}, v{base+k}")
    def spin_tag(self, issue, chunks, tmp, cnt="s57"):
        A = self.A
        top, done = self.lab("sp"), self.lab("spd")
        A(f"s_mov_b32 {cnt}, 0")
        A.label(top)
        issue()
        A("s_waitcnt vmcnt(0)")
        mx, mn, t0, t1, t2 = tmp, tmp+1, tmp+2, tmp+3, tmp+4
        def pk(c, d, t):
            A(f"v_perm_b32 v{d}, v{c+1}, v{c}, s64\nv_perm_b32 v{t}, v{c+3}, v{c+2}, s65\nv_or_b32 v{d}, v{d}, v{t}")
        ch = list(chunks)
        pk(ch[0], mx, t2); A(f"v_mov_b32 v{mn}, v{mx}")
        k = 1
        while k < len(ch):
            pk(ch[k], t0, t2)
            if k + 1 < len(ch):
                pk(ch[k+1], t1, t2)
                A(f"v_max3_u32 v{mx}, v{mx}, v{t0}, v{t1}\nv_min3_u32 v{mn}, v{mn}, v{t0}, v{t1}"); k += 2
            else:
                A(f"v_max_u32 v{mx}, v{mx}, v{t0}\nv_min_u32 v{mn}, v{mn}, v{t0}"); k += 1
        A(f"""
        v_cmp_ne_u32 vcc, s60, v{mx}
        v_cmp_ne_u32 s[66:67], s60, v{mn}
        s_add_u32 {cnt}, {cnt}, 1
        s_or_b64 vcc, vcc, s[66:67]
        s_cbranch_scc0 {done}
        s_sleep {self.opt.get("sleep", 2)}
        s_cmp_lt_u32 {cnt}, {SPIN_MAX}
        s_cbranch_scc1 {top}
        """)
        A.label(done)

    def spin_lds(self, addr_v, off, nflags, tmp, cnt="s57"):
        A = self.A
        top, done = self.lab("sl"), self.lab("sld")
        A(f"s_mov_b32 {cnt}, 0")
        A.label(top)
        if nflags == 4:
            A(f"""
            ds_read_b128 v[{tmp}:{tmp+3}], v{addr_v} offset:{off}
            s_waitcnt lgkmcnt(0)
            v_min_u32 v{tmp}, v{tmp}, v{tmp+1}
            v_min3_u32 v{tmp}, v{tmp}, v{tmp+2}, v{tmp+3}
            """)
        else:
            A(f"ds_read_b32 v{tmp}, v{addr_v} offset:{off}\ns_waitcnt lgkmcnt(0)")
        A(f"""
        v_cmp_eq_u32 vcc, 0, v{tmp}
        s_add_u32 {cnt}, {cnt}, 1
        s_nop 1
        s_cbranch_vccz {done}
        s_sleep 1
        s_cmp_lt_u32 {cnt}, {SPIN_MAX*8}
        s_cbranch_scc1 {top}
        """)
        A.label(done)

    def prologue(self):
        A = self.A
        A(f"""
        s_cmp_ge_u32 s2, 256
        s_cbranch_scc1 L_end
        s_load_dwordx4 s[4:7], s[0:1], 0
        s_load_dwordx2 s[56:57], s[0:1], 16
        s_load_dwordx8 s[60:67], s[0:1], 32
        s_load_dwordx4 s[68:71], s[0:1], 64
        s_load_dwordx2 s[72:73], s[0:1], 80
        v_lshrrev_b32 v2, 6, v0
        v_and_b32 v1, 63, v0
        s_and_b32 s20, s2, 7
        v_readfirstlane_b32 s26, v2
        s_lshr_b32 s21, s2, 3
        s_and_b32 s24, s21, 7
        s_lshr_b32 s25, s21, 3
        s_and_b32 s30, s20, 1
        s_lshl_b32 s22, s30, 3
        s_add_u32 s22, s22, s24
        s_lshr_b32 s31, s20, 1
        s_lshl_b32 s23, s31, 2
        s_add_u32 s23, s23, s25
        s_and_b32 s27, s26, 3
        s_lshl_b32 s28, s30, 3
        s_and_b32 s58, s31, 1
        s_lshl_b32 s58, s58, 2
        s_add_u32 s28, s28, s58
        s_and_b32 s58, s21, 3
        s_add_u32 s28, s28, s58
        s_lshr_b32 s29, s20, 2
        s_lshl_b32 s29, s29, 3
        s_lshr_b32 s58, s21, 2
        s_add_u32 s29, s29, s58
        s_waitcnt lgkmcnt(0)
        """)
        srd(A, 8, 4, 0x400000)
        srd(A, 12, 6, 0x600000)
        srd(A, 16, 72, WS_SIZE)
        A(f"s_add_u32 s74, s72, {WS_X}\ns_addc_u32 s75, s73, 0\ns_load_dword s3, s[74:75], 0\ns_cmp_ge_u32 s26, 4\ns_cbranch_scc1 L_compute")

    def loader(self):
        A = self.A
        V = VmTracker(A)
        self.sreg = 99
        self.stamp(0)
        tabs = [pack4(o) for o in order_tables()]
        VAo, VKVo, VQo, VL16 = 10, 11, 12, 13
        A(f"""
        ; ---- DMA lane offsets ----
        v_lshrrev_b32 v2, 3, v1
        v_lshrrev_b32 v3, 4, v1
        s_and_b32 s58, s27, 1
        s_lshl_b32 s59, s58, 2
        v_add_u32 v3, s59, v3
        v_and_b32 v4, 7, v1
        v_xor_b32 v3, v3, v4
        v_lshlrev_b32 v2, 11, v2
        v_lshl_add_u32 v{VAo}, v3, 4, v2
        v_and_b32 v5, 3, v1
        v_lshlrev_b32 v5, 4, v5
        v_bfe_u32 v6, v1, 4, 1
        v_lshl_add_u32 v5, v6, 6, v5
        v_bfe_u32 v6, v1, 2, 2
        v_lshrrev_b32 v7, 5, v1
        v_mul_u32_u24 v8, 6144, v6
        v_add_u32 v8, v8, v5
        v_lshl_add_u32 v{VKVo}, v7, 11, v8
        v_mul_u32_u24 v7, {4*6144}, v7
        v_add_u32 v{VQo}, v7, v8
        s_lshr_b32 s59, s27, 1
        s_lshl_b32 s59, s59, 5
        v_xor_b32 v{VKVo}, s59, v{VKVo}
        s_lshl_b32 s59, s58, 5
        v_xor_b32 v{VQo}, s59, v{VQo}
        s_sub_u32 s74, s24, s25
        s_and_b32 s74, s74, 3
        s_mov_b32 s76, {tabs[0] & 0xffffffff}
        s_mov_b32 s77, {tabs[0] >> 32}
        """)
        for q in range(1, 4):
            A(f"""
            s_cmp_eq_u32 s74, {q}
            s_cselect_b32 s76, {tabs[q] & 0xffffffff}, s76
            s_cselect_b32 s77, {tabs[q] >> 32}, s77
            """)
        A(f"""
        s_lshl_b32 s75, s30, 1
        s_add_u32 s75, s75, s31
        s_lshl_b32 s75, s75, 2
        s_lshl_b32 s58, s23, 7
        s_mul_i32 s78, s27, {4*6144}
        s_add_u32 s78, s78, s58
        s_add_u32 s78, s78, 2048
        s_mul_i32 s79, s27, {8*6144}
        s_add_u32 s79, s79, s58
        s_lshl_b32 s80, s27, 10
        s_lshl_b32 s81, s22, 7
        s_lshl_b32 s58, s27, 3
        s_add_u32 s81, s81, s58
        s_lshl_b32 s81, s81, 11
        """)
        def issue_stage(s):
            slot = s % 3
            A(f"""
            s_and_b32 s58, s76, 15
            s_lshr_b64 s[76:77], s[76:77], 4
            s_add_u32 s58, s58, s75
            s_and_b32 s58, s58, 15
            s_lshl_b32 s82, s58, 7
            s_add_u32 s82, s82, s81
            s_mul_i32 s59, s58, {64*6144}
            s_add_u32 s83, s59, s78
            s_add_u32 s84, s59, s79
            """)
            for p in range(4):
                A(f"s_add_u32 m0, s80, {L_A + slot*16384 + p*4096}")
                V.issue(f"buffer_load_dwordx4 v{VAo}, s[8:11], s82 offen lds", ("st", s))
                A(f"s_add_u32 s82, s82, {32*2048}\ns_add_u32 m0, s80, {L_KV + slot*16384 + p*4096}")
                V.issue(f"buffer_load_dwordx4 v{VKVo}, s[12:15], s83 offen lds", ("st", s))
                A(f"s_add_u32 s83, s83, {16*6144}")
                if p < 2:
                    A(f"s_add_u32 m0, s80, {L_Q + slot*8192 + p*4096}")
                    V.issue(f"buffer_load_dwordx4 v{VQo}, s[12:15], s84 offen lds", ("st", s))
                    A(f"s_add_u32 s84, s84, {32*6144}")
        pr = self.opt.get("probe")
        if pr:
            nwg, kb, which = pr
            A(f"""
            s_cmp_ge_u32 s2, {nwg}
            s_cbranch_scc1 L_noprobe
            s_load_dwordx2 s[96:97], s[0:1], {which}
            s_waitcnt lgkmcnt(0)
            s_mov_b32 s92, s96
            s_mov_b32 s93, s97
            s_mov_b32 s94, 0x400000
            s_mov_b32 s95, 0x20000
            v_lshlrev_b32 v20, 4, v1
            s_mul_i32 s58, s2, {kb*1024}
            s_add_u32 s58, s58, s80
            s_mov_b32 m0, s80
            """)
            for i in range(kb//4):
                A(f"buffer_load_dwordx4 v20, s[92:95], s58 offen lds\ns_add_u32 s58, s58, 4096")
            A("s_waitcnt vmcnt(0)\nL_noprobe:")
        issue_stage(0)
        issue_stage(1)
        srd(A, 32, 56, 0x200000)
        srd(A, 52, 60, 2048)
        srd(A, 36, 62, 0x700000)
        srd(A, 40, 64, 0x700000)
        srd(A, 44, 66, 0x700000)
        srd(A, 48, 70, 256)
        X, WR, F, T = 16, 32, 48, 80
        A(f"""
        v_lshlrev_b32 v{VL16}, 4, v1
        v_and_b32 v2, 31, v1
        v_lshlrev_b32 v2, 4, v2
        v_lshrrev_b32 v3, 5, v1
        v_lshl_add_u32 v4, v3, 11, v2
        s_lshl_b32 s85, s22, 7
        s_lshl_b32 s58, s23, 3
        s_add_u32 s85, s85, s58
        s_lshl_b32 s58, s27, 1
        s_add_u32 s85, s85, s58
        s_lshl_b32 s58, s85, 11
        """)
        for t in range(4):
            V.issue(f"buffer_load_dwordx4 {vr(X+4*t,4)}, v4, s[8:11], s58 offen offset:{512*t}", "sx")
        for t in range(4):
            V.issue(f"buffer_load_dwordx4 {vr(WR+4*t,4)}, v2, s[52:55], 0 offen offset:{512*t}", "sx")
        CF, CA, ONES, VC = 100, 124, 136, 140
        A(f"""
        v_mov_b32 v{ONES}, 0x3f803f80
        v_mov_b32 v{ONES+1}, 0x3f803f80
        v_mov_b32 v{ONES+2}, 0x3f803f80
        v_mov_b32 v{ONES+3}, 0x3f803f80
        v_bfe_u32 v2, v1, 2, 2
        v_lshlrev_b32 v2, 6, v2
        v_and_b32 v3, 3, v1
        v_lshl_add_u32 v2, v3, 3, v2
        v_lshrrev_b32 v3, 4, v1
        v_and_b32 v4, 1, v3
        v_lshl_add_u32 v2, v4, 5, v2
        s_lshl_b32 s58, s27, 8
        s_add_u32 s58, s58, {L_KV}
        v_lshl_add_u32 v{VC}, v3, 11, v2
        v_add_u32 v{VC}, s58, v{VC}
        v_xor_b32 v{VC+1}, 32, v{VC}
        s_lshr_b32 s58, s27, 1
        s_lshl_b32 s58, s58, 8
        s_add_u32 s58, s58, {L_Q}
        s_and_b32 s59, s27, 1
        s_lshl_b32 s59, s59, 5
        v_lshl_add_u32 v{VC+2}, v3, 10, v2
        v_xor_b32 v{VC+2}, s59, v{VC+2}
        v_add_u32 v{VC+2}, s58, v{VC+2}
        s_add_u32 s86, s74, 1
        s_cmp_lt_u32 s24, 4
        s_cselect_b32 s86, 0, s86
        v_mov_b32 v15, {OOB}
        v_cmp_gt_u32 vcc, 8, v1
        v_cndmask_b32 v14, v15, v{VL16}, vcc
        s_lshr_b32 s88, s2, 2
        s_and_b32 s89, s2, 3
        s_cmp_lt_u32 s2, 224
        s_cselect_b32 s87, 0, {OOB}
        """)
        A("s_waitcnt lgkmcnt(0)")
        VM = 96
        self.nonce_setup(VM)
        V.need({("st", 0)})
        A("s_barrier")
        self.stamp(1)

        def csum(s):
            skip = self.lab("cs")
            A(f"s_cmp_eq_u32 s86, {s}\ns_cbranch_scc0 {skip}")
            slot = s % 3
            for f in range(3):
                for ks in range(2):
                    for rd in range(2):
                        g = 8*ks + rd
                        off = slot*16384 + g*1024 if f < 2 else slot*8192 + g*512
                        A(f"ds_read_b64_tr_b16 {vr(CF+f*8+ks*4+2*rd,2)}, v{VC+f} offset:{off}")
            A("s_waitcnt lgkmcnt(0)")
            for f in range(3):
                A(f"v_mfma_f32_16x16x32_bf16 {vr(CA+4*f,4)}, {vr(ONES,4)}, {vr(CF+f*8,4)}, 0")
                A(f"v_mfma_f32_16x16x32_bf16 {vr(CA+4*f,4)}, {vr(ONES,4)}, {vr(CF+f*8+4,4)}, {vr(CA+4*f,4)}")
            A.label(skip)

        MEAN, MB, RINV, RACC = 92, 94, 95, 90
        def statsA():
            V.need({"sx"})
            for k in range(16): unpack(A, F+2*k, F+2*k+1, X+k)
            A(f"v_pk_add_f32 {vr(T,2)}, {vr(F,2)}, {vr(F+2,2)}\nv_pk_add_f32 {vr(T+2,2)}, {vr(F+4,2)}, {vr(F+6,2)}")
            for k in range(4, 16):
                a = T + 2*(k & 1)
                A(f"v_pk_add_f32 {vr(a,2)}, {vr(a,2)}, {vr(F+2*k,2)}")
            A(f"v_pk_add_f32 {vr(T,2)}, {vr(T,2)}, {vr(T+2,2)}\nv_add_f32 v{MEAN}, v{T}, v{T+1}")
            red_row(A, MEAN); red_swap(A, MEAN, T, 16)
            A(f"v_mul_f32 v{MEAN}, 0x3a800000, v{MEAN}\nv_mov_b32 v{MB}, v{MEAN}")
            rnd_bf16(A, MB)
        def statsB():
            for k in range(16):
                d = T + 4 + 2*(k & 1); a = T + 2*(k & 1)
                A(f"v_pk_add_f32 {vr(d,2)}, {vr(F+2*k,2)}, {vr(MEAN,2)} op_sel_hi:[1,0] neg_lo:[0,1] neg_hi:[0,1]")
                if k < 2: A(f"v_pk_mul_f32 {vr(a,2)}, {vr(d,2)}, {vr(d,2)}")
                else: A(f"v_pk_fma_f32 {vr(a,2)}, {vr(d,2)}, {vr(d,2)}, {vr(a,2)}")
            A(f"v_pk_add_f32 {vr(T,2)}, {vr(T,2)}, {vr(T+2,2)}\nv_add_f32 v{RINV}, v{T}, v{T+1}")
            red_row(A, RINV); red_swap(A, RINV, T, 16)
            A(f"v_mul_f32 v{RINV}, 0x3a800000, v{RINV}")
            rnd_bf16(A, RINV)
            A(f"v_add_f32 v{RINV}, 0x3727c5ac, v{RINV}")
            rnd_bf16(A, RINV)
            A(f"v_sqrt_f32 v{RINV}, v{RINV}")
            rnd_bf16(A, RINV)
            A(f"v_rcp_f32 v{RINV}, v{RINV}\nv_mov_b32 v{RACC}, 0")
        def statsC(k0, k1):
            for k in range(k0, k1):
                d = T + 2*(k & 3)
                A(f"""
                v_pk_add_f32 {vr(d,2)}, {vr(F+2*k,2)}, {vr(MB,2)} op_sel_hi:[1,0] neg_lo:[0,1] neg_hi:[0,1]
                v_cvt_pk_bf16_f32 v{d+1}, v{d}, v{d+1}
                v_lshlrev_b32 v{d}, 16, v{d+1}
                v_and_b32 v{d+1}, 0xffff0000, v{d+1}
                v_pk_mul_f32 {vr(d,2)}, {vr(d,2)}, {vr(MB,2)} op_sel:[0,1] op_sel_hi:[1,1]
                v_cvt_pk_bf16_f32 v{d}, v{d}, v{d+1}
                v_dot2_f32_bf16 v{RACC}, v{d}, v{WR+k}, v{RACC}
                """)
        def statsD():
            A("s_nop 2")
            red_row(A, RACC); red_swap(A, RACC, T, 16)
            rnd_bf16(A, RACC)
            A(f"""
            v_ashrrev_i32 v{T}, 31, v{RACC}
            v_or_b32 v{T}, 0x80000000, v{T}
            v_xor_b32 v{T}, v{T}, v{RACC}
            v_and_b32 v{T}, 0xffff0000, v{T}
            v_lshrrev_b32 v2, 5, v1
            v_add_u32 v2, s85, v2
            v_sub_u32 v3, 0x7ff, v2
            v_or_b32 v{T}, v{T}, v3
            v_mov_b32 v3, {L_FL + FL_KEY}
            ds_max_u32 v3, v{T}
            v_lshlrev_b32 v2, 3, v2
            v_and_b32 v3, 31, v1
            v_cmp_eq_u32 vcc, 0, v3
            v_cndmask_b32 v2, v15, v2, vcc
            s_mov_b32 s58, {WS_STAT}
            """)
            V.issue(f"buffer_store_dwordx2 {vr(MB,2)}, v2, s[16:19], s58 offen sc1", "pub")
            A("s_waitcnt lgkmcnt(0)")
        def pub_cs_key():
            A(f"""
            v_lshrrev_b32 v2, 4, v1
            v_cmp_eq_u32 vcc, 1, v2
            v_cndmask_b32 v{CA}, v{CA}, v{CA+4}, vcc
            v_cmp_eq_u32 vcc, 2, v2
            v_cndmask_b32 v{CA}, v{CA}, v{CA+8}, vcc
            s_lshl_b32 s58, s27, 7
            v_lshlrev_b32 v3, 2, v1
            v_add_u32 v3, s58, v3
            s_lshl_b32 s58, s27, 6
            s_add_u32 s58, s58, {512 - 128}
            v_lshlrev_b32 v4, 2, v1
            v_add_u32 v4, s58, v4
            v_cndmask_b32 v3, v3, v4, vcc
            v_cmp_eq_u32 vcc, 3, v2
            v_cndmask_b32 v3, v3, v15, vcc
            s_lshl_b32 s58, s23, 4
            s_add_u32 s58, s58, s22
            s_lshl_b32 s58, s58, 10
            s_add_u32 s58, s58, {WS_CSP}
            """)
            V.issue(f"buffer_store_dword v{CA}, v3, s[16:19], s58 offen sc1", "pub")
        def flag_s1():
            A(f"""
            v_mov_b32 v3, {L_FL + FL_KEY}
            ds_read_b32 v{T}, v3
            v_mov_b32 v{T+1}, s60
            v_cmp_eq_u32 vcc, 0, v0
            v_mov_b32 v4, 0
            v_cndmask_b32 v5, v15, v4, vcc
            s_lshl_b32 s58, s2, 3
            s_add_u32 s58, s58, {WS_KEY}
            s_waitcnt lgkmcnt(0)
            """)
            V.issue(f"buffer_store_dwordx2 {vr(T,2)}, v5, s[16:19], s58 offen sc1", "flag")
        S1R, KEYS = 144, 160
        def key_loads(issue):
            issue(f"buffer_load_dwordx4 {vr(KEYS,4)}, v6, s[16:19], s90 offen sc1", "poll")
            issue(f"buffer_load_dwordx4 {vr(KEYS+4,4)}, v6, s[16:19], s90 offen offset:16 sc1", "poll")
        def poll_s1_issue():
            A(f"v_lshlrev_b32 v6, 5, v1\ns_mov_b32 s90, {WS_KEY}")
            key_loads(V.issue)
        def poll_s1_check():
            V.need({"poll"})
            ok, top = self.lab("s1ok"), self.lab("s1sp")
            A(f"""
            s_mov_b32 s57, 0
            {top}:
            v_max3_u32 v2, v{KEYS+1}, v{KEYS+3}, v{KEYS+5}
            v_min3_u32 v3, v{KEYS+1}, v{KEYS+3}, v{KEYS+5}
            v_max_u32 v2, v2, v{KEYS+7}
            v_min_u32 v3, v3, v{KEYS+7}
            v_cmp_ne_u32 vcc, s60, v2
            v_cmp_ne_u32 s[66:67], s60, v3
            s_add_u32 s57, s57, 1
            s_or_b64 vcc, vcc, s[66:67]
            s_cbranch_scc0 {ok}
            s_cmp_ge_u32 s57, {SPIN_MAX}
            s_cbranch_scc1 {ok}
            s_sleep 8
            """)
            key_loads(lambda t, tag: A(t))
            A(f"""
            s_waitcnt vmcnt(0)
            s_branch {top}
            {ok}:
            v_mov_b32 v2, s60
            s_cmp_eq_u32 s2, 0
            s_cselect_b32 s58, 0, {OOB}
            s_add_u32 s58, s58, {WS_X}
            """)
            V.issue(f"buffer_store_dword v2, v5, s[16:19], s58 offen sc1", "x")
        def s1_loads():
            A(f"""
            v_and_b32 v2, 15, v1
            v_lshlrev_b32 v2, 4, v2
            v_lshrrev_b32 v3, 4, v1
            v_lshl_add_u32 v2, v3, 10, v2
            s_lshl_b32 s58, s23, 14
            s_lshl_b32 s59, s27, 8
            s_add_u32 s58, s58, s59
            s_add_u32 s58, s58, {WS_CSP}
            s_lshl_b32 s59, s22, 10
            s_add_u32 s59, s59, {WS_STAT}
            s_cmp_eq_u32 s27, 3
            s_cselect_b32 s58, s59, s58
            s_movk_i32 s59, 4096
            s_cselect_b32 s59, {OOB}, s59
            s_cselect_b64 vcc, -1, 0
            v_cndmask_b32 v2, v2, v{VL16}, vcc
            """)
            for t in range(4):
                V.issue(f"buffer_load_dwordx4 {vr(S1R+4*t,4)}, v2, s[16:19], s58 offen sc1", "s1")
                if t < 3: A("s_add_u32 s58, s58, s59")
        XSV, XST = 144, 146
        def s1_process():
            V.need({"s1"})
            w3, j = self.lab("w3"), self.lab("w3j")
            A(f"s_cmp_eq_u32 s27, 3\ns_cbranch_scc1 {w3}")
            for h in (0, 2):
                A(f"""
                v_pk_add_f32 {vr(S1R+h,2)}, {vr(S1R+h,2)}, {vr(S1R+4+h,2)}
                v_pk_add_f32 {vr(S1R+8+h,2)}, {vr(S1R+8+h,2)}, {vr(S1R+12+h,2)}
                v_pk_add_f32 {vr(S1R+h,2)}, {vr(S1R+h,2)}, {vr(S1R+8+h,2)}
                """)
            for k in range(4):
                red_swap(A, S1R+k, S1R+4+k, 16); red_swap(A, S1R+k, S1R+4+k, 32)
            A(f"""
            s_lshl_b32 s58, s27, 8
            s_add_u32 s58, s58, {L_CS}
            v_and_b32 v2, 15, v1
            v_lshlrev_b32 v2, 4, v2
            v_add_u32 v2, s58, v2
            ds_write_b128 v2, {vr(S1R,4)}
            s_branch {j}
            {w3}:
            v_mov_b32 v{S1R+4}, v{S1R}
            v_mov_b32 v{S1R+5}, v{S1R+2}
            v_mov_b32 v{S1R+6}, v{S1R+1}
            v_mov_b32 v{S1R+7}, v{S1R+3}
            v_mul_f32 v{S1R+8}, {hex(LOG2E)}, v{S1R+1}
            v_mul_f32 v{S1R+9}, {hex(LOG2E)}, v{S1R+3}
            v_lshlrev_b32 v2, 3, v1
            v_add_u32 v2, {L_M}, v2
            ds_write_b64 v2, {vr(S1R+4,2)}
            ds_write_b64 v2, {vr(S1R+6,2)} offset:{L_RI-L_M}
            ds_write_b64 v2, {vr(S1R+8,2)} offset:{L_RL-L_M}
            {j}:
            v_max_u32 v{KEYS}, v{KEYS}, v{KEYS+2}
            v_max3_u32 v{KEYS}, v{KEYS}, v{KEYS+4}, v{KEYS+6}
            """)
            red_row(A, KEYS, "v_max_u32"); red_swap(A, KEYS, KEYS+1, 16, "v_max_u32"); red_swap(A, KEYS, KEYS+1, 32, "v_max_u32")
            A(f"""
            v_readfirstlane_b32 s91, v{KEYS}
            s_and_b32 s92, s91, 0x7ff
            s_sub_u32 s92, 0x7ff, s92
            v_mov_b32 v2, {L_FL + FL_SEL}
            v_mov_b32 v3, s92
            ds_write_b32 v2, v3
            s_lshl_b32 s58, s92, 11
            s_lshl_b32 s59, s89, 9
            s_add_u32 s58, s58, s59
            s_lshl_b32 s59, s27, 7
            s_add_u32 s58, s58, s59
            v_lshlrev_b32 v2, 1, v1
            s_lshl_b32 s59, s92, 3
            s_add_u32 s59, s59, {WS_STAT}
            v_mov_b32 v3, 0
            s_waitcnt lgkmcnt(0)
            """)
            V.issue(f"buffer_load_ushort v{XSV}, v2, s[8:11], s58 offen", "xs")
            V.issue(f"buffer_load_dwordx2 {vr(XST,2)}, v3, s[16:19], s59 offen sc1", "xs")
        MSK = 232
        def xs_process():
            V.need({"xs"})
            A(f"""
            v_lshlrev_b32 v{XSV}, 16, v{XSV}
            v_sub_f32 v{XSV}, v{XSV}, v{XST}
            """)
            rnd_bf16(A, XSV)
            A(f"""
            v_mul_f32 v{XSV}, v{XSV}, v{XST+1}
            v_cvt_pk_bf16_f32 v{XSV}, v{XSV}, v{XSV}
            v_and_b32 v2, 1, v1
            v_mov_b32 v3, 0xffff
            v_mov_b32 v4, 0xffff0000
            v_cmp_eq_u32 vcc, 1, v2
            v_cndmask_b32 v3, v3, v4, vcc
            v_bfe_u32 v2, v1, 1, 2
            """)
            for r in range(4):
                A(f"v_cmp_eq_u32 vcc, {r}, v2\nv_cndmask_b32 v{MSK+r}, 0, v3, vcc")
        VWO = 9
        def wo_setup():
            A(f"""
            v_lshrrev_b32 v2, 5, v1
            v_bfe_u32 v3, v1, 2, 2
            v_lshl_add_u32 v3, v2, 2, v3
            v_lshlrev_b32 v3, 11, v3
            v_bfe_u32 v4, v1, 4, 1
            v_lshl_add_u32 v3, v4, 6, v3
            v_and_b32 v4, 3, v1
            v_lshlrev_b32 v2, 1, v2
            v_xor_b32 v4, v4, v2
            v_lshl_add_u32 v{VWO}, v4, 4, v3
            s_lshl_b32 s93, s27, 14
            s_lshl_b32 s58, s29, 7
            s_add_u32 s93, s93, s58
            s_and_b32 s94, s29, 7
            s_lshl_b32 s94, s94, 2
            """)
        def wo_issue(ts):
            for t in ts:
                A(f"""
                s_add_u32 s58, s94, {t}
                s_and_b32 s58, s58, 31
                s_lshl_b32 s58, s58, 16
                s_add_u32 s58, s58, s93
                s_add_u32 m0, s80, {t*4096}
                """)
                V.issue(f"buffer_load_dwordx4 v{VWO}, s[32:35], s58 offen lds", "wo")

        extra = {
            0: [lambda: csum(0)],
            1: [lambda: csum(1), statsA],
            2: [lambda: csum(2), statsB],
            3: [lambda: csum(3), lambda: statsC(0, 8)],
            4: [lambda: csum(4), lambda: statsC(8, 16), statsD],
            5: [pub_cs_key],
            7: [flag_s1],
            9: [poll_s1_check],
            10: [s1_loads],
            11: [s1_process],
            12: [xs_process, wo_setup],
            14: [lambda: wo_issue([30, 31, 4, 5, 6, 7, 16, 17, 18, 19, 26, 27])],
            15: [lambda: wo_issue([8, 9, 10, 11, 20, 21, 22, 23, 28, 29])],
        }
        for s in range(16):
            if s == 9: poll_s1_issue()
            if s + 2 < 16: issue_stage(s + 2)
            for f in extra.get(s, []): f()
            tags = {("st", s+1)}
            if s == 6: tags.add("pub")
            self.stamp(16+s)
            V.need(tags)
            self.stamp(32+s)
            A("s_barrier")
        self.stamp(2)
        wo_issue([0, 1, 2, 3, 12, 13, 14, 15, 24, 25])
        GW, DW = 168, 16
        A(f"""
        v_lshrrev_b32 v2, 3, v1
        v_and_b32 v3, 7, v1
        v_lshlrev_b32 v3, 4, v3
        v_mul_u32_u24 v4, 7168, v2
        v_add_u32 v4, v4, v3
        v_lshl_add_u32 v5, v2, 11, v3
        s_lshl_b32 s58, s89, 8
        s_lshl_b32 s59, s27, 6
        s_add_u32 s58, s58, s59
        s_mul_i32 s58, s58, 7168
        s_lshl_b32 s59, s88, 7
        s_add_u32 s58, s58, s59
        s_add_u32 s58, s58, s87
        """)
        for t in range(8):
            V.issue(f"buffer_load_dwordx4 {vr(GW+8*t,4)}, v4, s[36:39], s58 offen nt", ("gu", t))
            V.issue(f"buffer_load_dwordx4 {vr(GW+8*t+4,4)}, v4, s[40:43], s58 offen nt", ("gu", t))
            if t < 7: A(f"s_add_u32 s58, s58, {8*7168}")
        A(f"""
        s_lshl_b32 s58, s88, 6
        s_lshl_b32 s59, s89, 4
        s_add_u32 s58, s58, s59
        s_lshl_b32 s58, s58, 11
        s_lshl_b32 s59, s27, 9
        s_add_u32 s58, s58, s59
        s_add_u32 s58, s58, s87
        s_add_u32 s59, s58, {8*2048}
        """)
        for gq in range(4):
            V.issue(f"buffer_load_dwordx4 {vr(DW+8*gq,4)}, v5, s[44:47], s58 offen offset:{128*gq} nt", "dw")
            V.issue(f"buffer_load_dwordx4 {vr(DW+8*gq+4,4)}, v5, s[44:47], s59 offen offset:{128*gq} nt", "dw")
        AP, DT = 236, 240
        A(f"""
        v_lshrrev_b32 v2, 4, v1
        v_bfe_u32 v3, v1, 3, 1
        v_lshl_add_u32 v8, v2, 1, v3
        v_lshlrev_b32 v8, 2, v8
        v_mov_b32 v6, {L_FL}
        s_lshl_b32 s58, s27, 2
        v_add_u32 v7, s58, v6
        v_mov_b32 v48, 1
        """)
        for t in range(8):
            A(f"ds_bpermute_b32 v{50+t}, v8, v{XSV} offset:{32*t}")
        V.need({"wo"})
        A(f"ds_write_b32 v7, v48 offset:{FL_WO}")
        self.stamp(3)
        A(f"s_cmp_lg_u32 s87, 0\ns_cbranch_scc1 L_moe_done\ns_waitcnt lgkmcnt(0)")
        for t in range(8):
            for r in range(4): A(f"v_and_b32 v{AP+r}, v{50+t}, v{MSK+r}")
            V.need({("gu", t)})
            for m in range(2):
                c = "0" if t == 0 else vr(DT+4*m, 4)
                A(f"v_mfma_f32_16x16x32_bf16 {vr(DT+4*m,4)}, {vr(AP,4)}, {vr(GW+8*t+4*m,4)}, {c}")
            A("s_nop 3")
        def fold(base, n, tmp):
            for k in range(n):
                A(f"v_mov_b32_dpp v{base+k}, v{base+k} row_ror:8 row_mask:0xc bank_mask:0xf")
            for k in range(n):
                red_swap(A, base+k, tmp, 32)
        fold(DT, 8, 60)
        A(f"""
        v_and_b32 v2, 15, v1
        v_lshrrev_b32 v3, 4, v1
        v_lshlrev_b32 v61, 5, v2
        v_lshl_add_u32 v61, v3, 4, v61
        v_and_b32 v4, 0x28, v1
        v_cmp_eq_u32 s[96:97], 0, v4
        s_lshl_b32 s58, s27, 9
        s_add_u32 s58, s58, {L_GUS}
        v_add_u32 v2, s58, v61
        v_mov_b32 v3, {L_DUMMY}
        v_cndmask_b32 v2, v3, v2, s[96:97]
        ds_write_b128 v2, {vr(DT,4)}
        ds_write_b128 v2, {vr(DT+4,4)} offset:256
        s_waitcnt lgkmcnt(0)
        ds_write_b32 v7, v48 offset:{FL_GU}
        s_cmp_lg_u32 s27, 0
        s_cbranch_scc1 L_gu_pub_done
        """)
        self.spin_lds(6, FL_GU, 4, 64)
        A(f"v_and_b32 v2, 31, v1\nv_lshlrev_b32 v2, 4, v2\nv_add_u32 v3, {L_GUS}, v2")
        for w in range(4): A(f"ds_read_b128 {vr(64+4*w,4)}, v3 offset:{512*w}")
        A("s_waitcnt lgkmcnt(0)")
        for h in (0, 2):
            A(f"""
            v_pk_add_f32 {vr(64+h,2)}, {vr(64+h,2)}, {vr(68+h,2)}
            v_pk_add_f32 {vr(72+h,2)}, {vr(72+h,2)}, {vr(76+h,2)}
            v_pk_add_f32 {vr(64+h,2)}, {vr(64+h,2)}, {vr(72+h,2)}
            """)
        self.tag(64, VM)
        A(f"""
        v_cmp_gt_u32 vcc, 32, v1
        v_cndmask_b32 v2, v15, v2, vcc
        s_lshl_b32 s58, s2, 9
        s_add_u32 s58, s58, {WS_GUP}
        buffer_store_dwordx4 {vr(64,4)}, v2, s[16:19], s58 offen sc1
        L_gu_pub_done:
        v_bfe_u32 v2, v1, 3, 2
        v_lshlrev_b32 v2, 9, v2
        v_bfe_u32 v3, v1, 2, 1
        v_lshl_add_u32 v2, v3, 8, v2
        v_and_b32 v3, 3, v1
        v_lshl_add_u32 v2, v3, 4, v2
        s_lshl_b32 s58, s88, 11
        s_lshl_b32 s59, s89, 6
        s_add_u32 s58, s58, s59
        s_add_u32 s58, s58, {WS_GUP}
        """)
        self.stamp(4)
        self.spin_tag(lambda: A(f"buffer_load_dwordx4 {vr(64,4)}, v2, s[16:19], s58 offen sc1"), [64], 68)
        V.q = []
        self.stamp(5)
        for k in range(4): A(f"v_add_f32_dpp v{64+k}, v{64+k}, v{64+k} row_ror:8 row_mask:0xf bank_mask:0xf")
        for k in range(4): red_swap(A, 64+k, 68, 16)
        for k in range(4): rnd_bf16(A, 64+k)
        for k in range(4): A(f"v_mov_b32_dpp v{68+k}, v{64+k} row_ror:12 row_mask:0xf bank_mask:0xf")
        for k in range(4):
            A(f"""
            v_mul_f32 v72, {hex(LOG2E | 0x80000000)}, v{64+k}
            v_exp_f32 v72, v72
            v_add_f32 v72, 1.0, v72
            v_rcp_f32 v72, v72
            v_mul_f32 v{64+k}, v{64+k}, v72
            """)
            rnd_bf16(A, 64+k)
            A(f"v_mul_f32 v{64+k}, v{64+k}, v{68+k}\nv_cvt_pk_bf16_f32 v{64+k}, v{64+k}, v{64+k}")
        A(f"""
        s_lshl_b32 s58, s27, 6
        s_add_u32 s58, s58, {L_HT}
        v_add_u32 v2, s58, v{VL16}
        v_mov_b32 v3, {L_DUMMY}
        v_cmp_gt_u32 vcc, 4, v1
        v_cndmask_b32 v2, v3, v2, vcc
        ds_write_b128 v2, {vr(64,4)}
        v_add_u32 v3, s58, v8
        s_waitcnt lgkmcnt(0)
        ds_read_b32 v50, v3
        ds_read_b32 v51, v3 offset:32
        s_waitcnt lgkmcnt(0)
        """)
        for t in range(2):
            for r in range(4): A(f"v_and_b32 v{72+4*t+r}, v{50+t}, v{MSK+r}")
        for gq in range(4):
            A(f"v_mfma_f32_16x16x32_bf16 {vr(DT+4*gq,4)}, {vr(72,4)}, {vr(DW+8*gq,4)}, 0")
            A(f"v_mfma_f32_16x16x32_bf16 {vr(DT+4*gq,4)}, {vr(76,4)}, {vr(DW+8*gq+4,4)}, {vr(DT+4*gq,4)}")
        fold(DT, 16, 60)
        for gq in range(4): self.tag(DT+4*gq, VM)
        A(f"""
        v_cndmask_b32 v2, v15, v61, s[96:97]
        s_lshl_b32 s58, s2, 12
        s_add_u32 s58, s58, s80
        s_add_u32 s58, s58, {WS_YP}
        """)
        for gq in range(4):
            A(f"buffer_store_dwordx4 {vr(DT+4*gq,4)}, v2, s[16:19], s58 offen offset:{256*gq} sc1")
        A.label("L_moe_done")
        self.stamp(6)
        A(f"""
        s_lshr_b32 s58, s92, 7
        s_cmp_lg_u32 s58, s28
        s_cbranch_scc1 L_loader_end
        v_lshrrev_b32 v2, 4, v1
        v_lshlrev_b32 v2, 12, v2
        v_and_b32 v3, 15, v1
        v_lshl_add_u32 v2, v3, 4, v2
        s_mul_i32 s95, s27, {56*4096}
        s_lshl_b32 s59, s29, 8
        s_add_u32 s95, s95, s59
        s_add_u32 s95, s95, {WS_YP}
        """)
        def yl():
            A("s_mov_b32 s58, s95")
            for t in range(14):
                A(f"buffer_load_dwordx4 {vr(GW+4*t,4)}, v2, s[16:19], s58 offen sc1")
                if t < 13: A(f"s_add_u32 s58, s58, {4*4096}")
        self.spin_tag(yl, [GW+4*t for t in range(14)], 60)
        for t in range(1, 14):
            for h in (0, 2):
                A(f"v_pk_add_f32 {vr(GW+h,2)}, {vr(GW+h,2)}, {vr(GW+4*t+h,2)}")
        for k in range(4):
            red_swap(A, GW+k, 60, 16); red_swap(A, GW+k, 60, 32)
        A(f"""
        s_lshl_b32 s58, s27, 8
        s_add_u32 s58, s58, {L_YT}
        v_and_b32 v3, 15, v1
        v_lshlrev_b32 v3, 4, v3
        v_add_u32 v2, s58, v3
        ds_write_b128 v2, {vr(GW,4)}
        v_mov_b32 v6, {L_FL}
        s_lshl_b32 s58, s27, 2
        v_add_u32 v7, s58, v6
        v_mov_b32 v48, 1
        s_waitcnt lgkmcnt(0)
        ds_write_b32 v7, v48 offset:{FL_Y}
        s_cmp_lg_u32 s27, 0
        s_cbranch_scc1 L_loader_end
        """)
        self.spin_lds(6, FL_Y, 4, 64)
        A(f"v_add_u32 v2, {L_YT}, v3")
        for w in range(4): A(f"ds_read_b128 {vr(64+4*w,4)}, v2 offset:{256*w}")
        A(f"""
        s_and_b32 s58, s91, 0xffff0000
        s_ashr_i32 s59, s58, 31
        s_not_b32 s59, s59
        s_or_b32 s59, s59, 0x80000000
        s_xor_b32 s58, s58, s59
        s_and_b32 s58, s58, 0xffff0000
        v_mov_b32 v80, s58
        v_mul_f32 v80, {hex(LOG2E | 0x80000000)}, v80
        v_exp_f32 v80, v80
        v_add_f32 v80, 1.0, v80
        v_rcp_f32 v80, v80
        """)
        rnd_bf16(A, 80)
        A("s_waitcnt lgkmcnt(0)")
        for h in (0, 2):
            A(f"""
            v_pk_add_f32 {vr(64+h,2)}, {vr(64+h,2)}, {vr(68+h,2)}
            v_pk_add_f32 {vr(72+h,2)}, {vr(72+h,2)}, {vr(76+h,2)}
            v_pk_add_f32 {vr(64+h,2)}, {vr(64+h,2)}, {vr(72+h,2)}
            """)
        for k in range(4):
            rnd_bf16(A, 64+k)
            A(f"v_mul_f32 v{64+k}, v{64+k}, v80")
            rnd_bf16(A, 64+k)
        A(f"""
        v_add_u32 v2, {L_YF}, v3
        ds_write_b128 v2, {vr(64,4)}
        s_waitcnt lgkmcnt(0)
        ds_write_b32 v6, v48 offset:{FL_YF}
        L_loader_end:
        """)
        self.stamp(7)
        self.stamp_out()
        A("s_endpgm")

    def compute(self):
        A = self.A
        A.label("L_compute")
        self.sreg = 127
        self.stamp(0)
        A("s_setprio 2")
        srd(A, 32, 68, 0x400000)
        ACC = 128
        FA = lambda st, rf, ks: 16 + st*32 + (rf*2+ks)*4
        FB = lambda slot, ks: 80 + slot*8 + ks*4
        VA, VKV, VQ = 112, 114, 116
        N15, Q4 = 12, 13
        A(f"""
        s_lshr_b32 s36, s27, 1
        s_and_b32 s37, s27, 1
        v_and_b32 v{N15}, 15, v1
        v_lshrrev_b32 v{Q4}, 4, v1
        v_lshlrev_b32 v2, 2, v1
        v_add_u32 v2, {L_FL}, v2
        v_mov_b32 v3, 0
        ds_write_b32 v2, v3
        s_lshl_b32 s58, s36, 13
        v_lshlrev_b32 v14, 7, v{N15}
        v_add_u32 v14, s58, v14
        v_bfe_u32 v15, v{N15}, 1, 3
        """)
        for ks in range(2):
            A(f"v_add_u32 v2, {4*ks}, v{Q4}\nv_xor_b32 v2, v2, v15\nv_lshl_add_u32 v{VA+ks}, v2, 4, v14")
        A(f"""
        v_bfe_u32 v2, v1, 2, 2
        v_lshlrev_b32 v2, 6, v2
        v_and_b32 v3, 3, v1
        v_lshl_add_u32 v2, v3, 3, v2
        v_and_b32 v3, 1, v{Q4}
        v_lshl_add_u32 v10, v3, 5, v2
        s_lshl_b32 s58, s37, 8
        v_add_u32 v4, s58, v10
        v_lshl_add_u32 v{VKV}, v{Q4}, 11, v4
        v_add_u32 v{VKV}, {L_KV}, v{VKV}
        v_xor_b32 v{VKV+1}, 32, v{VKV}
        v_lshl_add_u32 v{VQ}, v{Q4}, 10, v4
        v_add_u32 v{VQ}, {L_Q}, v{VQ}
        v_xor_b32 v{VQ+1}, 32, v{VQ}
        """)
        L = LgkmTracker(A)
        def areads(s_):
            st = s_ & 1
            return [(f"ds_read_b128 {vr(FA(st,rf,ks),4)}, v{VA+ks} offset:{(s_%3)*16384+rf*2048}", ("A",s_)) for rf in range(4) for ks in range(2)]
        def breads(s_, cf):
            r = []
            slot = (s_*6+cf) % 4
            part, half = cf//2, cf % 2
            for ks in range(2):
                for rd in range(2):
                    g = 8*ks + rd
                    if part < 2:
                        r.append((f"ds_read_b64_tr_b16 {vr(FB(slot,ks)+2*rd,2)}, v{VKV+half} offset:{(s_%3)*16384+g*1024+part*512}", ("B",s_,cf)))
                    else:
                        r.append((f"ds_read_b64_tr_b16 {vr(FB(slot,ks)+2*rd,2)}, v{VQ+half} offset:{(s_%3)*8192+g*512}", ("B",s_,cf)))
            return r
        A("s_waitcnt lgkmcnt(0)")
        VM = 11
        self.nonce_setup(VM)
        A("s_barrier")
        self.stamp(1)
        PAT = [1,1,0,1,1,1,0,0]*2 + [1,1,1,1,1,1,0,0]
        for x in areads(0) + breads(0,0) + breads(0,1): L.issue(*x)
        for s_ in range(16):
            st = s_ & 1
            w1 = breads(s_,2) + breads(s_,3) + breads(s_,4) + breads(s_,5)
            w2 = (areads(s_+1) + breads(s_+1,0) + breads(s_+1,1)) if s_ < 15 else []
            for cf in range(6):
                slot = (s_*6+cf) % 4
                seq = [(rf,ks) for rf in range(4) for ks in ((0,1) if rf % 2 == 0 else (1,0))]
                for j,(rf,ks) in enumerate(seq):
                    g = (cf % 3)*8 + j
                    if j == 0:
                        if cf == 3:
                            L.drain(); A("s_barrier")
                        else:
                            L.need({("A",s_), ("B",s_,cf)})
                    acc = ACC + (rf*6+cf)*4
                    c = "0" if (s_ == 0 and j % 2 == 0) else vr(acc,4)
                    a, b = (FA(st,rf,ks), FB(slot,ks)) if cf < 4 else (FB(slot,ks), FA(st,rf,ks))
                    A(f"v_mfma_f32_16x16x32_bf16 {vr(acc,4)}, {vr(a,4)}, {vr(b,4)}, {c}")
                    w = w1 if cf < 3 else w2
                    if w and PAT[g]: L.issue(*w.pop(0))
            assert not w1 and not w2
        self.stamp(2)
        XR, ST2 = 224, 240
        A(f"""
        v_lshrrev_b32 v2, 3, v1
        v_and_b32 v3, 7, v1
        v_lshlrev_b32 v118, 11, v2
        v_lshl_add_u32 v118, v3, 4, v118
        v_lshlrev_b32 v119, 3, v2
        s_lshl_b32 s38, s28, 7
        s_lshl_b32 s58, s27, 5
        s_add_u32 s38, s38, s58
        s_lshl_b32 s39, s38, 11
        s_lshl_b32 s58, s29, 7
        s_add_u32 s39, s39, s58
        s_lshl_b32 s58, s38, 3
        s_add_u32 s58, s58, {WS_STAT}
        s_mov_b32 s59, s39
        """)
        for t in range(4):
            A(f"buffer_load_dwordx4 {vr(XR+4*t,4)}, v118, s[8:11], s59 offen")
            A(f"buffer_load_dwordx2 {vr(ST2+2*t,2)}, v119, s[16:19], s58 offen offset:{64*t} sc1")
            if t < 3: A(f"s_add_u32 s59, s59, {8*2048}")
        TM, TI, TL, CS = 16, 32, 48, 64
        PK, VV, ON, KT = 68, 84, 100, 20
        U, E = 104, 108
        A(f"""
        s_lshl_b32 s58, s36, 8
        v_lshl_add_u32 v2, v{Q4}, 4, s58
        v_add_u32 v2, {L_M}, v2
        s_lshl_b32 s58, s37, 7
        v_lshl_add_u32 v3, v{N15}, 2, s58
        v_add_u32 v3, {L_CS}, v3
        s_mov_b32 s40, 0x358637bd
        s_mov_b32 s41, 0x358637bd
        """)
        for cf in range(4): A(f"ds_read_b32 v{CS+cf}, v3 offset:{(cf>>1)*256 + (cf&1)*64}")
        for rf in range(4):
            A(f"ds_read_b128 {vr(TM+4*rf,4)}, v2 offset:{64*rf}")
            A(f"ds_read_b128 {vr(TI+4*rf,4)}, v2 offset:{64*rf + L_RI - L_M}")
            A(f"ds_read_b128 {vr(TL+4*rf,4)}, v2 offset:{64*rf + L_RL - L_M}")
        for k in range(4): A(f"v_mov_b32 v{ON+k}, 0x3f803f80")
        A("s_waitcnt lgkmcnt(0)")
        def bsel(reg, pos):
            base = reg & ~1; o = reg & 1
            return vr(base,2), o
        def phi4(a, m, m_b, c, c_b, rl, rl_b, ri, ri_b, dst):
            def opnd(r, b, h):
                if b:
                    p, o = bsel(r, 0); return p, o, o
                return vr(r+h,2), 0, 1
            for h in (0, 2):
                pm, ml, mh = opnd(m, m_b, h); pc, cl, ch = opnd(c, c_b, h)
                A(f"v_pk_fma_f32 {vr(U+h,2)}, {pm}, {pc}, {vr(a+h,2)} op_sel:[{ml},{cl},0] op_sel_hi:[{mh},{ch},1] neg_lo:[1,0,0] neg_hi:[1,0,0]")
            for h in (0, 2):
                p, lo, hi = opnd(rl, rl_b, h)
                A(f"v_pk_mul_f32 {vr(E+h,2)}, {vr(U+h,2)}, {p} op_sel:[0,{lo}] op_sel_hi:[1,{hi}]")
            for k in range(4): A(f"v_exp_f32 v{E+k}, v{E+k} clamp")
            for k in range(4): A(f"v_max_f32 v{U+k}, 0, v{U+k}")
            for h in (0, 2): A(f"v_pk_add_f32 {vr(E+h,2)}, {vr(E+h,2)}, s[40:41]")
            for h in (0, 2):
                p, lo, hi = opnd(ri, ri_b, h)
                A(f"v_pk_fma_f32 {vr(U+h,2)}, {vr(U+h,2)}, {p}, {vr(E+h,2)} op_sel:[0,{lo},0] op_sel_hi:[1,{hi},1]")
            A(f"v_cvt_pk_bf16_f32 v{dst}, v{U}, v{U+1}\nv_cvt_pk_bf16_f32 v{dst+1}, v{U+2}, v{U+3}")
        for rf in range(4):
            for cf in range(2):
                phi4(ACC+(rf*6+cf)*4, TM+4*rf, False, CS+cf, True, TL+4*rf, False, TI+4*rf, False, PK + (rf>>1)*8 + cf*4 + (rf&1)*2)
            for cf in range(2, 4):
                a = ACC+(rf*6+cf)*4
                pc, o = bsel(CS+cf, 0)
                for h in (0, 2):
                    A(f"v_pk_fma_f32 {vr(U+h,2)}, {vr(TM+4*rf+h,2)}, {pc}, {vr(a+h,2)} op_sel:[0,{o},0] op_sel_hi:[1,{o},1] neg_lo:[1,0,0] neg_hi:[1,0,0]")
                for h in (0, 2):
                    A(f"v_pk_mul_f32 {vr(U+h,2)}, {vr(U+h,2)}, {vr(TI+4*rf+h,2)}")
                d = VV + (rf>>1)*8 + (cf-2)*4 + (rf&1)*2
                A(f"v_cvt_pk_bf16_f32 v{d}, v{U}, v{U+1}\nv_cvt_pk_bf16_f32 v{d+1}, v{U+2}, v{U+3}")
        QM, QI, QL, QC = 44, 48, 52, 56
        A(f"""
        s_lshl_b32 s58, s36, 8
        v_lshl_add_u32 v2, v{N15}, 2, s58
        v_add_u32 v2, {L_M}, v2
        s_lshl_b32 s58, s37, 7
        v_lshl_add_u32 v3, v{Q4}, 4, s58
        v_add_u32 v3, {L_CS + 512}, v3
        """)
        for rf in range(4):
            A(f"ds_read_b32 v{QM+rf}, v2 offset:{64*rf}")
            A(f"ds_read_b32 v{QI+rf}, v2 offset:{64*rf + L_RI - L_M}")
            A(f"ds_read_b32 v{QL+rf}, v2 offset:{64*rf + L_RL - L_M}")
        for cf in range(2): A(f"ds_read_b128 {vr(QC+4*cf,4)}, v3 offset:{64*cf}")
        T = lambda eb, db: KT + (eb*2+db)*4
        for eb in range(3):
            for db in range(2):
                for ks2 in range(2):
                    b = vr(VV+ks2*8+eb*4,4) if eb < 2 else vr(ON,4)
                    c = "0" if ks2 == 0 else vr(T(eb,db),4)
                    A(f"v_mfma_f32_16x16x32_bf16 {vr(T(eb,db),4)}, {vr(PK+ks2*8+db*4,4)}, {b}, {c}")
        A(f"""
        s_lshl_b32 s42, s23, 1
        s_add_u32 s42, s42, s37
        s_lshl_b32 s43, s42, 5
        s_lshl_b32 s58, s22, 1
        s_add_u32 s58, s58, s36
        s_add_u32 s58, s58, s43
        s_lshl_b32 s59, s58, 7
        s_add_u32 s59, s59, {WS_ZP}
        s_lshl_b32 s58, s58, 12
        s_add_u32 s58, s58, {WS_KVP}
        v_lshlrev_b32 v120, 4, v1
        v_mov_b32 v121, {OOB}
        v_lshlrev_b32 v2, 4, v{Q4}
        v_cmp_eq_u32 vcc, 0, v{N15}
        v_cndmask_b32 v2, v121, v2, vcc
        """)
        for eb in range(2):
            for db in range(2):
                self.tag(T(eb,db), VM)
                A(f"buffer_store_dwordx4 {vr(T(eb,db),4)}, v120, s[16:19], s58 offen offset:{(eb*2+db)*1024} sc1")
        for db in range(2):
            self.tag(T(2,db), VM)
            A(f"buffer_store_dwordx4 {vr(T(2,db),4)}, v2, s[16:19], s59 offen offset:{64*db} sc1")
        self.stamp(3)
        PQ = 68
        A("s_waitcnt lgkmcnt(0)")
        for rf in range(4):
            for cf in range(2):
                phi4(ACC+(rf*6+4+cf)*4, QM+rf, True, QC+4*cf, False, QL+rf, True, QI+rf, True, PQ + rf*4 + cf*2)
        S = 128
        A("s_waitcnt vmcnt(6)")
        for t in range(4):
            m = ST2 + 2*t
            for k in range(4):
                x = XR + 4*t + k; d = S + 8*t + 2*k
                A(f"""
                v_lshlrev_b32 v{d}, 16, v{x}
                v_and_b32 v{d+1}, 0xffff0000, v{x}
                v_pk_add_f32 {vr(U,2)}, {vr(d,2)}, {vr(m,2)} op_sel_hi:[1,0] neg_lo:[0,1] neg_hi:[0,1]
                v_cvt_pk_bf16_f32 v{U+1}, v{U}, v{U+1}
                v_lshlrev_b32 v{U}, 16, v{U+1}
                v_and_b32 v{U+1}, 0xffff0000, v{U+1}
                v_pk_mul_f32 {vr(U,2)}, {vr(U,2)}, {vr(m,2)} op_sel:[0,1] op_sel_hi:[1,1]
                v_cvt_pk_bf16_f32 v{U+1}, v{U}, v{U+1}
                v_lshlrev_b32 v{U}, 16, v{U+1}
                v_and_b32 v{U+1}, 0xffff0000, v{U+1}
                v_pk_add_f32 {vr(d,2)}, {vr(d,2)}, {vr(U,2)}
                """)
        self.stamp(4)
        H1 = 16
        A(f"""
        v_lshrrev_b32 v2, 3, v1
        v_and_b32 v3, 7, v1
        v_lshlrev_b32 v3, 4, v3
        v_lshl_add_u32 v4, v2, 12, v3
        v_lshl_add_u32 v5, v2, 7, v3
        s_lshr_b32 s58, s22, 3
        s_lshl_b32 s59, s23, 1
        s_add_u32 s58, s58, s59
        s_lshl_b32 s44, s58, 17
        s_bfe_u32 s58, s22, 0x20001
        s_lshl_b32 s58, s58, 10
        s_add_u32 s44, s44, s58
        s_and_b32 s58, s22, 1
        s_lshl_b32 s58, s58, 9
        s_add_u32 s44, s44, s58
        s_lshl_b32 s58, s27, 7
        s_add_u32 s44, s44, s58
        s_add_u32 s44, s44, {WS_KVP}
        s_lshl_b32 s45, s42, 12
        s_add_u32 s45, s45, {WS_ZP}
        """)
        def h1():
            A("s_mov_b32 s58, s44")
            for t in range(4):
                A(f"buffer_load_dwordx4 {vr(H1+4*t,4)}, v4, s[16:19], s58 offen sc1")
                A(f"buffer_load_dwordx4 {vr(H1+16+4*t,4)}, v5, s[16:19], s45 offen offset:{1024*t} sc1")
                if t < 3: A(f"s_add_u32 s58, s58, {8*4096}")
        self.spin_tag(h1, [H1+4*t for t in range(8)], 48)
        self.stamp(5)
        for b in (H1, H1+16):
            for h in (0, 2):
                A(f"""
                v_pk_add_f32 {vr(b+h,2)}, {vr(b+h,2)}, {vr(b+4+h,2)}
                v_pk_add_f32 {vr(b+8+h,2)}, {vr(b+8+h,2)}, {vr(b+12+h,2)}
                v_pk_add_f32 {vr(b+h,2)}, {vr(b+h,2)}, {vr(b+8+h,2)}
                """)
        def red81632(b):
            for k in range(4): A(f"v_add_f32_dpp v{b+k}, v{b+k}, v{b+k} row_ror:8 row_mask:0xf bank_mask:0xf")
            for wh in (16, 32):
                for k in range(4): A(f"v_mov_b32 v{b+4+k}, v{b+k}")
                for k in range(4): A(f"v_permlane{wh}_swap_b32 v{b+k}, v{b+4+k}")
                for h in (0, 2): A(f"v_pk_add_f32 {vr(b+h,2)}, {vr(b+h,2)}, {vr(b+4+h,2)}")
        red81632(H1)
        self.tag(H1, VM)
        A(f"""
        s_lshl_b32 s58, s23, 4
        s_add_u32 s58, s58, s22
        s_lshl_b32 s58, s58, 9
        s_lshl_b32 s59, s27, 7
        s_add_u32 s58, s58, s59
        s_add_u32 s58, s58, {WS_KVF}
        v_cmp_gt_u32 vcc, 8, v1
        v_cndmask_b32 v2, v121, v120, vcc
        buffer_store_dwordx4 {vr(H1,4)}, v2, s[16:19], s58 offen sc1
        """)
        red81632(H1+16)
        A(f"v_cvt_pk_bf16_f32 v{H1+16}, v{H1+16}, v{H1+17}\nv_cvt_pk_bf16_f32 v{H1+17}, v{H1+18}, v{H1+19}")
        ZF, KF = 48, 52
        A(f"""
        v_lshlrev_b32 v2, 2, v{Q4}
        ds_bpermute_b32 v{ZF}, v2, v{H1+16}
        ds_bpermute_b32 v{ZF+1}, v2, v{H1+17}
        ds_bpermute_b32 v{ZF+2}, v2, v{H1+16} offset:16
        ds_bpermute_b32 v{ZF+3}, v2, v{H1+17} offset:16
        s_lshl_b32 s46, s42, 12
        s_add_u32 s46, s46, {WS_KVF}
        """)
        H2 = 84
        def h2():
            for k in range(4):
                A(f"buffer_load_dwordx4 {vr(H2+4*k,4)}, v120, s[16:19], s46 offen offset:{1024*k} sc1")
        self.spin_tag(h2, [H2+4*k for k in range(4)], 60)
        for k in range(8): A(f"v_cvt_pk_bf16_f32 v{KF+k}, v{H2+2*k}, v{H2+2*k+1}")
        self.stamp(6)
        NT = lambda rf, eb: 160 + (rf*3+eb)*4
        A("s_waitcnt lgkmcnt(0)")
        for rf in range(4):
            for eb in (2, 0, 1):
                a = vr(ZF,4) if eb == 2 else vr(KF+4*eb,4)
                A(f"v_mfma_f32_16x16x32_bf16 {vr(NT(rf,eb),4)}, {a}, {vr(PQ+4*rf,4)}, 0")
        A(f"""
        s_lshl_b32 s58, s22, 3
        s_lshl_b32 s59, s36, 2
        s_add_u32 s58, s58, s59
        s_lshl_b32 s58, s58, 5
        s_add_u32 s58, s58, s42
        s_lshl_b32 s58, s58, 10
        """)
        for rf in range(4):
            d = NT(rf,2)
            A(f"v_add_f32 v{d}, s40, v{d}\nv_rcp_f32 v{d}, v{d}")
        for rf in range(4):
            d = NT(rf,2); o = 16 + 4*rf
            for eb in range(2):
                n = NT(rf,eb)
                for h in (0, 2):
                    A(f"v_pk_mul_f32 {vr(n+h,2)}, {vr(n+h,2)}, {vr(d,2)} op_sel_hi:[1,0]")
                A(f"v_cvt_pk_bf16_f32 v{o+2*eb}, v{n}, v{n+1}\nv_cvt_pk_bf16_f32 v{o+2*eb+1}, v{n+2}, v{n+3}")
            A(f"buffer_store_dwordx4 {vr(o,4)}, v120, s[16:19], s58 offen sc1")
            if rf < 3: A(f"s_add_u32 s58, s58, 32768")
        A(f"""
        s_lshl_b32 s58, s22, 1
        s_add_u32 s58, s58, s36
        s_lshl_b32 s58, s58, 5
        s_add_u32 s58, s58, s42
        s_lshl_b32 s58, s58, 2
        s_add_u32 s58, s58, {WS_OF}
        v_cmp_eq_u32 vcc, 0, v1
        v_cndmask_b32 v2, v121, v120, vcc
        v_mov_b32 v3, s60
        s_waitcnt vmcnt(0)
        buffer_store_dword v3, v2, s[16:19], s58 offen sc1
        """)
        self.stamp(7)
        G2 = 160
        B2 = lambda slot, ks: 80 + slot*8 + ks*4
        OW = [16 + 8*k for k in range(8)] + [192 + 8*k for k in range(7)]
        NW = len(OW)
        VW = 112
        A(f"""
        v_lshl_add_u32 v{VW}, v{Q4}, 9, v10
        v_xor_b32 v{VW+1}, 32, v{VW}
        v_add_u32 v{VW+2}, 0x10000, v{VW}
        v_add_u32 v{VW+3}, 0x10000, v{VW+1}
        v_add_u32 v116, 32768, v120
        s_lshl_b32 s47, s28, 3
        s_lshl_b32 s58, s27, 1
        s_add_u32 s47, s47, s58
        s_lshl_b32 s47, s47, 15
        s_and_b32 s48, s29, 7
        s_lshl_b32 s48, s48, 2
        v_and_b32 v117, 31, v1
        v_lshlrev_b32 v117, 2, v117
        v_mov_b32 v122, {L_FL}
        s_lshl_b32 s50, s28, 1
        s_add_u32 s50, s50, s36
        s_lshl_b32 s50, s50, 7
        s_add_u32 s50, s50, {WS_OF}
        """)
        self.spin_lds(122, FL_WO, 4, 4)
        A(f"""
        s_mov_b32 s57, 0
        L_s3:
        buffer_load_dword v4, v117, s[16:19], s50 offen sc1
        s_waitcnt vmcnt(0)
        v_cmp_ne_u32 vcc, s60, v4
        s_add_u32 s57, s57, 1
        s_nop 1
        s_cbranch_vccz L_s3d
        s_sleep {self.opt.get("sleep", 2)}
        s_cmp_lt_u32 s57, {SPIN_MAX}
        s_cbranch_scc1 L_s3
        L_s3d:
        """)
        self.stamp(8)
        V = VmTracker(A)
        def oload(t):
            r = OW[t % NW]
            A(f"s_add_u32 s58, s48, {t}\ns_and_b32 s58, s58, 31\ns_lshl_b32 s58, s58, 10\ns_add_u32 s58, s58, s47")
            V.issue(f"buffer_load_dwordx4 {vr(r,4)}, v120, s[16:19], s58 offen sc1", ("o", t))
            V.issue(f"buffer_load_dwordx4 {vr(r+4,4)}, v116, s[16:19], s58 offen sc1", ("o", t))
        for t in range(NW): oload(t)
        L = LgkmTracker(A)
        def wreads(pr, nf):
            slot = nf
            r = []
            for ks in range(2):
                t = 2*pr + ks
                for rd in range(2):
                    r.append((f"ds_read_b64_tr_b16 {vr(B2(slot,ks)+2*rd,2)}, v{VW + (nf&1) + 2*(t>>4)} offset:{(t&15)*4096 + rd*2048 + (nf>>1)*256}", ("W",pr,nf)))
            return r
        for nf in range(3):
            for x in wreads(0, nf): L.issue(*x)
        nxt = NW
        for pr in range(16):
            for nf in range(4):
                g = pr*4 + nf + 3
                w = wreads(g//4, g % 4) if g < 64 else []
                if nf == 0: V.need({("o", 2*pr), ("o", 2*pr+1)})
                L.need({("W",pr,nf)})
                for j,(rf,ks) in enumerate(((0,0),(0,1),(1,1),(1,0))):
                    acc = G2 + (rf*4+nf)*4
                    c = "0" if (pr == 0 and j % 2 == 0) else vr(acc,4)
                    A(f"v_mfma_f32_16x16x32_bf16 {vr(acc,4)}, {vr(B2(nf,ks),4)}, {vr(OW[(2*pr+ks) % NW]+4*rf,4)}, {c}")
                    if w: L.issue(*w.pop(0))
            while nxt < 32 and nxt - NW <= 2*pr + 1:
                oload(nxt); nxt += 1
        self.stamp(9)
        A(f"""
        s_mul_i32 s58, s27, 4608
        s_add_u32 s58, s58, {L_TR}
        v_mul_u32_u24 v2, 144, v{N15}
        v_lshl_add_u32 v2, v{Q4}, 3, v2
        v_add_u32 v2, s58, v2
        v_lshrrev_b32 v3, 3, v1
        v_mul_u32_u24 v3, 144, v3
        v_and_b32 v4, 7, v1
        v_lshl_add_u32 v3, v4, 4, v3
        v_add_u32 v3, s58, v3
        ds_read_b32 v6, v122 offset:{FL_SEL}
        """)
        for rf in range(2):
            for nf in range(4):
                a = G2 + (rf*4+nf)*4; d = 16 + (rf*4+nf)*2
                A(f"v_cvt_pk_bf16_f32 v{d}, v{a}, v{a+1}\nv_cvt_pk_bf16_f32 v{d+1}, v{a+2}, v{a+3}")
                A(f"ds_write_b64 v2, {vr(d,2)} offset:{rf*16*144 + nf*32}")
        A("s_waitcnt lgkmcnt(0)")
        for t in range(4): A(f"ds_read_b128 {vr(32+4*t,4)}, v3 offset:{t*8*144}")
        A(f"""
        v_readfirstlane_b32 s52, v6
        s_sub_u32 s52, s52, s38
        s_cmp_lt_u32 s52, 32
        s_cbranch_scc0 L_no_moe
        """)
        self.spin_lds(122, FL_YF, 1, 5)
        A(f"""
        v_lshlrev_b32 v4, 5, v4
        v_add_u32 v4, {L_YF}, v4
        ds_read_b128 v[48:51], v4
        ds_read_b128 v[52:55], v4 offset:16
        v_lshrrev_b32 v5, 3, v1
        s_waitcnt lgkmcnt(0)
        """)
        for t in range(4):
            A(f"v_add_u32 v7, {8*t}, v5\nv_cmp_eq_u32 vcc, s52, v7")
            for k in range(8):
                A(f"v_cndmask_b32 v56, 0, v{48+k}, vcc\nv_add_f32 v{S+8*t+k}, v{S+8*t+k}, v56")
        A("L_no_moe:\ns_waitcnt lgkmcnt(0)")
        for t in range(4):
            for k in range(4):
                a = 32 + 4*t + k; s_ = S + 8*t + 2*k
                A(f"""
                v_lshlrev_b32 v{U}, 16, v{a}
                v_and_b32 v{U+1}, 0xffff0000, v{a}
                v_pk_add_f32 {vr(U,2)}, {vr(U,2)}, {vr(s_,2)}
                v_cvt_pk_bf16_f32 v{a}, v{U}, v{U+1}
                """)
            A(f"buffer_store_dwordx4 {vr(32+4*t,4)}, v118, s[32:35], s39 offen")
            if t < 3: A(f"s_add_u32 s39, s39, {8*2048}")
        self.stamp(10)
        self.stamp_out()
        A("L_end:\ns_endpgm")

    def build(self):
        self.prologue()
        self.loader()
        self.compute()
        body = hazard.fix(self.A.lines)
        hdr = open(os.path.join(os.path.dirname(os.path.abspath(__file__)), "header.txt")).read()
        out = hdr + f"; @launch grid=(256,1,1) block=(512,1,1) lds={LDS_SIZE}\n"
        out += f""".amdgcn_target "amdgcn-amd-amdhsa--gfx950"
.text
.globl {NAME}_kernel
.p2align 8
.type {NAME}_kernel,@function
{NAME}_kernel:
"""
        out += "\n".join(body) + "\n"
        out += f""".section .rodata,"a"
.p2align 6
.amdhsa_kernel {NAME}_kernel
  .amdhsa_next_free_vgpr 256
  .amdhsa_next_free_sgpr 102
  .amdhsa_accum_offset 256
  .amdhsa_group_segment_fixed_size 0
  .amdhsa_kernarg_size 88
  .amdhsa_user_sgpr_count 2
  .amdhsa_user_sgpr_kernarg_segment_ptr 1
  .amdhsa_system_sgpr_workgroup_id_x 1
  .amdhsa_float_denorm_mode_32 3
.end_amdhsa_kernel
"""
        return out

if __name__ == "__main__":
    diag = "--diag" in sys.argv
    out = [a for a in sys.argv[1:] if not a.startswith("--")]
    path = out[0] if out else f"cdna_kernels/{NAME}.s"
    kw = {}
    for a in sys.argv[1:]:
        if a.startswith("--") and "=" in a:
            k_, v_ = a[2:].split("="); kw[k_] = eval(v_)
    open(path, "w").write(Gen(diag=diag, **kw).build())
    print("wrote", path)
```

```python
class Asm:
    def __init__(self):
        self.lines = []
    def __call__(self, s):
        for l in s.strip("\n").split("\n"):
            l = l.strip()
            if not l: continue
            if l.endswith(":") or l.startswith(".") or l.startswith(";"):
                self.lines.append(l)
            else:
                self.lines.append("    " + l)
    def label(self, n): self.lines.append(n + ":")
    def text(self): return "\n".join(self.lines) + "\n"

def vr(b, n=1):
    return f"v{b}" if n == 1 else f"v[{b}:{b+n-1}]"
def ar(b, n=1):
    return f"a{b}" if n == 1 else f"a[{b}:{b+n-1}]"
def sr(b, n=1):
    return f"s{b}" if n == 1 else f"s[{b}:{b+n-1}]"

class LgkmTracker:
    def __init__(self, A):
        self.A = A
        self.q = []
    def issue(self, text, tag):
        self.A(text)
        self.q.append(tag)
    def need(self, tags):
        last = -1
        for i, t in enumerate(self.q):
            if t in tags: last = i
        if last < 0: return
        n = len(self.q) - 1 - last
        n = min(n, 15)
        self.A(f"s_waitcnt lgkmcnt({n})")
        self.q = self.q[len(self.q)-n:] if n > 0 else []
    def drain(self):
        if self.q:
            self.A("s_waitcnt lgkmcnt(0)")
            self.q = []

class VmTracker:
    def __init__(self, A):
        self.A = A
        self.q = []
    def issue(self, text, tag=None):
        self.A(text)
        if "_store_" not in text: self.q.append(tag)
    def need(self, tags):
        last = -1
        for i, t in enumerate(self.q):
            if t in tags: last = i
        if last < 0: return
        n = len(self.q) - 1 - last
        assert n <= 63, n
        self.A(f"s_waitcnt vmcnt({n})")
        self.q = self.q[len(self.q)-n:] if n > 0 else []
    def drain(self):
        self.A("s_waitcnt vmcnt(0)")
        self.q = []

class Rec:
    def __init__(self):
        self.atoms = []
        self._blk = None
    def _add(self, item):
        if self._blk is not None: self._blk.append(item)
        else: self.atoms.append([item])
    def __call__(self, s):
        for l in s.strip("\n").split("\n"):
            l = l.strip()
            if l: self._add(("t", l))
    def label(self, n): self._add(("t", n + ":"))
    def issue(self, text, tag=None): self._add(("i", text, tag))
    def need(self, tags): self._add(("n", tags))
    def begin(self):
        assert self._blk is None; self._blk = []
    def end(self):
        self.atoms.append(self._blk); self._blk = None

def replay(atom, A, V):
    for it in atom:
        if it[0] == "t": A(it[1])
        elif it[0] == "i": V.issue(it[1], it[2])
        else: V.need(it[1])

import re as _re
_SCC_W = ("s_cmp", "s_add", "s_sub", "s_and", "s_or", "s_xor", "s_lshl", "s_lshr", "s_ashr", "s_not", "s_bfe", "s_min", "s_max", "s_bitcmp")
_SCC_R = ("s_cselect", "s_cbranch_scc", "s_addc", "s_subb")
def group_atoms(items):
    n = len(items)
    txt = [it[1] if it[0] in "ti" else "" for it in items]
    glue = [False]*n
    def span(a, b):
        for k in range(a+1, b+1): glue[k] = True
    labs = {}
    for i, t in enumerate(txt):
        if t.endswith(":"): labs.setdefault(t[:-1], []).append(i)
        m = _re.match(r"s_c?branch\S*\s+(\S+)", t)
        if m: labs.setdefault(m.group(1), []).append(i)
    for l, idx in labs.items(): span(min(idx), max(idx))
    lastw = None
    for i, t in enumerate(txt):
        op = t.split()[0] if t else ""
        if op.startswith(_SCC_R) and lastw is not None: span(lastw, i)
        if op.startswith(_SCC_W): lastw = i
        if " m0," in t and i + 1 < n: glue[i+1] = True
        if t.endswith(":") and i > 0: glue[i] = True
    atoms = []
    for i, it in enumerate(items):
        if glue[i] and atoms: atoms[-1].append(it)
        else: atoms.append([it])
    return atoms

class Switch:
    def __init__(self, A):
        self.real = A; self.V = VmTracker(A); self.rec = None
    def __call__(self, s): (self.rec or self.real)(s)
    def label(self, n): (self.rec or self.real).label(n)
    def issue(self, text, tag=None): (self.rec or self.V).issue(text, tag)
    def need(self, tags): (self.rec or self.V).need(tags)
    def record(self, fns):
        self.rec = Rec()
        for f in fns: f()
        items = [it for a in self.rec.atoms for it in a]
        self.rec = None
        return group_atoms(items)
```

```python
import sys, os
sys.path.insert(0, os.path.dirname(os.path.abspath(__file__)))
from asmlib import *
import hazard

NAME = "parallel_sum__linear_attn_block__moe_arch_mod__prompt"

WS_O, WS_KVP, WS_ZP, WS_KVF = 0x000000, 0x400000, 0x800000, 0x860000
WS_X, WS_OF = 0x838000, 0x840000
WS_STAT, WS_KEY, WS_CSP, WS_GUP, WS_YP = 0x830000, 0x834000, 0x8A0000, 0x880000, 0x900000
WS_DIAG = 0xA00000
WS_SIZE = 0xA80000
OOB = 0x40000000
L_A, L_KV, L_Q = 0, 49152, 98304
L_M, L_RI, L_RL = 131072, 131584, 132096
L_CS = 132608
L_FL = 133376
FL_WO, FL_GU, FL_Y, FL_YF, FL_OC, FL_SEL, FL_NON, FL_KEY, FL_S3, FL_TAB, FL_C15 = 0, 16, 32, 48, 52, 56, 60, 64, 80, 96, 112
L_GUS = 133632
L_HT = 135680
L_YT = 135936
L_YF = 136960
L_DUMMY = 137216
L_TR = 138240
L_ST2 = 138240 + 4*4608
LDS_SIZE = L_ST2 + 1024
SPIN_MAX = 1 << 15
LOG2E = 0x3fb8aa3b

def order_tables():
    out = []
    for q in range(4):
        seq = [q]
        for g in range(4):
            others = [4*g + p for p in range(4) if p != q]
            oi = 0
            for sl in range(4):
                if sl == q and g < 3: seq.append(4*(g+1)+q)
                elif oi < 3: seq.append(others[oi]); oi += 1
        assert sorted(seq) == list(range(16))
        out.append(seq)
    return out
def pack4(seq):
    v = 0
    for i, c in enumerate(seq): v |= c << (4*i)
    return v

def srd(A, d, lo, size):
    A(f"s_mov_b32 s{d}, s{lo}\ns_mov_b32 s{d+1}, s{lo+1}\ns_mov_b32 s{d+2}, {hex(size)}\ns_mov_b32 s{d+3}, 0x20000")

def red_row(A, v, op="v_add_f32"):
    for r in (8, 4, 2, 1):
        A(f"{op}_dpp v{v}, v{v}, v{v} row_ror:{r} row_mask:0xf bank_mask:0xf")
def red_swap(A, v, t, which, op="v_add_f32"):
    A(f"v_mov_b32 v{t}, v{v}\nv_permlane{which}_swap_b32 v{v}, v{t}\n{op} v{v}, v{v}, v{t}")
def unpack(A, dlo, dhi, s):
    A(f"v_lshlrev_b32 v{dlo}, 16, v{s}\nv_and_b32 v{dhi}, 0xffff0000, v{s}")
def rnd_bf16(A, v):
    A(f"v_cvt_pk_bf16_f32 v{v}, v{v}, v{v}\nv_lshlrev_b32 v{v}, 16, v{v}")

class Gen:
    def __init__(self, diag=False, **kw):
        self.A = Asm()
        self.diag = diag
        self.nlab = 0
        self.opt = kw
        self.swap = kw.get("swap", 1)
    def lab(self, p):
        self.nlab += 1
        return f"L_{p}{self.nlab}"
    def stamp(self, slot):
        if not self.diag: return
        self.A(f"s_memrealtime s[98:99]\ns_waitcnt lgkmcnt(0)\nv_writelane_b32 v{self.sreg}, s98, {slot}")
        if slot < 16: self.A(f"s_memtime s[98:99]\ns_waitcnt lgkmcnt(0)\nv_writelane_b32 v{self.sreg}, s98, {48+slot}")
    def stamp_out(self):
        if not self.diag: return
        A = self.A
        A(f"""
        s_lshl_b32 s56, s2, 3
        s_xor_b32 s57, s26, {4 if self.swap else 0}
        s_add_u32 s56, s56, s57
        s_lshl_b32 s56, s56, 8
        s_add_u32 s56, s56, {WS_DIAG}
        v_and_b32 v2, 63, v0
        v_lshlrev_b32 v3, 2, v2
        buffer_store_dword v{self.sreg}, v3, s[16:19], s56 offen
        """)

    def spin_vm(self, issue, regs, tmp, cnt="s57"):
        A = self.A
        top, done = self.lab("sp"), self.lab("spd")
        A(f"s_mov_b32 {cnt}, 0")
        A.label(top)
        issue()
        A("s_waitcnt vmcnt(0)")
        r = list(regs)
        A(f"v_max_u32 v{tmp}, v{r[0]}, v{r[1]}" if len(r) > 1 else f"v_mov_b32 v{tmp}, v{r[0]}")
        k = 2
        while k < len(r):
            if k + 1 < len(r):
                A(f"v_max3_u32 v{tmp}, v{tmp}, v{r[k]}, v{r[k+1]}"); k += 2
            else:
                A(f"v_max_u32 v{tmp}, v{tmp}, v{r[k]}"); k += 1
        A(f"""
        v_cmp_eq_u32 vcc, -1, v{tmp}
        s_add_u32 {cnt}, {cnt}, 1
        s_nop 1
        s_cbranch_vccz {done}
        s_cmp_lt_u32 {cnt}, {SPIN_MAX}
        s_cbranch_scc1 {top}
        """)
        A.label(done)

    def nonce_setup(self, vmask):
        self.A(f"""
        s_add_u32 s60, s3, 1
        s_lshr_b32 s61, s60, 8
        s_lshr_b32 s62, s60, 16
        s_lshr_b32 s63, s60, 24
        s_mov_b32 s64, 0x0c0c0400
        s_mov_b32 s65, 0x04000c0c
        v_mov_b32 v{vmask}, 0xff
        """)
    def tag(self, base, vmask):
        for k in range(4):
            self.A(f"v_bfi_b32 v{base+k}, v{vmask}, s{60+k}, v{base+k}")
    def spin_tag(self, issue, chunks, tmp, cnt="s57", pre=False):
        A = self.A
        top, done = self.lab("sp"), self.lab("spd")
        chk = self.lab("spc")
        A(f"s_mov_b32 {cnt}, 0")
        if pre: A(f"s_branch {chk}")
        A.label(top)
        issue()
        A("s_waitcnt vmcnt(0)")
        if pre: A.label(chk)
        mx, mn, t0, t1, t2 = tmp, tmp+1, tmp+2, tmp+3, tmp+4
        def pk(c, d, t):
            A(f"v_perm_b32 v{d}, v{c+1}, v{c}, s64\nv_perm_b32 v{t}, v{c+3}, v{c+2}, s65\nv_or_b32 v{d}, v{d}, v{t}")
        ch = list(chunks)
        pk(ch[0], mx, t2); A(f"v_mov_b32 v{mn}, v{mx}")
        k = 1
        while k < len(ch):
            pk(ch[k], t0, t2)
            if k + 1 < len(ch):
                pk(ch[k+1], t1, t2)
                A(f"v_max3_u32 v{mx}, v{mx}, v{t0}, v{t1}\nv_min3_u32 v{mn}, v{mn}, v{t0}, v{t1}"); k += 2
            else:
                A(f"v_max_u32 v{mx}, v{mx}, v{t0}\nv_min_u32 v{mn}, v{mn}, v{t0}"); k += 1
        A(f"""
        v_cmp_ne_u32 vcc, s60, v{mx}
        v_cmp_ne_u32 s[66:67], s60, v{mn}
        s_add_u32 {cnt}, {cnt}, 1
        s_or_b64 vcc, vcc, s[66:67]
        s_cbranch_scc0 {done}
        s_sleep {self.opt.get("sleep", 4)}
        s_cmp_lt_u32 {cnt}, {SPIN_MAX}
        s_cbranch_scc1 {top}
        """)
        A.label(done)
        for c in ch:
            for k in range(4): A(f"v_and_b32 v{c+k}, 0xffffff00, v{c+k}")

    def spin_lds(self, addr_v, off, nflags, tmp, cnt="s57"):
        A = self.A
        top, done = self.lab("sl"), self.lab("sld")
        A(f"s_mov_b32 {cnt}, 0")
        A.label(top)
        if nflags == 4:
            A(f"""
            ds_read_b128 v[{tmp}:{tmp+3}], v{addr_v} offset:{off}
            s_waitcnt lgkmcnt(0)
            v_min_u32 v{tmp}, v{tmp}, v{tmp+1}
            v_min3_u32 v{tmp}, v{tmp}, v{tmp+2}, v{tmp+3}
            """)
        else:
            A(f"ds_read_b32 v{tmp}, v{addr_v} offset:{off}\ns_waitcnt lgkmcnt(0)")
        A(f"""
        v_cmp_eq_u32 vcc, 0, v{tmp}
        s_add_u32 {cnt}, {cnt}, 1
        s_nop 1
        s_cbranch_vccz {done}
        s_sleep 1
        s_cmp_lt_u32 {cnt}, {SPIN_MAX*8}
        s_cbranch_scc1 {top}
        """)
        A.label(done)

    def prologue(self):
        A = self.A
        A(f"""
        s_cmp_ge_u32 s2, 256
        s_cbranch_scc1 L_end
        s_load_dwordx4 s[4:7], s[0:1], 0
        s_load_dwordx2 s[56:57], s[0:1], 16
        s_load_dwordx8 s[60:67], s[0:1], 32
        s_load_dwordx4 s[68:71], s[0:1], 64
        s_load_dwordx2 s[72:73], s[0:1], 80
        v_lshrrev_b32 v2, 6, v0
        v_and_b32 v1, 63, v0
        s_and_b32 s20, s2, 7
        v_readfirstlane_b32 s26, v2
        s_lshr_b32 s21, s2, 3
        s_and_b32 s24, s21, 7
        s_lshr_b32 s25, s21, 3
        s_and_b32 s30, s20, 1
        s_lshl_b32 s22, s30, 3
        s_add_u32 s22, s22, s24
        s_lshr_b32 s31, s20, 1
        s_lshl_b32 s23, s31, 2
        s_add_u32 s23, s23, s25
        s_and_b32 s27, s26, 3
        s_lshl_b32 s28, s30, 3
        s_and_b32 s58, s31, 1
        s_lshl_b32 s58, s58, 2
        s_add_u32 s28, s28, s58
        s_and_b32 s58, s21, 3
        s_add_u32 s28, s28, s58
        s_lshr_b32 s29, s20, 2
        s_lshl_b32 s29, s29, 3
        s_lshr_b32 s58, s21, 2
        s_add_u32 s29, s29, s58
        s_waitcnt lgkmcnt(0)
        """)
        srd(A, 8, 4, 0x400000)
        srd(A, 12, 6, 0x600000)
        srd(A, 16, 72, WS_SIZE)
        A(f"s_add_u32 s72, s72, {WS_X}\ns_addc_u32 s73, s73, 0\ns_load_dword s3, s[72:73], 0")
        A(("s_cmp_ge_u32" if self.swap else "s_cmp_lt_u32") + " s26, 4\ns_cbranch_scc1 L_loader")
        srd(A, 52, 60, 2048)
        A(f"""
        v_and_b32 v2, 31, v1
        v_lshlrev_b32 v2, 4, v2
        v_lshrrev_b32 v3, 5, v1
        v_lshl_add_u32 v4, v3, 11, v2
        s_lshl_b32 s85, s22, 7
        s_lshl_b32 s58, s23, 3
        s_add_u32 s85, s85, s58
        s_lshl_b32 s58, s27, 1
        s_add_u32 s85, s85, s58
        s_lshl_b32 s58, s85, 11
        """)
        for t in range(4): A(f"buffer_load_dwordx4 {vr(16+4*t,4)}, v4, s[8:11], s58 offen offset:{512*t}{' nt' if self.opt.get('ntsx') else ''}")
        for t in range(4): A(f"buffer_load_dwordx4 {vr(32+4*t,4)}, v2, s[52:55], 0 offen offset:{512*t}")
        if self.opt.get("bar0"): A("s_barrier")
        A("s_branch L_compute\nL_loader:")

    def loader(self):
        A0 = self.A
        A = V = self.A = Switch(A0)
        self.sreg = 99
        self.stamp(0)
        tabs = [pack4(o) for o in order_tables()]
        VAo, VKVo, VQo, VL16 = 10, 11, 12, 13
        A(f"""
        ; ---- DMA lane offsets ----
        v_lshrrev_b32 v2, 3, v1
        v_lshrrev_b32 v3, 4, v1
        s_and_b32 s58, s27, 1
        s_lshl_b32 s59, s58, 2
        v_add_u32 v3, s59, v3
        v_and_b32 v4, 7, v1
        v_xor_b32 v3, v3, v4
        v_lshlrev_b32 v2, 11, v2
        v_lshl_add_u32 v{VAo}, v3, 4, v2
        v_and_b32 v5, 3, v1
        v_lshlrev_b32 v5, 4, v5
        v_bfe_u32 v6, v1, 4, 1
        v_lshl_add_u32 v5, v6, 6, v5
        v_bfe_u32 v6, v1, 2, 2
        v_lshrrev_b32 v7, 5, v1
        v_mul_u32_u24 v8, 6144, v6
        v_add_u32 v8, v8, v5
        v_lshl_add_u32 v{VKVo}, v7, 11, v8
        v_mul_u32_u24 v7, {4*6144}, v7
        v_add_u32 v{VQo}, v7, v8
        s_lshr_b32 s59, s27, 1
        s_lshl_b32 s59, s59, 5
        v_xor_b32 v{VKVo}, s59, v{VKVo}
        s_lshl_b32 s59, s58, 5
        v_xor_b32 v{VQo}, s59, v{VQo}
        s_sub_u32 s74, s24, s25
        s_and_b32 s74, s74, 3
        s_mov_b32 s76, {tabs[0] & 0xffffffff}
        s_mov_b32 s77, {tabs[0] >> 32}
        """)
        for q in range(1, 4):
            A(f"""
            s_cmp_eq_u32 s74, {q}
            s_cselect_b32 s76, {tabs[q] & 0xffffffff}, s76
            s_cselect_b32 s77, {tabs[q] >> 32}, s77
            """)
        A(f"""
        s_lshl_b32 s75, s30, 1
        {"s_add_u32 s75, s75, s31" if self.opt.get("rot", 1) else ""}
        s_lshl_b32 s75, s75, 2
        s_lshl_b32 s58, s23, 7
        s_mul_i32 s78, s27, {4*6144}
        s_add_u32 s78, s78, s58
        s_add_u32 s78, s78, 2048
        s_mul_i32 s79, s27, {8*6144}
        s_add_u32 s79, s79, s58
        s_lshl_b32 s80, s27, 10
        s_lshl_b32 s81, s22, 7
        s_lshl_b32 s58, s27, 3
        s_add_u32 s81, s81, s58
        s_lshl_b32 s81, s81, 11
        """)
        def issue_stage(s, atoms=(), k0=0):
            slot = s % 3
            atoms = list(atoms)
            per = -(-len(atoms) // (10 - k0))
            cnt = [0]
            nt = "nt " if s < self.opt.get("ntst", 0) else ""
            def fill():
                cnt[0] += 1
                if cnt[0] <= k0: return
                for _ in range(per):
                    if atoms: replay(atoms.pop(0), A0, V.V)
            A(f"""
            s_and_b32 s58, s76, 15
            s_lshr_b64 s[76:77], s[76:77], 4
            s_add_u32 s58, s58, s75
            s_and_b32 s58, s58, 15
            s_lshl_b32 s82, s58, 7
            s_add_u32 s82, s82, s81
            s_mul_i32 s59, s58, {64*6144}
            s_add_u32 s83, s59, s78
            s_add_u32 s84, s59, s79
            """)
            for p in range(4):
                A(f"s_add_u32 m0, s80, {L_A + slot*16384 + p*4096}")
                V.issue(f"buffer_load_dwordx4 v{VAo}, s[8:11], s82 offen {nt}lds", ("st", s))
                fill()
                A(f"s_add_u32 s82, s82, {32*2048}\ns_add_u32 m0, s80, {L_KV + slot*16384 + p*4096}")
                V.issue(f"buffer_load_dwordx4 v{VKVo}, s[12:15], s83 offen {nt}lds", ("st", s))
                fill()
                A(f"s_add_u32 s83, s83, {16*6144}")
                if p < 2:
                    A(f"s_add_u32 m0, s80, {L_Q + slot*8192 + p*4096}")
                    V.issue(f"buffer_load_dwordx4 v{VQo}, s[12:15], s84 offen {nt}lds", ("st", s))
                    fill()
                    A(f"s_add_u32 s84, s84, {32*6144}")
        pr = self.opt.get("probe")
        if pr:
            nwg, kb, which = pr
            A(f"""
            s_cmp_ge_u32 s2, {nwg}
            s_cbranch_scc1 L_noprobe
            v_lshlrev_b32 v20, 4, v1
            s_mov_b32 m0, s80
            """)
            for wh in (which if isinstance(which, tuple) else (which,)):
                A(f"""
                s_load_dwordx2 s[96:97], s[0:1], {wh}
                s_waitcnt lgkmcnt(0)
                s_mov_b32 s92, s96
                s_mov_b32 s93, s97
                s_mov_b32 s94, {0x400000 if wh == 24 else 0x700000}
                s_mov_b32 s95, 0x20000
                s_mul_i32 s58, s2, {kb*1024}
                s_add_u32 s58, s58, s80
                """)
                for i in range(kb//4):
                    A(f"buffer_load_dwordx4 v20, s[92:95], s58 offen lds\ns_add_u32 s58, s58, 4096")
            A("s_waitcnt vmcnt(0)\nL_noprobe:")
        if self.opt.get("bar0"): A("s_barrier")
        issue_stage(0)
        issue_stage(1)
        A(f"s_setprio {self.opt.get('lprio', 0)}")
        srd(A, 32, 56, 0x200000)
        if self.opt.get("wopf"):
            A(f"v_lshlrev_b32 v2, 4, v1\ns_lshl_b32 s58, s2, 13\ns_lshl_b32 s59, s27, 11\ns_add_u32 s58, s58, s59")
            V.issue("buffer_load_dwordx4 v[160:163], v2, s[32:35], s58 offen", "pf")
            V.issue("buffer_load_dwordx4 v[164:167], v2, s[32:35], s58 offen offset:1024", "pf")
        srd(A, 36, 62, 0x700000)
        srd(A, 40, 64, 0x700000)
        srd(A, 44, 66, 0x700000)
        T = 80
        CF, CA, ONES, VC = 100, 124, 136, 140
        A(f"""
        v_lshlrev_b32 v{VL16}, 4, v1
        v_mov_b32 v{ONES}, 0x3f803f80
        v_mov_b32 v{ONES+1}, 0x3f803f80
        v_mov_b32 v{ONES+2}, 0x3f803f80
        v_mov_b32 v{ONES+3}, 0x3f803f80
        v_bfe_u32 v2, v1, 2, 2
        v_lshlrev_b32 v2, 6, v2
        v_and_b32 v3, 3, v1
        v_lshl_add_u32 v2, v3, 3, v2
        v_lshrrev_b32 v3, 4, v1
        v_and_b32 v4, 1, v3
        v_lshl_add_u32 v2, v4, 5, v2
        s_lshl_b32 s58, s27, 8
        s_add_u32 s58, s58, {L_KV}
        v_lshl_add_u32 v{VC}, v3, 11, v2
        v_add_u32 v{VC}, s58, v{VC}
        v_xor_b32 v{VC+1}, 32, v{VC}
        s_lshr_b32 s58, s27, 1
        s_lshl_b32 s58, s58, 8
        s_add_u32 s58, s58, {L_Q}
        s_and_b32 s59, s27, 1
        s_lshl_b32 s59, s59, 5
        v_lshl_add_u32 v{VC+2}, v3, 10, v2
        v_xor_b32 v{VC+2}, s59, v{VC+2}
        v_add_u32 v{VC+2}, s58, v{VC+2}
        s_add_u32 s86, s74, 1
        s_cmp_lt_u32 s24, 4
        s_cselect_b32 s86, 0, s86
        v_mov_b32 v15, {OOB}
        v_cmp_gt_u32 vcc, 8, v1
        v_cndmask_b32 v14, v15, v{VL16}, vcc
        s_lshr_b32 s88, s2, 2
        s_and_b32 s89, s2, 3
        s_cmp_lt_u32 s2, 224
        s_cselect_b32 s87, 0, {OOB}
        """)
        VM = 96
        V.need({("st", 0)})
        A("s_barrier")
        self.stamp(1)

        def csum(s):
            skip = self.lab("cs")
            A(f"s_cmp_eq_u32 s86, {s}\ns_cbranch_scc0 {skip}")
            slot = s % 3
            for f in range(3):
                for ks in range(2):
                    for rd in range(2):
                        g = 8*ks + rd
                        off = slot*16384 + g*1024 if f < 2 else slot*8192 + g*512
                        A(f"ds_read_b64_tr_b16 {vr(CF+f*8+ks*4+2*rd,2)}, v{VC+f} offset:{off}")
            A("s_waitcnt lgkmcnt(0)")
            for f in range(3):
                A(f"v_mfma_f32_16x16x32_bf16 {vr(CA+4*f,4)}, {vr(ONES,4)}, {vr(CF+f*8,4)}, 0")
                A(f"v_mfma_f32_16x16x32_bf16 {vr(CA+4*f,4)}, {vr(ONES,4)}, {vr(CF+f*8+4,4)}, {vr(CA+4*f,4)}")
            A.label(skip)

        def nonce():
            A("s_waitcnt lgkmcnt(0)")
            self.nonce_setup(VM)
        def pub_cs_key():
            A(f"""
            v_lshrrev_b32 v2, 4, v1
            v_cmp_eq_u32 vcc, 1, v2
            v_cndmask_b32 v{CA}, v{CA}, v{CA+4}, vcc
            v_cmp_eq_u32 vcc, 2, v2
            v_cndmask_b32 v{CA}, v{CA}, v{CA+8}, vcc
            s_lshl_b32 s58, s27, 7
            v_lshlrev_b32 v3, 2, v1
            v_add_u32 v3, s58, v3
            s_lshl_b32 s58, s27, 6
            s_add_u32 s58, s58, {512 - 128}
            v_lshlrev_b32 v4, 2, v1
            v_add_u32 v4, s58, v4
            v_cndmask_b32 v3, v3, v4, vcc
            v_cmp_eq_u32 vcc, 3, v2
            v_cndmask_b32 v3, v3, v15, vcc
            s_lshl_b32 s58, s23, 4
            s_add_u32 s58, s58, s22
            s_lshl_b32 s58, s58, 10
            s_add_u32 s58, s58, {WS_CSP}
            """)
            A(f"v_and_b32 v4, 3, v1\nv_lshlrev_b32 v4, 3, v4\nv_lshrrev_b32 v4, v4, s60\nv_bfi_b32 v{CA}, v{VM}, v4, v{CA}")
            V.issue(f"buffer_store_dword v{CA}, v3, s[16:19], s58 offen sc1", "cs")
        def flag_s1():
            A(f"""
            v_mov_b32 v3, {L_FL + FL_KEY}
            ds_read_b128 {vr(T,4)}, v3
            v_cmp_eq_u32 vcc, {256 if self.swap else 0}, v0
            v_mov_b32 v4, 0
            v_cndmask_b32 v5, v15, v4, vcc
            s_lshl_b32 s58, s2, 3
            s_add_u32 s58, s58, {WS_KEY}
            s_waitcnt lgkmcnt(0)
            v_max_u32 v{T}, v{T}, v{T+1}
            v_max3_u32 v{T}, v{T}, v{T+2}, v{T+3}
            v_mov_b32 v{T+1}, s60
            """)
            V.issue(f"buffer_store_dwordx2 {vr(T,2)}, v5, s[16:19], s58 offen sc1", "flag")
        S1R, KEYS = 144, 152
        def s1_round(issue):
            A("s_mov_b32 s58, s90")
            for t in range(4):
                issue(f"buffer_load_dwordx4 {vr(S1R+4*t,4)}, v7, s[16:19], s58 offen sc1", "s1")
                if t < 3: A(f"s_add_u32 s58, s58, s{(95, 85, 74)[t]}")
        def s1_addr():
            A(f"""
            v_and_b32 v2, 15, v1
            v_lshlrev_b32 v2, 4, v2
            v_lshrrev_b32 v3, 4, v1
            v_lshl_add_u32 v2, v3, 10, v2
            s_lshl_b32 s90, s23, 14
            s_lshl_b32 s59, s27, 8
            s_add_u32 s90, s90, s59
            s_add_u32 s90, s90, {WS_CSP}
            s_lshl_b32 s59, s22, 10
            s_add_u32 s59, s59, {WS_STAT}
            s_sub_u32 s95, s28, s22
            s_lshl_b32 s95, s95, 10
            s_lshl_b32 s85, s28, 10
            s_sub_u32 s85, {WS_KEY - WS_STAT}, s85
            s_cmp_eq_u32 s27, 3
            s_cselect_b32 s90, s59, s90
            s_movk_i32 s59, 4096
            s_cselect_b32 s95, s95, s59
            s_cselect_b32 s85, s85, s59
            s_cselect_b32 s74, 1024, s59
            s_cselect_b64 vcc, -1, 0
            v_cndmask_b32 v7, v2, v{VL16}, vcc
            """)
        slow = []
        def s1_check(w3):
            def chk():
                if not w3:
                    for t in range(4):
                        c = S1R + 4*t
                        A(f"v_perm_b32 v{T+t}, v{c+1}, v{c}, s64\nv_perm_b32 v4, v{c+3}, v{c+2}, s65\nv_or_b32 v{T+t}, v{T+t}, v4")
                    A(f"v_max3_u32 v2, v{T}, v{T+1}, v{T+2}\nv_min3_u32 v3, v{T}, v{T+1}, v{T+2}\nv_max_u32 v2, v2, v{T+3}\nv_min_u32 v3, v3, v{T+3}")
                else:
                    A("s_mov_b32 s58, 0x05040100")
                    for t in range(4):
                        A(f"v_perm_b32 v{T+t}, v{S1R+2*t+1}, v{S1R+2*t}, s58")
                    A(f"""
                    v_max3_u32 v2, v{KEYS+1}, v{KEYS+3}, v{KEYS+5}
                    v_min3_u32 v3, v{KEYS+1}, v{KEYS+3}, v{KEYS+5}
                    v_max3_u32 v2, v2, v{KEYS+7}, v{T}
                    v_min3_u32 v3, v3, v{KEYS+7}, v{T}
                    v_max3_u32 v2, v2, v{T+1}, v{T+2}
                    v_min3_u32 v3, v3, v{T+1}, v{T+2}
                    v_max_u32 v2, v2, v{T+3}
                    v_min_u32 v3, v3, v{T+3}
                    """)
                A("v_cmp_ne_u32 vcc, s60, v2\nv_cmp_ne_u32 s[66:67], s60, v3\ns_or_b64 vcc, vcc, s[66:67]")
            V.need({"s1"})
            chk()
            sl, back = f"L_s1slow{int(w3)}", f"L_s1back{int(w3)}"
            A(f"s_cbranch_scc1 {sl}\n{back}:")
            def slowpath():
                top = self.lab("s1t")
                A(f"{sl}:\ns_mov_b32 s57, 0\n{top}:\ns_sleep 8")
                s1_round(lambda t, tag: A(t))
                A("s_waitcnt vmcnt(0)")
                chk()
                A(f"s_cbranch_scc0 {back}\ns_add_u32 s57, s57, 1\ns_cmp_lt_u32 s57, {SPIN_MAX}\ns_cbranch_scc1 {top}\ns_branch {back}")
            slow.append(slowpath)
        XSV, XST = 144, 146
        def s1_tables(w3):
            if not w3:
                for k in range(16): A(f"v_and_b32 v{S1R+k}, 0xffffff00, v{S1R+k}")
                for h in (0, 2):
                    A(f"v_pk_add_f32 {vr(S1R+h,2)}, {vr(S1R+h,2)}, {vr(S1R+4+h,2)}\nv_pk_add_f32 {vr(S1R+8+h,2)}, {vr(S1R+8+h,2)}, {vr(S1R+12+h,2)}")
                for h in (0, 2):
                    A(f"v_pk_add_f32 {vr(S1R+h,2)}, {vr(S1R+h,2)}, {vr(S1R+8+h,2)}")
                for wh in (16, 32):
                    for k in range(4): A(f"v_mov_b32 v{S1R+4+k}, v{S1R+k}")
                    for k in range(4): A(f"v_permlane{wh}_swap_b32 v{S1R+k}, v{S1R+4+k}")
                    for h in (0, 2): A(f"v_pk_add_f32 {vr(S1R+h,2)}, {vr(S1R+h,2)}, {vr(S1R+4+h,2)}")
                A(f"""
                s_lshl_b32 s58, s27, 8
                s_add_u32 s58, s58, {L_CS}
                v_and_b32 v2, 15, v1
                v_lshlrev_b32 v2, 4, v2
                v_add_u32 v2, s58, v2
                ds_write_b128 v2, {vr(S1R,4)}
                """)
                return
            for k in range(8): A(f"v_and_b32 v{S1R+k}, 0xffff0000, v{S1R+k}")
            for k in (1, 3, 5, 7): A(f"v_rcp_f32 v{S1R+k}, v{S1R+k}")
            A(f"""
            v_add_u32 v2, {L_ST2}, v{VL16}
            v_mov_b32 v{T}, v{S1R}
            v_mov_b32 v{T+1}, v{S1R+2}
            ds_write_b128 v2, {vr(S1R+4,4)}
            v_mov_b32 v{T+2}, v{S1R+1}
            v_mov_b32 v{T+3}, v{S1R+3}
            v_mul_f32 v{T+4}, {hex(LOG2E)}, v{S1R+1}
            v_mul_f32 v{T+5}, {hex(LOG2E)}, v{S1R+3}
            v_lshlrev_b32 v2, 3, v1
            v_add_u32 v2, {L_M}, v2
            ds_write_b64 v2, {vr(T,2)}
            ds_write_b64 v2, {vr(T+2,2)} offset:{L_RI-L_M}
            ds_write_b64 v2, {vr(T+4,2)} offset:{L_RL-L_M}
            v_max_u32 v{KEYS}, v{KEYS}, v{KEYS+2}
            v_max3_u32 v{KEYS}, v{KEYS}, v{KEYS+4}, v{KEYS+6}
            """)
            red_row(A, KEYS, "v_max_u32"); red_swap(A, KEYS, KEYS+1, 16, "v_max_u32"); red_swap(A, KEYS, KEYS+1, 32, "v_max_u32")
            A(f"""
            v_mov_b32 v2, {L_FL + FL_SEL}
            ds_write_b32 v2, v{KEYS}
            """)
        def xs_loads():
            self.spin_lds(6, FL_TAB, 4, 48)
            A(f"""
            ds_read_b32 v2, v6 offset:{FL_SEL}
            s_waitcnt lgkmcnt(0)
            v_readfirstlane_b32 s91, v2
            s_and_b32 s92, s91, 0x7ff
            s_sub_u32 s92, 0x7ff, s92
            s_lshl_b32 s58, s92, 11
            s_lshl_b32 s59, s89, 9
            s_add_u32 s58, s58, s59
            s_lshl_b32 s59, s27, 7
            s_add_u32 s58, s58, s59
            v_lshlrev_b32 v2, 1, v1
            s_lshl_b32 s90, s92, 3
            s_add_u32 s90, s90, {WS_STAT}
            v_mov_b32 v148, 0
            """)
            V.issue(f"buffer_load_ushort v{XSV}, v2, s[8:11], s58 offen", "xs")
            V.issue(f"buffer_load_dwordx2 {vr(XST,2)}, v148, s[16:19], s90 offen sc1", "xs")
        MSK = 232
        def xs_process():
            V.need({"xs"})
            top, ok = self.lab("xt"), self.lab("xk")
            A(f"""
            s_mov_b32 s57, 0
            s_mov_b32 s58, 0x05040100
            {top}:
            v_perm_b32 v2, v{XST+1}, v{XST}, s58
            v_cmp_ne_u32 vcc, s60, v2
            s_add_u32 s57, s57, 1
            s_nop 1
            s_cbranch_vccz {ok}
            s_cmp_ge_u32 s57, {SPIN_MAX}
            s_cbranch_scc1 {ok}
            buffer_load_dwordx2 {vr(XST,2)}, v148, s[16:19], s90 offen sc1
            s_waitcnt vmcnt(0)
            s_branch {top}
            {ok}:
            v_and_b32 v{XST}, 0xffff0000, v{XST}
            v_and_b32 v{XST+1}, 0xffff0000, v{XST+1}
            v_rcp_f32 v{XST+1}, v{XST+1}
            v_lshlrev_b32 v{XSV}, 16, v{XSV}
            v_sub_f32 v{XSV}, v{XSV}, v{XST}
            """)
            rnd_bf16(A, XSV)
            A(f"""
            v_mul_f32 v{XSV}, v{XSV}, v{XST+1}
            v_cvt_pk_bf16_f32 v{XSV}, v{XSV}, v{XSV}
            v_and_b32 v2, 1, v1
            v_mov_b32 v3, 0xffff
            v_mov_b32 v4, 0xffff0000
            v_cmp_eq_u32 vcc, 1, v2
            v_cndmask_b32 v3, v3, v4, vcc
            v_bfe_u32 v2, v1, 1, 2
            """)
            for r in range(4):
                A(f"v_cmp_eq_u32 vcc, {r}, v2\nv_cndmask_b32 v{MSK+r}, 0, v3, vcc")
        VWO = 9
        def wo_setup():
            A(f"""
            v_lshrrev_b32 v2, 5, v1
            v_bfe_u32 v3, v1, 2, 2
            v_lshl_add_u32 v3, v2, 2, v3
            v_lshlrev_b32 v3, 11, v3
            v_bfe_u32 v4, v1, 4, 1
            v_lshl_add_u32 v3, v4, 6, v3
            v_and_b32 v4, 3, v1
            v_lshlrev_b32 v2, 1, v2
            v_xor_b32 v4, v4, v2
            v_lshl_add_u32 v{VWO}, v4, 4, v3
            s_lshl_b32 s93, s27, 14
            s_lshl_b32 s58, s29, 7
            s_add_u32 s93, s93, s58
            s_and_b32 s94, s29, 7
            s_lshl_b32 s58, s28, 1
            s_add_u32 s94, s94, s58
            s_lshl_b32 s94, s94, 2
            """)
        def wo_issue(ts):
            for t in ts:
                A(f"""
                s_add_u32 s82, s94, {t}
                s_and_b32 s82, s82, 31
                s_lshl_b32 s82, s82, 16
                s_add_u32 s82, s82, s93
                s_add_u32 m0, s80, {t*4096}
                """)
                V.issue(f"buffer_load_dwordx4 v{VWO}, s[32:35], s82 offen lds", "wo")
                if self.opt.get("wothr"): A(f"s_waitcnt vmcnt({self.opt['wothr']-1})")

        GW, DW = 168, 16
        def moe_addr():
            A(f"""
            v_lshrrev_b32 v2, 3, v1
            v_and_b32 v3, 7, v1
            v_lshlrev_b32 v3, 4, v3
            v_mul_u32_u24 v97, 7168, v2
            v_add_u32 v97, v97, v3
            v_lshl_add_u32 v98, v2, 11, v3
            s_lshl_b32 s68, s89, 8
            s_lshl_b32 s59, s27, 6
            s_add_u32 s68, s68, s59
            s_mul_i32 s68, s68, 7168
            s_lshl_b32 s59, s88, 7
            s_add_u32 s68, s68, s59
            s_add_u32 s68, s68, s87
            s_lshl_b32 s69, s88, 6
            s_lshl_b32 s59, s89, 4
            s_add_u32 s69, s69, s59
            s_lshl_b32 s69, s69, 11
            s_lshl_b32 s59, s27, 9
            s_add_u32 s69, s69, s59
            s_add_u32 s69, s69, s87
            s_add_u32 s70, s69, {8*2048}
            """)
        def moe_ld(k):
            if k < 16:
                t, m = k >> 1, k & 1
                txt = f"buffer_load_dwordx4 {vr(GW+8*t+4*m,4)}, v97, s[{36+4*m}:{39+4*m}], s68 offen nt"
                post = f"s_add_u32 s68, s68, {8*7168}" if m == 1 else None
                return txt, ("gu", t), post
            gq, t = (k-16) >> 1, (k-16) & 1
            return f"buffer_load_dwordx4 {vr(DW+8*gq+4*t,4)}, v98, s[44:47], s{69+t} offen offset:{128*gq} nt", "dw", None
        runs = self.opt.get("runs", [])
        ng, gstep = self.opt.get("ngroups", 1), self.opt.get("gstep", 1)
        g1l = self.opt.get("g1", [])
        early = [k for _, ks in runs for k in ks] + g1l
        def xtile():
            A(f"""
            s_lshl_b32 s58, s28, 7
            s_lshl_b32 s59, s27, 5
            s_add_u32 s58, s58, s59
            s_lshl_b32 s58, s58, 11
            s_lshl_b32 s59, s29, 7
            s_add_u32 s58, s58, s59
            s_mul_i32 s59, s27, 4608
            """)
            for t in range(4):
                A(f"s_add_u32 m0, s59, {L_TR + 1024*t}")
                V.issue(f"buffer_load_dwordx4 v98, s[8:11], s58 offen lds", "xt")
                if t < 3: A(f"s_add_u32 s58, s58, {8*2048}")
        P = self.opt.get("s1at", 13)
        extra = {s: [] for s in range(16)}
        for s in range(5): extra[s].append(lambda s=s: csum(s))
        extra[0] += [nonce, flag_s1]
        extra[1] += [moe_addr]
        extra[5] += [pub_cs_key]
        extra[7] += [s1_addr]
        extra[8] += [wo_setup]
        for s in self.opt.get("noextra", []):
            extra[s] = [f for f in extra[s] if f in (nonce, moe_addr, wo_setup, s1_addr)]
        if runs: A(f"s_lshr_b32 s71, s2, 3\ns_mul_i32 s58, s71, {(65536+ng-1)//ng}\ns_lshr_b32 s58, s58, 16\ns_mul_i32 s58, s58, {ng}\ns_sub_u32 s71, s71, s58")
        def iteration(s, atoms, k0=0):
            here = [(g, ks) for first, ks in runs for g in range(ng) if first + g*gstep == s]
            assert len(here) <= 1
            if here:
                g, ks = here[0]
                skip = self.lab("run")
                A(f"s_cmp_eq_u32 s71, {g}\ns_cbranch_scc0 {skip}")
                for k in ks:
                    txt, tag, post = moe_ld(k)
                    A(txt)
                    if post: A(post)
                A.label(skip)
            if s + 2 < 16: issue_stage(s + 2, atoms, k0)
            else:
                for a in atoms: replay(a, A0, V.V)
            if s == P: s1_round(V.issue)
            if s == 13:
                xtile()
                for k in g1l:
                    txt, tag, post = moe_ld(k)
                    V.issue(txt, "g1")
                    if post: A(post)
            tags = {("st", s+1)}
            if self.opt.get("iters"): self.stamp(16+s)
            if here:
                assert s >= 2 and s != P+1
                V.need(tags)
                w = A0.lines.pop()
                n = int(w.split("(")[1].split(")")[0])
                a, b = self.lab("wa"), self.lab("wb")
                A(f"s_cmp_eq_u32 s71, {g}\ns_cbranch_scc0 {a}\ns_waitcnt vmcnt({min(63, n+len(ks))})\ns_branch {b}\n{a}:\ns_waitcnt vmcnt({n})\n{b}:")
            else:
                V.need(tags)
            if s == 14: A("s_waitcnt lgkmcnt(0)")
            if self.opt.get("iters"): self.stamp(32+s)
            A("s_barrier")
        for s in range(min(P+1, 15) if P < 13 else 15): iteration(s, A.record(extra[s]))
        A("s_cmp_eq_u32 s27, 3\ns_cbranch_scc1 L_path3")
        q0 = list(V.V.q)
        for w3 in (False, True):
            if w3: A.label("L_path3")
            V.V.q = list(q0)
            if P == 13:
                s1_check(w3); s1_tables(w3)
            else:
                tab = A.record([lambda: s1_tables(w3)])
                per = -(-len(tab) // (14 - (P+1)))
                for s in range(P+1, 15):
                    if s == P+1: iteration(s, A.record(extra[s] + [lambda: s1_check(w3)]), self.opt.get("k0", 4))
                    else:
                        iteration(s, A.record(extra[s]) + tab[:per]); tab = tab[per:]
                assert not tab
            if not w3: A("s_branch L_pathj")
        A.label("L_pathj")
        V.V.q = ["xt"]*4
        A(f"s_lshl_b32 s58, s27, 2\ns_add_u32 s58, s58, {L_FL + FL_TAB}\nv_mov_b32 v2, s58\nv_mov_b32 v3, 1")
        A(f"s_waitcnt vmcnt({len(g1l)}) lgkmcnt(0)")
        V.V.q = ["g1"]*len(g1l)
        A("ds_write_b32 v2, v3")
        self.stamp(18)
        A(f"""
        s_lshl_b32 s58, s2, 2
        s_add_u32 s58, s58, s27
        s_cmp_eq_u32 s58, 3
        s_cbranch_scc0 L_nox
        v_mov_b32 v2, s60
        v_cmp_eq_u32 vcc, 0, v1
        v_cndmask_b32 v3, v15, v1, vcc
        s_mov_b32 s58, {WS_X}
        buffer_store_dword v2, v3, s[16:19], s58 offen sc1
        L_nox:
        """)
        wo_issue([30, 31, 4, 5, 6, 7, 16, 17, 18, 19, 26, 27, 8, 9, 10, 11, 20, 21, 22, 23, 28, 29])
        V = V.V
        A(f"v_mov_b32 v6, {L_FL}")
        self.spin_lds(6, FL_C15, 4, 48)
        self.stamp(2)
        if self.opt.get("stop"):
            self.stamp_out(); A("s_endpgm")
        wo_issue([0, 1, 2, 3, 12, 13, 14, 15, 24, 25])
        xs_loads()
        thr = self.opt.get("thr", 3)
        rest = [k for k in range(24) if k not in early]
        if self.opt.get("nomoe"): rest = []
        A(f"""
        v_mov_b32 v6, {L_FL}
        s_lshl_b32 s58, s27, 2
        v_add_u32 v7, s58, v6
        v_mov_b32 v48, 1
        """)
        wo_flagged = False
        for n, k in enumerate(rest):
            txt, tag, post = moe_ld(k)
            V.issue(txt, tag)
            if post: A(post)
            if thr and n + 1 >= thr:
                A(f"s_waitcnt vmcnt({thr-1})")
                V.q = V.q[len(V.q)-(thr-1):] if thr > 1 else []
                if not wo_flagged:
                    A(f"ds_write_b32 v7, v48 offset:{FL_WO}"); wo_flagged = True
                    self.stamp(3)
        xs_process()
        AP, DT = 236, 240
        A(f"""
        v_lshrrev_b32 v2, 4, v1
        v_bfe_u32 v3, v1, 3, 1
        v_lshl_add_u32 v8, v2, 1, v3
        v_lshlrev_b32 v8, 2, v8
        """)
        for t in range(8):
            A(f"ds_bpermute_b32 v{50+t}, v8, v{XSV} offset:{32*t}")
        if not wo_flagged:
            V.need({"wo"})
            A(f"ds_write_b32 v7, v48 offset:{FL_WO}")
            self.stamp(3)
        if self.opt.get("nomoe"): A("s_branch L_loader_end")
        A(f"s_cmp_lg_u32 s87, 0\ns_cbranch_scc1 L_moe_done\ns_waitcnt lgkmcnt(0)")
        for t in range(8):
            for r in range(4): A(f"v_and_b32 v{AP+r}, v{50+t}, v{MSK+r}")
            V.need({("gu", t)})
            for m in range(2):
                c = "0" if t == 0 else vr(DT+4*m, 4)
                A(f"v_mfma_f32_16x16x32_bf16 {vr(DT+4*m,4)}, {vr(AP,4)}, {vr(GW+8*t+4*m,4)}, {c}")
            A("s_nop 3")
        def fold(base, n, tmp):
            for k in range(n):
                A(f"v_mov_b32_dpp v{base+k}, v{base+k} row_ror:8 row_mask:0xc bank_mask:0xf")
            for k in range(n):
                red_swap(A, base+k, tmp, 32)
        fold(DT, 8, 60)
        A(f"""
        v_and_b32 v2, 15, v1
        v_lshrrev_b32 v3, 4, v1
        v_lshlrev_b32 v61, 5, v2
        v_lshl_add_u32 v61, v3, 4, v61
        v_and_b32 v4, 0x28, v1
        v_cmp_eq_u32 s[96:97], 0, v4
        s_lshl_b32 s58, s27, 9
        s_add_u32 s58, s58, {L_GUS}
        v_add_u32 v2, s58, v61
        v_mov_b32 v3, {L_DUMMY}
        v_cndmask_b32 v2, v3, v2, s[96:97]
        ds_write_b128 v2, {vr(DT,4)}
        ds_write_b128 v2, {vr(DT+4,4)} offset:256
        s_waitcnt lgkmcnt(0)
        ds_write_b32 v7, v48 offset:{FL_GU}
        s_cmp_lg_u32 s27, 0
        s_cbranch_scc1 L_gu_pub_done
        """)
        self.spin_lds(6, FL_GU, 4, 64)
        A(f"v_and_b32 v2, 31, v1\nv_lshlrev_b32 v2, 4, v2\nv_add_u32 v3, {L_GUS}, v2")
        for w in range(4): A(f"ds_read_b128 {vr(64+4*w,4)}, v3 offset:{512*w}")
        A("s_waitcnt lgkmcnt(0)")
        for h in (0, 2):
            A(f"""
            v_pk_add_f32 {vr(64+h,2)}, {vr(64+h,2)}, {vr(68+h,2)}
            v_pk_add_f32 {vr(72+h,2)}, {vr(72+h,2)}, {vr(76+h,2)}
            v_pk_add_f32 {vr(64+h,2)}, {vr(64+h,2)}, {vr(72+h,2)}
            """)
        self.tag(64, VM)
        A(f"""
        v_cmp_gt_u32 vcc, 32, v1
        v_cndmask_b32 v2, v15, v2, vcc
        s_lshl_b32 s58, s2, 9
        s_add_u32 s58, s58, {WS_GUP}
        buffer_store_dwordx4 {vr(64,4)}, v2, s[16:19], s58 offen sc1
        L_gu_pub_done:
        v_bfe_u32 v2, v1, 3, 2
        v_lshlrev_b32 v2, 9, v2
        v_bfe_u32 v3, v1, 2, 1
        v_lshl_add_u32 v2, v3, 8, v2
        v_and_b32 v3, 3, v1
        v_lshl_add_u32 v2, v3, 4, v2
        s_lshl_b32 s58, s88, 11
        s_lshl_b32 s59, s89, 6
        s_add_u32 s58, s58, s59
        s_add_u32 s58, s58, {WS_GUP}
        """)
        self.stamp(4)
        self.spin_tag(lambda: A(f"buffer_load_dwordx4 {vr(64,4)}, v2, s[16:19], s58 offen sc1"), [64], 68)
        V.q = []
        self.stamp(5)
        for k in range(4): A(f"v_add_f32_dpp v{64+k}, v{64+k}, v{64+k} row_ror:8 row_mask:0xf bank_mask:0xf")
        for k in range(4): red_swap(A, 64+k, 68, 16)
        for k in range(4): rnd_bf16(A, 64+k)
        for k in range(4): A(f"v_mov_b32_dpp v{68+k}, v{64+k} row_ror:12 row_mask:0xf bank_mask:0xf")
        for k in range(4):
            A(f"""
            v_mul_f32 v72, {hex(LOG2E | 0x80000000)}, v{64+k}
            v_exp_f32 v72, v72
            v_add_f32 v72, 1.0, v72
            v_rcp_f32 v72, v72
            v_mul_f32 v{64+k}, v{64+k}, v72
            """)
            rnd_bf16(A, 64+k)
            A(f"v_mul_f32 v{64+k}, v{64+k}, v{68+k}\nv_cvt_pk_bf16_f32 v{64+k}, v{64+k}, v{64+k}")
        A(f"""
        s_lshl_b32 s58, s27, 6
        s_add_u32 s58, s58, {L_HT}
        v_add_u32 v2, s58, v{VL16}
        v_mov_b32 v3, {L_DUMMY}
        v_cmp_gt_u32 vcc, 4, v1
        v_cndmask_b32 v2, v3, v2, vcc
        ds_write_b128 v2, {vr(64,4)}
        v_add_u32 v3, s58, v8
        s_waitcnt lgkmcnt(0)
        ds_read_b32 v50, v3
        ds_read_b32 v51, v3 offset:32
        s_waitcnt lgkmcnt(0)
        """)
        for t in range(2):
            for r in range(4): A(f"v_and_b32 v{72+4*t+r}, v{50+t}, v{MSK+r}")
        for gq in range(4):
            A(f"v_mfma_f32_16x16x32_bf16 {vr(DT+4*gq,4)}, {vr(72,4)}, {vr(DW+8*gq,4)}, 0")
            A(f"v_mfma_f32_16x16x32_bf16 {vr(DT+4*gq,4)}, {vr(76,4)}, {vr(DW+8*gq+4,4)}, {vr(DT+4*gq,4)}")
        fold(DT, 16, 60)
        for gq in range(4): self.tag(DT+4*gq, VM)
        A(f"""
        v_cndmask_b32 v2, v15, v61, s[96:97]
        s_lshl_b32 s58, s2, 12
        s_add_u32 s58, s58, s80
        s_add_u32 s58, s58, {WS_YP}
        """)
        for gq in range(4):
            A(f"buffer_store_dwordx4 {vr(DT+4*gq,4)}, v2, s[16:19], s58 offen offset:{256*gq} sc1")
        A.label("L_moe_done")
        self.stamp(6)
        A(f"""
        s_lshr_b32 s58, s92, 7
        s_cmp_lg_u32 s58, s28
        s_cbranch_scc1 L_loader_end
        v_lshrrev_b32 v2, 4, v1
        v_lshlrev_b32 v2, 12, v2
        v_and_b32 v3, 15, v1
        v_lshl_add_u32 v2, v3, 4, v2
        s_mul_i32 s95, s27, {56*4096}
        s_lshl_b32 s59, s29, 8
        s_add_u32 s95, s95, s59
        s_add_u32 s95, s95, {WS_YP}
        """)
        def yl():
            A("s_mov_b32 s58, s95")
            for t in range(14):
                A(f"buffer_load_dwordx4 {vr(GW+4*t,4)}, v2, s[16:19], s58 offen sc1")
                if t < 13: A(f"s_add_u32 s58, s58, {4*4096}")
        self.spin_tag(yl, [GW+4*t for t in range(14)], 60)
        for t in range(1, 14):
            for h in (0, 2):
                A(f"v_pk_add_f32 {vr(GW+h,2)}, {vr(GW+h,2)}, {vr(GW+4*t+h,2)}")
        for k in range(4):
            red_swap(A, GW+k, 60, 16); red_swap(A, GW+k, 60, 32)
        A(f"""
        s_lshl_b32 s58, s27, 8
        s_add_u32 s58, s58, {L_YT}
        v_and_b32 v3, 15, v1
        v_lshlrev_b32 v3, 4, v3
        v_add_u32 v2, s58, v3
        ds_write_b128 v2, {vr(GW,4)}
        v_mov_b32 v6, {L_FL}
        s_lshl_b32 s58, s27, 2
        v_add_u32 v7, s58, v6
        v_mov_b32 v48, 1
        s_waitcnt lgkmcnt(0)
        ds_write_b32 v7, v48 offset:{FL_Y}
        s_cmp_lg_u32 s27, 0
        s_cbranch_scc1 L_loader_end
        """)
        self.spin_lds(6, FL_Y, 4, 64)
        A(f"v_add_u32 v2, {L_YT}, v3")
        for w in range(4): A(f"ds_read_b128 {vr(64+4*w,4)}, v2 offset:{256*w}")
        A(f"""
        s_and_b32 s58, s91, 0xffff0000
        s_ashr_i32 s59, s58, 31
        s_not_b32 s59, s59
        s_or_b32 s59, s59, 0x80000000
        s_xor_b32 s58, s58, s59
        s_and_b32 s58, s58, 0xffff0000
        v_mov_b32 v80, s58
        v_mul_f32 v80, {hex(LOG2E | 0x80000000)}, v80
        v_exp_f32 v80, v80
        v_add_f32 v80, 1.0, v80
        v_rcp_f32 v80, v80
        """)
        rnd_bf16(A, 80)
        A("s_waitcnt lgkmcnt(0)")
        for h in (0, 2):
            A(f"""
            v_pk_add_f32 {vr(64+h,2)}, {vr(64+h,2)}, {vr(68+h,2)}
            v_pk_add_f32 {vr(72+h,2)}, {vr(72+h,2)}, {vr(76+h,2)}
            v_pk_add_f32 {vr(64+h,2)}, {vr(64+h,2)}, {vr(72+h,2)}
            """)
        for k in range(4):
            rnd_bf16(A, 64+k)
            A(f"v_mul_f32 v{64+k}, v{64+k}, v80")
            rnd_bf16(A, 64+k)
        A(f"""
        v_add_u32 v2, {L_YF}, v3
        ds_write_b128 v2, {vr(64,4)}
        s_waitcnt lgkmcnt(0)
        ds_write_b32 v6, v48 offset:{FL_YF}
        L_loader_end:
        """)
        self.stamp(7)
        self.stamp_out()
        A("s_endpgm")
        for f in slow: f()
        self.A = A0

    def stats(self):
        A = self.A
        X, WR, F, T = 16, 32, 48, 80
        MEAN, MB, RINV, RACC = 92, 94, 95, 90
        A("s_waitcnt vmcnt(4)")
        for k in range(16): unpack(A, F+2*k, F+2*k+1, X+k)
        A(f"v_pk_add_f32 {vr(T,2)}, {vr(F,2)}, {vr(F+2,2)}\nv_pk_add_f32 {vr(T+2,2)}, {vr(F+4,2)}, {vr(F+6,2)}")
        for k in range(4, 16):
            a = T + 2*(k & 1)
            A(f"v_pk_add_f32 {vr(a,2)}, {vr(a,2)}, {vr(F+2*k,2)}")
        A(f"v_pk_add_f32 {vr(T,2)}, {vr(T,2)}, {vr(T+2,2)}\nv_add_f32 v{MEAN}, v{T}, v{T+1}")
        red_row(A, MEAN); red_swap(A, MEAN, T, 16)
        A(f"v_mul_f32 v{MEAN}, 0x3a800000, v{MEAN}\nv_mov_b32 v{MB}, v{MEAN}")
        rnd_bf16(A, MB)
        for k in range(16):
            d = T + 4 + 2*(k & 1); a = T + 2*(k & 1)
            A(f"v_pk_add_f32 {vr(d,2)}, {vr(F+2*k,2)}, {vr(MEAN,2)} op_sel_hi:[1,0] neg_lo:[0,1] neg_hi:[0,1]")
            if k < 2: A(f"v_pk_mul_f32 {vr(a,2)}, {vr(d,2)}, {vr(d,2)}")
            else: A(f"v_pk_fma_f32 {vr(a,2)}, {vr(d,2)}, {vr(d,2)}, {vr(a,2)}")
        A(f"v_pk_add_f32 {vr(T,2)}, {vr(T,2)}, {vr(T+2,2)}\nv_add_f32 v{RINV}, v{T}, v{T+1}")
        red_row(A, RINV); red_swap(A, RINV, T, 16)
        A(f"v_mul_f32 v{RINV}, 0x3a800000, v{RINV}")
        rnd_bf16(A, RINV)
        A(f"v_add_f32 v{RINV}, 0x3727c5ac, v{RINV}")
        rnd_bf16(A, RINV)
        A(f"v_sqrt_f32 v{RINV}, v{RINV}")
        rnd_bf16(A, RINV)
        A(f"v_mov_b32 v97, v{RINV}\nv_rcp_f32 v{RINV}, v{RINV}\nv_mov_b32 v{RACC}, 0\nv_mov_b32 v{RACC+1}, 0")
        for k in range(16):
            A(f"v_pk_add_f32 {vr(F+2*k,2)}, {vr(F+2*k,2)}, {vr(MB,2)} op_sel_hi:[1,0] neg_lo:[0,1] neg_hi:[0,1]")
        for k in range(16): A(f"v_cvt_pk_bf16_f32 v{X+k}, v{F+2*k}, v{F+2*k+1}")
        for k in range(16): unpack(A, F+2*k, F+2*k+1, X+k)
        for k in range(16):
            A(f"v_pk_mul_f32 {vr(F+2*k,2)}, {vr(F+2*k,2)}, {vr(MB,2)} op_sel:[0,1] op_sel_hi:[1,1]")
        for k in range(16): A(f"v_cvt_pk_bf16_f32 v{X+k}, v{F+2*k}, v{F+2*k+1}")
        A(f"""
        v_lshrrev_b32 v2, 5, v1
        v_add_u32 v2, s85, v2
        v_sub_u32 v5, 0x7ff, v2
        v_lshlrev_b32 v2, 3, v2
        v_and_b32 v3, 31, v1
        v_cmp_eq_u32 vcc, 0, v3
        v_mov_b32 v3, {OOB}
        v_cndmask_b32 v2, v3, v2, vcc
        s_waitcnt lgkmcnt(0)
        s_add_u32 s60, s3, 1
        s_and_b32 s58, s60, 0xffff
        s_lshr_b32 s59, s60, 16
        v_or_b32 v96, s58, v{MB}
        v_or_b32 v97, s59, v97
        s_mov_b32 s58, {WS_STAT}
        buffer_store_dwordx2 v[96:97], v2, s[16:19], s58 offen sc1
        s_waitcnt vmcnt(1)
        """)
        for k in range(16): A(f"v_dot2_f32_bf16 v{RACC+(k&1)}, v{X+k}, v{WR+k}, v{RACC+(k&1)}")
        A(f"s_nop 2\nv_add_f32 v{RACC}, v{RACC}, v{RACC+1}")
        red_row(A, RACC); red_swap(A, RACC, T, 16)
        rnd_bf16(A, RACC)
        A(f"""
        v_ashrrev_i32 v{T}, 31, v{RACC}
        v_or_b32 v{T}, 0x80000000, v{T}
        v_xor_b32 v{T}, v{T}, v{RACC}
        v_and_b32 v{T}, 0xffff0000, v{T}
        v_or_b32 v{T}, v{T}, v5
        """)
        red_swap(A, T, T+1, 32, "v_max_u32")
        A(f"""
        s_lshl_b32 s58, s27, 2
        s_add_u32 s58, s58, {L_FL + FL_KEY}
        v_mov_b32 v3, s58
        ds_write_b32 v3, v{T}
        """)

    def compute(self):
        A = self.A
        A.label("L_compute")
        self.sreg = 127
        self.stamp(0)
        srd(A, 32, 68, 0x400000)
        ACC = 128
        FA = lambda st, rf, ks: 16 + st*32 + (rf*2+ks)*4
        FB = lambda slot, ks: 80 + slot*8 + ks*4
        VA, VKV, VQ = 112, 114, 116
        N15, Q4 = 12, 13
        A(f"""
        s_lshr_b32 s36, s27, 1
        s_and_b32 s37, s27, 1
        v_and_b32 v{N15}, 15, v1
        v_lshrrev_b32 v{Q4}, 4, v1
        v_lshlrev_b32 v2, 2, v{N15}
        v_add_u32 v2, {L_FL}, v2
        v_mov_b32 v3, 0
        ds_write_b32 v2, v3
        ds_write_b32 v2, v3 offset:{FL_S3}
        s_lshl_b32 s58, s36, 13
        v_lshlrev_b32 v14, 7, v{N15}
        v_add_u32 v14, s58, v14
        v_bfe_u32 v15, v{N15}, 1, 3
        """)
        for ks in range(2):
            A(f"v_add_u32 v2, {4*ks}, v{Q4}\nv_xor_b32 v2, v2, v15\nv_lshl_add_u32 v{VA+ks}, v2, 4, v14")
        A(f"""
        v_bfe_u32 v2, v1, 2, 2
        v_lshlrev_b32 v2, 6, v2
        v_and_b32 v3, 3, v1
        v_lshl_add_u32 v2, v3, 3, v2
        v_and_b32 v3, 1, v{Q4}
        v_lshl_add_u32 v10, v3, 5, v2
        s_lshl_b32 s58, s37, 8
        v_add_u32 v4, s58, v10
        v_lshl_add_u32 v{VKV}, v{Q4}, 11, v4
        v_add_u32 v{VKV}, {L_KV}, v{VKV}
        v_xor_b32 v{VKV+1}, 32, v{VKV}
        v_lshl_add_u32 v{VQ}, v{Q4}, 10, v4
        v_add_u32 v{VQ}, {L_Q}, v{VQ}
        v_xor_b32 v{VQ+1}, 32, v{VQ}
        """)
        L = LgkmTracker(A)
        def areads(s_):
            st = s_ & 1
            return [(f"ds_read_b128 {vr(FA(st,rf,ks),4)}, v{VA+ks} offset:{(s_%3)*16384+rf*2048}", ("A",s_)) for rf in range(4) for ks in range(2)]
        def breads(s_, cf):
            r = []
            slot = (s_*6+cf) % 4
            part, half = cf//2, cf % 2
            for ks in range(2):
                for rd in range(2):
                    g = 8*ks + rd
                    if part < 2:
                        r.append((f"ds_read_b64_tr_b16 {vr(FB(slot,ks)+2*rd,2)}, v{VKV+half} offset:{(s_%3)*16384+g*1024+part*512}", ("B",s_,cf)))
                    else:
                        r.append((f"ds_read_b64_tr_b16 {vr(FB(slot,ks)+2*rd,2)}, v{VQ+half} offset:{(s_%3)*8192+g*512}", ("B",s_,cf)))
            return r
        VM = 11
        A(f"s_lshl_b32 s58, s27, 2\ns_add_u32 s58, s58, {L_FL + FL_C15}\nv_mov_b32 v123, s58\nv_mov_b32 v124, 1")
        self.stats()
        self.stamp(11)
        A(f"s_setprio {self.opt.get('prio', 2)}\ns_waitcnt lgkmcnt(0)\ns_barrier")
        self.stamp(1)
        PAT = [1,1,0,1,1,1,0,0]*2 + [1,1,1,1,1,1,0,0]
        for x in areads(0) + breads(0,0) + breads(0,1): L.issue(*x)
        for s_ in range(16):
            st = s_ & 1
            w1 = breads(s_,2) + breads(s_,3) + breads(s_,4) + breads(s_,5)
            w2 = (areads(s_+1) + breads(s_+1,0) + breads(s_+1,1)) if s_ < 15 else []
            for cf in range(6):
                slot = (s_*6+cf) % 4
                seq = [(rf,ks) for rf in range(4) for ks in ((0,1) if rf % 2 == 0 else (1,0))]
                for j,(rf,ks) in enumerate(seq):
                    g = (cf % 3)*8 + j
                    if j == 0:
                        if cf == 3:
                            L.drain()
                            if s_ < 15: A("s_barrier")
                            else: A("ds_write_b32 v123, v124")
                        else:
                            L.need({("A",s_), ("B",s_,cf)})
                    acc = ACC + (rf*6+cf)*4
                    c = "0" if (s_ == 0 and j % 2 == 0) else vr(acc,4)
                    a, b = (FA(st,rf,ks), FB(slot,ks)) if cf < 4 else (FB(slot,ks), FA(st,rf,ks))
                    A(f"v_mfma_f32_16x16x32_bf16 {vr(acc,4)}, {vr(a,4)}, {vr(b,4)}, {c}")
                    w = w1 if cf < 3 else w2
                    if w and PAT[g]: L.issue(*w.pop(0))
            assert not w1 and not w2
        self.stamp(2)
        if self.opt.get("stop"):
            self.stamp_out(); A("s_endpgm")
        A(f"v_mov_b32 v122, {L_FL}")
        self.spin_lds(122, FL_TAB, 4, 4)
        self.stamp(20)
        TM, TI, TL, CS = 16, 32, 48, 64
        PK, VV, ON, KT = 68, 84, 100, 20
        U, E = 104, 108
        A(f"""
        s_lshl_b32 s58, s36, 8
        v_lshl_add_u32 v2, v{Q4}, 4, s58
        v_add_u32 v2, {L_M}, v2
        s_lshl_b32 s58, s37, 7
        v_lshl_add_u32 v3, v{N15}, 2, s58
        v_add_u32 v3, {L_CS}, v3
        s_mov_b32 s40, 0x358637bd
        s_mov_b32 s41, 0x358637bd
        """)
        for cf in range(4): A(f"ds_read_b32 v{CS+cf}, v3 offset:{(cf>>1)*256 + (cf&1)*64}")
        for rf in range(4):
            A(f"ds_read_b128 {vr(TM+4*rf,4)}, v2 offset:{64*rf}")
            A(f"ds_read_b128 {vr(TI+4*rf,4)}, v2 offset:{64*rf + L_RI - L_M}")
            A(f"ds_read_b128 {vr(TL+4*rf,4)}, v2 offset:{64*rf + L_RL - L_M}")
        for k in range(4): A(f"v_mov_b32 v{ON+k}, 0x3f803f80")
        self.nonce_setup(VM)
        A("s_waitcnt lgkmcnt(0)")
        def bsel(reg, pos):
            base = reg & ~1; o = reg & 1
            return vr(base,2), o
        def phi4(a, m, m_b, c, c_b, rl, rl_b, ri, ri_b, dst):
            def opnd(r, b, h):
                if b:
                    p, o = bsel(r, 0); return p, o, o
                return vr(r+h,2), 0, 1
            for h in (0, 2):
                pm, ml, mh = opnd(m, m_b, h); pc, cl, ch = opnd(c, c_b, h)
                A(f"v_pk_fma_f32 {vr(U+h,2)}, {pm}, {pc}, {vr(a+h,2)} op_sel:[{ml},{cl},0] op_sel_hi:[{mh},{ch},1] neg_lo:[1,0,0] neg_hi:[1,0,0]")
            for h in (0, 2):
                p, lo, hi = opnd(rl, rl_b, h)
                A(f"v_pk_mul_f32 {vr(E+h,2)}, {vr(U+h,2)}, {p} op_sel:[0,{lo}] op_sel_hi:[1,{hi}]")
            for k in range(4): A(f"v_exp_f32 v{E+k}, v{E+k} clamp")
            for k in range(4): A(f"v_max_f32 v{U+k}, 0, v{U+k}")
            for h in (0, 2): A(f"v_pk_add_f32 {vr(E+h,2)}, {vr(E+h,2)}, s[40:41]")
            for h in (0, 2):
                p, lo, hi = opnd(ri, ri_b, h)
                A(f"v_pk_fma_f32 {vr(U+h,2)}, {vr(U+h,2)}, {p}, {vr(E+h,2)} op_sel:[0,{lo},0] op_sel_hi:[1,{hi},1]")
            A(f"v_cvt_pk_bf16_f32 v{dst}, v{U}, v{U+1}\nv_cvt_pk_bf16_f32 v{dst+1}, v{U+2}, v{U+3}")
        for rf in range(4):
            for cf in range(2):
                phi4(ACC+(rf*6+cf)*4, TM+4*rf, False, CS+cf, True, TL+4*rf, False, TI+4*rf, False, PK + (rf>>1)*8 + cf*4 + (rf&1)*2)
            for cf in range(2, 4):
                a = ACC+(rf*6+cf)*4
                pc, o = bsel(CS+cf, 0)
                for h in (0, 2):
                    A(f"v_pk_fma_f32 {vr(U+h,2)}, {vr(TM+4*rf+h,2)}, {pc}, {vr(a+h,2)} op_sel:[0,{o},0] op_sel_hi:[1,{o},1] neg_lo:[1,0,0] neg_hi:[1,0,0]")
                for h in (0, 2):
                    A(f"v_pk_mul_f32 {vr(U+h,2)}, {vr(U+h,2)}, {vr(TI+4*rf+h,2)}")
                d = VV + (rf>>1)*8 + (cf-2)*4 + (rf&1)*2
                A(f"v_cvt_pk_bf16_f32 v{d}, v{U}, v{U+1}\nv_cvt_pk_bf16_f32 v{d+1}, v{U+2}, v{U+3}")
        self.stamp(21)
        QM, QI, QL, QC = 44, 48, 52, 56
        A(f"""
        s_lshl_b32 s58, s36, 8
        v_lshl_add_u32 v2, v{N15}, 2, s58
        v_add_u32 v2, {L_M}, v2
        s_lshl_b32 s58, s37, 7
        v_lshl_add_u32 v3, v{Q4}, 4, s58
        v_add_u32 v3, {L_CS + 512}, v3
        """)
        for rf in range(4):
            A(f"ds_read_b32 v{QM+rf}, v2 offset:{64*rf}")
            A(f"ds_read_b32 v{QI+rf}, v2 offset:{64*rf + L_RI - L_M}")
            A(f"ds_read_b32 v{QL+rf}, v2 offset:{64*rf + L_RL - L_M}")
        for cf in range(2): A(f"ds_read_b128 {vr(QC+4*cf,4)}, v3 offset:{64*cf}")
        T = lambda eb, db: KT + (eb*2+db)*4
        for eb in range(3):
            for db in range(2):
                for ks2 in range(2):
                    b = vr(VV+ks2*8+eb*4,4) if eb < 2 else vr(ON,4)
                    c = "0" if ks2 == 0 else vr(T(eb,db),4)
                    A(f"v_mfma_f32_16x16x32_bf16 {vr(T(eb,db),4)}, {vr(PK+ks2*8+db*4,4)}, {b}, {c}")
        A(f"""
        s_lshl_b32 s42, s23, 1
        s_add_u32 s42, s42, s37
        s_lshl_b32 s43, s42, 5
        s_lshl_b32 s58, s22, 1
        s_add_u32 s58, s58, s36
        s_add_u32 s58, s58, s43
        s_lshl_b32 s59, s58, 7
        s_add_u32 s59, s59, {WS_ZP}
        s_lshl_b32 s58, s58, 12
        s_add_u32 s58, s58, {WS_KVP}
        v_lshlrev_b32 v120, 4, v1
        v_mov_b32 v121, {OOB}
        v_lshlrev_b32 v2, 4, v{Q4}
        v_cmp_eq_u32 vcc, 0, v{N15}
        v_cndmask_b32 v2, v121, v2, vcc
        """)
        for eb in range(2):
            for db in range(2):
                self.tag(T(eb,db), VM)
                A(f"buffer_store_dwordx4 {vr(T(eb,db),4)}, v120, s[16:19], s58 offen offset:{(eb*2+db)*1024} sc1")
        for db in range(2):
            self.tag(T(2,db), VM)
            A(f"buffer_store_dwordx4 {vr(T(2,db),4)}, v2, s[16:19], s59 offen offset:{64*db} sc1")
        self.stamp(3)
        XR, ST2 = 224, 240
        A(f"""
        v_lshrrev_b32 v2, 3, v1
        v_and_b32 v3, 7, v1
        v_lshlrev_b32 v118, 11, v2
        v_lshl_add_u32 v118, v3, 4, v118
        s_lshl_b32 s58, s27, 8
        s_add_u32 s58, s58, {L_ST2}
        v_lshl_add_u32 v119, v2, 3, s58
        s_mul_i32 s58, s27, 4608
        s_add_u32 s58, s58, {L_TR}
        v_add_u32 v2, s58, v120
        s_lshl_b32 s38, s28, 7
        s_lshl_b32 s58, s27, 5
        s_add_u32 s38, s38, s58
        s_lshl_b32 s39, s38, 11
        s_lshl_b32 s58, s29, 7
        s_add_u32 s39, s39, s58
        """)
        for t in range(4):
            A(f"ds_read_b128 {vr(XR+4*t,4)}, v2 offset:{1024*t}")
            A(f"ds_read_b64 {vr(ST2+2*t,2)}, v119 offset:{64*t}")
        PQ = 68
        A("s_waitcnt lgkmcnt(0)")
        for rf in range(4):
            for cf in range(2):
                phi4(ACC+(rf*6+4+cf)*4, QM+rf, True, QC+4*cf, False, QL+rf, True, QI+rf, True, PQ + rf*4 + cf*2)
        S = 128
        for t in range(4):
            m = ST2 + 2*t
            for k in range(4):
                x = XR + 4*t + k; d = S + 8*t + 2*k
                A(f"""
                v_lshlrev_b32 v{d}, 16, v{x}
                v_and_b32 v{d+1}, 0xffff0000, v{x}
                v_pk_add_f32 {vr(U,2)}, {vr(d,2)}, {vr(m,2)} op_sel_hi:[1,0] neg_lo:[0,1] neg_hi:[0,1]
                v_cvt_pk_bf16_f32 v{U+1}, v{U}, v{U+1}
                v_lshlrev_b32 v{U}, 16, v{U+1}
                v_and_b32 v{U+1}, 0xffff0000, v{U+1}
                v_pk_mul_f32 {vr(U,2)}, {vr(U,2)}, {vr(m,2)} op_sel:[0,1] op_sel_hi:[1,1]
                v_cvt_pk_bf16_f32 v{U+1}, v{U}, v{U+1}
                v_lshlrev_b32 v{U}, 16, v{U+1}
                v_and_b32 v{U+1}, 0xffff0000, v{U+1}
                v_pk_add_f32 {vr(d,2)}, {vr(d,2)}, {vr(U,2)}
                """)
        self.stamp(4)
        H1 = 16
        A(f"""
        v_lshrrev_b32 v2, 3, v1
        v_and_b32 v3, 7, v1
        v_lshlrev_b32 v3, 4, v3
        v_lshl_add_u32 v4, v2, 12, v3
        v_lshl_add_u32 v5, v2, 7, v3
        s_lshr_b32 s58, s22, 3
        s_lshl_b32 s59, s23, 1
        s_add_u32 s58, s58, s59
        s_lshl_b32 s44, s58, 17
        s_bfe_u32 s58, s22, 0x20001
        s_lshl_b32 s58, s58, 10
        s_add_u32 s44, s44, s58
        s_and_b32 s58, s22, 1
        s_lshl_b32 s58, s58, 9
        s_add_u32 s44, s44, s58
        s_lshl_b32 s58, s27, 7
        s_add_u32 s44, s44, s58
        s_add_u32 s44, s44, {WS_KVP}
        s_lshl_b32 s45, s42, 12
        s_add_u32 s45, s45, {WS_ZP}
        """)
        def h1():
            A("s_mov_b32 s58, s44")
            for t in range(4):
                A(f"buffer_load_dwordx4 {vr(H1+4*t,4)}, v4, s[16:19], s58 offen sc1")
                A(f"buffer_load_dwordx4 {vr(H1+16+4*t,4)}, v5, s[16:19], s45 offen offset:{1024*t} sc1")
                if t < 3: A(f"s_add_u32 s58, s58, {8*4096}")
        if self.opt.get("d1"): A(f"s_sleep {self.opt['d1']}")
        self.spin_tag(h1, [H1+4*t for t in range(8)], 48)
        if self.diag: A("v_writelane_b32 v127, s57, 12")
        self.stamp(5)
        for b in (H1, H1+16):
            for h in (0, 2):
                A(f"""
                v_pk_add_f32 {vr(b+h,2)}, {vr(b+h,2)}, {vr(b+4+h,2)}
                v_pk_add_f32 {vr(b+8+h,2)}, {vr(b+8+h,2)}, {vr(b+12+h,2)}
                v_pk_add_f32 {vr(b+h,2)}, {vr(b+h,2)}, {vr(b+8+h,2)}
                """)
        def red81632(b):
            for k in range(4): A(f"v_add_f32_dpp v{b+k}, v{b+k}, v{b+k} row_ror:8 row_mask:0xf bank_mask:0xf")
            for wh in (16, 32):
                for k in range(4): A(f"v_mov_b32 v{b+4+k}, v{b+k}")
                for k in range(4): A(f"v_permlane{wh}_swap_b32 v{b+k}, v{b+4+k}")
                for h in (0, 2): A(f"v_pk_add_f32 {vr(b+h,2)}, {vr(b+h,2)}, {vr(b+4+h,2)}")
        red81632(H1)
        self.tag(H1, VM)
        A(f"""
        s_lshl_b32 s58, s23, 4
        s_add_u32 s58, s58, s22
        s_lshl_b32 s58, s58, 9
        s_lshl_b32 s59, s27, 7
        s_add_u32 s58, s58, s59
        s_add_u32 s58, s58, {WS_KVF}
        v_cmp_gt_u32 vcc, 8, v1
        v_cndmask_b32 v2, v121, v120, vcc
        buffer_store_dwordx4 {vr(H1,4)}, v2, s[16:19], s58 offen sc1
        """)
        red81632(H1+16)
        A(f"v_cvt_pk_bf16_f32 v{H1+16}, v{H1+16}, v{H1+17}\nv_cvt_pk_bf16_f32 v{H1+17}, v{H1+18}, v{H1+19}")
        ZF, KF = 48, 52
        A(f"""
        v_lshlrev_b32 v2, 2, v{Q4}
        ds_bpermute_b32 v{ZF}, v2, v{H1+16}
        ds_bpermute_b32 v{ZF+1}, v2, v{H1+17}
        ds_bpermute_b32 v{ZF+2}, v2, v{H1+16} offset:16
        ds_bpermute_b32 v{ZF+3}, v2, v{H1+17} offset:16
        s_lshl_b32 s46, s42, 12
        s_add_u32 s46, s46, {WS_KVF}
        """)
        H2 = 84
        def h2():
            for k in range(4):
                A(f"buffer_load_dwordx4 {vr(H2+4*k,4)}, v120, s[16:19], s46 offen offset:{1024*k} sc1")
        if self.opt.get("d2"): A(f"s_sleep {self.opt['d2']}")
        self.spin_tag(h2, [H2+4*k for k in range(4)], 60)
        if self.diag: A("v_writelane_b32 v127, s57, 13")
        for k in range(8): A(f"v_cvt_pk_bf16_f32 v{KF+k}, v{H2+2*k}, v{H2+2*k+1}")
        self.stamp(6)
        NT = lambda rf, eb: 160 + (rf*3+eb)*4
        A("s_waitcnt lgkmcnt(0)")
        for rf in range(4):
            for eb in (2, 0, 1):
                a = vr(ZF,4) if eb == 2 else vr(KF+4*eb,4)
                A(f"v_mfma_f32_16x16x32_bf16 {vr(NT(rf,eb),4)}, {a}, {vr(PQ+4*rf,4)}, 0")
        A(f"""
        s_lshl_b32 s58, s22, 3
        s_lshl_b32 s59, s36, 2
        s_add_u32 s58, s58, s59
        s_lshl_b32 s58, s58, 5
        s_add_u32 s58, s58, s42
        s_lshl_b32 s58, s58, 10
        """)
        for rf in range(4):
            d = NT(rf,2)
            A(f"v_add_f32 v{d}, s40, v{d}\nv_rcp_f32 v{d}, v{d}")
        for rf in range(4):
            d = NT(rf,2); o = 16 + 4*rf
            for eb in range(2):
                n = NT(rf,eb)
                for h in (0, 2):
                    A(f"v_pk_mul_f32 {vr(n+h,2)}, {vr(n+h,2)}, {vr(d,2)} op_sel_hi:[1,0]")
                A(f"v_cvt_pk_bf16_f32 v{o+2*eb}, v{n}, v{n+1}\nv_cvt_pk_bf16_f32 v{o+2*eb+1}, v{n+2}, v{n+3}")
            A(f"buffer_store_dwordx4 {vr(o,4)}, v120, s[16:19], s58 offen sc1")
            if rf < 3: A(f"s_add_u32 s58, s58, 32768")
        A(f"""
        s_lshl_b32 s58, s22, 4
        s_add_u32 s58, s58, s23
        s_lshl_b32 s58, s58, 7
        s_add_u32 s58, s58, {WS_OF}
        v_cmp_eq_u32 vcc, 0, v1
        v_cndmask_b32 v2, v121, v120, vcc
        v_mov_b32 v3, s60
        v_cndmask_b32 v4, 0, 1, vcc
        s_waitcnt vmcnt(0)
        ds_add_rtn_u32 v5, v122, v4 offset:{FL_OC}
        s_waitcnt lgkmcnt(0)
        v_readfirstlane_b32 s59, v5
        s_cmp_eq_u32 s59, 3
        s_cbranch_scc0 L_notlast
        buffer_store_dword v3, v2, s[16:19], s58 offen sc1
        L_notlast:
        """)
        self.stamp(7)
        G2 = 160
        B2 = lambda slot, ks: 80 + slot*8 + ks*4
        NW = self.opt.get("nw", 8)
        OW = ([16 + 8*k for k in range(8)] + [192 + 8*k for k in range(7)])[:NW]
        VW = 112
        A(f"""
        v_lshl_add_u32 v{VW}, v{Q4}, 9, v10
        v_xor_b32 v{VW+1}, 32, v{VW}
        v_add_u32 v{VW+2}, 0x10000, v{VW}
        v_add_u32 v{VW+3}, 0x10000, v{VW+1}
        v_add_u32 v116, 32768, v120
        s_lshl_b32 s47, s28, 3
        s_lshl_b32 s58, s27, 1
        s_add_u32 s47, s47, s58
        s_lshl_b32 s47, s47, 15
        s_and_b32 s48, s29, 7
        s_lshl_b32 s58, s28, 1
        s_add_u32 s48, s48, s58
        s_lshl_b32 s48, s48, 2
        v_lshlrev_b32 v117, 7, v{N15}
        s_lshl_b32 s50, s28, 11
        s_add_u32 s50, s50, {WS_OF}
        """)
        self.spin_lds(122, FL_WO, 4, 4)
        A(f"""
        s_cmp_eq_u32 s27, 0
        s_cbranch_scc0 L_s3w
        s_sleep {self.opt.get("d3", 8)}
        s_mov_b32 s57, 0
        L_s3:
        buffer_load_dword v4, v117, s[16:19], s50 offen sc1
        s_waitcnt vmcnt(0)
        v_cmp_ne_u32 vcc, s60, v4
        s_add_u32 s57, s57, 1
        s_nop 1
        s_cbranch_vccz L_s3d
        s_sleep {self.opt.get("sleep", 4)}
        s_cmp_lt_u32 s57, {SPIN_MAX}
        s_cbranch_scc1 L_s3
        L_s3d:
        v_mov_b32 v4, 1
        ds_write_b32 v122, v4 offset:{FL_S3}
        s_branch L_s3j
        L_s3w:
        """)
        self.spin_lds(122, FL_S3, 1, 4)
        A.label("L_s3j")
        self.stamp(8)
        V = VmTracker(A)
        def oload(u):
            t, rf = u >> 1, u & 1
            if u % 8 == 0:
                A(f"s_add_u32 s58, s48, {t}\ns_and_b32 s58, s58, 31\ns_lshl_b32 s58, s58, 10\ns_add_u32 s51, s58, s47")
            V.issue(f"buffer_load_dwordx4 {vr(OW[t % NW]+4*rf,4)}, v{116 if rf else 120}, s[16:19], s51 offen offset:{(t&3)*1024} sc1", ("o", t))
        PRE = self.opt.get("pre", 4)
        for u in range(2*PRE): oload(u)
        L = LgkmTracker(A)
        def wreads(pr, nf):
            slot = nf
            r = []
            for ks in range(2):
                t = 2*pr + ks
                for rd in range(2):
                    r.append((f"ds_read_b64_tr_b16 {vr(B2(slot,ks)+2*rd,2)}, v{VW + (nf&1) + 2*(t>>4)} offset:{(t&15)*4096 + rd*2048 + (nf>>1)*256}", ("W",pr,nf)))
            return r
        for nf in range(3):
            for x in wreads(0, nf): L.issue(*x)
        nxt = 2*PRE
        for pr in range(16):
            for nf in range(4):
                g = pr*4 + nf + 3
                w = wreads(g//4, g % 4) if g < 64 else []
                if nf == 0 and not self.opt.get("g2nowait"): V.need({("o", 2*pr), ("o", 2*pr+1)})
                if nf == 0 and pr in (0, 4, 8, 12) and self.opt.get("g2st"): self.stamp(16+pr//4)
                L.need({("W",pr,nf)})
                for j,(rf,ks) in enumerate(((0,0),(0,1),(1,1),(1,0))):
                    acc = G2 + (rf*4+nf)*4
                    c = "0" if (pr == 0 and j % 2 == 0) else vr(acc,4)
                    A(f"v_mfma_f32_16x16x32_bf16 {vr(acc,4)}, {vr(B2(nf,ks),4)}, {vr(OW[(2*pr+ks) % NW]+4*rf,4)}, {c}")
                    if w: L.issue(*w.pop(0))
                    if j == self.opt.get("opos", 1):
                        for _ in range(2 if (nxt >> 1) < 2*pr + NW - 2 else 1):
                            if nxt < 64 and (nxt >> 1) - NW <= 2*pr - 1:
                                oload(nxt); nxt += 1
        assert nxt == 64
        self.stamp(9)
        A(f"""
        s_mul_i32 s58, s27, 4608
        s_add_u32 s58, s58, {L_TR}
        v_mul_u32_u24 v2, 144, v{N15}
        v_lshl_add_u32 v2, v{Q4}, 3, v2
        v_add_u32 v2, s58, v2
        v_lshrrev_b32 v3, 3, v1
        v_mul_u32_u24 v3, 144, v3
        v_and_b32 v4, 7, v1
        v_lshl_add_u32 v3, v4, 4, v3
        v_add_u32 v3, s58, v3
        ds_read_b32 v6, v122 offset:{FL_SEL}
        """)
        for rf in range(2):
            for nf in range(4):
                a = G2 + (rf*4+nf)*4; d = 16 + (rf*4+nf)*2
                A(f"v_cvt_pk_bf16_f32 v{d}, v{a}, v{a+1}\nv_cvt_pk_bf16_f32 v{d+1}, v{a+2}, v{a+3}")
                A(f"ds_write_b64 v2, {vr(d,2)} offset:{rf*16*144 + nf*32}")
        A("s_waitcnt lgkmcnt(0)")
        for t in range(4): A(f"ds_read_b128 {vr(32+4*t,4)}, v3 offset:{t*8*144}")
        A(f"""
        v_readfirstlane_b32 s52, v6
        s_and_b32 s52, s52, 0x7ff
        s_sub_u32 s52, 0x7ff, s52
        s_sub_u32 s52, s52, s38
        s_cmp_lt_u32 s52, {0 if self.opt.get("nomoe") else 32}
        s_cbranch_scc0 L_no_moe
        """)
        self.spin_lds(122, FL_YF, 1, 5)
        A(f"""
        v_lshlrev_b32 v4, 5, v4
        v_add_u32 v4, {L_YF}, v4
        ds_read_b128 v[48:51], v4
        ds_read_b128 v[52:55], v4 offset:16
        v_lshrrev_b32 v5, 3, v1
        s_waitcnt lgkmcnt(0)
        """)
        for t in range(4):
            A(f"v_add_u32 v7, {8*t}, v5\nv_cmp_eq_u32 vcc, s52, v7")
            for k in range(8):
                A(f"v_cndmask_b32 v56, 0, v{48+k}, vcc\nv_add_f32 v{S+8*t+k}, v{S+8*t+k}, v56")
        A("L_no_moe:\ns_waitcnt lgkmcnt(0)")
        for t in range(4):
            for k in range(4):
                a = 32 + 4*t + k; s_ = S + 8*t + 2*k
                A(f"""
                v_lshlrev_b32 v{U}, 16, v{a}
                v_and_b32 v{U+1}, 0xffff0000, v{a}
                v_pk_add_f32 {vr(U,2)}, {vr(U,2)}, {vr(s_,2)}
                v_cvt_pk_bf16_f32 v{a}, v{U}, v{U+1}
                """)
            A(f"buffer_store_dwordx4 {vr(32+4*t,4)}, v118, s[32:35], s39 offen")
            if t < 3: A(f"s_add_u32 s39, s39, {8*2048}")
        self.stamp(10)
        self.stamp_out()
        A("L_end:\ns_endpgm")

    def build(self):
        self.prologue()
        self.loader()
        self.compute()
        body = hazard.fix(self.A.lines)
        hdr = open(os.path.join(os.path.dirname(os.path.abspath(__file__)), "header.txt")).read()
        out = hdr + f"; @launch grid=(256,1,1) block=(512,1,1) lds={LDS_SIZE}\n"
        out += f""".amdgcn_target "amdgcn-amd-amdhsa--gfx950"
.text
.globl {NAME}_kernel
.p2align 8
.type {NAME}_kernel,@function
{NAME}_kernel:
"""
        out += "\n".join(body) + "\n"
        out += f""".section .rodata,"a"
.p2align 6
.amdhsa_kernel {NAME}_kernel
  .amdhsa_next_free_vgpr 256
  .amdhsa_next_free_sgpr 102
  .amdhsa_accum_offset 256
  .amdhsa_group_segment_fixed_size 0
  .amdhsa_kernarg_size 88
  .amdhsa_user_sgpr_count 2
  .amdhsa_user_sgpr_kernarg_segment_ptr 1
  .amdhsa_system_sgpr_workgroup_id_x 1
  .amdhsa_float_denorm_mode_32 3
.end_amdhsa_kernel
"""
        return out

if __name__ == "__main__":
    diag = "--diag" in sys.argv
    out = [a for a in sys.argv[1:] if not a.startswith("--")]
    path = out[0] if out else f"cdna_kernels/{NAME}.s"
    kw = {}
    for a in sys.argv[1:]:
        if a.startswith("--") and "=" in a:
            k_, v_ = a[2:].split("="); kw[k_] = eval(v_)
    open(path, "w").write(Gen(diag=diag, **kw).build())
    print("wrote", path)
```

```python
import sys, os
sys.path.insert(0, os.path.dirname(os.path.abspath(__file__)))
from asmlib import *
import hazard

NAME = "parallel_sum__linear_attn_block__moe_arch_mod__prompt"

WS_O, WS_KVP, WS_ZP, WS_KVF, WS_ZF = 0x000000, 0xB00000, 0x800000, 0x860000, 0x880000
KVS = 4096 + 128
WS_X, WS_OF = 0x838000, 0x840000
WS_STAT, WS_KEY, WS_CSP, WS_GUP, WS_YP = 0x830000, 0x834000, 0x8A0000, 0xA80000, 0x900000
WS_DIAG = 0xA00000
WS_SIZE = 0x1000000
OOB = 0x40000000
L_A, L_KV, L_Q = 0, 49152, 98304
L_M, L_RI, L_RL = 131072, 131584, 132096
L_CS = 132608
L_FL = 133376
FL_WO, FL_GU, FL_Y, FL_YF, FL_OC, FL_SEL, FL_NON, FL_KEY, FL_S3, FL_TAB, FL_C15, FL_H = 0, 16, 32, 48, 52, 56, 60, 64, 80, 96, 112, 84
L_HT = 133632
L_YT = 133888
L_YF = 134912
L_ST2 = 135168
L_TR = 136192
L_GUS = L_TR + 4*4608
LDS_SIZE = L_GUS + 8192
SPIN_MAX = 1 << 15
LOG2E = 0x3fb8aa3b

def order_tables():
    out = []
    for q in range(4):
        seq = [q]
        for g in range(4):
            others = [4*g + p for p in range(4) if p != q]
            oi = 0
            for sl in range(4):
                if sl == q and g < 3: seq.append(4*(g+1)+q)
                elif oi < 3: seq.append(others[oi]); oi += 1
        assert sorted(seq) == list(range(16))
        out.append(seq)
    return out
def pack4(seq):
    v = 0
    for i, c in enumerate(seq): v |= c << (4*i)
    return v

def srd(A, d, lo, size):
    A(f"s_mov_b32 s{d}, s{lo}\ns_mov_b32 s{d+1}, s{lo+1}\ns_mov_b32 s{d+2}, {hex(size)}\ns_mov_b32 s{d+3}, 0x20000")

def red_row(A, v, op="v_add_f32"):
    for r in (8, 4, 2, 1):
        A(f"{op}_dpp v{v}, v{v}, v{v} row_ror:{r} row_mask:0xf bank_mask:0xf")
def red_swap(A, v, t, which, op="v_add_f32"):
    A(f"v_mov_b32 v{t}, v{v}\nv_permlane{which}_swap_b32 v{v}, v{t}\n{op} v{v}, v{v}, v{t}")
def unpack(A, dlo, dhi, s):
    A(f"v_lshlrev_b32 v{dlo}, 16, v{s}\nv_and_b32 v{dhi}, 0xffff0000, v{s}")
def rnd_bf16(A, v):
    A(f"v_cvt_pk_bf16_f32 v{v}, v{v}, v{v}\nv_lshlrev_b32 v{v}, 16, v{v}")

class Gen:
    def __init__(self, diag=False, **kw):
        self.A = Asm()
        self.diag = diag
        self.nlab = 0
        self.opt = kw
        self.swap = kw.get("swap", 1)
    def lab(self, p):
        self.nlab += 1
        return f"L_{p}{self.nlab}"
    def stamp(self, slot):
        if not self.diag: return
        self.A(f"s_memrealtime s[98:99]\ns_waitcnt lgkmcnt(0)\nv_writelane_b32 v{self.sreg}, s98, {slot}")
        if slot < 16: self.A(f"s_memtime s[98:99]\ns_waitcnt lgkmcnt(0)\nv_writelane_b32 v{self.sreg}, s98, {48+slot}")
    def stamp_out(self):
        if not self.diag: return
        A = self.A
        A(f"""
        s_lshl_b32 s56, s2, 3
        s_xor_b32 s57, s26, {4 if self.swap else 0}
        s_add_u32 s56, s56, s57
        s_lshl_b32 s56, s56, 8
        s_add_u32 s56, s56, {WS_DIAG}
        v_and_b32 v2, 63, v0
        v_lshlrev_b32 v3, 2, v2
        buffer_store_dword v{self.sreg}, v3, s[16:19], s56 offen
        """)

    def spin_vm(self, issue, regs, tmp, cnt="s57"):
        A = self.A
        top, done = self.lab("sp"), self.lab("spd")
        A(f"s_mov_b32 {cnt}, 0")
        A.label(top)
        issue()
        A("s_waitcnt vmcnt(0)")
        r = list(regs)
        A(f"v_max_u32 v{tmp}, v{r[0]}, v{r[1]}" if len(r) > 1 else f"v_mov_b32 v{tmp}, v{r[0]}")
        k = 2
        while k < len(r):
            if k + 1 < len(r):
                A(f"v_max3_u32 v{tmp}, v{tmp}, v{r[k]}, v{r[k+1]}"); k += 2
            else:
                A(f"v_max_u32 v{tmp}, v{tmp}, v{r[k]}"); k += 1
        A(f"""
        v_cmp_eq_u32 vcc, -1, v{tmp}
        s_add_u32 {cnt}, {cnt}, 1
        s_nop 1
        s_cbranch_vccz {done}
        s_cmp_lt_u32 {cnt}, {SPIN_MAX}
        s_cbranch_scc1 {top}
        """)
        A.label(done)

    def nonce_setup(self, vmask):
        self.A(f"""
        s_add_u32 s60, s3, 1
        s_lshr_b32 s61, s60, 8
        s_lshr_b32 s62, s60, 16
        s_lshr_b32 s63, s60, 24
        s_mov_b32 s64, 0x0c0c0400
        s_mov_b32 s65, 0x04000c0c
        v_mov_b32 v{vmask}, 0xff
        """)
    def tag(self, base, vmask):
        for k in range(4):
            self.A(f"v_bfi_b32 v{base+k}, v{vmask}, s{60+k}, v{base+k}")
    def spin_tag(self, issue, chunks, tmp, cnt="s57", pre=False):
        A = self.A
        top, done = self.lab("sp"), self.lab("spd")
        chk = self.lab("spc")
        A(f"s_mov_b32 {cnt}, 0")
        if pre: A(f"s_branch {chk}")
        A.label(top)
        issue()
        A("s_waitcnt vmcnt(0)")
        if pre: A.label(chk)
        mx, mn, t0, t1, t2 = tmp, tmp+1, tmp+2, tmp+3, tmp+4
        def pk(c, d, t):
            A(f"v_perm_b32 v{d}, v{c+1}, v{c}, s64\nv_perm_b32 v{t}, v{c+3}, v{c+2}, s65\nv_or_b32 v{d}, v{d}, v{t}")
        ch = list(chunks)
        pk(ch[0], mx, t2); A(f"v_mov_b32 v{mn}, v{mx}")
        k = 1
        while k < len(ch):
            pk(ch[k], t0, t2)
            if k + 1 < len(ch):
                pk(ch[k+1], t1, t2)
                A(f"v_max3_u32 v{mx}, v{mx}, v{t0}, v{t1}\nv_min3_u32 v{mn}, v{mn}, v{t0}, v{t1}"); k += 2
            else:
                A(f"v_max_u32 v{mx}, v{mx}, v{t0}\nv_min_u32 v{mn}, v{mn}, v{t0}"); k += 1
        A(f"""
        v_cmp_ne_u32 vcc, s60, v{mx}
        v_cmp_ne_u32 s[66:67], s60, v{mn}
        s_add_u32 {cnt}, {cnt}, 1
        s_or_b64 vcc, vcc, s[66:67]
        s_cbranch_scc0 {done}
        s_sleep {self.opt.get("sleep", 4)}
        s_cmp_lt_u32 {cnt}, {SPIN_MAX}
        s_cbranch_scc1 {top}
        """)
        A.label(done)
        for c in ch:
            for k in range(4): A(f"v_and_b32 v{c+k}, 0xffffff00, v{c+k}")

    def gather(self, loads, tmp, after=None, younger=0):
        A = self.A
        n = len(loads)
        for pre, txt, c in loads:
            if pre: A(pre)
            A(txt)
        if self.diag: A("s_mov_b32 s97, 0")
        for k, (pre, txt, c) in enumerate(loads):
            ok, top = self.lab("gk"), self.lab("gt")
            chk = f"""
            v_perm_b32 v{tmp}, v{c+1}, v{c}, s64
            v_perm_b32 v{tmp+1}, v{c+3}, v{c+2}, s65
            v_or_b32 v{tmp}, v{tmp}, v{tmp+1}
            v_cmp_ne_u32 vcc, s60, v{tmp}
            """
            A(f"s_waitcnt vmcnt({n-1-k+younger})")
            A(chk)
            A(f"s_mov_b32 s57, 0\ns_nop 0\ns_cbranch_vccz {ok}\n{top}:\ns_sleep {self.opt.get('sleep', 4)}")
            if pre: A(pre)
            A(txt + "\ns_waitcnt vmcnt(0)")
            if self.diag: A("s_add_u32 s97, s97, 1")
            A(chk)
            re_ = self.lab("gr")
            A(f"s_add_u32 s57, s57, 1\ns_nop 0\ns_cbranch_vccz {re_}\ns_cmp_lt_u32 s57, {SPIN_MAX}\ns_cbranch_scc1 {top}\n{re_}:")
            for pre2, txt2, c2 in loads[k+1:]:
                if pre2: A(pre2)
                A(txt2)
            A.label(ok)
            for r in range(4): A(f"v_and_b32 v{c+r}, 0xffffff00, v{c+r}")
            if after: after(k)

    def spin_lds(self, addr_v, off, nflags, tmp, cnt="s57"):
        A = self.A
        top, done = self.lab("sl"), self.lab("sld")
        A(f"s_mov_b32 {cnt}, 0")
        A.label(top)
        if nflags == 4:
            A(f"""
            ds_read_b128 v[{tmp}:{tmp+3}], v{addr_v} offset:{off}
            s_waitcnt lgkmcnt(0)
            v_min_u32 v{tmp}, v{tmp}, v{tmp+1}
            v_min3_u32 v{tmp}, v{tmp}, v{tmp+2}, v{tmp+3}
            """)
        else:
            A(f"ds_read_b32 v{tmp}, v{addr_v} offset:{off}\ns_waitcnt lgkmcnt(0)")
        A(f"""
        v_cmp_eq_u32 vcc, 0, v{tmp}
        s_add_u32 {cnt}, {cnt}, 1
        s_nop 1
        s_cbranch_vccz {done}
        s_sleep 1
        s_cmp_lt_u32 {cnt}, {SPIN_MAX*8}
        s_cbranch_scc1 {top}
        """)
        A.label(done)

    def prologue(self):
        A = self.A
        A(f"""
        s_cmp_ge_u32 s2, 256
        s_cbranch_scc1 L_end
        s_load_dwordx4 s[4:7], s[0:1], 0
        s_load_dwordx2 s[56:57], s[0:1], 16
        s_load_dwordx8 s[60:67], s[0:1], 32
        s_load_dwordx4 s[68:71], s[0:1], 64
        s_load_dwordx2 s[72:73], s[0:1], 80
        v_lshrrev_b32 v2, 6, v0
        v_and_b32 v1, 63, v0
        s_and_b32 s20, s2, 7
        v_readfirstlane_b32 s26, v2
        s_lshr_b32 s21, s2, 3
        s_and_b32 s24, s21, 7
        s_lshr_b32 s25, s21, 3
        s_and_b32 s30, s20, 1
        s_lshl_b32 s22, s30, 3
        s_add_u32 s22, s22, s24
        s_lshr_b32 s31, s20, 1
        s_lshl_b32 s23, s31, 2
        s_add_u32 s23, s23, s25
        s_and_b32 s27, s26, 3
        s_lshl_b32 s28, s30, 3
        s_and_b32 s58, s31, 1
        s_lshl_b32 s58, s58, 2
        s_add_u32 s28, s28, s58
        s_and_b32 s58, s21, 3
        s_add_u32 s28, s28, s58
        s_lshr_b32 s29, s20, 2
        s_lshl_b32 s29, s29, 3
        s_lshr_b32 s58, s21, 2
        s_add_u32 s29, s29, s58
        s_waitcnt lgkmcnt(0)
        """)
        srd(A, 8, 4, 0x400000)
        srd(A, 12, 6, 0x600000)
        srd(A, 16, 72, WS_SIZE)
        A(f"s_add_u32 s72, s72, {WS_X}\ns_addc_u32 s73, s73, 0\ns_load_dword s3, s[72:73], 0")
        A(("s_cmp_ge_u32" if self.swap else "s_cmp_lt_u32") + " s26, 4\ns_cbranch_scc1 L_loader")
        srd(A, 52, 60, 2048)
        A(f"""
        v_and_b32 v2, 31, v1
        v_lshlrev_b32 v2, 4, v2
        v_lshrrev_b32 v3, 5, v1
        v_lshl_add_u32 v4, v3, 11, v2
        s_lshl_b32 s85, s22, 7
        s_lshl_b32 s58, s23, 3
        s_add_u32 s85, s85, s58
        s_lshl_b32 s58, s27, 1
        s_add_u32 s85, s85, s58
        s_lshl_b32 s58, s85, 11
        """)
        for t in range(4): A(f"buffer_load_dwordx4 {vr(16+4*t,4)}, v4, s[8:11], s58 offen offset:{512*t}{' nt' if self.opt.get('ntsx') else ''}")
        for t in range(4): A(f"buffer_load_dwordx4 {vr(32+4*t,4)}, v2, s[52:55], 0 offen offset:{512*t}")
        if self.opt.get("bar0"): A("s_barrier")
        A("s_branch L_compute\nL_loader:")

    def loader(self):
        A0 = self.A
        A = V = self.A = Switch(A0)
        self.sreg = 99
        self.stamp(0)
        tabs = [pack4(o) for o in order_tables()]
        VAo, VKVo, VQo, VL16 = 10, 11, 12, 13
        A(f"""
        ; ---- DMA lane offsets ----
        v_lshrrev_b32 v2, 3, v1
        v_lshrrev_b32 v3, 4, v1
        s_and_b32 s58, s27, 1
        s_lshl_b32 s59, s58, 2
        v_add_u32 v3, s59, v3
        v_and_b32 v4, 7, v1
        v_xor_b32 v3, v3, v4
        v_lshlrev_b32 v2, 11, v2
        v_lshl_add_u32 v{VAo}, v3, 4, v2
        v_and_b32 v5, 3, v1
        v_lshlrev_b32 v5, 4, v5
        v_bfe_u32 v6, v1, 4, 1
        v_lshl_add_u32 v5, v6, 6, v5
        v_bfe_u32 v6, v1, 2, 2
        v_lshrrev_b32 v7, 5, v1
        v_mul_u32_u24 v8, 6144, v6
        v_add_u32 v8, v8, v5
        v_lshl_add_u32 v{VKVo}, v7, 11, v8
        v_mul_u32_u24 v7, {4*6144}, v7
        v_add_u32 v{VQo}, v7, v8
        s_lshr_b32 s59, s27, 1
        s_lshl_b32 s59, s59, 5
        v_xor_b32 v{VKVo}, s59, v{VKVo}
        s_lshl_b32 s59, s58, 5
        v_xor_b32 v{VQo}, s59, v{VQo}
        s_sub_u32 s74, s24, s25
        s_and_b32 s74, s74, 3
        s_mov_b32 s76, {tabs[0] & 0xffffffff}
        s_mov_b32 s77, {tabs[0] >> 32}
        """)
        for q in range(1, 4):
            A(f"""
            s_cmp_eq_u32 s74, {q}
            s_cselect_b32 s76, {tabs[q] & 0xffffffff}, s76
            s_cselect_b32 s77, {tabs[q] >> 32}, s77
            """)
        A(f"""
        s_lshl_b32 s75, s30, 1
        {"s_add_u32 s75, s75, s31" if self.opt.get("rot", 1) else ""}
        s_lshl_b32 s75, s75, 2
        s_lshl_b32 s58, s23, 7
        s_mul_i32 s78, s27, {4*6144}
        s_add_u32 s78, s78, s58
        s_add_u32 s78, s78, 2048
        s_mul_i32 s79, s27, {8*6144}
        s_xor_b32 s58, s58, 128
        s_add_u32 s79, s79, s58
        s_lshl_b32 s80, s27, 10
        s_lshl_b32 s81, s22, 7
        s_lshl_b32 s58, s27, 3
        s_add_u32 s81, s81, s58
        s_lshl_b32 s81, s81, 11
        """)
        def issue_stage(s, atoms=(), k0=0):
            slot = s % 3
            atoms = list(atoms)
            per = -(-len(atoms) // (10 - k0))
            cnt = [0]
            nt = "nt " if s < self.opt.get("ntst", 0) else ""
            def fill():
                cnt[0] += 1
                if cnt[0] <= k0: return
                for _ in range(per):
                    if atoms: replay(atoms.pop(0), A0, V.V)
            A(f"""
            s_and_b32 s58, s76, 15
            s_lshr_b64 s[76:77], s[76:77], 4
            s_add_u32 s58, s58, s75
            s_and_b32 s58, s58, 15
            s_lshl_b32 s82, s58, 7
            s_add_u32 s82, s82, s81
            s_mul_i32 s59, s58, {64*6144}
            s_add_u32 s83, s59, s78
            s_add_u32 s84, s59, s79
            """)
            for p in range(4):
                A(f"s_add_u32 m0, s80, {L_A + slot*16384 + p*4096}")
                V.issue(f"buffer_load_dwordx4 v{VAo}, s[8:11], s82 offen {nt}lds", ("st", s))
                fill()
                A(f"s_add_u32 s82, s82, {32*2048}\ns_add_u32 m0, s80, {L_KV + slot*16384 + p*4096}")
                V.issue(f"buffer_load_dwordx4 v{VKVo}, s[12:15], s83 offen {nt}lds", ("st", s))
                fill()
                A(f"s_add_u32 s83, s83, {16*6144}")
                if p < 2:
                    A(f"s_add_u32 m0, s80, {L_Q + slot*8192 + p*4096}")
                    V.issue(f"buffer_load_dwordx4 v{VQo}, s[12:15], s84 offen {nt}lds", ("st", s))
                    fill()
                    A(f"s_add_u32 s84, s84, {32*6144}")
        pr = self.opt.get("probe")
        if pr:
            nwg, kb, which = pr
            A(f"""
            s_cmp_ge_u32 s2, {nwg}
            s_cbranch_scc1 L_noprobe
            v_lshlrev_b32 v20, 4, v1
            s_mov_b32 m0, s80
            """)
            for wh in (which if isinstance(which, tuple) else (which,)):
                A(f"""
                s_load_dwordx2 s[96:97], s[0:1], {wh}
                s_waitcnt lgkmcnt(0)
                s_mov_b32 s92, s96
                s_mov_b32 s93, s97
                s_mov_b32 s94, {0x400000 if wh == 24 else 0x700000}
                s_mov_b32 s95, 0x20000
                s_mul_i32 s58, s2, {kb*1024}
                s_add_u32 s58, s58, s80
                """)
                for i in range(kb//4):
                    A(f"buffer_load_dwordx4 v20, s[92:95], s58 offen lds\ns_add_u32 s58, s58, 4096")
            A("s_waitcnt vmcnt(0)\nL_noprobe:")
        if self.opt.get("bar0"): A("s_barrier")
        issue_stage(0)
        issue_stage(1)
        A(f"s_setprio {self.opt.get('lprio', 0)}")
        srd(A, 32, 56, 0x200000)
        if self.opt.get("wopf"):
            A(f"v_lshlrev_b32 v2, 4, v1\ns_lshl_b32 s58, s2, 13\ns_lshl_b32 s59, s27, 11\ns_add_u32 s58, s58, s59")
            V.issue("buffer_load_dwordx4 v[160:163], v2, s[32:35], s58 offen", "pf")
            V.issue("buffer_load_dwordx4 v[164:167], v2, s[32:35], s58 offen offset:1024", "pf")
        srd(A, 36, 62, 0x700000)
        srd(A, 40, 64, 0x700000)
        srd(A, 44, 66, 0x700000)
        T = 80
        CF, CA, ONES, VC = 100, 124, 136, 140
        A(f"""
        v_lshlrev_b32 v{VL16}, 4, v1
        v_mov_b32 v{ONES}, 0x3f803f80
        v_mov_b32 v{ONES+1}, 0x3f803f80
        v_mov_b32 v{ONES+2}, 0x3f803f80
        v_mov_b32 v{ONES+3}, 0x3f803f80
        v_bfe_u32 v2, v1, 2, 2
        v_lshlrev_b32 v2, 6, v2
        v_and_b32 v3, 3, v1
        v_lshl_add_u32 v2, v3, 3, v2
        v_lshrrev_b32 v3, 4, v1
        v_and_b32 v4, 1, v3
        v_lshl_add_u32 v2, v4, 5, v2
        s_lshl_b32 s58, s27, 8
        s_add_u32 s58, s58, {L_KV}
        v_lshl_add_u32 v{VC}, v3, 11, v2
        v_add_u32 v{VC}, s58, v{VC}
        v_xor_b32 v{VC+1}, 32, v{VC}
        s_lshr_b32 s58, s27, 1
        s_lshl_b32 s58, s58, 8
        s_add_u32 s58, s58, {L_Q}
        s_and_b32 s59, s27, 1
        s_lshl_b32 s59, s59, 5
        v_lshl_add_u32 v{VC+2}, v3, 10, v2
        v_xor_b32 v{VC+2}, s59, v{VC+2}
        v_add_u32 v{VC+2}, s58, v{VC+2}
        s_add_u32 s86, s74, 1
        s_cmp_lt_u32 s24, 4
        s_cselect_b32 s86, 0, s86
        v_mov_b32 v15, {OOB}
        s_lshr_b32 s88, s2, 4
        s_and_b32 s89, s2, 15
        s_cmp_lt_u32 s2, 224
        s_cselect_b32 s87, 0, {OOB}
        """)
        VM = 96
        V.need({("st", 0)})
        A("s_barrier")
        self.stamp(1)

        def csum(s):
            skip = self.lab("cs")
            A(f"s_cmp_eq_u32 s86, {s}\ns_cbranch_scc0 {skip}")
            slot = s % 3
            for f in range(3):
                for ks in range(2):
                    for rd in range(2):
                        g = 8*ks + rd
                        off = slot*16384 + g*1024 if f < 2 else slot*8192 + g*512
                        A(f"ds_read_b64_tr_b16 {vr(CF+f*8+ks*4+2*rd,2)}, v{VC+f} offset:{off}")
            A("s_waitcnt lgkmcnt(0)")
            for f in range(3):
                A(f"v_mfma_f32_16x16x32_bf16 {vr(CA+4*f,4)}, {vr(ONES,4)}, {vr(CF+f*8,4)}, 0")
                A(f"v_mfma_f32_16x16x32_bf16 {vr(CA+4*f,4)}, {vr(ONES,4)}, {vr(CF+f*8+4,4)}, {vr(CA+4*f,4)}")
            A.label(skip)

        def nonce():
            A("s_waitcnt lgkmcnt(0)")
            self.nonce_setup(VM)
        def pub_cs_key():
            A(f"""
            v_lshrrev_b32 v2, 4, v1
            v_cmp_eq_u32 vcc, 1, v2
            v_cndmask_b32 v{CA}, v{CA}, v{CA+4}, vcc
            v_cmp_eq_u32 vcc, 2, v2
            v_cndmask_b32 v{CA}, v{CA}, v{CA+8}, vcc
            s_lshl_b32 s58, s27, 7
            v_lshlrev_b32 v3, 2, v1
            v_add_u32 v3, s58, v3
            s_lshl_b32 s58, s27, 6
            s_add_u32 s58, s58, {512 - 128}
            v_lshlrev_b32 v4, 2, v1
            v_add_u32 v4, s58, v4
            v_cndmask_b32 v3, v3, v4, vcc
            v_cmp_eq_u32 vcc, 3, v2
            v_cndmask_b32 v3, v3, v15, vcc
            s_lshl_b32 s58, s23, 4
            s_add_u32 s58, s58, s22
            s_lshl_b32 s58, s58, 10
            s_add_u32 s58, s58, {WS_CSP}
            """)
            A(f"v_and_b32 v4, 3, v1\nv_lshlrev_b32 v4, 3, v4\nv_lshrrev_b32 v4, v4, s60\nv_bfi_b32 v{CA}, v{VM}, v4, v{CA}")
            V.issue(f"buffer_store_dword v{CA}, v3, s[16:19], s58 offen sc1", "cs")
        def flag_s1():
            A(f"""
            v_mov_b32 v3, {L_FL + FL_KEY}
            ds_read_b128 {vr(T,4)}, v3
            v_cmp_eq_u32 vcc, {256 if self.swap else 0}, v0
            v_mov_b32 v4, 0
            v_cndmask_b32 v5, v15, v4, vcc
            s_lshl_b32 s58, s2, 3
            s_add_u32 s58, s58, {WS_KEY}
            s_waitcnt lgkmcnt(0)
            v_max_u32 v{T}, v{T}, v{T+1}
            v_max3_u32 v{T}, v{T}, v{T+2}, v{T+3}
            v_mov_b32 v{T+1}, s60
            """)
            V.issue(f"buffer_store_dwordx2 {vr(T,2)}, v5, s[16:19], s58 offen sc1", "flag")
        S1R, KEYS = 144, 152
        def s1_round(issue):
            A("s_mov_b32 s58, s90")
            for t in range(4):
                issue(f"buffer_load_dwordx4 {vr(S1R+4*t,4)}, v7, s[16:19], s58 offen sc1", "s1")
                if t < 3: A(f"s_add_u32 s58, s58, s{(95, 85, 74)[t]}")
        def s1_addr():
            A(f"""
            v_and_b32 v2, 15, v1
            v_lshlrev_b32 v2, 4, v2
            v_lshrrev_b32 v3, 4, v1
            v_lshl_add_u32 v2, v3, 10, v2
            s_lshl_b32 s90, s23, 14
            s_lshl_b32 s59, s27, 8
            s_add_u32 s90, s90, s59
            s_add_u32 s90, s90, {WS_CSP}
            s_lshl_b32 s59, s22, 10
            s_add_u32 s59, s59, {WS_STAT}
            s_sub_u32 s95, s28, s22
            s_lshl_b32 s95, s95, 10
            s_lshl_b32 s85, s28, 10
            s_sub_u32 s85, {WS_KEY - WS_STAT}, s85
            s_cmp_eq_u32 s27, 3
            s_cselect_b32 s90, s59, s90
            s_movk_i32 s59, 4096
            s_cselect_b32 s95, s95, s59
            s_cselect_b32 s85, s85, s59
            s_cselect_b32 s74, 1024, s59
            s_cselect_b64 vcc, -1, 0
            v_cndmask_b32 v7, v2, v{VL16}, vcc
            """)
        slow = []
        def s1_check(w3):
            def chk():
                if not w3:
                    for t in range(4):
                        c = S1R + 4*t
                        A(f"v_perm_b32 v{T+t}, v{c+1}, v{c}, s64\nv_perm_b32 v4, v{c+3}, v{c+2}, s65\nv_or_b32 v{T+t}, v{T+t}, v4")
                    A(f"v_max3_u32 v2, v{T}, v{T+1}, v{T+2}\nv_min3_u32 v3, v{T}, v{T+1}, v{T+2}\nv_max_u32 v2, v2, v{T+3}\nv_min_u32 v3, v3, v{T+3}")
                else:
                    A("s_mov_b32 s58, 0x05040100")
                    for t in range(4):
                        A(f"v_perm_b32 v{T+t}, v{S1R+2*t+1}, v{S1R+2*t}, s58")
                    A(f"""
                    v_max3_u32 v2, v{KEYS+1}, v{KEYS+3}, v{KEYS+5}
                    v_min3_u32 v3, v{KEYS+1}, v{KEYS+3}, v{KEYS+5}
                    v_max3_u32 v2, v2, v{KEYS+7}, v{T}
                    v_min3_u32 v3, v3, v{KEYS+7}, v{T}
                    v_max3_u32 v2, v2, v{T+1}, v{T+2}
                    v_min3_u32 v3, v3, v{T+1}, v{T+2}
                    v_max_u32 v2, v2, v{T+3}
                    v_min_u32 v3, v3, v{T+3}
                    """)
                A("v_cmp_ne_u32 vcc, s60, v2\nv_cmp_ne_u32 s[66:67], s60, v3\ns_or_b64 vcc, vcc, s[66:67]")
            V.need({"s1"})
            chk()
            sl, back = f"L_s1slow{int(w3)}", f"L_s1back{int(w3)}"
            A(f"s_cbranch_scc1 {sl}\n{back}:")
            def slowpath():
                top = self.lab("s1t")
                A(f"{sl}:\ns_mov_b32 s57, 0\n{top}:\ns_sleep 8")
                s1_round(lambda t, tag: A(t))
                A("s_waitcnt vmcnt(0)")
                chk()
                A(f"s_cbranch_scc0 {back}\ns_add_u32 s57, s57, 1\ns_cmp_lt_u32 s57, {SPIN_MAX}\ns_cbranch_scc1 {top}\ns_branch {back}")
            slow.append(slowpath)
        XSV, XST = 144, 146
        def s1_tables(w3):
            if not w3:
                for k in range(16): A(f"v_and_b32 v{S1R+k}, 0xffffff00, v{S1R+k}")
                for h in (0, 2):
                    A(f"v_pk_add_f32 {vr(S1R+h,2)}, {vr(S1R+h,2)}, {vr(S1R+4+h,2)}\nv_pk_add_f32 {vr(S1R+8+h,2)}, {vr(S1R+8+h,2)}, {vr(S1R+12+h,2)}")
                for h in (0, 2):
                    A(f"v_pk_add_f32 {vr(S1R+h,2)}, {vr(S1R+h,2)}, {vr(S1R+8+h,2)}")
                for wh in (16, 32):
                    for k in range(4): A(f"v_mov_b32 v{S1R+4+k}, v{S1R+k}")
                    for k in range(4): A(f"v_permlane{wh}_swap_b32 v{S1R+k}, v{S1R+4+k}")
                    for h in (0, 2): A(f"v_pk_add_f32 {vr(S1R+h,2)}, {vr(S1R+h,2)}, {vr(S1R+4+h,2)}")
                A(f"""
                s_lshl_b32 s58, s27, 8
                s_add_u32 s58, s58, {L_CS}
                v_and_b32 v2, 15, v1
                v_lshlrev_b32 v2, 4, v2
                v_add_u32 v2, s58, v2
                ds_write_b128 v2, {vr(S1R,4)}
                """)
                return
            for k in range(8): A(f"v_and_b32 v{S1R+k}, 0xffff0000, v{S1R+k}")
            for k in (1, 3, 5, 7): A(f"v_rcp_f32 v{S1R+k}, v{S1R+k}")
            A(f"""
            v_add_u32 v2, {L_ST2}, v{VL16}
            v_mov_b32 v{T}, v{S1R}
            v_mov_b32 v{T+1}, v{S1R+2}
            ds_write_b128 v2, {vr(S1R+4,4)}
            v_mov_b32 v{T+2}, v{S1R+1}
            v_mov_b32 v{T+3}, v{S1R+3}
            v_mul_f32 v{T+4}, {hex(LOG2E)}, v{S1R+1}
            v_mul_f32 v{T+5}, {hex(LOG2E)}, v{S1R+3}
            v_lshlrev_b32 v2, 3, v1
            v_add_u32 v2, {L_M}, v2
            ds_write_b64 v2, {vr(T,2)}
            ds_write_b64 v2, {vr(T+2,2)} offset:{L_RI-L_M}
            ds_write_b64 v2, {vr(T+4,2)} offset:{L_RL-L_M}
            v_max_u32 v{KEYS}, v{KEYS}, v{KEYS+2}
            v_max3_u32 v{KEYS}, v{KEYS}, v{KEYS+4}, v{KEYS+6}
            """)
            red_row(A, KEYS, "v_max_u32"); red_swap(A, KEYS, KEYS+1, 16, "v_max_u32"); red_swap(A, KEYS, KEYS+1, 32, "v_max_u32")
            A(f"""
            v_mov_b32 v2, {L_FL + FL_SEL}
            ds_write_b32 v2, v{KEYS}
            """)
        def xs_loads():
            self.spin_lds(6, FL_TAB, 4, 48)
            A(f"""
            ds_read_b32 v2, v6 offset:{FL_SEL}
            s_waitcnt lgkmcnt(0)
            v_readfirstlane_b32 s91, v2
            s_and_b32 s92, s91, 0x7ff
            s_sub_u32 s92, 0x7ff, s92
            s_lshl_b32 s58, s92, 11
            s_lshl_b32 s59, s89, 7
            s_add_u32 s58, s58, s59
            s_lshl_b32 s59, s27, 5
            s_add_u32 s58, s58, s59
            v_and_b32 v2, 15, v1
            v_lshlrev_b32 v2, 1, v2
            s_lshl_b32 s90, s92, 3
            s_add_u32 s90, s90, {WS_STAT}
            v_mov_b32 v148, 0
            """)
            V.issue(f"buffer_load_ushort v{XSV}, v2, s[8:11], s58 offen", "xs")
            V.issue(f"buffer_load_dwordx2 {vr(XST,2)}, v148, s[16:19], s90 offen sc1", "xs")
        MSK = 232
        def xs_process():
            V.need({"xs"})
            top, ok = self.lab("xt"), self.lab("xk")
            A(f"""
            s_mov_b32 s57, 0
            s_mov_b32 s58, 0x05040100
            {top}:
            v_perm_b32 v2, v{XST+1}, v{XST}, s58
            v_cmp_ne_u32 vcc, s60, v2
            s_add_u32 s57, s57, 1
            s_nop 1
            s_cbranch_vccz {ok}
            s_cmp_ge_u32 s57, {SPIN_MAX}
            s_cbranch_scc1 {ok}
            buffer_load_dwordx2 {vr(XST,2)}, v148, s[16:19], s90 offen sc1
            s_waitcnt vmcnt(0)
            s_branch {top}
            {ok}:
            v_and_b32 v{XST}, 0xffff0000, v{XST}
            v_and_b32 v{XST+1}, 0xffff0000, v{XST+1}
            v_rcp_f32 v{XST+1}, v{XST+1}
            v_lshlrev_b32 v{XSV}, 16, v{XSV}
            v_sub_f32 v{XSV}, v{XSV}, v{XST}
            """)
            rnd_bf16(A, XSV)
            A(f"""
            v_mul_f32 v{XSV}, v{XSV}, v{XST+1}
            v_cvt_pk_bf16_f32 v{XSV}, v{XSV}, v{XSV}
            v_and_b32 v2, 1, v1
            v_mov_b32 v3, 0xffff
            v_mov_b32 v4, 0xffff0000
            v_cmp_eq_u32 vcc, 1, v2
            v_cndmask_b32 v3, v3, v4, vcc
            v_lshrrev_b32 v2, 1, v1
            v_xor_b32 v2, v2, v1
            v_and_b32 v2, 8, v2
            v_cmp_eq_u32 vcc, 0, v2
            v_cndmask_b32 v3, 0, v3, vcc
            v_bfe_u32 v2, v1, 1, 2
            """)
            for r in range(4):
                A(f"v_cmp_eq_u32 vcc, {r}, v2\nv_cndmask_b32 v{MSK+r}, 0, v3, vcc")
        VWO = 9
        def wo_setup():
            A(f"""
            v_lshrrev_b32 v2, 5, v1
            v_bfe_u32 v3, v1, 2, 2
            v_lshl_add_u32 v3, v2, 2, v3
            v_lshlrev_b32 v3, 11, v3
            v_bfe_u32 v4, v1, 4, 1
            v_lshl_add_u32 v3, v4, 6, v3
            v_and_b32 v4, 3, v1
            v_lshlrev_b32 v2, 1, v2
            v_xor_b32 v4, v4, v2
            v_lshl_add_u32 v{VWO}, v4, 4, v3
            s_lshl_b32 s93, s27, 14
            s_lshl_b32 s58, s29, 7
            s_add_u32 s93, s93, s58
            s_and_b32 s94, s29, 7
            s_lshl_b32 s58, s28, 1
            s_add_u32 s94, s94, s58
            s_lshl_b32 s94, s94, 2
            """)
        def wo_issue(ts):
            for t in ts:
                A(f"""
                s_add_u32 s82, s94, {t}
                s_and_b32 s82, s82, 31
                s_lshl_b32 s82, s82, 16
                s_add_u32 s82, s82, s93
                s_add_u32 m0, s80, {t*4096}
                """)
                V.issue(f"buffer_load_dwordx4 v{VWO}, s[32:35], s82 offen lds", "wo")
                if self.opt.get("wothr"): A(f"s_waitcnt vmcnt({self.opt['wothr']-1})")

        GW, DW = 168, 16
        def moe_addr():
            A(f"""
            v_lshrrev_b32 v2, 5, v1
            v_and_b32 v3, 31, v1
            v_lshlrev_b32 v3, 4, v3
            v_mul_u32_u24 v97, 7168, v2
            v_add_u32 v97, v97, v3
            v_lshl_add_u32 v98, v2, 11, v3
            v_lshrrev_b32 v2, 3, v1
            v_and_b32 v3, 7, v1
            v_lshlrev_b32 v3, 4, v3
            v_lshl_add_u32 v14, v2, 11, v3
            s_lshl_b32 s68, s89, 6
            s_lshl_b32 s59, s27, 4
            s_add_u32 s68, s68, s59
            s_mul_i32 s68, s68, 7168
            s_lshl_b32 s59, s88, 9
            s_add_u32 s68, s68, s59
            s_add_u32 s68, s68, s87
            s_lshl_b32 s69, s2, 15
            s_lshl_b32 s59, s27, 9
            s_add_u32 s69, s69, s59
            s_add_u32 s69, s69, s87
            """)
        def moe_ld(k):
            if k < 16:
                t, m = k >> 1, k & 1
                txt = f"buffer_load_dwordx4 {vr(GW+8*t+4*m,4)}, v97, s[{36+4*m}:{39+4*m}], s68 offen nt"
                post = f"s_add_u32 s68, s68, {2*7168}" if m == 1 else None
                return txt, ("gu", t), post
            return f"buffer_load_dwordx4 {vr(DW+4*(k-16),4)}, v98, s[44:47], s69 offen nt", "dw", "s_add_u32 s69, s69, 4096"
        runs = self.opt.get("runs", [])
        ng, gstep = self.opt.get("ngroups", 1), self.opt.get("gstep", 1)
        g1l = self.opt.get("g1", [])
        early = [k for _, ks in runs for k in ks] + g1l
        def xtile():
            A(f"""
            s_lshl_b32 s58, s28, 7
            s_lshl_b32 s59, s27, 5
            s_add_u32 s58, s58, s59
            s_lshl_b32 s58, s58, 11
            s_lshl_b32 s59, s29, 7
            s_add_u32 s58, s58, s59
            s_mul_i32 s59, s27, 4608
            """)
            for t in range(4):
                A(f"s_add_u32 m0, s59, {L_TR + 1024*t}")
                V.issue(f"buffer_load_dwordx4 v14, s[8:11], s58 offen lds", "xt")
                if t < 3: A(f"s_add_u32 s58, s58, {8*2048}")
        P = self.opt.get("s1at", 13)
        extra = {s: [] for s in range(16)}
        for s in range(5): extra[s].append(lambda s=s: csum(s))
        extra[0] += [nonce, flag_s1]
        extra[1] += [moe_addr]
        extra[5] += [pub_cs_key]
        extra[7] += [s1_addr]
        extra[8] += [wo_setup]
        for s in self.opt.get("noextra", []):
            extra[s] = [f for f in extra[s] if f in (nonce, moe_addr, wo_setup, s1_addr)]
        if runs: A(f"s_lshr_b32 s71, s2, 3\ns_mul_i32 s58, s71, {(65536+ng-1)//ng}\ns_lshr_b32 s58, s58, 16\ns_mul_i32 s58, s58, {ng}\ns_sub_u32 s71, s71, s58")
        def iteration(s, atoms, k0=0):
            here = [(g, ks) for first, ks in runs for g in range(ng) if first + g*gstep == s]
            assert len(here) <= 1
            if here:
                g, ks = here[0]
                skip = self.lab("run")
                A(f"s_cmp_eq_u32 s71, {g}\ns_cbranch_scc0 {skip}")
                for k in ks:
                    txt, tag, post = moe_ld(k)
                    A(txt)
                    if post: A(post)
                A.label(skip)
            if s + 2 < 16: issue_stage(s + 2, atoms, k0)
            else:
                for a in atoms: replay(a, A0, V.V)
            if s == P: s1_round(V.issue)
            if s == 13:
                xtile()
                for k in g1l:
                    txt, tag, post = moe_ld(k)
                    V.issue(txt, "g1")
                    if post: A(post)
            tags = {("st", s+1)}
            if self.opt.get("iters"): self.stamp(16+s)
            if here:
                assert s >= 2 and s != P+1
                V.need(tags)
                w = A0.lines.pop()
                n = int(w.split("(")[1].split(")")[0])
                a, b = self.lab("wa"), self.lab("wb")
                A(f"s_cmp_eq_u32 s71, {g}\ns_cbranch_scc0 {a}\ns_waitcnt vmcnt({min(63, n+len(ks))})\ns_branch {b}\n{a}:\ns_waitcnt vmcnt({n})\n{b}:")
            else:
                V.need(tags)
            if s == 14: A("s_waitcnt lgkmcnt(0)")
            if self.opt.get("iters"): self.stamp(32+s)
            A("s_barrier")
        for s in range(min(P+1, 15) if P < 13 else 15): iteration(s, A.record(extra[s]))
        A("s_cmp_eq_u32 s27, 3\ns_cbranch_scc1 L_path3")
        q0 = list(V.V.q)
        for w3 in (False, True):
            if w3: A.label("L_path3")
            V.V.q = list(q0)
            if P == 13:
                s1_check(w3); s1_tables(w3)
            else:
                tab = A.record([lambda: s1_tables(w3)])
                per = -(-len(tab) // (14 - (P+1)))
                for s in range(P+1, 15):
                    if s == P+1: iteration(s, A.record(extra[s] + [lambda: s1_check(w3)]), self.opt.get("k0", 4))
                    else:
                        iteration(s, A.record(extra[s]) + tab[:per]); tab = tab[per:]
                assert not tab
            if not w3: A("s_branch L_pathj")
        A.label("L_pathj")
        V.V.q = ["xt"]*4
        A(f"s_lshl_b32 s58, s27, 2\ns_add_u32 s58, s58, {L_FL + FL_TAB}\nv_mov_b32 v2, s58\nv_mov_b32 v3, 1")
        A(f"s_waitcnt vmcnt({len(g1l)}) lgkmcnt(0)")
        V.V.q = ["g1"]*len(g1l)
        A("ds_write_b32 v2, v3")
        self.stamp(18)
        A(f"""
        s_lshl_b32 s58, s2, 2
        s_add_u32 s58, s58, s27
        s_cmp_eq_u32 s58, 3
        s_cbranch_scc0 L_nox
        v_mov_b32 v2, s60
        v_cmp_eq_u32 vcc, 0, v1
        v_cndmask_b32 v3, v15, v1, vcc
        s_mov_b32 s58, {WS_X}
        buffer_store_dword v2, v3, s[16:19], s58 offen sc1
        L_nox:
        """)
        wo_issue([30, 31, 4, 5, 6, 7, 16, 17, 18, 19, 26, 27, 8, 9, 10, 11, 20, 21, 22, 23, 28, 29])
        V = V.V
        A(f"v_mov_b32 v6, {L_FL}")
        self.spin_lds(6, FL_C15, 4, 48)
        self.stamp(2)
        if self.opt.get("stop"):
            self.stamp_out(); A("s_endpgm")
        wo_issue([0, 1, 2, 3, 12, 13, 14, 15, 24, 25])
        xs_loads()
        thr = self.opt.get("thr", 3)
        rest = [k for k in range(24) if k not in early]
        if self.opt.get("nomoe"): rest = []
        A(f"""
        v_mov_b32 v6, {L_FL}
        s_lshl_b32 s58, s27, 2
        v_add_u32 v7, s58, v6
        v_mov_b32 v48, 1
        """)
        wo_flagged = False
        for n, k in enumerate(rest):
            txt, tag, post = moe_ld(k)
            V.issue(txt, tag)
            if post: A(post)
            if thr and n + 1 >= thr:
                A(f"s_waitcnt vmcnt({thr-1})")
                V.q = V.q[len(V.q)-(thr-1):] if thr > 1 else []
                if not wo_flagged:
                    A(f"ds_write_b32 v7, v48 offset:{FL_WO}"); wo_flagged = True
                    self.stamp(3)
        xs_process()
        AP, DT = 236, 240
        A(f"""
        v_lshrrev_b32 v8, 5, v1
        v_lshlrev_b32 v8, 2, v8
        """)
        for t in range(8):
            A(f"ds_bpermute_b32 v{50+t}, v8, v{XSV} offset:{8*t}")
        if not wo_flagged:
            V.need({"wo"})
            A(f"ds_write_b32 v7, v48 offset:{FL_WO}")
            self.stamp(3)
        if self.opt.get("nomoe"): A("s_branch L_loader_end")
        A(f"s_cmp_lg_u32 s87, 0\ns_cbranch_scc1 L_moe_done\ns_waitcnt lgkmcnt(0)")
        for t in range(8):
            ap = AP if t & 1 else 64
            for r in range(4): A(f"v_and_b32 v{ap+r}, v{50+t}, v{MSK+r}")
            V.need({("gu", t)})
            for m in range(2):
                c = "0" if t == 0 else vr(DT+4*m, 4)
                A(f"v_mfma_f32_16x16x32_bf16 {vr(DT+4*m,4)}, {vr(ap,4)}, {vr(GW+8*t+4*m,4)}, {c}")
        A(f"""
        v_and_b32 v2, 15, v1
        v_lshlrev_b32 v61, 5, v2
        v_bfe_u32 v3, v1, 4, 1
        v_lshl_add_u32 v61, v3, 4, v61
        v_lshrrev_b32 v3, 5, v1
        v_lshl_add_u32 v61, v3, 9, v61
        s_lshl_b32 s58, s27, 11
        s_add_u32 s58, s58, {L_GUS}
        v_add_u32 v2, s58, v61
        ds_write_b128 v2, {vr(DT,4)}
        ds_write_b128 v2, {vr(DT+4,4)} offset:1024
        v_and_b32 v2, 31, v1
        v_lshlrev_b32 v2, 4, v2
        s_lshl_b32 s58, s27, 9
        v_add_u32 v2, s58, v2
        v_add_u32 v3, {L_GUS}, v2
        s_waitcnt lgkmcnt(0)
        ds_write_b32 v7, v48 offset:{FL_GU}
        """)
        self.spin_lds(6, FL_GU, 4, 64)
        for w in range(4): A(f"ds_read_b128 {vr(64+4*w,4)}, v3 offset:{2048*w}")
        A("s_waitcnt lgkmcnt(0)")
        for h in (0, 2):
            A(f"v_pk_add_f32 {vr(64+h,2)}, {vr(64+h,2)}, {vr(68+h,2)}\nv_pk_add_f32 {vr(72+h,2)}, {vr(72+h,2)}, {vr(76+h,2)}")
        for h in (0, 2):
            A(f"v_pk_add_f32 {vr(64+h,2)}, {vr(64+h,2)}, {vr(72+h,2)}")
        self.tag(64, VM)
        A(f"""
        v_cmp_gt_u32 vcc, 32, v1
        v_cndmask_b32 v2, v15, v2, vcc
        s_lshl_b32 s58, s2, 11
        s_add_u32 s58, s58, {WS_GUP}
        buffer_store_dwordx4 {vr(64,4)}, v2, s[16:19], s58 offen sc1
        v_lshrrev_b32 v2, 2, v1
        v_lshlrev_b32 v2, 11, v2
        v_and_b32 v3, 3, v1
        v_lshl_add_u32 v2, v3, 4, v2
        s_lshl_b32 s58, s88, 15
        s_lshl_b32 s59, s89, 6
        s_add_u32 s58, s58, s59
        s_add_u32 s58, s58, {WS_GUP}
        s_cmp_lg_u32 s27, 0
        s_cbranch_scc1 L_hwait
        s_sleep {self.opt.get("d4", 8)}
        """)
        self.stamp(4)
        self.gather([(None, f"buffer_load_dwordx4 {vr(64+4*k,4)}, v2, s[16:19], s58 offen offset:{1024*k} sc1", 64+4*k) for k in range(2)], 72)
        V.q = []
        self.stamp(5)
        for r in (8, 4):
            for k in range(8): A(f"v_add_f32_dpp v{64+k}, v{64+k}, v{64+k} row_ror:{r} row_mask:0xf bank_mask:0xf")
        for wh in (16, 32):
            for k in range(8): A(f"v_mov_b32 v{72+k}, v{64+k}")
            for k in range(8): A(f"v_permlane{wh}_swap_b32 v{64+k}, v{72+k}")
            for h in range(0, 8, 2): A(f"v_pk_add_f32 {vr(64+h,2)}, {vr(64+h,2)}, {vr(72+h,2)}")
        for k in range(8): A(f"v_cvt_pk_bf16_f32 v{64+k}, v{64+k}, v{64+k}")
        for k in range(8): A(f"v_lshlrev_b32 v{64+k}, 16, v{64+k}")
        for k in range(4): A(f"v_mul_f32 v{72+k}, {hex(LOG2E | 0x80000000)}, v{64+k}")
        for k in range(4): A(f"v_exp_f32 v{72+k}, v{72+k}")
        for k in range(4): A(f"v_add_f32 v{72+k}, 1.0, v{72+k}")
        for k in range(4): A(f"v_rcp_f32 v{72+k}, v{72+k}")
        for k in range(4): A(f"v_mul_f32 v{64+k}, v{64+k}, v{72+k}")
        for k in range(4): A(f"v_cvt_pk_bf16_f32 v{64+k}, v{64+k}, v{64+k}")
        for k in range(4): A(f"v_lshlrev_b32 v{64+k}, 16, v{64+k}")
        for k in range(4): A(f"v_mul_f32 v{64+k}, v{64+k}, v{68+k}")
        for k in range(4): A(f"v_cvt_pk_bf16_f32 v{64+k}, v{64+k}, v{64+k}")
        A(f"""
        v_and_b32 v2, 3, v1
        v_lshlrev_b32 v2, 4, v2
        v_add_u32 v2, {L_HT}, v2
        ds_write_b128 v2, {vr(64,4)}
        s_waitcnt lgkmcnt(0)
        ds_write_b32 v6, v48 offset:{FL_H}
        L_hwait:
        v_add_u32 v3, {L_HT}, v8
        """)
        self.spin_lds(6, FL_H, 1, 64)
        A("s_waitcnt vmcnt(1)")
        for t in range(8): A(f"ds_read_b32 v{50+t}, v3 offset:{8*t}")
        A("s_waitcnt lgkmcnt(0)")
        for t in range(8):
            ap = AP if t & 1 else 64
            for r in range(4): A(f"v_and_b32 v{ap+r}, v{50+t}, v{MSK+r}")
            A(f"v_mfma_f32_16x16x32_bf16 {vr(DT,4)}, {vr(ap,4)}, {vr(DW+4*t,4)}, {'0' if t == 0 else vr(DT,4)}")
        self.tag(DT, VM)
        A(f"""
        s_lshl_b32 s58, s2, 12
        s_add_u32 s58, s58, s80
        s_add_u32 s58, s58, {WS_YP}
        buffer_store_dwordx4 {vr(DT,4)}, v61, s[16:19], s58 offen sc1
        """)
        A.label("L_moe_done")
        self.stamp(6)
        A(f"""
        s_lshr_b32 s58, s92, 7
        s_cmp_lg_u32 s58, s28
        s_cbranch_scc1 L_loader_end
        v_lshrrev_b32 v2, 4, v1
        v_lshlrev_b32 v2, 12, v2
        v_and_b32 v3, 15, v1
        v_lshl_add_u32 v2, v3, 4, v2
        s_mul_i32 s95, s27, {56*4096}
        s_lshl_b32 s59, s29, 8
        s_add_u32 s95, s95, s59
        s_add_u32 s95, s95, {WS_YP}
        """)
        def yacc(k):
            if k:
                for h in (0, 2): A(f"v_pk_add_f32 {vr(GW+h,2)}, {vr(GW+h,2)}, {vr(GW+4*k+h,2)}")
        self.gather([(f"s_add_u32 s58, s95, {4*4096*t}", f"buffer_load_dwordx4 {vr(GW+4*t,4)}, v2, s[16:19], s58 offen sc1", GW+4*t) for t in range(14)], 60, yacc)
        for k in range(4):
            red_swap(A, GW+k, 60, 16); red_swap(A, GW+k, 60, 32)
        A(f"""
        s_lshl_b32 s58, s27, 8
        s_add_u32 s58, s58, {L_YT}
        v_and_b32 v3, 15, v1
        v_lshlrev_b32 v3, 4, v3
        v_add_u32 v2, s58, v3
        ds_write_b128 v2, {vr(GW,4)}
        v_mov_b32 v6, {L_FL}
        s_lshl_b32 s58, s27, 2
        v_add_u32 v7, s58, v6
        v_mov_b32 v48, 1
        s_waitcnt lgkmcnt(0)
        ds_write_b32 v7, v48 offset:{FL_Y}
        s_cmp_lg_u32 s27, 0
        s_cbranch_scc1 L_loader_end
        """)
        self.spin_lds(6, FL_Y, 4, 64)
        A(f"v_add_u32 v2, {L_YT}, v3")
        for w in range(4): A(f"ds_read_b128 {vr(64+4*w,4)}, v2 offset:{256*w}")
        A(f"""
        s_and_b32 s58, s91, 0xffff0000
        s_ashr_i32 s59, s58, 31
        s_not_b32 s59, s59
        s_or_b32 s59, s59, 0x80000000
        s_xor_b32 s58, s58, s59
        s_and_b32 s58, s58, 0xffff0000
        v_mov_b32 v80, s58
        v_mul_f32 v80, {hex(LOG2E | 0x80000000)}, v80
        v_exp_f32 v80, v80
        v_add_f32 v80, 1.0, v80
        v_rcp_f32 v80, v80
        """)
        rnd_bf16(A, 80)
        A("s_waitcnt lgkmcnt(0)")
        for h in (0, 2):
            A(f"""
            v_pk_add_f32 {vr(64+h,2)}, {vr(64+h,2)}, {vr(68+h,2)}
            v_pk_add_f32 {vr(72+h,2)}, {vr(72+h,2)}, {vr(76+h,2)}
            v_pk_add_f32 {vr(64+h,2)}, {vr(64+h,2)}, {vr(72+h,2)}
            """)
        for k in range(4):
            rnd_bf16(A, 64+k)
            A(f"v_mul_f32 v{64+k}, v{64+k}, v80")
            rnd_bf16(A, 64+k)
        A(f"""
        v_add_u32 v2, {L_YF}, v3
        ds_write_b128 v2, {vr(64,4)}
        s_waitcnt lgkmcnt(0)
        ds_write_b32 v6, v48 offset:{FL_YF}
        L_loader_end:
        """)
        self.stamp(7)
        self.stamp_out()
        A("s_endpgm")
        for f in slow: f()
        self.A = A0

    def stats(self):
        A = self.A
        X, WR, F, T = 16, 32, 48, 80
        MEAN, MB, RINV, RACC = 92, 94, 95, 90
        A("s_waitcnt vmcnt(4)")
        for k in range(16): unpack(A, F+2*k, F+2*k+1, X+k)
        A(f"v_pk_add_f32 {vr(T,2)}, {vr(F,2)}, {vr(F+2,2)}\nv_pk_add_f32 {vr(T+2,2)}, {vr(F+4,2)}, {vr(F+6,2)}")
        for k in range(4, 16):
            a = T + 2*(k & 1)
            A(f"v_pk_add_f32 {vr(a,2)}, {vr(a,2)}, {vr(F+2*k,2)}")
        A(f"v_pk_add_f32 {vr(T,2)}, {vr(T,2)}, {vr(T+2,2)}\nv_add_f32 v{MEAN}, v{T}, v{T+1}")
        red_row(A, MEAN); red_swap(A, MEAN, T, 16)
        A(f"v_mul_f32 v{MEAN}, 0x3a800000, v{MEAN}\nv_mov_b32 v{MB}, v{MEAN}")
        rnd_bf16(A, MB)
        for k in range(16):
            d = T + 4 + 2*(k & 1); a = T + 2*(k & 1)
            A(f"v_pk_add_f32 {vr(d,2)}, {vr(F+2*k,2)}, {vr(MEAN,2)} op_sel_hi:[1,0] neg_lo:[0,1] neg_hi:[0,1]")
            if k < 2: A(f"v_pk_mul_f32 {vr(a,2)}, {vr(d,2)}, {vr(d,2)}")
            else: A(f"v_pk_fma_f32 {vr(a,2)}, {vr(d,2)}, {vr(d,2)}, {vr(a,2)}")
        A(f"v_pk_add_f32 {vr(T,2)}, {vr(T,2)}, {vr(T+2,2)}\nv_add_f32 v{RINV}, v{T}, v{T+1}")
        red_row(A, RINV); red_swap(A, RINV, T, 16)
        A(f"v_mul_f32 v{RINV}, 0x3a800000, v{RINV}")
        rnd_bf16(A, RINV)
        A(f"v_add_f32 v{RINV}, 0x3727c5ac, v{RINV}")
        rnd_bf16(A, RINV)
        A(f"v_sqrt_f32 v{RINV}, v{RINV}")
        rnd_bf16(A, RINV)
        A(f"v_mov_b32 v97, v{RINV}\nv_rcp_f32 v{RINV}, v{RINV}\nv_mov_b32 v{RACC}, 0\nv_mov_b32 v{RACC+1}, 0")
        for k in range(16):
            A(f"v_pk_add_f32 {vr(F+2*k,2)}, {vr(F+2*k,2)}, {vr(MB,2)} op_sel_hi:[1,0] neg_lo:[0,1] neg_hi:[0,1]")
        for k in range(16): A(f"v_cvt_pk_bf16_f32 v{X+k}, v{F+2*k}, v{F+2*k+1}")
        for k in range(16): unpack(A, F+2*k, F+2*k+1, X+k)
        for k in range(16):
            A(f"v_pk_mul_f32 {vr(F+2*k,2)}, {vr(F+2*k,2)}, {vr(MB,2)} op_sel:[0,1] op_sel_hi:[1,1]")
        for k in range(16): A(f"v_cvt_pk_bf16_f32 v{X+k}, v{F+2*k}, v{F+2*k+1}")
        A(f"""
        v_lshrrev_b32 v2, 5, v1
        v_add_u32 v2, s85, v2
        v_sub_u32 v5, 0x7ff, v2
        v_lshlrev_b32 v2, 3, v2
        v_and_b32 v3, 31, v1
        v_cmp_eq_u32 vcc, 0, v3
        v_mov_b32 v3, {OOB}
        v_cndmask_b32 v2, v3, v2, vcc
        s_waitcnt lgkmcnt(0)
        s_add_u32 s60, s3, 1
        s_and_b32 s58, s60, 0xffff
        s_lshr_b32 s59, s60, 16
        v_or_b32 v96, s58, v{MB}
        v_or_b32 v97, s59, v97
        s_mov_b32 s58, {WS_STAT}
        buffer_store_dwordx2 v[96:97], v2, s[16:19], s58 offen sc1
        s_waitcnt vmcnt(1)
        """)
        for k in range(16): A(f"v_dot2_f32_bf16 v{RACC+(k&1)}, v{X+k}, v{WR+k}, v{RACC+(k&1)}")
        A(f"s_nop 2\nv_add_f32 v{RACC}, v{RACC}, v{RACC+1}")
        red_row(A, RACC); red_swap(A, RACC, T, 16)
        rnd_bf16(A, RACC)
        A(f"""
        v_ashrrev_i32 v{T}, 31, v{RACC}
        v_or_b32 v{T}, 0x80000000, v{T}
        v_xor_b32 v{T}, v{T}, v{RACC}
        v_and_b32 v{T}, 0xffff0000, v{T}
        v_or_b32 v{T}, v{T}, v5
        """)
        red_swap(A, T, T+1, 32, "v_max_u32")
        A(f"""
        s_lshl_b32 s58, s27, 2
        s_add_u32 s58, s58, {L_FL + FL_KEY}
        v_mov_b32 v3, s58
        ds_write_b32 v3, v{T}
        """)

    def compute(self):
        A = self.A
        A.label("L_compute")
        self.sreg = 127
        self.stamp(0)
        srd(A, 32, 68, 0x400000)
        ACC = 128
        FA = lambda st, rf, ks: 16 + st*32 + (rf*2+ks)*4
        FB = lambda slot, ks: 80 + slot*8 + ks*4
        VA, VKV, VQ = 112, 114, 116
        N15, Q4 = 12, 13
        A(f"""
        s_lshr_b32 s36, s27, 1
        s_and_b32 s37, s27, 1
        v_and_b32 v{N15}, 15, v1
        v_lshrrev_b32 v{Q4}, 4, v1
        v_lshlrev_b32 v2, 2, v{N15}
        v_add_u32 v2, {L_FL}, v2
        v_mov_b32 v3, 0
        ds_write_b32 v2, v3
        ds_write_b32 v2, v3 offset:{FL_S3}
        s_lshl_b32 s58, s36, 13
        v_lshlrev_b32 v14, 7, v{N15}
        v_add_u32 v14, s58, v14
        v_bfe_u32 v15, v{N15}, 1, 3
        """)
        for ks in range(2):
            A(f"v_add_u32 v2, {4*ks}, v{Q4}\nv_xor_b32 v2, v2, v15\nv_lshl_add_u32 v{VA+ks}, v2, 4, v14")
        A(f"""
        v_bfe_u32 v2, v1, 2, 2
        v_lshlrev_b32 v2, 6, v2
        v_and_b32 v3, 3, v1
        v_lshl_add_u32 v2, v3, 3, v2
        v_and_b32 v3, 1, v{Q4}
        v_lshl_add_u32 v10, v3, 5, v2
        s_lshl_b32 s58, s37, 8
        v_add_u32 v4, s58, v10
        v_lshl_add_u32 v{VKV}, v{Q4}, 11, v4
        v_add_u32 v{VKV}, {L_KV}, v{VKV}
        v_xor_b32 v{VKV+1}, 32, v{VKV}
        v_lshl_add_u32 v{VQ}, v{Q4}, 10, v4
        v_add_u32 v{VQ}, {L_Q}, v{VQ}
        v_xor_b32 v{VQ+1}, 32, v{VQ}
        """)
        L = LgkmTracker(A)
        def areads(s_):
            st = s_ & 1
            return [(f"ds_read_b128 {vr(FA(st,rf,ks),4)}, v{VA+ks} offset:{(s_%3)*16384+rf*2048}", ("A",s_)) for rf in range(4) for ks in range(2)]
        def breads(s_, cf):
            r = []
            slot = (s_*6+cf) % 4
            part, half = cf//2, cf % 2
            for ks in range(2):
                for rd in range(2):
                    g = 8*ks + rd
                    if part < 2:
                        r.append((f"ds_read_b64_tr_b16 {vr(FB(slot,ks)+2*rd,2)}, v{VKV+half} offset:{(s_%3)*16384+g*1024+part*512}", ("B",s_,cf)))
                    else:
                        r.append((f"ds_read_b64_tr_b16 {vr(FB(slot,ks)+2*rd,2)}, v{VQ+half} offset:{(s_%3)*8192+g*512}", ("B",s_,cf)))
            return r
        VM = 11
        A(f"s_lshl_b32 s58, s27, 2\ns_add_u32 s58, s58, {L_FL + FL_C15}\nv_mov_b32 v123, s58\nv_mov_b32 v124, 1")
        self.stats()
        self.stamp(11)
        A(f"s_setprio {self.opt.get('prio', 2)}\ns_waitcnt lgkmcnt(0)\ns_barrier")
        self.stamp(1)
        PAT = [1,1,0,1,1,1,0,0]*2 + [1,1,1,1,1,1,0,0]
        for x in areads(0) + breads(0,0) + breads(0,1): L.issue(*x)
        for s_ in range(16):
            st = s_ & 1
            w1 = breads(s_,2) + breads(s_,3) + breads(s_,4) + breads(s_,5)
            w2 = (areads(s_+1) + breads(s_+1,0) + breads(s_+1,1)) if s_ < 15 else []
            for cf in range(6):
                slot = (s_*6+cf) % 4
                seq = [(rf,ks) for rf in range(4) for ks in ((0,1) if rf % 2 == 0 else (1,0))]
                for j,(rf,ks) in enumerate(seq):
                    g = (cf % 3)*8 + j
                    if j == 0:
                        if cf == 3:
                            L.drain()
                            if s_ < 15: A("s_barrier")
                            else: A("ds_write_b32 v123, v124")
                        else:
                            L.need({("A",s_), ("B",s_,cf)})
                    acc = ACC + (rf*6+cf)*4
                    c = "0" if (s_ == 0 and j % 2 == 0) else vr(acc,4)
                    a, b = (FA(st,rf,ks), FB(slot,ks)) if cf < 4 else (FB(slot,ks), FA(st,rf,ks))
                    A(f"v_mfma_f32_16x16x32_bf16 {vr(acc,4)}, {vr(a,4)}, {vr(b,4)}, {c}")
                    w = w1 if cf < 3 else w2
                    if w and PAT[g]: L.issue(*w.pop(0))
            assert not w1 and not w2
        self.stamp(2)
        if self.opt.get("stop"):
            self.stamp_out(); A("s_endpgm")
        A(f"v_mov_b32 v122, {L_FL}")
        self.spin_lds(122, FL_TAB, 4, 4)
        self.stamp(20)
        TM, TI, TL, CS = 16, 32, 48, 64
        PK, VV, ON, KT = 68, 84, 100, 20
        U, E = 104, 108
        A(f"""
        s_lshl_b32 s58, s36, 8
        v_lshl_add_u32 v2, v{Q4}, 4, s58
        v_add_u32 v2, {L_M}, v2
        s_lshl_b32 s58, s37, 7
        v_lshl_add_u32 v3, v{N15}, 2, s58
        v_add_u32 v3, {L_CS}, v3
        s_mov_b32 s40, 0x358637bd
        s_mov_b32 s41, 0x358637bd
        """)
        for cf in range(4): A(f"ds_read_b32 v{CS+cf}, v3 offset:{(cf>>1)*256 + (cf&1)*64}")
        for rf in range(4):
            A(f"ds_read_b128 {vr(TM+4*rf,4)}, v2 offset:{64*rf}")
            A(f"ds_read_b128 {vr(TI+4*rf,4)}, v2 offset:{64*rf + L_RI - L_M}")
            A(f"ds_read_b128 {vr(TL+4*rf,4)}, v2 offset:{64*rf + L_RL - L_M}")
        for k in range(4): A(f"v_mov_b32 v{ON+k}, 0x3f803f80")
        self.nonce_setup(VM)
        A("s_waitcnt lgkmcnt(0)")
        def bsel(reg, pos):
            base = reg & ~1; o = reg & 1
            return vr(base,2), o
        def phi4(a, m, m_b, c, c_b, rl, rl_b, ri, ri_b, dst):
            def opnd(r, b, h):
                if b:
                    p, o = bsel(r, 0); return p, o, o
                return vr(r+h,2), 0, 1
            for h in (0, 2):
                pm, ml, mh = opnd(m, m_b, h); pc, cl, ch = opnd(c, c_b, h)
                A(f"v_pk_fma_f32 {vr(U+h,2)}, {pm}, {pc}, {vr(a+h,2)} op_sel:[{ml},{cl},0] op_sel_hi:[{mh},{ch},1] neg_lo:[1,0,0] neg_hi:[1,0,0]")
            for h in (0, 2):
                p, lo, hi = opnd(rl, rl_b, h)
                A(f"v_pk_mul_f32 {vr(E+h,2)}, {vr(U+h,2)}, {p} op_sel:[0,{lo}] op_sel_hi:[1,{hi}]")
            for k in range(4): A(f"v_exp_f32 v{E+k}, v{E+k} clamp")
            for k in range(4): A(f"v_max_f32 v{U+k}, 0, v{U+k}")
            for h in (0, 2): A(f"v_pk_add_f32 {vr(E+h,2)}, {vr(E+h,2)}, s[40:41]")
            for h in (0, 2):
                p, lo, hi = opnd(ri, ri_b, h)
                A(f"v_pk_fma_f32 {vr(U+h,2)}, {vr(U+h,2)}, {p}, {vr(E+h,2)} op_sel:[0,{lo},0] op_sel_hi:[1,{hi},1]")
            A(f"v_cvt_pk_bf16_f32 v{dst}, v{U}, v{U+1}\nv_cvt_pk_bf16_f32 v{dst+1}, v{U+2}, v{U+3}")
        for rf in range(4):
            for cf in range(2):
                phi4(ACC+(rf*6+cf)*4, TM+4*rf, False, CS+cf, True, TL+4*rf, False, TI+4*rf, False, PK + (rf>>1)*8 + cf*4 + (rf&1)*2)
            for cf in range(2, 4):
                a = ACC+(rf*6+cf)*4
                pc, o = bsel(CS+cf, 0)
                for h in (0, 2):
                    A(f"v_pk_fma_f32 {vr(U+h,2)}, {vr(TM+4*rf+h,2)}, {pc}, {vr(a+h,2)} op_sel:[0,{o},0] op_sel_hi:[1,{o},1] neg_lo:[1,0,0] neg_hi:[1,0,0]")
                for h in (0, 2):
                    A(f"v_pk_mul_f32 {vr(U+h,2)}, {vr(U+h,2)}, {vr(TI+4*rf+h,2)}")
                d = VV + (rf>>1)*8 + (cf-2)*4 + (rf&1)*2
                A(f"v_cvt_pk_bf16_f32 v{d}, v{U}, v{U+1}\nv_cvt_pk_bf16_f32 v{d+1}, v{U+2}, v{U+3}")
        self.stamp(21)
        QM, QI, QL, QC = 44, 48, 52, 56
        A(f"""
        s_lshl_b32 s58, s36, 8
        v_lshl_add_u32 v2, v{N15}, 2, s58
        v_add_u32 v2, {L_M}, v2
        s_lshl_b32 s58, s37, 7
        v_lshl_add_u32 v3, v{Q4}, 4, s58
        v_add_u32 v3, {L_CS + 512}, v3
        """)
        for rf in range(4):
            A(f"ds_read_b32 v{QM+rf}, v2 offset:{64*rf}")
            A(f"ds_read_b32 v{QI+rf}, v2 offset:{64*rf + L_RI - L_M}")
            A(f"ds_read_b32 v{QL+rf}, v2 offset:{64*rf + L_RL - L_M}")
        for cf in range(2): A(f"ds_read_b128 {vr(QC+4*cf,4)}, v3 offset:{64*cf}")
        T = lambda eb, db: KT + (eb*2+db)*4
        for eb in range(3):
            for db in range(2):
                for ks2 in range(2):
                    b = vr(VV+ks2*8+eb*4,4) if eb < 2 else vr(ON,4)
                    c = "0" if ks2 == 0 else vr(T(eb,db),4)
                    A(f"v_mfma_f32_16x16x32_bf16 {vr(T(eb,db),4)}, {vr(PK+ks2*8+db*4,4)}, {b}, {c}")
        A(f"""
        s_lshl_b32 s42, s23, 1
        s_add_u32 s42, s42, s37
        s_lshl_b32 s43, s42, 5
        s_lshl_b32 s58, s22, 1
        s_add_u32 s58, s58, s36
        s_add_u32 s58, s58, s43
        s_lshl_b32 s59, s58, 7
        s_add_u32 s59, s59, {WS_ZP}
        s_mul_i32 s58, s58, {KVS}
        s_add_u32 s58, s58, {WS_KVP}
        v_lshlrev_b32 v120, 4, v1
        v_mov_b32 v121, {OOB}
        v_lshlrev_b32 v2, 4, v{Q4}
        v_cmp_eq_u32 vcc, 0, v{N15}
        v_cndmask_b32 v2, v121, v2, vcc
        """)
        for eb in range(2):
            for db in range(2):
                self.tag(T(eb,db), VM)
                A(f"buffer_store_dwordx4 {vr(T(eb,db),4)}, v120, s[16:19], s58 offen offset:{(eb*2+db)*1024} sc1")
        for db in range(2):
            self.tag(T(2,db), VM)
            A(f"buffer_store_dwordx4 {vr(T(2,db),4)}, v2, s[16:19], s59 offen offset:{64*db} sc1")
        self.stamp(3)
        XR, ST2 = 224, 240
        A(f"""
        v_lshrrev_b32 v2, 3, v1
        v_and_b32 v3, 7, v1
        v_lshlrev_b32 v118, 11, v2
        v_lshl_add_u32 v118, v3, 4, v118
        s_lshl_b32 s58, s27, 8
        s_add_u32 s58, s58, {L_ST2}
        v_lshl_add_u32 v119, v2, 3, s58
        s_mul_i32 s58, s27, 4608
        s_add_u32 s58, s58, {L_TR}
        v_add_u32 v2, s58, v120
        s_lshl_b32 s38, s28, 7
        s_lshl_b32 s58, s27, 5
        s_add_u32 s38, s38, s58
        s_lshl_b32 s39, s38, 11
        s_lshl_b32 s58, s29, 7
        s_add_u32 s39, s39, s58
        """)
        for t in range(4):
            A(f"ds_read_b128 {vr(XR+4*t,4)}, v2 offset:{1024*t}")
            A(f"ds_read_b64 {vr(ST2+2*t,2)}, v119 offset:{64*t}")
        PQ = 68
        A("s_waitcnt lgkmcnt(0)")
        for rf in range(4):
            for cf in range(2):
                phi4(ACC+(rf*6+4+cf)*4, QM+rf, True, QC+4*cf, False, QL+rf, True, QI+rf, True, PQ + rf*4 + cf*2)
        S = 128
        for t in range(4):
            m = ST2 + 2*t
            for k in range(4):
                x = XR + 4*t + k; d = S + 8*t + 2*k
                A(f"""
                v_lshlrev_b32 v{d}, 16, v{x}
                v_and_b32 v{d+1}, 0xffff0000, v{x}
                v_pk_add_f32 {vr(U,2)}, {vr(d,2)}, {vr(m,2)} op_sel_hi:[1,0] neg_lo:[0,1] neg_hi:[0,1]
                v_cvt_pk_bf16_f32 v{U+1}, v{U}, v{U+1}
                v_lshlrev_b32 v{U}, 16, v{U+1}
                v_and_b32 v{U+1}, 0xffff0000, v{U+1}
                v_pk_mul_f32 {vr(U,2)}, {vr(U,2)}, {vr(m,2)} op_sel:[0,1] op_sel_hi:[1,1]
                v_cvt_pk_bf16_f32 v{U+1}, v{U}, v{U+1}
                v_lshlrev_b32 v{U}, 16, v{U+1}
                v_and_b32 v{U+1}, 0xffff0000, v{U+1}
                v_pk_add_f32 {vr(d,2)}, {vr(d,2)}, {vr(U,2)}
                """)
        self.stamp(4)
        H1 = 16
        A(f"""
        v_lshrrev_b32 v2, 3, v1
        v_and_b32 v3, 7, v1
        v_lshlrev_b32 v3, 4, v3
        v_mul_u32_u24 v4, {KVS}, v2
        v_add_u32 v4, v4, v3
        v_lshl_add_u32 v5, v2, 7, v3
        s_lshr_b32 s58, s22, 3
        s_lshl_b32 s59, s23, 1
        s_add_u32 s45, s58, s59
        s_mul_i32 s44, s45, {32*KVS}
        s_lshl_b32 s58, s22, 9
        s_and_b32 s58, s58, 0xfff
        s_add_u32 s44, s44, s58
        s_lshl_b32 s58, s27, 7
        s_add_u32 s44, s44, s58
        s_add_u32 s44, s44, {WS_KVP}
        s_lshl_b32 s58, s23, 4
        s_add_u32 s58, s58, s22
        s_lshl_b32 s46, s58, 9
        s_lshl_b32 s59, s27, 7
        s_add_u32 s46, s46, s59
        s_add_u32 s46, s46, {WS_KVF}
        v_cmp_gt_u32 vcc, 8, v1
        v_cndmask_b32 v6, v121, v120, vcc
        """)
        def acc(b):
            def f(k):
                if k:
                    for h in (0, 2): A(f"v_pk_add_f32 {vr(b+h,2)}, {vr(b+h,2)}, {vr(b+4*k+h,2)}")
            return f
        def red81632(b):
            for k in range(4): A(f"v_add_f32_dpp v{b+k}, v{b+k}, v{b+k} row_ror:8 row_mask:0xf bank_mask:0xf")
            for wh in (16, 32):
                for k in range(4): A(f"v_mov_b32 v{b+4+k}, v{b+k}")
                for k in range(4): A(f"v_permlane{wh}_swap_b32 v{b+k}, v{b+4+k}")
                for h in (0, 2): A(f"v_pk_add_f32 {vr(b+h,2)}, {vr(b+h,2)}, {vr(b+4+h,2)}")
            self.tag(b, VM)
        if self.opt.get("d1"): A(f"s_sleep {self.opt['d1']}")
        self.gather([(f"s_add_u32 s58, s44, {8*KVS*t}", f"buffer_load_dwordx4 {vr(H1+4*t,4)}, v4, s[16:19], s58 offen sc1", H1+4*t) for t in range(4)], 48, acc(H1))
        if self.diag: A("v_writelane_b32 v127, s97, 12")
        red81632(H1)
        A(f"""
        buffer_store_dwordx4 {vr(H1,4)}, v6, s[16:19], s46 offen sc1
        s_and_b32 s58, s22, 7
        s_lshl_b32 s58, s58, 2
        s_add_u32 s58, s58, s27
        s_cmp_eq_u32 s58, 29
        s_cbranch_scc0 L_noz
        s_lshl_b32 s44, s45, 12
        s_add_u32 s44, s44, {WS_ZP}
        s_lshl_b32 s45, s45, 7
        s_add_u32 s45, s45, {WS_ZF}
        """)
        self.gather([(None, f"buffer_load_dwordx4 {vr(H1+16+4*t,4)}, v5, s[16:19], s44 offen offset:{1024*t} sc1", H1+16+4*t) for t in range(4)], 48, acc(H1+16))
        red81632(H1+16)
        A(f"""
        buffer_store_dwordx4 {vr(H1+16,4)}, v6, s[16:19], s45 offen sc1
        L_noz:
        """)
        self.stamp(5)
        ZF, KF, H2 = 48, 52, 84
        A(f"""
        s_xor_b32 s42, s42, 2
        s_lshl_b32 s46, s42, 12
        s_add_u32 s46, s46, {WS_KVF}
        s_lshl_b32 s45, s42, 7
        s_add_u32 s45, s45, {WS_ZF}
        v_lshlrev_b32 v2, 4, v{Q4}
        """)
        def cv(k):
            d = KF + 2*k if k < 4 else ZF + 2*(k-4)
            A(f"v_cvt_pk_bf16_f32 v{d}, v{H2+4*k}, v{H2+4*k+1}\nv_cvt_pk_bf16_f32 v{d+1}, v{H2+4*k+2}, v{H2+4*k+3}")
        if self.opt.get("d2"): A(f"s_sleep {self.opt['d2']}")
        self.gather([(None, f"buffer_load_dwordx4 {vr(H2+4*k,4)}, v120, s[16:19], s46 offen offset:{1024*k} sc1", H2+4*k) for k in range(4)] +
                    [(None, f"buffer_load_dwordx4 {vr(H2+16+4*k,4)}, v2, s[16:19], s45 offen offset:{64*k} sc1", H2+16+4*k) for k in range(2)], 60, cv)
        if self.diag: A("v_writelane_b32 v127, s97, 13")
        self.stamp(6)
        NT = lambda rf, eb: 160 + (rf*3+eb)*4
        for rf in range(4):
            for eb in (2, 0, 1):
                a = vr(ZF,4) if eb == 2 else vr(KF+4*eb,4)
                A(f"v_mfma_f32_16x16x32_bf16 {vr(NT(rf,eb),4)}, {a}, {vr(PQ+4*rf,4)}, 0")
        A(f"""
        s_lshl_b32 s58, s22, 3
        s_lshl_b32 s59, s36, 2
        s_add_u32 s58, s58, s59
        s_lshl_b32 s58, s58, 5
        s_add_u32 s58, s58, s42
        s_lshl_b32 s58, s58, 10
        """)
        for rf in range(4):
            d = NT(rf,2)
            A(f"v_add_f32 v{d}, s40, v{d}\nv_rcp_f32 v{d}, v{d}")
        for rf in range(4):
            d = NT(rf,2); o = 16 + 4*rf
            for eb in range(2):
                n = NT(rf,eb)
                for h in (0, 2):
                    A(f"v_pk_mul_f32 {vr(n+h,2)}, {vr(n+h,2)}, {vr(d,2)} op_sel_hi:[1,0]")
                A(f"v_cvt_pk_bf16_f32 v{o+2*eb}, v{n}, v{n+1}\nv_cvt_pk_bf16_f32 v{o+2*eb+1}, v{n+2}, v{n+3}")
            A(f"buffer_store_dwordx4 {vr(o,4)}, v120, s[16:19], s58 offen sc1")
            if rf < 3: A(f"s_add_u32 s58, s58, 32768")
        A(f"""
        s_lshl_b32 s58, s22, 4
        s_add_u32 s58, s58, s23
        s_lshl_b32 s58, s58, 7
        s_add_u32 s58, s58, {WS_OF}
        v_cmp_eq_u32 vcc, 0, v1
        v_cndmask_b32 v2, v121, v120, vcc
        v_mov_b32 v3, s60
        v_cndmask_b32 v4, 0, 1, vcc
        s_waitcnt vmcnt(0)
        ds_add_rtn_u32 v5, v122, v4 offset:{FL_OC}
        s_waitcnt lgkmcnt(0)
        v_readfirstlane_b32 s59, v5
        s_cmp_eq_u32 s59, 3
        s_cbranch_scc0 L_notlast
        buffer_store_dword v3, v2, s[16:19], s58 offen sc1
        L_notlast:
        """)
        self.stamp(7)
        G2 = 160
        B2 = lambda slot, ks: 80 + slot*8 + ks*4
        NW = self.opt.get("nw", 8)
        OW = ([16 + 8*k for k in range(8)] + [192 + 8*k for k in range(7)])[:NW]
        VW = 112
        A(f"""
        v_lshl_add_u32 v{VW}, v{Q4}, 9, v10
        v_xor_b32 v{VW+1}, 32, v{VW}
        v_add_u32 v{VW+2}, 0x10000, v{VW}
        v_add_u32 v{VW+3}, 0x10000, v{VW+1}
        v_add_u32 v116, 32768, v120
        s_lshl_b32 s47, s28, 3
        s_lshl_b32 s58, s27, 1
        s_add_u32 s47, s47, s58
        s_lshl_b32 s47, s47, 15
        s_and_b32 s48, s29, 7
        s_lshl_b32 s58, s28, 1
        s_add_u32 s48, s48, s58
        s_lshl_b32 s48, s48, 2
        v_lshlrev_b32 v117, 7, v{N15}
        s_lshl_b32 s50, s28, 11
        s_add_u32 s50, s50, {WS_OF}
        """)
        self.spin_lds(122, FL_WO, 4, 4)
        A(f"""
        s_cmp_eq_u32 s27, 0
        s_cbranch_scc0 L_s3w
        s_sleep {self.opt.get("d3", 8)}
        s_mov_b32 s57, 0
        L_s3:
        buffer_load_dword v4, v117, s[16:19], s50 offen sc1
        s_waitcnt vmcnt(0)
        v_cmp_ne_u32 vcc, s60, v4
        s_add_u32 s57, s57, 1
        s_nop 1
        s_cbranch_vccz L_s3d
        s_sleep {self.opt.get("sleep", 4)}
        s_cmp_lt_u32 s57, {SPIN_MAX}
        s_cbranch_scc1 L_s3
        L_s3d:
        v_mov_b32 v4, 1
        ds_write_b32 v122, v4 offset:{FL_S3}
        s_branch L_s3j
        L_s3w:
        """)
        self.spin_lds(122, FL_S3, 1, 4)
        A.label("L_s3j")
        self.stamp(8)
        V = VmTracker(A)
        def oload(u):
            t, rf = u >> 1, u & 1
            if u % 8 == 0:
                A(f"s_add_u32 s58, s48, {t}\ns_and_b32 s58, s58, 31\ns_lshl_b32 s58, s58, 10\ns_add_u32 s51, s58, s47")
            V.issue(f"buffer_load_dwordx4 {vr(OW[t % NW]+4*rf,4)}, v{116 if rf else 120}, s[16:19], s51 offen offset:{(t&3)*1024} sc1", ("o", t))
        PRE = self.opt.get("pre", 4)
        for u in range(2*PRE): oload(u)
        L = LgkmTracker(A)
        def wreads(pr, nf):
            slot = nf
            r = []
            for ks in range(2):
                t = 2*pr + ks
                for rd in range(2):
                    r.append((f"ds_read_b64_tr_b16 {vr(B2(slot,ks)+2*rd,2)}, v{VW + (nf&1) + 2*(t>>4)} offset:{(t&15)*4096 + rd*2048 + (nf>>1)*256}", ("W",pr,nf)))
            return r
        for nf in range(3):
            for x in wreads(0, nf): L.issue(*x)
        nxt = 2*PRE
        for pr in range(16):
            for nf in range(4):
                g = pr*4 + nf + 3
                w = wreads(g//4, g % 4) if g < 64 else []
                if nf == 0 and not self.opt.get("g2nowait"): V.need({("o", 2*pr), ("o", 2*pr+1)})
                if nf == 0 and pr in (0, 4, 8, 12) and self.opt.get("g2st"): self.stamp(16+pr//4)
                L.need({("W",pr,nf)})
                for j,(rf,ks) in enumerate(((0,0),(0,1),(1,1),(1,0))):
                    acc = G2 + (rf*4+nf)*4
                    c = "0" if (pr == 0 and j % 2 == 0) else vr(acc,4)
                    A(f"v_mfma_f32_16x16x32_bf16 {vr(acc,4)}, {vr(B2(nf,ks),4)}, {vr(OW[(2*pr+ks) % NW]+4*rf,4)}, {c}")
                    if w: L.issue(*w.pop(0))
                    if j == self.opt.get("opos", 1):
                        for _ in range(2 if (nxt >> 1) < 2*pr + NW - 2 else 1):
                            if nxt < 64 and (nxt >> 1) - NW <= 2*pr - 1:
                                oload(nxt); nxt += 1
        assert nxt == 64
        self.stamp(9)
        A(f"""
        s_mul_i32 s58, s27, 4608
        s_add_u32 s58, s58, {L_TR}
        v_mul_u32_u24 v2, 144, v{N15}
        v_lshl_add_u32 v2, v{Q4}, 3, v2
        v_add_u32 v2, s58, v2
        v_lshrrev_b32 v3, 3, v1
        v_mul_u32_u24 v3, 144, v3
        v_and_b32 v4, 7, v1
        v_lshl_add_u32 v3, v4, 4, v3
        v_add_u32 v3, s58, v3
        ds_read_b32 v6, v122 offset:{FL_SEL}
        """)
        for rf in range(2):
            for nf in range(4):
                a = G2 + (rf*4+nf)*4; d = 16 + (rf*4+nf)*2
                A(f"v_cvt_pk_bf16_f32 v{d}, v{a}, v{a+1}\nv_cvt_pk_bf16_f32 v{d+1}, v{a+2}, v{a+3}")
                A(f"ds_write_b64 v2, {vr(d,2)} offset:{rf*16*144 + nf*32}")
        A("s_waitcnt lgkmcnt(0)")
        for t in range(4): A(f"ds_read_b128 {vr(32+4*t,4)}, v3 offset:{t*8*144}")
        A(f"""
        v_readfirstlane_b32 s52, v6
        s_and_b32 s52, s52, 0x7ff
        s_sub_u32 s52, 0x7ff, s52
        s_sub_u32 s52, s52, s38
        s_cmp_lt_u32 s52, {0 if self.opt.get("nomoe") else 32}
        s_cbranch_scc0 L_no_moe
        """)
        self.spin_lds(122, FL_YF, 1, 5)
        A(f"""
        v_lshlrev_b32 v4, 5, v4
        v_add_u32 v4, {L_YF}, v4
        ds_read_b128 v[48:51], v4
        ds_read_b128 v[52:55], v4 offset:16
        v_lshrrev_b32 v5, 3, v1
        s_waitcnt lgkmcnt(0)
        """)
        for t in range(4):
            A(f"v_add_u32 v7, {8*t}, v5\nv_cmp_eq_u32 vcc, s52, v7")
            for k in range(8):
                A(f"v_cndmask_b32 v56, 0, v{48+k}, vcc\nv_add_f32 v{S+8*t+k}, v{S+8*t+k}, v56")
        A("L_no_moe:\ns_waitcnt lgkmcnt(0)")
        for t in range(4):
            for k in range(4):
                a = 32 + 4*t + k; s_ = S + 8*t + 2*k
                A(f"""
                v_lshlrev_b32 v{U}, 16, v{a}
                v_and_b32 v{U+1}, 0xffff0000, v{a}
                v_pk_add_f32 {vr(U,2)}, {vr(U,2)}, {vr(s_,2)}
                v_cvt_pk_bf16_f32 v{a}, v{U}, v{U+1}
                """)
            A(f"buffer_store_dwordx4 {vr(32+4*t,4)}, v118, s[32:35], s39 offen")
            if t < 3: A(f"s_add_u32 s39, s39, {8*2048}")
        self.stamp(10)
        self.stamp_out()
        A("L_end:\ns_endpgm")

    def build(self):
        self.prologue()
        self.loader()
        self.compute()
        body = hazard.fix(self.A.lines)
        hdr = open(os.path.join(os.path.dirname(os.path.abspath(__file__)), "header.txt")).read()
        out = hdr + f"; @launch grid=(256,1,1) block=(512,1,1) lds={LDS_SIZE}\n"
        out += f""".amdgcn_target "amdgcn-amd-amdhsa--gfx950"
.text
.globl {NAME}_kernel
.p2align 8
.type {NAME}_kernel,@function
{NAME}_kernel:
"""
        out += "\n".join(body) + "\n"
        out += f""".section .rodata,"a"
.p2align 6
.amdhsa_kernel {NAME}_kernel
  .amdhsa_next_free_vgpr 256
  .amdhsa_next_free_sgpr 102
  .amdhsa_accum_offset 256
  .amdhsa_group_segment_fixed_size 0
  .amdhsa_kernarg_size 88
  .amdhsa_user_sgpr_count 2
  .amdhsa_user_sgpr_kernarg_segment_ptr 1
  .amdhsa_system_sgpr_workgroup_id_x 1
  .amdhsa_float_denorm_mode_32 3
.end_amdhsa_kernel
"""
        return out

if __name__ == "__main__":
    diag = "--diag" in sys.argv
    out = [a for a in sys.argv[1:] if not a.startswith("--")]
    path = out[0] if out else f"cdna_kernels/{NAME}.s"
    kw = {}
    for a in sys.argv[1:]:
        if a.startswith("--") and "=" in a:
            k_, v_ = a[2:].split("="); kw[k_] = eval(v_)
    open(path, "w").write(Gen(diag=diag, **kw).build())
    print("wrote", path)
```

```python
import sys, os
sys.path.insert(0, os.path.dirname(os.path.abspath(__file__)))
from asmlib import *
import hazard

NAME = "parallel_sum__linear_attn_block__moe_arch_mod__prompt"

WS_O, WS_KVP, WS_ZP, WS_KVF, WS_ZF = 0x000000, 0xB00000, 0x800000, 0x860000, 0x880000
KVS = 4096 + 128
WS_OF = 0x840000
WS_STAT, WS_KEY, WS_CSP, WS_GUP, WS_YP = 0x830000, 0x834000, 0x8A0000, 0xA80000, 0x900000
WS_DIAG = 0xA00000
WS_SIZE = 0x1000000
OOB = 0x40000000
L_A, L_KV, L_Q = 0, 49152, 98304
L_M, L_RI, L_RL = 131072, 131584, 132096
L_CS = 132608
L_FL = 133376
FL_WO, FL_GU, FL_Y, FL_YF, FL_OC, FL_SEL, FL_NON, FL_KEY, FL_S3, FL_TAB, FL_C15, FL_H, FL_ST = 0, 16, 32, 48, 52, 56, 60, 64, 80, 96, 112, 84, 144
L_HT = 133632
L_YT = 133888
L_YF = 134912
L_ST2 = 135168
L_TR = 136192
L_GUS = L_TR + 4*4608
LDS_SIZE = L_GUS + 8192
SPIN_MAX = 1 << 15
LOG2E = 0x3fb8aa3b

def order_tables():
    out = []
    for q in range(4):
        seq = [q]
        for g in range(4):
            others = [4*g + p for p in range(4) if p != q]
            oi = 0
            for sl in range(4):
                if sl == q and g < 3: seq.append(4*(g+1)+q)
                elif oi < 3: seq.append(others[oi]); oi += 1
        assert sorted(seq) == list(range(16))
        out.append(seq)
    return out
def pack4(seq):
    v = 0
    for i, c in enumerate(seq): v |= c << (4*i)
    return v

def srd(A, d, lo, size):
    A(f"s_mov_b32 s{d}, s{lo}\ns_mov_b32 s{d+1}, s{lo+1}\ns_mov_b32 s{d+2}, {hex(size)}\ns_mov_b32 s{d+3}, 0x20000")

def red_row(A, v, op="v_add_f32"):
    for r in (8, 4, 2, 1):
        A(f"{op}_dpp v{v}, v{v}, v{v} row_ror:{r} row_mask:0xf bank_mask:0xf")
def red_swap(A, v, t, which, op="v_add_f32"):
    A(f"v_mov_b32 v{t}, v{v}\nv_permlane{which}_swap_b32 v{v}, v{t}\n{op} v{v}, v{v}, v{t}")
def unpack(A, dlo, dhi, s):
    A(f"v_lshlrev_b32 v{dlo}, 16, v{s}\nv_and_b32 v{dhi}, 0xffff0000, v{s}")
def rnd_bf16(A, v):
    A(f"v_cvt_pk_bf16_f32 v{v}, v{v}, v{v}\nv_lshlrev_b32 v{v}, 16, v{v}")

class Gen:
    def __init__(self, diag=False, **kw):
        self.A = Asm()
        self.diag = diag
        self.nlab = 0
        self.opt = kw
        self.swap = kw.get("swap", 1)
    def lab(self, p):
        self.nlab += 1
        return f"L_{p}{self.nlab}"
    def stamp(self, slot):
        if not self.diag: return
        self.A(f"s_memrealtime s[98:99]\ns_waitcnt lgkmcnt(0)\nv_writelane_b32 v{self.sreg}, s98, {slot}")
        if slot < 16: self.A(f"s_memtime s[98:99]\ns_waitcnt lgkmcnt(0)\nv_writelane_b32 v{self.sreg}, s98, {48+slot}")
    def stamp_out(self):
        if not self.diag: return
        A = self.A
        A(f"""
        s_lshl_b32 s56, s2, 3
        s_xor_b32 s57, s26, {4 if self.swap else 0}
        s_add_u32 s56, s56, s57
        s_lshl_b32 s56, s56, 8
        s_add_u32 s56, s56, {WS_DIAG}
        v_and_b32 v2, 63, v0
        v_lshlrev_b32 v3, 2, v2
        buffer_store_dword v{self.sreg}, v3, s[16:19], s56 offen
        """)

    def spin_vm(self, issue, regs, tmp, cnt="s57"):
        A = self.A
        top, done = self.lab("sp"), self.lab("spd")
        A(f"s_mov_b32 {cnt}, 0")
        A.label(top)
        issue()
        A("s_waitcnt vmcnt(0)")
        r = list(regs)
        A(f"v_max_u32 v{tmp}, v{r[0]}, v{r[1]}" if len(r) > 1 else f"v_mov_b32 v{tmp}, v{r[0]}")
        k = 2
        while k < len(r):
            if k + 1 < len(r):
                A(f"v_max3_u32 v{tmp}, v{tmp}, v{r[k]}, v{r[k+1]}"); k += 2
            else:
                A(f"v_max_u32 v{tmp}, v{tmp}, v{r[k]}"); k += 1
        A(f"""
        v_cmp_eq_u32 vcc, -1, v{tmp}
        s_add_u32 {cnt}, {cnt}, 1
        s_nop 1
        s_cbranch_vccz {done}
        s_cmp_lt_u32 {cnt}, {SPIN_MAX}
        s_cbranch_scc1 {top}
        """)
        A.label(done)

    def nonce_setup(self, vmask):
        self.A(f"""
        s_mov_b32 s60, s3
        s_lshr_b32 s61, s60, 8
        s_lshr_b32 s62, s60, 16
        s_lshr_b32 s63, s60, 24
        s_mov_b32 s64, 0x0c0c0400
        s_mov_b32 s65, 0x04000c0c
        v_mov_b32 v{vmask}, 0xff
        """)
    def tag(self, base, vmask):
        for k in range(4):
            self.A(f"v_bfi_b32 v{base+k}, v{vmask}, s{60+k}, v{base+k}")
    def spin_tag(self, issue, chunks, tmp, cnt="s57", pre=False):
        A = self.A
        top, done = self.lab("sp"), self.lab("spd")
        chk = self.lab("spc")
        A(f"s_mov_b32 {cnt}, 0")
        if pre: A(f"s_branch {chk}")
        A.label(top)
        issue()
        A("s_waitcnt vmcnt(0)")
        if pre: A.label(chk)
        mx, mn, t0, t1, t2 = tmp, tmp+1, tmp+2, tmp+3, tmp+4
        def pk(c, d, t):
            A(f"v_perm_b32 v{d}, v{c+1}, v{c}, s64\nv_perm_b32 v{t}, v{c+3}, v{c+2}, s65\nv_or_b32 v{d}, v{d}, v{t}")
        ch = list(chunks)
        pk(ch[0], mx, t2); A(f"v_mov_b32 v{mn}, v{mx}")
        k = 1
        while k < len(ch):
            pk(ch[k], t0, t2)
            if k + 1 < len(ch):
                pk(ch[k+1], t1, t2)
                A(f"v_max3_u32 v{mx}, v{mx}, v{t0}, v{t1}\nv_min3_u32 v{mn}, v{mn}, v{t0}, v{t1}"); k += 2
            else:
                A(f"v_max_u32 v{mx}, v{mx}, v{t0}\nv_min_u32 v{mn}, v{mn}, v{t0}"); k += 1
        A(f"""
        v_cmp_ne_u32 vcc, s60, v{mx}
        v_cmp_ne_u32 s[66:67], s60, v{mn}
        s_add_u32 {cnt}, {cnt}, 1
        s_or_b64 vcc, vcc, s[66:67]
        s_cbranch_scc0 {done}
        s_sleep {self.opt.get("sleep", 4)}
        s_cmp_lt_u32 {cnt}, {SPIN_MAX}
        s_cbranch_scc1 {top}
        """)
        A.label(done)
        for c in ch:
            for k in range(4): A(f"v_and_b32 v{c+k}, 0xffffff00, v{c+k}")

    def gather(self, loads, tmp, after=None, younger=0):
        A = self.A
        n = len(loads)
        for pre, txt, c in loads:
            if pre: A(pre)
            A(txt)
        if self.diag: A("s_mov_b32 s97, 0")
        for k, (pre, txt, c) in enumerate(loads):
            ok, top = self.lab("gk"), self.lab("gt")
            chk = f"""
            v_perm_b32 v{tmp}, v{c+1}, v{c}, s64
            v_perm_b32 v{tmp+1}, v{c+3}, v{c+2}, s65
            v_or_b32 v{tmp}, v{tmp}, v{tmp+1}
            v_cmp_ne_u32 vcc, s60, v{tmp}
            """
            A(f"s_waitcnt vmcnt({n-1-k+younger})")
            A(chk)
            A(f"s_mov_b32 s57, 0\ns_nop 0\ns_cbranch_vccz {ok}\n{top}:\ns_sleep {self.opt.get('sleep', 4)}")
            if pre: A(pre)
            A(txt + "\ns_waitcnt vmcnt(0)")
            if self.diag: A("s_add_u32 s97, s97, 1")
            A(chk)
            re_ = self.lab("gr")
            A(f"s_add_u32 s57, s57, 1\ns_nop 0\ns_cbranch_vccz {re_}\ns_cmp_lt_u32 s57, {SPIN_MAX}\ns_cbranch_scc1 {top}\n{re_}:")
            for pre2, txt2, c2 in loads[k+1:]:
                if pre2: A(pre2)
                A(txt2)
            A.label(ok)
            for r in range(4): A(f"v_and_b32 v{c+r}, 0xffffff00, v{c+r}")
            if after: after(k)

    def spin_lds(self, addr_v, off, nflags, tmp, cnt="s57"):
        A = self.A
        top, done = self.lab("sl"), self.lab("sld")
        A(f"s_mov_b32 {cnt}, 0")
        A.label(top)
        if nflags == 4:
            A(f"""
            ds_read_b128 v[{tmp}:{tmp+3}], v{addr_v} offset:{off}
            s_waitcnt lgkmcnt(0)
            v_min_u32 v{tmp}, v{tmp}, v{tmp+1}
            v_min3_u32 v{tmp}, v{tmp}, v{tmp+2}, v{tmp+3}
            """)
        else:
            A(f"ds_read_b32 v{tmp}, v{addr_v} offset:{off}\ns_waitcnt lgkmcnt(0)")
        A(f"""
        v_cmp_eq_u32 vcc, 0, v{tmp}
        s_add_u32 {cnt}, {cnt}, 1
        s_nop 1
        s_cbranch_vccz {done}
        s_sleep 1
        s_cmp_lt_u32 {cnt}, {SPIN_MAX*8}
        s_cbranch_scc1 {top}
        """)
        A.label(done)

    def prologue(self):
        A = self.A
        A(f"""
        s_cmp_ge_u32 s2, 256
        s_cbranch_scc1 L_end
        s_load_dwordx4 s[4:7], s[0:1], 0
        s_load_dwordx2 s[56:57], s[0:1], 16
        s_load_dwordx8 s[60:67], s[0:1], 32
        s_load_dwordx4 s[68:71], s[0:1], 64
        s_load_dwordx2 s[72:73], s[0:1], 80
        v_lshrrev_b32 v2, 6, v0
        v_and_b32 v1, 63, v0
        s_and_b32 s20, s2, 7
        v_readfirstlane_b32 s26, v2
        s_lshr_b32 s21, s2, 3
        s_and_b32 s24, s21, 7
        s_lshr_b32 s25, s21, 3
        s_and_b32 s30, s20, 1
        s_lshl_b32 s22, s30, 3
        s_add_u32 s22, s22, s24
        s_lshr_b32 s31, s20, 1
        s_lshl_b32 s23, s31, 2
        s_add_u32 s23, s23, s25
        s_and_b32 s27, s26, 3
        s_lshl_b32 s28, s30, 3
        s_and_b32 s58, s31, 1
        s_lshl_b32 s58, s58, 2
        s_add_u32 s28, s28, s58
        s_and_b32 s58, s21, 3
        s_add_u32 s28, s28, s58
        s_lshr_b32 s29, s20, 2
        s_lshl_b32 s29, s29, 3
        s_lshr_b32 s58, s21, 2
        s_add_u32 s29, s29, s58
        s_waitcnt lgkmcnt(0)
        """)
        srd(A, 8, 4, 0x400000)
        srd(A, 12, 6, 0x600000)
        srd(A, 16, 72, WS_SIZE)
        A(("s_cmp_ge_u32" if self.swap else "s_cmp_lt_u32") + " s26, 4\ns_cbranch_scc1 L_loader")
        srd(A, 52, 60, 2048)
        A(f"""
        v_and_b32 v2, 31, v1
        v_lshlrev_b32 v2, 4, v2
        v_lshrrev_b32 v3, 5, v1
        v_lshl_add_u32 v4, v3, 11, v2
        s_lshl_b32 s85, s22, 7
        s_lshl_b32 s58, s23, 3
        s_add_u32 s85, s85, s58
        s_lshl_b32 s58, s27, 1
        s_add_u32 s85, s85, s58
        s_lshl_b32 s58, s85, 11
        """)
        for t in range(4): A(f"buffer_load_dwordx4 {vr(16+4*t,4)}, v4, s[8:11], s58 offen offset:{512*t}{' nt' if self.opt.get('ntsx') else ''}")
        for t in range(4): A(f"buffer_load_dwordx4 {vr(32+4*t,4)}, v2, s[52:55], 0 offen offset:{512*t}")
        if self.opt.get("bar0"): A("s_barrier")
        A("s_branch L_compute\nL_loader:")

    def loader(self):
        A0 = self.A
        A = V = self.A = Switch(A0)
        self.sreg = 99
        self.stamp(0)
        srd(A, 48, 70, 256)
        A(f"""
        s_lshl_b32 s58, s2, 2
        s_add_u32 s58, s58, s27
        s_cmp_eq_u32 s58, 0
        s_cbranch_scc0 L_notag
        s_memrealtime s[58:59]
        v_lshlrev_b32 v2, 20, v1
        s_waitcnt lgkmcnt(0)
        s_lshl_b32 s58, s58, 1
        s_or_b32 s58, s58, 1
        v_mov_b32 v3, s58
        buffer_store_dword v3, v2, s[48:51], 0 offen sc1
        L_notag:
        """)
        tabs = [pack4(o) for o in order_tables()]
        VAo, VKVo, VQo, VL16 = 10, 11, 12, 13
        A(f"""
        ; ---- DMA lane offsets ----
        v_lshrrev_b32 v2, 3, v1
        v_lshrrev_b32 v3, 4, v1
        s_and_b32 s58, s27, 1
        s_lshl_b32 s59, s58, 2
        v_add_u32 v3, s59, v3
        v_and_b32 v4, 7, v1
        v_xor_b32 v3, v3, v4
        v_lshlrev_b32 v2, 11, v2
        v_lshl_add_u32 v{VAo}, v3, 4, v2
        v_and_b32 v5, 3, v1
        v_lshlrev_b32 v5, 4, v5
        v_bfe_u32 v6, v1, 4, 1
        v_lshl_add_u32 v5, v6, 6, v5
        v_bfe_u32 v6, v1, 2, 2
        v_lshrrev_b32 v7, 5, v1
        v_mul_u32_u24 v8, 6144, v6
        v_add_u32 v8, v8, v5
        v_lshl_add_u32 v{VKVo}, v7, 11, v8
        v_mul_u32_u24 v7, {4*6144}, v7
        v_add_u32 v{VQo}, v7, v8
        s_lshr_b32 s59, s27, 1
        s_lshl_b32 s59, s59, 5
        v_xor_b32 v{VKVo}, s59, v{VKVo}
        s_lshl_b32 s59, s58, 5
        v_xor_b32 v{VQo}, s59, v{VQo}
        s_sub_u32 s74, s24, s25
        s_and_b32 s74, s74, 3
        s_mov_b32 s76, {tabs[0] & 0xffffffff}
        s_mov_b32 s77, {tabs[0] >> 32}
        """)
        for q in range(1, 4):
            A(f"""
            s_cmp_eq_u32 s74, {q}
            s_cselect_b32 s76, {tabs[q] & 0xffffffff}, s76
            s_cselect_b32 s77, {tabs[q] >> 32}, s77
            """)
        A(f"""
        s_lshl_b32 s75, s30, 1
        {"s_add_u32 s75, s75, s31" if self.opt.get("rot", 1) else ""}
        s_lshl_b32 s75, s75, 2
        s_lshl_b32 s58, s23, 7
        s_mul_i32 s78, s27, {4*6144}
        s_add_u32 s78, s78, s58
        s_add_u32 s78, s78, 2048
        s_mul_i32 s79, s27, {8*6144}
        s_xor_b32 s58, s58, 128
        s_add_u32 s79, s79, s58
        s_lshl_b32 s80, s27, 10
        s_lshl_b32 s81, s22, 7
        s_lshl_b32 s58, s27, 3
        s_add_u32 s81, s81, s58
        s_lshl_b32 s81, s81, 11
        """)
        def issue_stage(s, atoms=(), k0=0):
            slot = s % 3
            atoms = list(atoms)
            per = -(-len(atoms) // (10 - k0))
            cnt = [0]
            nt = "nt " if s < self.opt.get("ntst", 0) else ""
            def fill():
                cnt[0] += 1
                if cnt[0] <= k0: return
                for _ in range(per):
                    if atoms: replay(atoms.pop(0), A0, V.V)
            A(f"""
            s_and_b32 s58, s76, 15
            s_lshr_b64 s[76:77], s[76:77], 4
            s_add_u32 s58, s58, s75
            s_and_b32 s58, s58, 15
            s_lshl_b32 s82, s58, 7
            s_add_u32 s82, s82, s81
            s_mul_i32 s59, s58, {64*6144}
            s_add_u32 s83, s59, s78
            s_add_u32 s84, s59, s79
            """)
            for p in range(4):
                A(f"s_add_u32 m0, s80, {L_A + slot*16384 + p*4096}")
                V.issue(f"buffer_load_dwordx4 v{VAo}, s[8:11], s82 offen {nt}lds", ("st", s))
                fill()
                A(f"s_add_u32 s82, s82, {32*2048}\ns_add_u32 m0, s80, {L_KV + slot*16384 + p*4096}")
                V.issue(f"buffer_load_dwordx4 v{VKVo}, s[12:15], s83 offen {nt}lds", ("st", s))
                fill()
                A(f"s_add_u32 s83, s83, {16*6144}")
                if p < 2:
                    A(f"s_add_u32 m0, s80, {L_Q + slot*8192 + p*4096}")
                    V.issue(f"buffer_load_dwordx4 v{VQo}, s[12:15], s84 offen {nt}lds", ("st", s))
                    fill()
                    A(f"s_add_u32 s84, s84, {32*6144}")
        pr = self.opt.get("probe")
        if pr:
            nwg, kb, which = pr
            A(f"""
            s_cmp_ge_u32 s2, {nwg}
            s_cbranch_scc1 L_noprobe
            v_lshlrev_b32 v20, 4, v1
            s_mov_b32 m0, s80
            """)
            for wh in (which if isinstance(which, tuple) else (which,)):
                A(f"""
                s_load_dwordx2 s[96:97], s[0:1], {wh}
                s_waitcnt lgkmcnt(0)
                s_mov_b32 s92, s96
                s_mov_b32 s93, s97
                s_mov_b32 s94, {0x400000 if wh == 24 else 0x700000}
                s_mov_b32 s95, 0x20000
                s_mul_i32 s58, s2, {kb*1024}
                s_add_u32 s58, s58, s80
                """)
                for i in range(kb//4):
                    A(f"buffer_load_dwordx4 v20, s[92:95], s58 offen lds\ns_add_u32 s58, s58, 4096")
            A("s_waitcnt vmcnt(0)\nL_noprobe:")
        if self.opt.get("bar0"): A("s_barrier")
        issue_stage(0)
        issue_stage(1)
        A(f"s_setprio {self.opt.get('lprio', 0)}")
        srd(A, 32, 56, 0x200000)
        if self.opt.get("wopf"):
            A(f"v_lshlrev_b32 v2, 4, v1\ns_lshl_b32 s58, s2, 13\ns_lshl_b32 s59, s27, 11\ns_add_u32 s58, s58, s59")
            V.issue("buffer_load_dwordx4 v[160:163], v2, s[32:35], s58 offen", "pf")
            V.issue("buffer_load_dwordx4 v[164:167], v2, s[32:35], s58 offen offset:1024", "pf")
        srd(A, 36, 62, 0x700000)
        srd(A, 40, 64, 0x700000)
        srd(A, 44, 66, 0x700000)
        T = 80
        CF, CA, ONES, VC = 100, 124, 136, 140
        A(f"""
        v_lshlrev_b32 v{VL16}, 4, v1
        v_mov_b32 v{ONES}, 0x3f803f80
        v_mov_b32 v{ONES+1}, 0x3f803f80
        v_mov_b32 v{ONES+2}, 0x3f803f80
        v_mov_b32 v{ONES+3}, 0x3f803f80
        v_bfe_u32 v2, v1, 2, 2
        v_lshlrev_b32 v2, 6, v2
        v_and_b32 v3, 3, v1
        v_lshl_add_u32 v2, v3, 3, v2
        v_lshrrev_b32 v3, 4, v1
        v_and_b32 v4, 1, v3
        v_lshl_add_u32 v2, v4, 5, v2
        s_lshl_b32 s58, s27, 8
        s_add_u32 s58, s58, {L_KV}
        v_lshl_add_u32 v{VC}, v3, 11, v2
        v_add_u32 v{VC}, s58, v{VC}
        v_xor_b32 v{VC+1}, 32, v{VC}
        s_lshr_b32 s58, s27, 1
        s_lshl_b32 s58, s58, 8
        s_add_u32 s58, s58, {L_Q}
        s_and_b32 s59, s27, 1
        s_lshl_b32 s59, s59, 5
        v_lshl_add_u32 v{VC+2}, v3, 10, v2
        v_xor_b32 v{VC+2}, s59, v{VC+2}
        v_add_u32 v{VC+2}, s58, v{VC+2}
        s_add_u32 s86, s74, 1
        s_cmp_lt_u32 s24, 4
        s_cselect_b32 s86, 0, s86
        v_mov_b32 v15, {OOB}
        s_lshr_b32 s88, s2, 4
        s_and_b32 s89, s2, 15
        s_cmp_lt_u32 s2, 224
        s_cselect_b32 s87, 0, {OOB}
        """)
        VM = 96
        slow = []
        A("s_load_dword s3, s[70:71], 0")
        V.need({("st", 0)})
        A("s_barrier")
        self.stamp(1)

        def csum(s):
            skip = self.lab("cs")
            A(f"s_cmp_eq_u32 s86, {s}\ns_cbranch_scc0 {skip}")
            slot = s % 3
            for f in range(3):
                for ks in range(2):
                    for rd in range(2):
                        g = 8*ks + rd
                        off = slot*16384 + g*1024 if f < 2 else slot*8192 + g*512
                        A(f"ds_read_b64_tr_b16 {vr(CF+f*8+ks*4+2*rd,2)}, v{VC+f} offset:{off}")
            A("s_waitcnt lgkmcnt(0)")
            for f in range(3):
                A(f"v_mfma_f32_16x16x32_bf16 {vr(CA+4*f,4)}, {vr(ONES,4)}, {vr(CF+f*8,4)}, 0")
                A(f"v_mfma_f32_16x16x32_bf16 {vr(CA+4*f,4)}, {vr(ONES,4)}, {vr(CF+f*8+4,4)}, {vr(CA+4*f,4)}")
            A.label(skip)

        def nonce():
            A("s_waitcnt lgkmcnt(0)\ns_cmp_eq_u32 s3, 0\ns_cbranch_scc1 L_tagslow\nL_tagback:")
            self.nonce_setup(VM)
            A(f"v_mov_b32 v2, {L_FL + FL_NON}\nv_mov_b32 v3, s3\nds_write_b32 v2, v3")
            slow.append(lambda: A(f"""
            L_tagslow:
            s_mov_b32 s57, 0
            v_mov_b32 v2, 0
            L_tagspin:
            buffer_load_dword v3, v2, s[48:51], 0 offen sc1
            s_waitcnt vmcnt(0)
            v_readfirstlane_b32 s3, v3
            s_add_u32 s57, s57, 1
            s_cmp_lg_u32 s3, 0
            s_cbranch_scc1 L_tagback
            s_sleep 4
            s_cmp_lt_u32 s57, {SPIN_MAX}
            s_cbranch_scc1 L_tagspin
            s_branch L_tagback
            """))
        def pub_cs_key():
            A(f"""
            v_lshrrev_b32 v2, 4, v1
            v_cmp_eq_u32 vcc, 1, v2
            v_cndmask_b32 v{CA}, v{CA}, v{CA+4}, vcc
            v_cmp_eq_u32 vcc, 2, v2
            v_cndmask_b32 v{CA}, v{CA}, v{CA+8}, vcc
            s_lshl_b32 s58, s27, 7
            v_lshlrev_b32 v3, 2, v1
            v_add_u32 v3, s58, v3
            s_lshl_b32 s58, s27, 6
            s_add_u32 s58, s58, {512 - 128}
            v_lshlrev_b32 v4, 2, v1
            v_add_u32 v4, s58, v4
            v_cndmask_b32 v3, v3, v4, vcc
            v_cmp_eq_u32 vcc, 3, v2
            v_cndmask_b32 v3, v3, v15, vcc
            s_lshl_b32 s58, s23, 4
            s_add_u32 s58, s58, s22
            s_lshl_b32 s58, s58, 10
            s_add_u32 s58, s58, {WS_CSP}
            """)
            A(f"v_and_b32 v4, 3, v1\nv_lshlrev_b32 v4, 3, v4\nv_lshrrev_b32 v4, v4, s60\nv_bfi_b32 v{CA}, v{VM}, v4, v{CA}")
            V.issue(f"buffer_store_dword v{CA}, v3, s[16:19], s58 offen sc1", "cs")
        def flag_s1():
            A(f"""
            v_mov_b32 v3, {L_FL + FL_KEY}
            ds_read_b128 {vr(T,4)}, v3
            v_cmp_eq_u32 vcc, {256 if self.swap else 0}, v0
            v_mov_b32 v4, 0
            v_cndmask_b32 v5, v15, v4, vcc
            s_lshl_b32 s58, s2, 3
            s_add_u32 s58, s58, {WS_KEY}
            s_waitcnt lgkmcnt(0)
            v_max_u32 v{T}, v{T}, v{T+1}
            v_max3_u32 v{T}, v{T}, v{T+2}, v{T+3}
            v_mov_b32 v{T+1}, s60
            """)
            V.issue(f"buffer_store_dwordx2 {vr(T,2)}, v5, s[16:19], s58 offen sc1", "flag")
            A(f"""
            v_and_b32 v2, 7, v1
            v_lshlrev_b32 v2, 3, v2
            v_add_u32 v3, {L_FL + FL_ST}, v2
            ds_read_b64 {vr(T+4,2)}, v3
            v_subrev_u32 v3, {256 if self.swap else 0}, v0
            v_cmp_gt_u32 vcc, 8, v3
            v_cndmask_b32 v2, v15, v2, vcc
            s_and_b32 s59, s60, 0xffff
            s_lshl_b32 s58, s22, 4
            s_add_u32 s58, s58, s23
            s_lshl_b32 s58, s58, 6
            s_add_u32 s58, s58, {WS_STAT}
            s_waitcnt lgkmcnt(0)
            v_or_b32 v{T+4}, s59, v{T+4}
            v_or_b32 v{T+5}, s62, v{T+5}
            """)
            V.issue(f"buffer_store_dwordx2 {vr(T+4,2)}, v2, s[16:19], s58 offen sc1", "flag")
        S1R, KEYS = 144, 152
        def s1_round(issue):
            A("s_mov_b32 s58, s90")
            for t in range(4):
                issue(f"buffer_load_dwordx4 {vr(S1R+4*t,4)}, v7, s[16:19], s58 offen sc1", "s1")
                if t < 3: A(f"s_add_u32 s58, s58, s{(95, 85, 74)[t]}")
        def s1_addr():
            A(f"""
            v_and_b32 v2, 15, v1
            v_lshlrev_b32 v2, 4, v2
            v_lshrrev_b32 v3, 4, v1
            v_lshl_add_u32 v2, v3, 10, v2
            s_lshl_b32 s90, s23, 14
            s_lshl_b32 s59, s27, 8
            s_add_u32 s90, s90, s59
            s_add_u32 s90, s90, {WS_CSP}
            s_lshl_b32 s59, s22, 10
            s_add_u32 s59, s59, {WS_STAT}
            s_sub_u32 s95, s28, s22
            s_lshl_b32 s95, s95, 10
            s_lshl_b32 s85, s28, 10
            s_sub_u32 s85, {WS_KEY - WS_STAT}, s85
            s_cmp_eq_u32 s27, 3
            s_cselect_b32 s90, s59, s90
            s_movk_i32 s59, 4096
            s_cselect_b32 s95, s95, s59
            s_cselect_b32 s85, s85, s59
            s_cselect_b32 s74, 1024, s59
            s_cselect_b64 vcc, -1, 0
            v_cndmask_b32 v7, v2, v{VL16}, vcc
            """)
        def s1_check(w3):
            def chk():
                if not w3:
                    for t in range(4):
                        c = S1R + 4*t
                        A(f"v_perm_b32 v{T+t}, v{c+1}, v{c}, s64\nv_perm_b32 v4, v{c+3}, v{c+2}, s65\nv_or_b32 v{T+t}, v{T+t}, v4")
                    A(f"v_max3_u32 v2, v{T}, v{T+1}, v{T+2}\nv_min3_u32 v3, v{T}, v{T+1}, v{T+2}\nv_max_u32 v2, v2, v{T+3}\nv_min_u32 v3, v3, v{T+3}")
                else:
                    A("s_mov_b32 s58, 0x05040100")
                    for t in range(4):
                        A(f"v_perm_b32 v{T+t}, v{S1R+2*t+1}, v{S1R+2*t}, s58")
                    A(f"""
                    v_max3_u32 v2, v{KEYS+1}, v{KEYS+3}, v{KEYS+5}
                    v_min3_u32 v3, v{KEYS+1}, v{KEYS+3}, v{KEYS+5}
                    v_max3_u32 v2, v2, v{KEYS+7}, v{T}
                    v_min3_u32 v3, v3, v{KEYS+7}, v{T}
                    v_max3_u32 v2, v2, v{T+1}, v{T+2}
                    v_min3_u32 v3, v3, v{T+1}, v{T+2}
                    v_max_u32 v2, v2, v{T+3}
                    v_min_u32 v3, v3, v{T+3}
                    """)
                A("v_cmp_ne_u32 vcc, s60, v2\nv_cmp_ne_u32 s[66:67], s60, v3\ns_or_b64 vcc, vcc, s[66:67]")
            V.need({"s1"})
            chk()
            sl, back = f"L_s1slow{int(w3)}", f"L_s1back{int(w3)}"
            A(f"s_cbranch_scc1 {sl}\n{back}:")
            def slowpath():
                top = self.lab("s1t")
                A(f"{sl}:\ns_mov_b32 s57, 0\n{top}:\ns_sleep 8")
                s1_round(lambda t, tag: A(t))
                A("s_waitcnt vmcnt(0)")
                chk()
                A(f"s_cbranch_scc0 {back}\ns_add_u32 s57, s57, 1\ns_cmp_lt_u32 s57, {SPIN_MAX}\ns_cbranch_scc1 {top}\ns_branch {back}")
            slow.append(slowpath)
        XSV, XST = 144, 146
        def s1_tables(w3):
            if not w3:
                for k in range(16): A(f"v_and_b32 v{S1R+k}, 0xffffff00, v{S1R+k}")
                for h in (0, 2):
                    A(f"v_pk_add_f32 {vr(S1R+h,2)}, {vr(S1R+h,2)}, {vr(S1R+4+h,2)}\nv_pk_add_f32 {vr(S1R+8+h,2)}, {vr(S1R+8+h,2)}, {vr(S1R+12+h,2)}")
                for h in (0, 2):
                    A(f"v_pk_add_f32 {vr(S1R+h,2)}, {vr(S1R+h,2)}, {vr(S1R+8+h,2)}")
                for wh in (16, 32):
                    for k in range(4): A(f"v_mov_b32 v{S1R+4+k}, v{S1R+k}")
                    for k in range(4): A(f"v_permlane{wh}_swap_b32 v{S1R+k}, v{S1R+4+k}")
                    for h in (0, 2): A(f"v_pk_add_f32 {vr(S1R+h,2)}, {vr(S1R+h,2)}, {vr(S1R+4+h,2)}")
                A(f"""
                s_lshl_b32 s58, s27, 8
                s_add_u32 s58, s58, {L_CS}
                v_and_b32 v2, 15, v1
                v_lshlrev_b32 v2, 4, v2
                v_add_u32 v2, s58, v2
                ds_write_b128 v2, {vr(S1R,4)}
                """)
                return
            for k in range(8): A(f"v_and_b32 v{S1R+k}, 0xffff0000, v{S1R+k}")
            for k in (1, 3, 5, 7): A(f"v_rcp_f32 v{S1R+k}, v{S1R+k}")
            A(f"""
            v_add_u32 v2, {L_ST2}, v{VL16}
            v_mov_b32 v{T}, v{S1R}
            v_mov_b32 v{T+1}, v{S1R+2}
            ds_write_b128 v2, {vr(S1R+4,4)}
            v_mov_b32 v{T+2}, v{S1R+1}
            v_mov_b32 v{T+3}, v{S1R+3}
            v_mul_f32 v{T+4}, {hex(LOG2E)}, v{S1R+1}
            v_mul_f32 v{T+5}, {hex(LOG2E)}, v{S1R+3}
            v_lshlrev_b32 v2, 3, v1
            v_add_u32 v2, {L_M}, v2
            ds_write_b64 v2, {vr(T,2)}
            ds_write_b64 v2, {vr(T+2,2)} offset:{L_RI-L_M}
            ds_write_b64 v2, {vr(T+4,2)} offset:{L_RL-L_M}
            v_max_u32 v{KEYS}, v{KEYS}, v{KEYS+2}
            v_max3_u32 v{KEYS}, v{KEYS}, v{KEYS+4}, v{KEYS+6}
            """)
            red_row(A, KEYS, "v_max_u32"); red_swap(A, KEYS, KEYS+1, 16, "v_max_u32"); red_swap(A, KEYS, KEYS+1, 32, "v_max_u32")
            A(f"""
            v_mov_b32 v2, {L_FL + FL_SEL}
            ds_write_b32 v2, v{KEYS}
            """)
        def xs_loads():
            self.spin_lds(6, FL_TAB, 4, 48)
            A(f"""
            ds_read_b32 v2, v6 offset:{FL_SEL}
            s_waitcnt lgkmcnt(0)
            v_readfirstlane_b32 s91, v2
            s_and_b32 s92, s91, 0x7ff
            s_sub_u32 s92, 0x7ff, s92
            s_lshl_b32 s58, s92, 11
            s_lshl_b32 s59, s89, 7
            s_add_u32 s58, s58, s59
            s_lshl_b32 s59, s27, 5
            s_add_u32 s58, s58, s59
            v_and_b32 v2, 15, v1
            v_lshlrev_b32 v2, 1, v2
            s_lshl_b32 s90, s92, 3
            s_add_u32 s90, s90, {WS_STAT}
            v_mov_b32 v148, 0
            """)
            V.issue(f"buffer_load_ushort v{XSV}, v2, s[8:11], s58 offen", "xs")
            V.issue(f"buffer_load_dwordx2 {vr(XST,2)}, v148, s[16:19], s90 offen sc1", "xs")
        MSK = 232
        def xs_process():
            V.need({"xs"})
            top, ok = self.lab("xt"), self.lab("xk")
            A(f"""
            s_mov_b32 s57, 0
            s_mov_b32 s58, 0x05040100
            {top}:
            v_perm_b32 v2, v{XST+1}, v{XST}, s58
            v_cmp_ne_u32 vcc, s60, v2
            s_add_u32 s57, s57, 1
            s_nop 1
            s_cbranch_vccz {ok}
            s_cmp_ge_u32 s57, {SPIN_MAX}
            s_cbranch_scc1 {ok}
            buffer_load_dwordx2 {vr(XST,2)}, v148, s[16:19], s90 offen sc1
            s_waitcnt vmcnt(0)
            s_branch {top}
            {ok}:
            v_and_b32 v{XST}, 0xffff0000, v{XST}
            v_and_b32 v{XST+1}, 0xffff0000, v{XST+1}
            v_rcp_f32 v{XST+1}, v{XST+1}
            v_lshlrev_b32 v{XSV}, 16, v{XSV}
            v_sub_f32 v{XSV}, v{XSV}, v{XST}
            """)
            rnd_bf16(A, XSV)
            A(f"""
            v_mul_f32 v{XSV}, v{XSV}, v{XST+1}
            v_cvt_pk_bf16_f32 v{XSV}, v{XSV}, v{XSV}
            v_and_b32 v2, 1, v1
            v_mov_b32 v3, 0xffff
            v_mov_b32 v4, 0xffff0000
            v_cmp_eq_u32 vcc, 1, v2
            v_cndmask_b32 v3, v3, v4, vcc
            v_lshrrev_b32 v2, 1, v1
            v_xor_b32 v2, v2, v1
            v_and_b32 v2, 8, v2
            v_cmp_eq_u32 vcc, 0, v2
            v_cndmask_b32 v3, 0, v3, vcc
            v_bfe_u32 v2, v1, 1, 2
            """)
            for r in range(4):
                A(f"v_cmp_eq_u32 vcc, {r}, v2\nv_cndmask_b32 v{MSK+r}, 0, v3, vcc")
        VWO = 9
        def wo_setup():
            A(f"""
            v_lshrrev_b32 v2, 5, v1
            v_bfe_u32 v3, v1, 2, 2
            v_lshl_add_u32 v3, v2, 2, v3
            v_lshlrev_b32 v3, 11, v3
            v_bfe_u32 v4, v1, 4, 1
            v_lshl_add_u32 v3, v4, 6, v3
            v_and_b32 v4, 3, v1
            v_lshlrev_b32 v2, 1, v2
            v_xor_b32 v4, v4, v2
            v_lshl_add_u32 v{VWO}, v4, 4, v3
            s_lshl_b32 s93, s27, 14
            s_lshl_b32 s58, s29, 7
            s_add_u32 s93, s93, s58
            s_and_b32 s94, s29, 7
            s_lshl_b32 s58, s28, 1
            s_add_u32 s94, s94, s58
            s_lshl_b32 s94, s94, 2
            """)
        def wo_issue(ts):
            for t in ts:
                A(f"""
                s_add_u32 s82, s94, {t}
                s_and_b32 s82, s82, 31
                s_lshl_b32 s82, s82, 16
                s_add_u32 s82, s82, s93
                s_add_u32 m0, s80, {t*4096}
                """)
                V.issue(f"buffer_load_dwordx4 v{VWO}, s[32:35], s82 offen lds", "wo")
                if self.opt.get("wothr"): A(f"s_waitcnt vmcnt({self.opt['wothr']-1})")

        GW, DW = 168, 16
        def moe_addr():
            A(f"""
            v_lshrrev_b32 v2, 5, v1
            v_and_b32 v3, 31, v1
            v_lshlrev_b32 v3, 4, v3
            v_mul_u32_u24 v97, 7168, v2
            v_add_u32 v97, v97, v3
            v_lshl_add_u32 v98, v2, 11, v3
            v_lshrrev_b32 v2, 3, v1
            v_and_b32 v3, 7, v1
            v_lshlrev_b32 v3, 4, v3
            v_lshl_add_u32 v14, v2, 11, v3
            s_lshl_b32 s68, s89, 6
            s_lshl_b32 s59, s27, 4
            s_add_u32 s68, s68, s59
            s_mul_i32 s68, s68, 7168
            s_lshl_b32 s59, s88, 9
            s_add_u32 s68, s68, s59
            s_lshl_b32 s69, s2, 15
            s_lshl_b32 s59, s27, 9
            s_add_u32 s69, s69, s59
            s_cmp_eq_u32 s87, 0
            s_cselect_b32 s68, s68, 0
            s_cselect_b32 s69, s69, 0
            s_cselect_b64 vcc, -1, 0
            v_cndmask_b32 v97, 0, v97, vcc
            v_cndmask_b32 v98, 0, v98, vcc
            """)
        def moe_ld(k):
            if k < 16:
                t, m = k >> 1, k & 1
                txt = f"buffer_load_dwordx4 {vr(GW+8*t+4*m,4)}, v97, s[{36+4*m}:{39+4*m}], s68 offen nt"
                post = f"s_add_u32 s68, s68, {2*7168}" if m == 1 else None
                return txt, ("gu", t), post
            return f"buffer_load_dwordx4 {vr(DW+4*(k-16),4)}, v98, s[44:47], s69 offen nt", "dw", "s_add_u32 s69, s69, 4096"
        runs = self.opt.get("runs", [])
        ng, gstep = self.opt.get("ngroups", 1), self.opt.get("gstep", 1)
        g1l = self.opt.get("g1", [])
        early = [k for _, ks in runs for k in ks] + g1l
        def xtile():
            A(f"""
            s_lshl_b32 s58, s28, 7
            s_lshl_b32 s59, s27, 5
            s_add_u32 s58, s58, s59
            s_lshl_b32 s58, s58, 11
            s_lshl_b32 s59, s29, 7
            s_add_u32 s58, s58, s59
            s_mul_i32 s59, s27, 4608
            """)
            for t in range(4):
                A(f"s_add_u32 m0, s59, {L_TR + 1024*t}")
                V.issue(f"buffer_load_dwordx4 v14, s[8:11], s58 offen lds", "xt")
                if t < 3: A(f"s_add_u32 s58, s58, {8*2048}")
        P = self.opt.get("s1at", 13)
        extra = {s: [] for s in range(16)}
        for s in range(5): extra[s].append(lambda s=s: csum(s))
        extra[0] += [nonce, flag_s1]
        extra[1] += [moe_addr]
        extra[5] += [pub_cs_key]
        extra[7] += [s1_addr]
        extra[8] += [wo_setup]
        for s in self.opt.get("noextra", []):
            extra[s] = [f for f in extra[s] if f in (nonce, moe_addr, wo_setup, s1_addr)]
        if runs: A(f"s_lshr_b32 s71, s2, 3\ns_mul_i32 s58, s71, {(65536+ng-1)//ng}\ns_lshr_b32 s58, s58, 16\ns_mul_i32 s58, s58, {ng}\ns_sub_u32 s71, s71, s58")
        def iteration(s, atoms, k0=0):
            here = [(g, ks) for first, ks in runs for g in range(ng) if first + g*gstep == s]
            assert len(here) <= 1
            if here:
                g, ks = here[0]
                skip = self.lab("run")
                A(f"s_cmp_eq_u32 s71, {g}\ns_cbranch_scc0 {skip}")
                for k in ks:
                    txt, tag, post = moe_ld(k)
                    A(txt)
                    if post: A(post)
                A.label(skip)
            if s + 2 < 16: issue_stage(s + 2, atoms, k0)
            else:
                for a in atoms: replay(a, A0, V.V)
            if s == P: s1_round(V.issue)
            if s == 13:
                xtile()
                for k in g1l:
                    txt, tag, post = moe_ld(k)
                    V.issue(txt, "g1")
                    if post: A(post)
            tags = {("st", s+1)}
            if self.opt.get("iters"): self.stamp(16+s)
            if here:
                assert s >= 2 and s != P+1
                V.need(tags)
                w = A0.lines.pop()
                n = int(w.split("(")[1].split(")")[0])
                a, b = self.lab("wa"), self.lab("wb")
                A(f"s_cmp_eq_u32 s71, {g}\ns_cbranch_scc0 {a}\ns_waitcnt vmcnt({min(63, n+len(ks))})\ns_branch {b}\n{a}:\ns_waitcnt vmcnt({n})\n{b}:")
            else:
                V.need(tags)
            if s == 14: A("s_waitcnt lgkmcnt(0)")
            if self.opt.get("iters"): self.stamp(32+s)
            A("s_barrier")
        for s in range(min(P+1, 15) if P < 13 else 15): iteration(s, A.record(extra[s]))
        A("s_cmp_eq_u32 s27, 3\ns_cbranch_scc1 L_path3")
        q0 = list(V.V.q)
        for w3 in (False, True):
            if w3: A.label("L_path3")
            V.V.q = list(q0)
            if P == 13:
                s1_check(w3); s1_tables(w3)
            else:
                tab = A.record([lambda: s1_tables(w3)])
                per = -(-len(tab) // (14 - (P+1)))
                for s in range(P+1, 15):
                    if s == P+1: iteration(s, A.record(extra[s] + [lambda: s1_check(w3)]), self.opt.get("k0", 4))
                    else:
                        iteration(s, A.record(extra[s]) + tab[:per]); tab = tab[per:]
                assert not tab
            if not w3: A("s_branch L_pathj")
        A.label("L_pathj")
        V.V.q = ["xt"]*4
        A(f"s_lshl_b32 s58, s27, 2\ns_add_u32 s58, s58, {L_FL + FL_TAB}\nv_mov_b32 v2, s58\nv_mov_b32 v3, 1")
        A(f"s_waitcnt vmcnt({len(g1l)}) lgkmcnt(0)")
        V.V.q = ["g1"]*len(g1l)
        A("ds_write_b32 v2, v3")
        self.stamp(18)
        A(f"""
        """)
        wo_issue([30, 31, 4, 5, 6, 7, 16, 17, 18, 19, 26, 27, 8, 9, 10, 11, 20, 21, 22, 23, 28, 29])
        V = V.V
        A(f"v_mov_b32 v6, {L_FL}")
        self.spin_lds(6, FL_C15, 4, 48)
        self.stamp(2)
        if self.opt.get("stop"):
            self.stamp_out(); A("s_endpgm")
        wo_issue([0, 1, 2, 3, 12, 13, 14, 15, 24, 25])
        xs_loads()
        thr = self.opt.get("thr", 3)
        rest = [k for k in range(24) if k not in early]
        if self.opt.get("nomoe"): rest = []
        A(f"""
        v_mov_b32 v6, {L_FL}
        s_lshl_b32 s58, s27, 2
        v_add_u32 v7, s58, v6
        v_mov_b32 v48, 1
        """)
        wo_flagged = False
        for n, k in enumerate(rest):
            txt, tag, post = moe_ld(k)
            V.issue(txt, tag)
            if post: A(post)
            if thr and n + 1 >= thr:
                A(f"s_waitcnt vmcnt({thr-1})")
                V.q = V.q[len(V.q)-(thr-1):] if thr > 1 else []
                if not wo_flagged:
                    A(f"ds_write_b32 v7, v48 offset:{FL_WO}"); wo_flagged = True
                    self.stamp(3)
        xs_process()
        AP, DT = 236, 240
        A(f"""
        v_lshrrev_b32 v8, 5, v1
        v_lshlrev_b32 v8, 2, v8
        """)
        for t in range(8):
            A(f"ds_bpermute_b32 v{50+t}, v8, v{XSV} offset:{8*t}")
        if not wo_flagged:
            V.need({"wo"})
            A(f"ds_write_b32 v7, v48 offset:{FL_WO}")
            self.stamp(3)
        if self.opt.get("nomoe"): A("s_branch L_loader_end")
        A(f"s_cmp_lg_u32 s87, 0\ns_cbranch_scc1 L_moe_done\ns_waitcnt lgkmcnt(0)")
        for t in range(8):
            ap = AP if t & 1 else 64
            for r in range(4): A(f"v_and_b32 v{ap+r}, v{50+t}, v{MSK+r}")
            V.need({("gu", t)})
            for m in range(2):
                c = "0" if t == 0 else vr(DT+4*m, 4)
                A(f"v_mfma_f32_16x16x32_bf16 {vr(DT+4*m,4)}, {vr(ap,4)}, {vr(GW+8*t+4*m,4)}, {c}")
        A(f"""
        v_and_b32 v2, 15, v1
        v_lshlrev_b32 v61, 5, v2
        v_bfe_u32 v3, v1, 4, 1
        v_lshl_add_u32 v61, v3, 4, v61
        v_lshrrev_b32 v3, 5, v1
        v_lshl_add_u32 v61, v3, 9, v61
        s_lshl_b32 s58, s27, 11
        s_add_u32 s58, s58, {L_GUS}
        v_add_u32 v2, s58, v61
        ds_write_b128 v2, {vr(DT,4)}
        ds_write_b128 v2, {vr(DT+4,4)} offset:1024
        v_and_b32 v2, 31, v1
        v_lshlrev_b32 v2, 4, v2
        s_lshl_b32 s58, s27, 9
        v_add_u32 v2, s58, v2
        v_add_u32 v3, {L_GUS}, v2
        s_waitcnt lgkmcnt(0)
        ds_write_b32 v7, v48 offset:{FL_GU}
        """)
        self.spin_lds(6, FL_GU, 4, 64)
        for w in range(4): A(f"ds_read_b128 {vr(64+4*w,4)}, v3 offset:{2048*w}")
        A("s_waitcnt lgkmcnt(0)")
        for h in (0, 2):
            A(f"v_pk_add_f32 {vr(64+h,2)}, {vr(64+h,2)}, {vr(68+h,2)}\nv_pk_add_f32 {vr(72+h,2)}, {vr(72+h,2)}, {vr(76+h,2)}")
        for h in (0, 2):
            A(f"v_pk_add_f32 {vr(64+h,2)}, {vr(64+h,2)}, {vr(72+h,2)}")
        self.tag(64, VM)
        A(f"""
        v_cmp_gt_u32 vcc, 32, v1
        v_cndmask_b32 v2, v15, v2, vcc
        s_lshl_b32 s58, s2, 11
        s_add_u32 s58, s58, {WS_GUP}
        buffer_store_dwordx4 {vr(64,4)}, v2, s[16:19], s58 offen sc1
        v_lshrrev_b32 v2, 2, v1
        v_lshlrev_b32 v2, 11, v2
        v_and_b32 v3, 3, v1
        v_lshl_add_u32 v2, v3, 4, v2
        s_lshl_b32 s58, s88, 15
        s_lshl_b32 s59, s89, 6
        s_add_u32 s58, s58, s59
        s_add_u32 s58, s58, {WS_GUP}
        s_cmp_lg_u32 s27, 0
        s_cbranch_scc1 L_hwait
        s_sleep {self.opt.get("d4", 8)}
        """)
        self.stamp(4)
        self.gather([(None, f"buffer_load_dwordx4 {vr(64+4*k,4)}, v2, s[16:19], s58 offen offset:{1024*k} sc1", 64+4*k) for k in range(2)], 72)
        V.q = []
        self.stamp(5)
        for r in (8, 4):
            for k in range(8): A(f"v_add_f32_dpp v{64+k}, v{64+k}, v{64+k} row_ror:{r} row_mask:0xf bank_mask:0xf")
        for wh in (16, 32):
            for k in range(8): A(f"v_mov_b32 v{72+k}, v{64+k}")
            for k in range(8): A(f"v_permlane{wh}_swap_b32 v{64+k}, v{72+k}")
            for h in range(0, 8, 2): A(f"v_pk_add_f32 {vr(64+h,2)}, {vr(64+h,2)}, {vr(72+h,2)}")
        for k in range(8): A(f"v_cvt_pk_bf16_f32 v{64+k}, v{64+k}, v{64+k}")
        for k in range(8): A(f"v_lshlrev_b32 v{64+k}, 16, v{64+k}")
        for k in range(4): A(f"v_mul_f32 v{72+k}, {hex(LOG2E | 0x80000000)}, v{64+k}")
        for k in range(4): A(f"v_exp_f32 v{72+k}, v{72+k}")
        for k in range(4): A(f"v_add_f32 v{72+k}, 1.0, v{72+k}")
        for k in range(4): A(f"v_rcp_f32 v{72+k}, v{72+k}")
        for k in range(4): A(f"v_mul_f32 v{64+k}, v{64+k}, v{72+k}")
        for k in range(4): A(f"v_cvt_pk_bf16_f32 v{64+k}, v{64+k}, v{64+k}")
        for k in range(4): A(f"v_lshlrev_b32 v{64+k}, 16, v{64+k}")
        for k in range(4): A(f"v_mul_f32 v{64+k}, v{64+k}, v{68+k}")
        for k in range(4): A(f"v_cvt_pk_bf16_f32 v{64+k}, v{64+k}, v{64+k}")
        A(f"""
        v_and_b32 v2, 3, v1
        v_lshlrev_b32 v2, 4, v2
        v_add_u32 v2, {L_HT}, v2
        ds_write_b128 v2, {vr(64,4)}
        s_waitcnt lgkmcnt(0)
        ds_write_b32 v6, v48 offset:{FL_H}
        L_hwait:
        v_add_u32 v3, {L_HT}, v8
        """)
        self.spin_lds(6, FL_H, 1, 64)
        A("s_waitcnt vmcnt(0)")
        for t in range(8): A(f"ds_read_b32 v{50+t}, v3 offset:{8*t}")
        A("s_waitcnt lgkmcnt(0)")
        for t in range(8):
            ap = AP if t & 1 else 64
            for r in range(4): A(f"v_and_b32 v{ap+r}, v{50+t}, v{MSK+r}")
            A(f"v_mfma_f32_16x16x32_bf16 {vr(DT,4)}, {vr(ap,4)}, {vr(DW+4*t,4)}, {'0' if t == 0 else vr(DT,4)}")
        self.tag(DT, VM)
        A(f"""
        s_lshl_b32 s58, s2, 12
        s_add_u32 s58, s58, s80
        s_add_u32 s58, s58, {WS_YP}
        buffer_store_dwordx4 {vr(DT,4)}, v61, s[16:19], s58 offen sc1
        """)
        A.label("L_moe_done")
        self.stamp(6)
        A(f"""
        s_lshr_b32 s58, s92, 7
        s_cmp_lg_u32 s58, s28
        s_cbranch_scc1 L_loader_end
        v_lshrrev_b32 v2, 4, v1
        v_lshlrev_b32 v2, 12, v2
        v_and_b32 v3, 15, v1
        v_lshl_add_u32 v2, v3, 4, v2
        s_mul_i32 s95, s27, {56*4096}
        s_lshl_b32 s59, s29, 8
        s_add_u32 s95, s95, s59
        s_add_u32 s95, s95, {WS_YP}
        """)
        def yacc(k):
            if k:
                for h in (0, 2): A(f"v_pk_add_f32 {vr(GW+h,2)}, {vr(GW+h,2)}, {vr(GW+4*k+h,2)}")
        self.gather([(f"s_add_u32 s58, s95, {4*4096*t}", f"buffer_load_dwordx4 {vr(GW+4*t,4)}, v2, s[16:19], s58 offen sc1", GW+4*t) for t in range(14)], 60, yacc)
        for k in range(4):
            red_swap(A, GW+k, 60, 16); red_swap(A, GW+k, 60, 32)
        A(f"""
        s_lshl_b32 s58, s27, 8
        s_add_u32 s58, s58, {L_YT}
        v_and_b32 v3, 15, v1
        v_lshlrev_b32 v3, 4, v3
        v_add_u32 v2, s58, v3
        ds_write_b128 v2, {vr(GW,4)}
        v_mov_b32 v6, {L_FL}
        s_lshl_b32 s58, s27, 2
        v_add_u32 v7, s58, v6
        v_mov_b32 v48, 1
        s_waitcnt lgkmcnt(0)
        ds_write_b32 v7, v48 offset:{FL_Y}
        s_cmp_lg_u32 s27, 0
        s_cbranch_scc1 L_loader_end
        """)
        self.spin_lds(6, FL_Y, 4, 64)
        A(f"v_add_u32 v2, {L_YT}, v3")
        for w in range(4): A(f"ds_read_b128 {vr(64+4*w,4)}, v2 offset:{256*w}")
        A(f"""
        s_and_b32 s58, s91, 0xffff0000
        s_ashr_i32 s59, s58, 31
        s_not_b32 s59, s59
        s_or_b32 s59, s59, 0x80000000
        s_xor_b32 s58, s58, s59
        s_and_b32 s58, s58, 0xffff0000
        v_mov_b32 v80, s58
        v_mul_f32 v80, {hex(LOG2E | 0x80000000)}, v80
        v_exp_f32 v80, v80
        v_add_f32 v80, 1.0, v80
        v_rcp_f32 v80, v80
        """)
        rnd_bf16(A, 80)
        A("s_waitcnt lgkmcnt(0)")
        for h in (0, 2):
            A(f"""
            v_pk_add_f32 {vr(64+h,2)}, {vr(64+h,2)}, {vr(68+h,2)}
            v_pk_add_f32 {vr(72+h,2)}, {vr(72+h,2)}, {vr(76+h,2)}
            v_pk_add_f32 {vr(64+h,2)}, {vr(64+h,2)}, {vr(72+h,2)}
            """)
        for k in range(4):
            rnd_bf16(A, 64+k)
            A(f"v_mul_f32 v{64+k}, v{64+k}, v80")
            rnd_bf16(A, 64+k)
        A(f"""
        v_add_u32 v2, {L_YF}, v3
        ds_write_b128 v2, {vr(64,4)}
        s_waitcnt lgkmcnt(0)
        ds_write_b32 v6, v48 offset:{FL_YF}
        L_loader_end:
        """)
        self.stamp(7)
        self.stamp_out()
        A("s_endpgm")
        for f in slow: f()
        self.A = A0

    def stats(self):
        A = self.A
        X, WR, F, T = 16, 32, 48, 80
        MEAN, MB, RINV, RACC = 92, 94, 98, 90
        A("s_waitcnt vmcnt(4)")
        for k in range(16): unpack(A, F+2*k, F+2*k+1, X+k)
        A(f"v_pk_add_f32 {vr(T,2)}, {vr(F,2)}, {vr(F+2,2)}\nv_pk_add_f32 {vr(T+2,2)}, {vr(F+4,2)}, {vr(F+6,2)}")
        for k in range(4, 16):
            a = T + 2*(k & 1)
            A(f"v_pk_add_f32 {vr(a,2)}, {vr(a,2)}, {vr(F+2*k,2)}")
        A(f"v_pk_add_f32 {vr(T,2)}, {vr(T,2)}, {vr(T+2,2)}\nv_add_f32 v{MEAN}, v{T}, v{T+1}")
        red_row(A, MEAN); red_swap(A, MEAN, T, 16)
        A(f"v_mul_f32 v{MEAN}, 0x3a800000, v{MEAN}\nv_mov_b32 v{MB}, v{MEAN}")
        rnd_bf16(A, MB)
        for k in range(16):
            d = T + 4 + 2*(k & 1); a = T + 2*(k & 1)
            A(f"v_pk_add_f32 {vr(d,2)}, {vr(F+2*k,2)}, {vr(MEAN,2)} op_sel_hi:[1,0] neg_lo:[0,1] neg_hi:[0,1]")
            if k < 2: A(f"v_pk_mul_f32 {vr(a,2)}, {vr(d,2)}, {vr(d,2)}")
            else: A(f"v_pk_fma_f32 {vr(a,2)}, {vr(d,2)}, {vr(d,2)}, {vr(a,2)}")
        A(f"v_pk_add_f32 {vr(T,2)}, {vr(T,2)}, {vr(T+2,2)}\nv_add_f32 v{RINV}, v{T}, v{T+1}")
        red_row(A, RINV); red_swap(A, RINV, T, 16)
        A(f"v_mul_f32 v{RINV}, 0x3a800000, v{RINV}")
        rnd_bf16(A, RINV)
        A(f"v_add_f32 v{RINV}, 0x3727c5ac, v{RINV}")
        rnd_bf16(A, RINV)
        A(f"v_sqrt_f32 v{RINV}, v{RINV}")
        rnd_bf16(A, RINV)
        A(f"v_mov_b32 v97, v{RINV}\nv_rcp_f32 v{RINV}, v{RINV}\nv_mov_b32 v{RACC}, 0\nv_mov_b32 v{RACC+1}, 0")
        for k in range(16):
            A(f"v_pk_add_f32 {vr(F+2*k,2)}, {vr(F+2*k,2)}, {vr(MB,2)} op_sel_hi:[1,0] neg_lo:[0,1] neg_hi:[0,1]")
        for k in range(16): A(f"v_cvt_pk_bf16_f32 v{X+k}, v{F+2*k}, v{F+2*k+1}")
        for k in range(16): unpack(A, F+2*k, F+2*k+1, X+k)
        for k in range(16):
            A(f"v_pk_mul_f32 {vr(F+2*k,2)}, {vr(F+2*k,2)}, {vr(RINV,2)} op_sel_hi:[1,0]")
        for k in range(16): A(f"v_cvt_pk_bf16_f32 v{X+k}, v{F+2*k}, v{F+2*k+1}")
        A(f"""
        v_lshrrev_b32 v2, 5, v1
        v_add_u32 v2, s85, v2
        v_sub_u32 v5, 0x7ff, v2
        v_lshrrev_b32 v2, 5, v1
        v_lshlrev_b32 v2, 3, v2
        s_lshl_b32 s58, s27, 4
        s_add_u32 s58, s58, {L_FL + FL_ST}
        v_add_u32 v2, s58, v2
        v_mov_b32 v96, v{MB}
        ds_write_b64 v2, v[96:97]
        s_waitcnt vmcnt(0)
        """)
        for k in range(16): A(f"v_dot2_f32_bf16 v{RACC+(k&1)}, v{X+k}, v{WR+k}, v{RACC+(k&1)}")
        A(f"s_nop 2\nv_add_f32 v{RACC}, v{RACC}, v{RACC+1}")
        red_row(A, RACC); red_swap(A, RACC, T, 16)
        rnd_bf16(A, RACC)
        A(f"""
        v_ashrrev_i32 v{T}, 31, v{RACC}
        v_or_b32 v{T}, 0x80000000, v{T}
        v_xor_b32 v{T}, v{T}, v{RACC}
        v_and_b32 v{T}, 0xffff0000, v{T}
        v_or_b32 v{T}, v{T}, v5
        """)
        red_swap(A, T, T+1, 32, "v_max_u32")
        A(f"""
        s_lshl_b32 s58, s27, 2
        s_add_u32 s58, s58, {L_FL + FL_KEY}
        v_mov_b32 v3, s58
        ds_write_b32 v3, v{T}
        """)

    def compute(self):
        A = self.A
        A.label("L_compute")
        self.sreg = 127
        self.stamp(0)
        srd(A, 32, 68, 0x400000)
        ACC = 128
        FA = lambda st, rf, ks: 16 + st*32 + (rf*2+ks)*4
        FB = lambda slot, ks: 80 + slot*8 + ks*4
        VA, VKV, VQ = 112, 114, 116
        N15, Q4 = 12, 13
        A(f"""
        s_lshr_b32 s36, s27, 1
        s_and_b32 s37, s27, 1
        v_and_b32 v{N15}, 15, v1
        v_lshrrev_b32 v{Q4}, 4, v1
        v_lshlrev_b32 v2, 2, v{N15}
        v_add_u32 v2, {L_FL}, v2
        v_mov_b32 v3, 0
        ds_write_b32 v2, v3
        ds_write_b32 v2, v3 offset:{FL_S3}
        s_lshl_b32 s58, s36, 13
        v_lshlrev_b32 v14, 7, v{N15}
        v_add_u32 v14, s58, v14
        v_bfe_u32 v15, v{N15}, 1, 3
        """)
        for ks in range(2):
            A(f"v_add_u32 v2, {4*ks}, v{Q4}\nv_xor_b32 v2, v2, v15\nv_lshl_add_u32 v{VA+ks}, v2, 4, v14")
        A(f"""
        v_bfe_u32 v2, v1, 2, 2
        v_lshlrev_b32 v2, 6, v2
        v_and_b32 v3, 3, v1
        v_lshl_add_u32 v2, v3, 3, v2
        v_and_b32 v3, 1, v{Q4}
        v_lshl_add_u32 v10, v3, 5, v2
        s_lshl_b32 s58, s37, 8
        v_add_u32 v4, s58, v10
        v_lshl_add_u32 v{VKV}, v{Q4}, 11, v4
        v_add_u32 v{VKV}, {L_KV}, v{VKV}
        v_xor_b32 v{VKV+1}, 32, v{VKV}
        v_lshl_add_u32 v{VQ}, v{Q4}, 10, v4
        v_add_u32 v{VQ}, {L_Q}, v{VQ}
        v_xor_b32 v{VQ+1}, 32, v{VQ}
        """)
        L = LgkmTracker(A)
        def areads(s_):
            st = s_ & 1
            return [(f"ds_read_b128 {vr(FA(st,rf,ks),4)}, v{VA+ks} offset:{(s_%3)*16384+rf*2048}", ("A",s_)) for rf in range(4) for ks in range(2)]
        def breads(s_, cf):
            r = []
            slot = (s_*6+cf) % 4
            part, half = cf//2, cf % 2
            for ks in range(2):
                for rd in range(2):
                    g = 8*ks + rd
                    if part < 2:
                        r.append((f"ds_read_b64_tr_b16 {vr(FB(slot,ks)+2*rd,2)}, v{VKV+half} offset:{(s_%3)*16384+g*1024+part*512}", ("B",s_,cf)))
                    else:
                        r.append((f"ds_read_b64_tr_b16 {vr(FB(slot,ks)+2*rd,2)}, v{VQ+half} offset:{(s_%3)*8192+g*512}", ("B",s_,cf)))
            return r
        VM = 11
        A(f"s_lshl_b32 s58, s27, 2\ns_add_u32 s58, s58, {L_FL + FL_C15}\nv_mov_b32 v123, s58\nv_mov_b32 v124, 1")
        self.stats()
        self.stamp(11)
        A(f"s_setprio {self.opt.get('prio', 2)}\ns_waitcnt lgkmcnt(0)\ns_barrier")
        self.stamp(1)
        PAT = [1,1,0,1,1,1,0,0]*2 + [1,1,1,1,1,1,0,0]
        for x in areads(0) + breads(0,0) + breads(0,1): L.issue(*x)
        for s_ in range(16):
            st = s_ & 1
            w1 = breads(s_,2) + breads(s_,3) + breads(s_,4) + breads(s_,5)
            w2 = (areads(s_+1) + breads(s_+1,0) + breads(s_+1,1)) if s_ < 15 else []
            for cf in range(6):
                slot = (s_*6+cf) % 4
                seq = [(rf,ks) for rf in range(4) for ks in ((0,1) if rf % 2 == 0 else (1,0))]
                for j,(rf,ks) in enumerate(seq):
                    g = (cf % 3)*8 + j
                    if j == 0:
                        if cf == 3:
                            L.drain()
                            if s_ < 15: A("s_barrier")
                            else: A("ds_write_b32 v123, v124")
                        else:
                            L.need({("A",s_), ("B",s_,cf)})
                    acc = ACC + (rf*6+cf)*4
                    c = "0" if (s_ == 0 and j % 2 == 0) else vr(acc,4)
                    a, b = (FA(st,rf,ks), FB(slot,ks)) if cf < 4 else (FB(slot,ks), FA(st,rf,ks))
                    A(f"v_mfma_f32_16x16x32_bf16 {vr(acc,4)}, {vr(a,4)}, {vr(b,4)}, {c}")
                    w = w1 if cf < 3 else w2
                    if w and PAT[g]: L.issue(*w.pop(0))
            assert not w1 and not w2
        self.stamp(2)
        if self.opt.get("stop"):
            self.stamp_out(); A("s_endpgm")
        A(f"v_mov_b32 v122, {L_FL}")
        self.spin_lds(122, FL_TAB, 4, 4)
        A(f"ds_read_b32 v8, v122 offset:{FL_NON}")
        self.stamp(20)
        TM, TI, TL, CS = 16, 32, 48, 248
        PK, VV, ON, KT = 68, 84, 100, 20
        U, E = 104, 108
        A(f"""
        s_lshl_b32 s58, s36, 8
        v_lshl_add_u32 v2, v{Q4}, 4, s58
        v_add_u32 v2, {L_M}, v2
        s_lshl_b32 s58, s37, 7
        v_lshl_add_u32 v3, v{N15}, 2, s58
        v_add_u32 v3, {L_CS}, v3
        s_mov_b32 s40, 0x358637bd
        s_mov_b32 s41, 0x358637bd
        """)
        for cf in range(4): A(f"ds_read_b32 v{CS+2*cf}, v3 offset:{(cf>>1)*256 + (cf&1)*64}")
        for rf in range(4):
            A(f"ds_read_b128 {vr(TM+4*rf,4)}, v2 offset:{64*rf}")
            A(f"ds_read_b128 {vr(TI+4*rf,4)}, v2 offset:{64*rf + L_RI - L_M}")
            A(f"ds_read_b128 {vr(TL+4*rf,4)}, v2 offset:{64*rf + L_RL - L_M}")
        for k in range(4): A(f"v_mov_b32 v{ON+k}, 0x3f803f80")
        A("s_waitcnt lgkmcnt(0)\nv_readfirstlane_b32 s3, v8")
        self.nonce_setup(VM)
        def bsel(reg, pos):
            base = reg & ~1; o = reg & 1
            return vr(base,2), o
        def phi4(a, m, m_b, c, c_b, rl, rl_b, ri, ri_b, dst):
            def opnd(r, b, h):
                if b:
                    p, o = bsel(r, 0); return p, o, o
                return vr(r+h,2), 0, 1
            for h in (0, 2):
                pm, ml, mh = opnd(m, m_b, h); pc, cl, ch = opnd(c, c_b, h)
                A(f"v_pk_fma_f32 {vr(U+h,2)}, {pm}, {pc}, {vr(a+h,2)} op_sel:[{ml},{cl},0] op_sel_hi:[{mh},{ch},1] neg_lo:[1,0,0] neg_hi:[1,0,0]")
            for h in (0, 2):
                p, lo, hi = opnd(rl, rl_b, h)
                A(f"v_pk_mul_f32 {vr(E+h,2)}, {vr(U+h,2)}, {p} op_sel:[0,{lo}] op_sel_hi:[1,{hi}]")
            for k in range(4): A(f"v_exp_f32 v{E+k}, v{E+k} clamp")
            for k in range(4): A(f"v_max_f32 v{U+k}, 0, v{U+k}")
            for h in (0, 2): A(f"v_pk_add_f32 {vr(E+h,2)}, {vr(E+h,2)}, s[40:41]")
            for h in (0, 2):
                p, lo, hi = opnd(ri, ri_b, h)
                A(f"v_pk_fma_f32 {vr(U+h,2)}, {vr(U+h,2)}, {p}, {vr(E+h,2)} op_sel:[0,{lo},0] op_sel_hi:[1,{hi},1]")
            A(f"v_cvt_pk_bf16_f32 v{dst}, v{U}, v{U+1}\nv_cvt_pk_bf16_f32 v{dst+1}, v{U+2}, v{U+3}")
        for rf in range(4):
            for cf in range(2):
                phi4(ACC+(rf*6+cf)*4, TM+4*rf, False, CS+2*cf, True, TL+4*rf, False, TI+4*rf, False, PK + (rf>>1)*8 + cf*4 + (rf&1)*2)
            for cf in range(2, 4):
                a = ACC+(rf*6+cf)*4
                pc, o = bsel(CS+2*cf, 0)
                for h in (0, 2):
                    A(f"v_pk_fma_f32 {vr(U+h,2)}, {vr(TM+4*rf+h,2)}, {pc}, {vr(a+h,2)} op_sel:[0,{o},0] op_sel_hi:[1,{o},1] neg_lo:[1,0,0] neg_hi:[1,0,0]")
                for h in (0, 2):
                    A(f"v_pk_mul_f32 {vr(U+h,2)}, {vr(U+h,2)}, {vr(TI+4*rf+h,2)}")
                d = VV + (rf>>1)*8 + (cf-2)*4 + (rf&1)*2
                A(f"v_cvt_pk_bf16_f32 v{d}, v{U}, v{U+1}\nv_cvt_pk_bf16_f32 v{d+1}, v{U+2}, v{U+3}")
        self.stamp(21)
        QM, QI, QL, QC = 44, 52, 60, 248
        A(f"""
        s_lshl_b32 s58, s36, 8
        v_lshl_add_u32 v2, v{N15}, 2, s58
        v_add_u32 v2, {L_M}, v2
        s_lshl_b32 s58, s37, 7
        v_lshl_add_u32 v3, v{Q4}, 4, s58
        v_add_u32 v3, {L_CS + 512}, v3
        """)
        for rf in range(4):
            A(f"ds_read_b32 v{QM+2*rf}, v2 offset:{64*rf}")
            A(f"ds_read_b32 v{QI+2*rf}, v2 offset:{64*rf + L_RI - L_M}")
            A(f"ds_read_b32 v{QL+2*rf}, v2 offset:{64*rf + L_RL - L_M}")
        for cf in range(2): A(f"ds_read_b128 {vr(QC+4*cf,4)}, v3 offset:{64*cf}")
        T = lambda eb, db: KT + (eb*2+db)*4
        for eb in range(3):
            for db in range(2):
                for ks2 in range(2):
                    b = vr(VV+ks2*8+eb*4,4) if eb < 2 else vr(ON,4)
                    c = "0" if ks2 == 0 else vr(T(eb,db),4)
                    A(f"v_mfma_f32_16x16x32_bf16 {vr(T(eb,db),4)}, {vr(PK+ks2*8+db*4,4)}, {b}, {c}")
        A(f"""
        s_lshl_b32 s42, s23, 1
        s_add_u32 s42, s42, s37
        s_lshl_b32 s43, s42, 5
        s_lshl_b32 s58, s22, 1
        s_add_u32 s58, s58, s36
        s_add_u32 s58, s58, s43
        s_lshl_b32 s59, s58, 7
        s_add_u32 s59, s59, {WS_ZP}
        s_mul_i32 s58, s58, {KVS}
        s_add_u32 s58, s58, {WS_KVP}
        v_lshlrev_b32 v120, 4, v1
        v_mov_b32 v121, {OOB}
        v_lshlrev_b32 v2, 4, v{Q4}
        v_cmp_eq_u32 vcc, 0, v{N15}
        v_cndmask_b32 v2, v121, v2, vcc
        """)
        for eb in range(2):
            for db in range(2):
                self.tag(T(eb,db), VM)
                A(f"buffer_store_dwordx4 {vr(T(eb,db),4)}, v120, s[16:19], s58 offen offset:{(eb*2+db)*1024} sc1")
        for db in range(2):
            self.tag(T(2,db), VM)
            A(f"buffer_store_dwordx4 {vr(T(2,db),4)}, v2, s[16:19], s59 offen offset:{64*db} sc1")
        self.stamp(3)
        XR, ST2 = 224, 240
        A(f"""
        v_lshrrev_b32 v2, 3, v1
        v_and_b32 v3, 7, v1
        v_lshlrev_b32 v118, 11, v2
        v_lshl_add_u32 v118, v3, 4, v118
        s_lshl_b32 s58, s27, 8
        s_add_u32 s58, s58, {L_ST2}
        v_lshl_add_u32 v119, v2, 3, s58
        s_mul_i32 s58, s27, 4608
        s_add_u32 s58, s58, {L_TR}
        v_add_u32 v2, s58, v120
        s_lshl_b32 s38, s28, 7
        s_lshl_b32 s58, s27, 5
        s_add_u32 s38, s38, s58
        s_lshl_b32 s39, s38, 11
        s_lshl_b32 s58, s29, 7
        s_add_u32 s39, s39, s58
        """)
        for t in range(4):
            A(f"ds_read_b128 {vr(XR+4*t,4)}, v2 offset:{1024*t}")
            A(f"ds_read_b64 {vr(ST2+2*t,2)}, v119 offset:{64*t}")
        PQ = 68
        A("s_waitcnt lgkmcnt(0)")
        for rf in range(4):
            for cf in range(2):
                phi4(ACC+(rf*6+4+cf)*4, QM+2*rf, True, QC+4*cf, False, QL+2*rf, True, QI+2*rf, True, PQ + rf*4 + cf*2)
        S = 128
        for t in range(4):
            m = ST2 + 2*t
            A(f"v_mov_b32 v{E}, v{m+1}")
            for k in range(4):
                x = XR + 4*t + k; d = S + 8*t + 2*k
                A(f"""
                v_lshlrev_b32 v{d}, 16, v{x}
                v_and_b32 v{d+1}, 0xffff0000, v{x}
                v_pk_add_f32 {vr(U,2)}, {vr(d,2)}, {vr(m,2)} op_sel_hi:[1,0] neg_lo:[0,1] neg_hi:[0,1]
                v_cvt_pk_bf16_f32 v{U+1}, v{U}, v{U+1}
                v_lshlrev_b32 v{U}, 16, v{U+1}
                v_and_b32 v{U+1}, 0xffff0000, v{U+1}
                v_pk_mul_f32 {vr(U,2)}, {vr(U,2)}, {vr(E,2)} op_sel_hi:[1,0]
                v_cvt_pk_bf16_f32 v{U+1}, v{U}, v{U+1}
                v_lshlrev_b32 v{U}, 16, v{U+1}
                v_and_b32 v{U+1}, 0xffff0000, v{U+1}
                v_pk_add_f32 {vr(d,2)}, {vr(d,2)}, {vr(U,2)}
                """)
        self.stamp(4)
        H1 = 16
        A(f"""
        v_lshrrev_b32 v2, 3, v1
        v_and_b32 v3, 7, v1
        v_lshlrev_b32 v3, 4, v3
        v_mul_u32_u24 v4, {KVS}, v2
        v_add_u32 v4, v4, v3
        v_lshl_add_u32 v5, v2, 7, v3
        s_lshr_b32 s58, s22, 3
        s_lshl_b32 s59, s23, 1
        s_add_u32 s45, s58, s59
        s_mul_i32 s44, s45, {32*KVS}
        s_lshl_b32 s58, s22, 9
        s_and_b32 s58, s58, 0xfff
        s_add_u32 s44, s44, s58
        s_lshl_b32 s58, s27, 7
        s_add_u32 s44, s44, s58
        s_add_u32 s44, s44, {WS_KVP}
        s_lshl_b32 s58, s23, 4
        s_add_u32 s58, s58, s22
        s_lshl_b32 s46, s58, 9
        s_lshl_b32 s59, s27, 7
        s_add_u32 s46, s46, s59
        s_add_u32 s46, s46, {WS_KVF}
        v_cmp_gt_u32 vcc, 8, v1
        v_cndmask_b32 v6, v121, v120, vcc
        """)
        def acc(b):
            def f(k):
                if k:
                    for h in (0, 2): A(f"v_pk_add_f32 {vr(b+h,2)}, {vr(b+h,2)}, {vr(b+4*k+h,2)}")
            return f
        def red81632(b):
            for k in range(4): A(f"v_add_f32_dpp v{b+k}, v{b+k}, v{b+k} row_ror:8 row_mask:0xf bank_mask:0xf")
            for wh in (16, 32):
                for k in range(4): A(f"v_mov_b32 v{b+4+k}, v{b+k}")
                for k in range(4): A(f"v_permlane{wh}_swap_b32 v{b+k}, v{b+4+k}")
                for h in (0, 2): A(f"v_pk_add_f32 {vr(b+h,2)}, {vr(b+h,2)}, {vr(b+4+h,2)}")
            self.tag(b, VM)
        if self.opt.get("d1"): A(f"s_sleep {self.opt['d1']}")
        self.gather([(f"s_add_u32 s58, s44, {8*KVS*t}", f"buffer_load_dwordx4 {vr(H1+4*t,4)}, v4, s[16:19], s58 offen sc1", H1+4*t) for t in range(4)], 48, acc(H1))
        if self.diag: A("v_writelane_b32 v127, s97, 12")
        red81632(H1)
        A(f"""
        buffer_store_dwordx4 {vr(H1,4)}, v6, s[16:19], s46 offen sc1
        s_and_b32 s58, s22, 7
        s_lshl_b32 s58, s58, 2
        s_add_u32 s58, s58, s27
        s_cmp_eq_u32 s58, 29
        s_cbranch_scc0 L_noz
        s_lshl_b32 s44, s45, 12
        s_add_u32 s44, s44, {WS_ZP}
        s_lshl_b32 s45, s45, 7
        s_add_u32 s45, s45, {WS_ZF}
        """)
        self.gather([(None, f"buffer_load_dwordx4 {vr(H1+16+4*t,4)}, v5, s[16:19], s44 offen offset:{1024*t} sc1", H1+16+4*t) for t in range(4)], 48, acc(H1+16))
        red81632(H1+16)
        A(f"""
        buffer_store_dwordx4 {vr(H1+16,4)}, v6, s[16:19], s45 offen sc1
        L_noz:
        """)
        self.stamp(5)
        ZF, KF, H2 = 48, 52, 84
        A(f"""
        s_xor_b32 s42, s42, 2
        s_lshl_b32 s46, s42, 12
        s_add_u32 s46, s46, {WS_KVF}
        s_lshl_b32 s45, s42, 7
        s_add_u32 s45, s45, {WS_ZF}
        v_lshlrev_b32 v2, 4, v{Q4}
        """)
        def cv(k):
            d = KF + 2*k if k < 4 else ZF + 2*(k-4)
            A(f"v_cvt_pk_bf16_f32 v{d}, v{H2+4*k}, v{H2+4*k+1}\nv_cvt_pk_bf16_f32 v{d+1}, v{H2+4*k+2}, v{H2+4*k+3}")
        if self.opt.get("d2"): A(f"s_sleep {self.opt['d2']}")
        self.gather([(None, f"buffer_load_dwordx4 {vr(H2+4*k,4)}, v120, s[16:19], s46 offen offset:{1024*k} sc1", H2+4*k) for k in range(4)] +
                    [(None, f"buffer_load_dwordx4 {vr(H2+16+4*k,4)}, v2, s[16:19], s45 offen offset:{64*k} sc1", H2+16+4*k) for k in range(2)], 60, cv)
        if self.diag: A("v_writelane_b32 v127, s97, 13")
        self.stamp(6)
        NT = lambda rf, eb: 160 + (rf*3+eb)*4
        for rf in range(4):
            for eb in (2, 0, 1):
                a = vr(ZF,4) if eb == 2 else vr(KF+4*eb,4)
                A(f"v_mfma_f32_16x16x32_bf16 {vr(NT(rf,eb),4)}, {a}, {vr(PQ+4*rf,4)}, 0")
        A(f"""
        s_lshl_b32 s58, s22, 3
        s_lshl_b32 s59, s36, 2
        s_add_u32 s58, s58, s59
        s_lshl_b32 s58, s58, 5
        s_add_u32 s58, s58, s42
        s_lshl_b32 s58, s58, 10
        """)
        for rf in range(4):
            d = NT(rf,2)
            A(f"v_add_f32 v{d}, s40, v{d}\nv_rcp_f32 v{d}, v{d}")
        for rf in range(4):
            d = NT(rf,2); o = 16 + 4*rf
            for eb in range(2):
                n = NT(rf,eb)
                for h in (0, 2):
                    A(f"v_pk_mul_f32 {vr(n+h,2)}, {vr(n+h,2)}, {vr(d,2)} op_sel_hi:[1,0]")
                A(f"v_cvt_pk_bf16_f32 v{o+2*eb}, v{n}, v{n+1}\nv_cvt_pk_bf16_f32 v{o+2*eb+1}, v{n+2}, v{n+3}")
            A(f"buffer_store_dwordx4 {vr(o,4)}, v120, s[16:19], s58 offen sc1")
            if rf < 3: A(f"s_add_u32 s58, s58, 32768")
        A(f"""
        s_lshl_b32 s58, s22, 4
        s_add_u32 s58, s58, s23
        s_lshl_b32 s58, s58, 7
        s_add_u32 s58, s58, {WS_OF}
        v_cmp_eq_u32 vcc, 0, v1
        v_cndmask_b32 v2, v121, v120, vcc
        v_mov_b32 v3, s60
        v_cndmask_b32 v4, 0, 1, vcc
        s_waitcnt vmcnt(0)
        ds_add_rtn_u32 v5, v122, v4 offset:{FL_OC}
        s_waitcnt lgkmcnt(0)
        v_readfirstlane_b32 s59, v5
        s_cmp_eq_u32 s59, 3
        s_cbranch_scc0 L_notlast
        buffer_store_dword v3, v2, s[16:19], s58 offen sc1
        L_notlast:
        """)
        self.stamp(7)
        G2 = 160
        B2 = lambda slot, ks: 80 + slot*8 + ks*4
        NW = self.opt.get("nw", 8)
        OW = ([16 + 8*k for k in range(8)] + [192 + 8*k for k in range(7)])[:NW]
        VW = 112
        A(f"""
        v_lshl_add_u32 v{VW}, v{Q4}, 9, v10
        v_xor_b32 v{VW+1}, 32, v{VW}
        v_add_u32 v{VW+2}, 0x10000, v{VW}
        v_add_u32 v{VW+3}, 0x10000, v{VW+1}
        v_add_u32 v116, 32768, v120
        s_lshl_b32 s47, s28, 3
        s_lshl_b32 s58, s27, 1
        s_add_u32 s47, s47, s58
        s_lshl_b32 s47, s47, 15
        s_and_b32 s48, s29, 7
        s_lshl_b32 s58, s28, 1
        s_add_u32 s48, s48, s58
        s_lshl_b32 s48, s48, 2
        v_lshlrev_b32 v117, 7, v{N15}
        s_lshl_b32 s50, s28, 11
        s_add_u32 s50, s50, {WS_OF}
        """)
        self.spin_lds(122, FL_WO, 4, 4)
        A(f"""
        s_cmp_eq_u32 s27, 0
        s_cbranch_scc0 L_s3w
        s_sleep {self.opt.get("d3", 8)}
        s_mov_b32 s57, 0
        L_s3:
        buffer_load_dword v4, v117, s[16:19], s50 offen sc1
        s_waitcnt vmcnt(0)
        v_cmp_ne_u32 vcc, s60, v4
        s_add_u32 s57, s57, 1
        s_nop 1
        s_cbranch_vccz L_s3d
        s_sleep {self.opt.get("sleep", 4)}
        s_cmp_lt_u32 s57, {SPIN_MAX}
        s_cbranch_scc1 L_s3
        L_s3d:
        v_mov_b32 v4, 1
        ds_write_b32 v122, v4 offset:{FL_S3}
        s_branch L_s3j
        L_s3w:
        """)
        self.spin_lds(122, FL_S3, 1, 4)
        A.label("L_s3j")
        self.stamp(8)
        V = VmTracker(A)
        def oload(u):
            t, rf = u >> 1, u & 1
            if u % 8 == 0:
                A(f"s_add_u32 s58, s48, {t}\ns_and_b32 s58, s58, 31\ns_lshl_b32 s58, s58, 10\ns_add_u32 s51, s58, s47")
            V.issue(f"buffer_load_dwordx4 {vr(OW[t % NW]+4*rf,4)}, v{116 if rf else 120}, s[16:19], s51 offen offset:{(t&3)*1024} sc1", ("o", t))
        PRE = self.opt.get("pre", 4)
        for u in range(2*PRE): oload(u)
        L = LgkmTracker(A)
        def wreads(pr, nf):
            slot = nf
            r = []
            for ks in range(2):
                t = 2*pr + ks
                for rd in range(2):
                    r.append((f"ds_read_b64_tr_b16 {vr(B2(slot,ks)+2*rd,2)}, v{VW + (nf&1) + 2*(t>>4)} offset:{(t&15)*4096 + rd*2048 + (nf>>1)*256}", ("W",pr,nf)))
            return r
        for nf in range(3):
            for x in wreads(0, nf): L.issue(*x)
        nxt = 2*PRE
        for pr in range(16):
            for nf in range(4):
                g = pr*4 + nf + 3
                w = wreads(g//4, g % 4) if g < 64 else []
                if nf == 0 and not self.opt.get("g2nowait"): V.need({("o", 2*pr), ("o", 2*pr+1)})
                if nf == 0 and pr in (0, 4, 8, 12) and self.opt.get("g2st"): self.stamp(16+pr//4)
                L.need({("W",pr,nf)})
                for j,(rf,ks) in enumerate(((0,0),(0,1),(1,1),(1,0))):
                    acc = G2 + (rf*4+nf)*4
                    c = "0" if (pr == 0 and j % 2 == 0) else vr(acc,4)
                    A(f"v_mfma_f32_16x16x32_bf16 {vr(acc,4)}, {vr(B2(nf,ks),4)}, {vr(OW[(2*pr+ks) % NW]+4*rf,4)}, {c}")
                    if w: L.issue(*w.pop(0))
                    if j == self.opt.get("opos", 1):
                        for _ in range(2 if (nxt >> 1) < 2*pr + NW - 2 else 1):
                            if nxt < 64 and (nxt >> 1) - NW <= 2*pr - 1:
                                oload(nxt); nxt += 1
        assert nxt == 64
        self.stamp(9)
        A(f"""
        s_mul_i32 s58, s27, 4608
        s_add_u32 s58, s58, {L_TR}
        v_mul_u32_u24 v2, 144, v{N15}
        v_lshl_add_u32 v2, v{Q4}, 3, v2
        v_add_u32 v2, s58, v2
        v_lshrrev_b32 v3, 3, v1
        v_mul_u32_u24 v3, 144, v3
        v_and_b32 v4, 7, v1
        v_lshl_add_u32 v3, v4, 4, v3
        v_add_u32 v3, s58, v3
        ds_read_b32 v6, v122 offset:{FL_SEL}
        """)
        for rf in range(2):
            for nf in range(4):
                a = G2 + (rf*4+nf)*4; d = 16 + (rf*4+nf)*2
                A(f"v_cvt_pk_bf16_f32 v{d}, v{a}, v{a+1}\nv_cvt_pk_bf16_f32 v{d+1}, v{a+2}, v{a+3}")
                A(f"ds_write_b64 v2, {vr(d,2)} offset:{rf*16*144 + nf*32}")
        A("s_waitcnt lgkmcnt(0)")
        for t in range(4): A(f"ds_read_b128 {vr(32+4*t,4)}, v3 offset:{t*8*144}")
        A(f"""
        v_readfirstlane_b32 s52, v6
        s_and_b32 s52, s52, 0x7ff
        s_sub_u32 s52, 0x7ff, s52
        s_sub_u32 s52, s52, s38
        s_cmp_lt_u32 s52, {0 if self.opt.get("nomoe") else 32}
        s_cbranch_scc0 L_no_moe
        """)
        self.spin_lds(122, FL_YF, 1, 5)
        A(f"""
        v_lshlrev_b32 v4, 5, v4
        v_add_u32 v4, {L_YF}, v4
        ds_read_b128 v[48:51], v4
        ds_read_b128 v[52:55], v4 offset:16
        v_lshrrev_b32 v5, 3, v1
        s_waitcnt lgkmcnt(0)
        """)
        for t in range(4):
            A(f"v_add_u32 v7, {8*t}, v5\nv_cmp_eq_u32 vcc, s52, v7")
            for k in range(8):
                A(f"v_cndmask_b32 v56, 0, v{48+k}, vcc\nv_add_f32 v{S+8*t+k}, v{S+8*t+k}, v56")
        A("L_no_moe:\ns_waitcnt lgkmcnt(0)")
        for t in range(4):
            for k in range(4):
                a = 32 + 4*t + k; s_ = S + 8*t + 2*k
                A(f"""
                v_lshlrev_b32 v{U}, 16, v{a}
                v_and_b32 v{U+1}, 0xffff0000, v{a}
                v_pk_add_f32 {vr(U,2)}, {vr(U,2)}, {vr(s_,2)}
                v_cvt_pk_bf16_f32 v{a}, v{U}, v{U+1}
                """)
            A(f"buffer_store_dwordx4 {vr(32+4*t,4)}, v118, s[32:35], s39 offen")
            if t < 3: A(f"s_add_u32 s39, s39, {8*2048}")
        self.stamp(10)
        self.stamp_out()
        A("L_end:\ns_endpgm")

    def build(self):
        self.prologue()
        self.loader()
        self.compute()
        body = hazard.fix(self.A.lines)
        hdr = open(os.path.join(os.path.dirname(os.path.abspath(__file__)), "header.txt")).read()
        out = hdr + f"; @launch grid=(256,1,1) block=(512,1,1) lds={LDS_SIZE}\n"
        out += f""".amdgcn_target "amdgcn-amd-amdhsa--gfx950"
.text
.globl {NAME}_kernel
.p2align 8
.type {NAME}_kernel,@function
{NAME}_kernel:
"""
        out += "\n".join(body) + "\n"
        out += f""".section .rodata,"a"
.p2align 6
.amdhsa_kernel {NAME}_kernel
  .amdhsa_next_free_vgpr 256
  .amdhsa_next_free_sgpr 102
  .amdhsa_accum_offset 256
  .amdhsa_group_segment_fixed_size 0
  .amdhsa_kernarg_size 88
  .amdhsa_user_sgpr_count 2
  .amdhsa_user_sgpr_kernarg_segment_ptr 1
  .amdhsa_system_sgpr_workgroup_id_x 1
  .amdhsa_float_denorm_mode_32 3
.end_amdhsa_kernel
"""
        return out

if __name__ == "__main__":
    diag = "--diag" in sys.argv
    out = [a for a in sys.argv[1:] if not a.startswith("--")]
    path = out[0] if out else f"cdna_kernels/{NAME}.s"
    kw = {}
    for a in sys.argv[1:]:
        if a.startswith("--") and "=" in a:
            k_, v_ = a[2:].split("="); kw[k_] = eval(v_)
    open(path, "w").write(Gen(diag=diag, **kw).build())
    print("wrote", path)
```

```python
import sys, os
sys.path.insert(0, os.path.dirname(os.path.abspath(__file__)))
from asmlib import *
import hazard

NAME = "parallel_sum__linear_attn_block__moe_arch_mod__prompt"

WS_O, WS_KVP, WS_ZP, WS_KVF, WS_ZF = 0x000000, 0xB00000, 0x800000, 0x860000, 0x880000
KVS = 4096 + 128
WS_OF = 0x840000
WS_STAT, WS_KEY, WS_CSP, WS_GUP, WS_YP = 0x830000, 0x834000, 0x8A0000, 0xA80000, 0x900000
WS_DIAG = 0xA00000
WS_SIZE = 0x1000000
OOB = 0x40000000
L_A, L_KV, L_Q = 0, 49152, 98304
L_M, L_RI, L_RL = 131072, 131584, 132096
L_CS = 132608
L_FL = 133376
FL_WO, FL_GU, FL_Y, FL_YF, FL_OC, FL_SEL, FL_NON, FL_KEY, FL_S3, FL_TAB, FL_C15, FL_H, FL_ST = 0, 16, 32, 48, 52, 56, 60, 64, 80, 96, 112, 84, 144
L_HT = 133632
L_YT = 133888
L_YF = 134912
L_ST2 = 135168
L_TR = 136192
L_GUS = L_TR + 4*4608
LDS_SIZE = L_GUS + 8192
SPIN_MAX = 1 << 15
LOG2E = 0x3fb8aa3b

def order_tables():
    out = []
    for q in range(4):
        seq = [q]
        for g in range(4):
            others = [4*g + p for p in range(4) if p != q]
            oi = 0
            for sl in range(4):
                if sl == q and g < 3: seq.append(4*(g+1)+q)
                elif oi < 3: seq.append(others[oi]); oi += 1
        assert sorted(seq) == list(range(16))
        out.append(seq)
    return out
def pack4(seq):
    v = 0
    for i, c in enumerate(seq): v |= c << (4*i)
    return v

def srd(A, d, lo, size):
    A(f"s_mov_b32 s{d}, s{lo}\ns_mov_b32 s{d+1}, s{lo+1}\ns_mov_b32 s{d+2}, {hex(size)}\ns_mov_b32 s{d+3}, 0x20000")

def red_row(A, v, op="v_add_f32"):
    for r in (8, 4, 2, 1):
        A(f"{op}_dpp v{v}, v{v}, v{v} row_ror:{r} row_mask:0xf bank_mask:0xf")
def red_swap(A, v, t, which, op="v_add_f32"):
    A(f"v_mov_b32 v{t}, v{v}\nv_permlane{which}_swap_b32 v{v}, v{t}\n{op} v{v}, v{v}, v{t}")
def unpack(A, dlo, dhi, s):
    A(f"v_lshlrev_b32 v{dlo}, 16, v{s}\nv_and_b32 v{dhi}, 0xffff0000, v{s}")
def rnd_bf16(A, v):
    A(f"v_cvt_pk_bf16_f32 v{v}, v{v}, v{v}\nv_lshlrev_b32 v{v}, 16, v{v}")

class Gen:
    def __init__(self, diag=False, **kw):
        self.A = Asm()
        self.diag = diag
        self.nlab = 0
        self.opt = kw
        self.swap = kw.get("swap", 1)
    def lab(self, p):
        self.nlab += 1
        return f"L_{p}{self.nlab}"
    def stamp(self, slot):
        if not self.diag: return
        self.A(f"s_memrealtime s[98:99]\ns_waitcnt lgkmcnt(0)\nv_writelane_b32 v{self.sreg}, s98, {slot}")
        if slot < 16: self.A(f"s_memtime s[98:99]\ns_waitcnt lgkmcnt(0)\nv_writelane_b32 v{self.sreg}, s98, {48+slot}")
    def dbg_max(self, word, inv=False):
        if not self.opt.get("span"): return
        sk = self.lab("dm")
        self.A(f"""
        s_and_b32 s76, s2, 0x39
        s_add_u32 s76, s76, s27
        s_cmp_eq_u32 s76, 0
        s_cbranch_scc0 {sk}
        s_memrealtime s[98:99]
        v_lshlrev_b32 v2, 20, v1
        s_mov_b32 s76, s70
        s_mov_b32 s77, s71
        s_mov_b32 s78, 256
        s_mov_b32 s79, 0x20000
        s_waitcnt lgkmcnt(0)
        {"s_not_b32 s98, s98" if inv else ""}
        v_mov_b32 v3, s98
        buffer_atomic_umax v3, v2, s[76:79], 0 offen offset:{4*word}
        {sk}:
        """)
    def stamp_out(self):
        if not self.diag: return
        A = self.A
        A(f"""
        s_lshl_b32 s56, s2, 3
        s_xor_b32 s57, s26, {4 if self.swap else 0}
        s_add_u32 s56, s56, s57
        s_lshl_b32 s56, s56, 8
        s_add_u32 s56, s56, {WS_DIAG}
        v_and_b32 v2, 63, v0
        v_lshlrev_b32 v3, 2, v2
        buffer_store_dword v{self.sreg}, v3, s[16:19], s56 offen
        """)

    def spin_vm(self, issue, regs, tmp, cnt="s57"):
        A = self.A
        top, done = self.lab("sp"), self.lab("spd")
        A(f"s_mov_b32 {cnt}, 0")
        A.label(top)
        issue()
        A("s_waitcnt vmcnt(0)")
        r = list(regs)
        A(f"v_max_u32 v{tmp}, v{r[0]}, v{r[1]}" if len(r) > 1 else f"v_mov_b32 v{tmp}, v{r[0]}")
        k = 2
        while k < len(r):
            if k + 1 < len(r):
                A(f"v_max3_u32 v{tmp}, v{tmp}, v{r[k]}, v{r[k+1]}"); k += 2
            else:
                A(f"v_max_u32 v{tmp}, v{tmp}, v{r[k]}"); k += 1
        A(f"""
        v_cmp_eq_u32 vcc, -1, v{tmp}
        s_add_u32 {cnt}, {cnt}, 1
        s_nop 1
        s_cbranch_vccz {done}
        s_cmp_lt_u32 {cnt}, {SPIN_MAX}
        s_cbranch_scc1 {top}
        """)
        A.label(done)

    def nonce_setup(self, vmask):
        self.A(f"""
        s_mov_b32 s60, s3
        s_lshr_b32 s61, s60, 8
        s_lshr_b32 s62, s60, 16
        s_lshr_b32 s63, s60, 24
        s_mov_b32 s64, 0x0c0c0400
        s_mov_b32 s65, 0x04000c0c
        v_mov_b32 v{vmask}, 0xff
        """)
    def tag(self, base, vmask):
        for k in range(4):
            self.A(f"v_bfi_b32 v{base+k}, v{vmask}, s{60+k}, v{base+k}")
    def spin_tag(self, issue, chunks, tmp, cnt="s57", pre=False):
        A = self.A
        top, done = self.lab("sp"), self.lab("spd")
        chk = self.lab("spc")
        A(f"s_mov_b32 {cnt}, 0")
        if pre: A(f"s_branch {chk}")
        A.label(top)
        issue()
        A("s_waitcnt vmcnt(0)")
        if pre: A.label(chk)
        mx, mn, t0, t1, t2 = tmp, tmp+1, tmp+2, tmp+3, tmp+4
        def pk(c, d, t):
            A(f"v_perm_b32 v{d}, v{c+1}, v{c}, s64\nv_perm_b32 v{t}, v{c+3}, v{c+2}, s65\nv_or_b32 v{d}, v{d}, v{t}")
        ch = list(chunks)
        pk(ch[0], mx, t2); A(f"v_mov_b32 v{mn}, v{mx}")
        k = 1
        while k < len(ch):
            pk(ch[k], t0, t2)
            if k + 1 < len(ch):
                pk(ch[k+1], t1, t2)
                A(f"v_max3_u32 v{mx}, v{mx}, v{t0}, v{t1}\nv_min3_u32 v{mn}, v{mn}, v{t0}, v{t1}"); k += 2
            else:
                A(f"v_max_u32 v{mx}, v{mx}, v{t0}\nv_min_u32 v{mn}, v{mn}, v{t0}"); k += 1
        A(f"""
        v_cmp_ne_u32 vcc, s60, v{mx}
        v_cmp_ne_u32 s[66:67], s60, v{mn}
        s_add_u32 {cnt}, {cnt}, 1
        s_or_b64 vcc, vcc, s[66:67]
        s_cbranch_scc0 {done}
        s_sleep {self.opt.get("sleep", 4)}
        s_cmp_lt_u32 {cnt}, {SPIN_MAX}
        s_cbranch_scc1 {top}
        """)
        A.label(done)
        for c in ch:
            for k in range(4): A(f"v_and_b32 v{c+k}, 0xffffff00, v{c+k}")

    def gather(self, loads, tmp, after=None, younger=0):
        A = self.A
        n = len(loads)
        for pre, txt, c in loads:
            if pre: A(pre)
            A(txt)
        if self.diag: A("s_mov_b32 s97, 0")
        for k, (pre, txt, c) in enumerate(loads):
            ok, top = self.lab("gk"), self.lab("gt")
            chk = f"""
            v_perm_b32 v{tmp}, v{c+1}, v{c}, s64
            v_perm_b32 v{tmp+1}, v{c+3}, v{c+2}, s65
            v_or_b32 v{tmp}, v{tmp}, v{tmp+1}
            v_cmp_ne_u32 vcc, s60, v{tmp}
            """
            A(f"s_waitcnt vmcnt({n-1-k+younger})")
            A(chk)
            A(f"s_mov_b32 s57, 0\ns_nop 0\ns_cbranch_vccz {ok}\n{top}:\ns_sleep {self.opt.get('sleep', 4)}")
            if pre: A(pre)
            A(txt + "\ns_waitcnt vmcnt(0)")
            if self.diag: A("s_add_u32 s97, s97, 1")
            A(chk)
            re_ = self.lab("gr")
            A(f"s_add_u32 s57, s57, 1\ns_nop 0\ns_cbranch_vccz {re_}\ns_cmp_lt_u32 s57, {SPIN_MAX}\ns_cbranch_scc1 {top}\n{re_}:")
            for pre2, txt2, c2 in loads[k+1:]:
                if pre2: A(pre2)
                A(txt2)
            A.label(ok)
            for r in range(4): A(f"v_and_b32 v{c+r}, 0xffffff00, v{c+r}")
            if after: after(k)

    def spin_lds(self, addr_v, off, nflags, tmp, cnt="s57"):
        A = self.A
        top, done = self.lab("sl"), self.lab("sld")
        A(f"s_mov_b32 {cnt}, 0")
        A.label(top)
        if nflags == 4:
            A(f"""
            ds_read_b128 v[{tmp}:{tmp+3}], v{addr_v} offset:{off}
            s_waitcnt lgkmcnt(0)
            v_min_u32 v{tmp}, v{tmp}, v{tmp+1}
            v_min3_u32 v{tmp}, v{tmp}, v{tmp+2}, v{tmp+3}
            """)
        else:
            A(f"ds_read_b32 v{tmp}, v{addr_v} offset:{off}\ns_waitcnt lgkmcnt(0)")
        A(f"""
        v_cmp_eq_u32 vcc, 0, v{tmp}
        s_add_u32 {cnt}, {cnt}, 1
        s_nop 1
        s_cbranch_vccz {done}
        s_sleep 1
        s_cmp_lt_u32 {cnt}, {SPIN_MAX*8}
        s_cbranch_scc1 {top}
        """)
        A.label(done)

    def prologue(self):
        A = self.A
        A(f"""
        s_cmp_ge_u32 s2, 256
        s_cbranch_scc1 L_end
        s_load_dwordx4 s[4:7], s[0:1], 0
        s_load_dwordx2 s[56:57], s[0:1], 16
        s_load_dwordx8 s[60:67], s[0:1], 32
        s_load_dwordx4 s[68:71], s[0:1], 64
        s_load_dwordx2 s[72:73], s[0:1], 80
        v_lshrrev_b32 v2, 6, v0
        v_and_b32 v1, 63, v0
        s_and_b32 s20, s2, 7
        v_readfirstlane_b32 s26, v2
        s_lshr_b32 s21, s2, 3
        s_and_b32 s24, s21, 7
        s_lshr_b32 s25, s21, 3
        s_and_b32 s30, s20, 1
        s_lshl_b32 s22, s30, 3
        s_add_u32 s22, s22, s24
        s_lshr_b32 s31, s20, 1
        s_lshl_b32 s23, s31, 2
        s_add_u32 s23, s23, s25
        s_and_b32 s27, s26, 3
        s_lshl_b32 s28, s30, 3
        s_and_b32 s58, s31, 1
        s_lshl_b32 s58, s58, 2
        s_add_u32 s28, s28, s58
        s_and_b32 s58, s21, 3
        s_add_u32 s28, s28, s58
        s_lshr_b32 s29, s20, 2
        s_lshl_b32 s29, s29, 3
        s_lshr_b32 s58, s21, 2
        s_add_u32 s29, s29, s58
        s_waitcnt lgkmcnt(0)
        """)
        srd(A, 8, 4, 0x400000)
        srd(A, 12, 6, 0x600000)
        srd(A, 16, 72, WS_SIZE)
        A(("s_cmp_ge_u32" if self.swap else "s_cmp_lt_u32") + " s26, 4\ns_cbranch_scc1 L_loader")
        srd(A, 52, 60, 2048)
        A(f"""
        v_and_b32 v2, 31, v1
        v_lshlrev_b32 v2, 4, v2
        v_lshrrev_b32 v3, 5, v1
        v_lshl_add_u32 v4, v3, 11, v2
        s_lshl_b32 s85, s22, 7
        s_lshl_b32 s58, s23, 3
        s_add_u32 s85, s85, s58
        s_lshl_b32 s58, s27, 1
        s_add_u32 s85, s85, s58
        s_lshl_b32 s58, s85, 11
        """)
        for t in range(4): A(f"buffer_load_dwordx4 {vr(16+4*t,4)}, v4, s[8:11], s58 offen offset:{512*t}{' nt' if self.opt.get('ntsx') else ''}")
        for t in range(4): A(f"buffer_load_dwordx4 {vr(32+4*t,4)}, v2, s[52:55], 0 offen offset:{512*t}")
        if self.opt.get("bar0"): A("s_barrier")
        A("s_branch L_compute\nL_loader:")

    def loader(self):
        A0 = self.A
        A = V = self.A = Switch(A0)
        self.sreg = 99
        self.stamp(0)
        srd(A, 48, 70, 256)
        A(f"""
        s_lshl_b32 s58, s2, 2
        s_add_u32 s58, s58, s27
        s_cmp_eq_u32 s58, 0
        s_cbranch_scc0 L_notag
        s_memrealtime s[58:59]
        v_lshlrev_b32 v2, 20, v1
        s_waitcnt lgkmcnt(0)
        s_lshl_b32 s58, s58, 1
        s_or_b32 s58, s58, 1
        v_mov_b32 v3, s58
        buffer_store_dword v3, v2, s[48:51], 0 offen sc1
        L_notag:
        """)
        tabs = [pack4(o) for o in order_tables()]
        VAo, VKVo, VQo, VL16 = 10, 11, 12, 13
        A(f"""
        ; ---- DMA lane offsets ----
        v_lshrrev_b32 v2, 3, v1
        v_lshrrev_b32 v3, 4, v1
        s_and_b32 s58, s27, 1
        s_lshl_b32 s59, s58, 2
        v_add_u32 v3, s59, v3
        v_and_b32 v4, 7, v1
        v_xor_b32 v3, v3, v4
        v_lshlrev_b32 v2, 11, v2
        v_lshl_add_u32 v{VAo}, v3, 4, v2
        v_and_b32 v5, 3, v1
        v_lshlrev_b32 v5, 4, v5
        v_bfe_u32 v6, v1, 4, 1
        v_lshl_add_u32 v5, v6, 6, v5
        v_bfe_u32 v6, v1, 2, 2
        v_lshrrev_b32 v7, 5, v1
        v_mul_u32_u24 v8, 6144, v6
        v_add_u32 v8, v8, v5
        v_lshl_add_u32 v{VKVo}, v7, 11, v8
        v_mul_u32_u24 v7, {4*6144}, v7
        v_add_u32 v{VQo}, v7, v8
        s_lshr_b32 s59, s27, 1
        s_lshl_b32 s59, s59, 5
        v_xor_b32 v{VKVo}, s59, v{VKVo}
        s_lshl_b32 s59, s58, 5
        v_xor_b32 v{VQo}, s59, v{VQo}
        s_sub_u32 s74, s24, s25
        s_and_b32 s74, s74, 3
        s_mov_b32 s76, {tabs[0] & 0xffffffff}
        s_mov_b32 s77, {tabs[0] >> 32}
        """)
        for q in range(1, 4):
            A(f"""
            s_cmp_eq_u32 s74, {q}
            s_cselect_b32 s76, {tabs[q] & 0xffffffff}, s76
            s_cselect_b32 s77, {tabs[q] >> 32}, s77
            """)
        A(f"""
        s_lshl_b32 s75, s30, 1
        {"s_add_u32 s75, s75, s31" if self.opt.get("rot", 1) else ""}
        s_lshl_b32 s75, s75, 2
        s_lshl_b32 s58, s23, 7
        s_mul_i32 s78, s27, {4*6144}
        s_add_u32 s78, s78, s58
        s_add_u32 s78, s78, 2048
        s_mul_i32 s79, s27, {8*6144}
        s_xor_b32 s58, s58, 128
        s_add_u32 s79, s79, s58
        s_lshl_b32 s80, s27, 10
        s_lshl_b32 s81, s22, 7
        s_lshl_b32 s58, s27, 3
        s_add_u32 s81, s81, s58
        s_lshl_b32 s81, s81, 11
        """)
        def issue_stage(s, atoms=(), k0=0):
            slot = s % 3
            atoms = list(atoms)
            per = -(-len(atoms) // (10 - k0))
            cnt = [0]
            nt = "nt " if s < self.opt.get("ntst", 0) else ""
            def fill():
                cnt[0] += 1
                if cnt[0] <= k0: return
                for _ in range(per):
                    if atoms: replay(atoms.pop(0), A0, V.V)
            A(f"""
            s_and_b32 s58, s76, 15
            s_lshr_b64 s[76:77], s[76:77], 4
            s_add_u32 s58, s58, s75
            s_and_b32 s58, s58, 15
            s_lshl_b32 s82, s58, 7
            s_add_u32 s82, s82, s81
            s_mul_i32 s59, s58, {64*6144}
            s_add_u32 s83, s59, s78
            s_add_u32 s84, s59, s79
            """)
            for p in range(4):
                A(f"s_add_u32 m0, s80, {L_A + slot*16384 + p*4096}")
                V.issue(f"buffer_load_dwordx4 v{VAo}, s[8:11], s82 offen {nt}lds", ("st", s))
                fill()
                A(f"s_add_u32 s82, s82, {32*2048}\ns_add_u32 m0, s80, {L_KV + slot*16384 + p*4096}")
                V.issue(f"buffer_load_dwordx4 v{VKVo}, s[12:15], s83 offen {nt}lds", ("st", s))
                fill()
                A(f"s_add_u32 s83, s83, {16*6144}")
                if p < 2:
                    A(f"s_add_u32 m0, s80, {L_Q + slot*8192 + p*4096}")
                    V.issue(f"buffer_load_dwordx4 v{VQo}, s[12:15], s84 offen {nt}lds", ("st", s))
                    fill()
                    A(f"s_add_u32 s84, s84, {32*6144}")
        pr = self.opt.get("probe")
        if pr:
            nwg, kb, which = pr
            A(f"""
            s_cmp_ge_u32 s2, {nwg}
            s_cbranch_scc1 L_noprobe
            v_lshlrev_b32 v20, 4, v1
            s_mov_b32 m0, s80
            """)
            for wh in (which if isinstance(which, tuple) else (which,)):
                A(f"""
                s_load_dwordx2 s[96:97], s[0:1], {wh}
                s_waitcnt lgkmcnt(0)
                s_mov_b32 s92, s96
                s_mov_b32 s93, s97
                s_mov_b32 s94, {0x400000 if wh == 24 else 0x700000}
                s_mov_b32 s95, 0x20000
                s_mul_i32 s58, s2, {kb*1024}
                s_add_u32 s58, s58, s80
                """)
                for i in range(kb//4):
                    A(f"buffer_load_dwordx4 v20, s[92:95], s58 offen lds\ns_add_u32 s58, s58, 4096")
            A("s_waitcnt vmcnt(0)\nL_noprobe:")
        if self.opt.get("bar0"): A("s_barrier")
        issue_stage(0)
        issue_stage(1)
        A(f"s_setprio {self.opt.get('lprio', 0)}")
        srd(A, 32, 56, 0x200000)
        if self.opt.get("wopf"):
            A(f"v_lshlrev_b32 v2, 4, v1\ns_lshl_b32 s58, s2, 13\ns_lshl_b32 s59, s27, 11\ns_add_u32 s58, s58, s59")
            V.issue("buffer_load_dwordx4 v[160:163], v2, s[32:35], s58 offen", "pf")
            V.issue("buffer_load_dwordx4 v[164:167], v2, s[32:35], s58 offen offset:1024", "pf")
        srd(A, 36, 62, 0x700000)
        srd(A, 40, 64, 0x700000)
        srd(A, 44, 66, 0x700000)
        T = 80
        CF, CA, ONES, VC = 100, 124, 136, 140
        A(f"""
        v_lshlrev_b32 v{VL16}, 4, v1
        v_mov_b32 v{ONES}, 0x3f803f80
        v_mov_b32 v{ONES+1}, 0x3f803f80
        v_mov_b32 v{ONES+2}, 0x3f803f80
        v_mov_b32 v{ONES+3}, 0x3f803f80
        v_bfe_u32 v2, v1, 2, 2
        v_lshlrev_b32 v2, 6, v2
        v_and_b32 v3, 3, v1
        v_lshl_add_u32 v2, v3, 3, v2
        v_lshrrev_b32 v3, 4, v1
        v_and_b32 v4, 1, v3
        v_lshl_add_u32 v2, v4, 5, v2
        s_lshl_b32 s58, s27, 8
        s_add_u32 s58, s58, {L_KV}
        v_lshl_add_u32 v{VC}, v3, 11, v2
        v_add_u32 v{VC}, s58, v{VC}
        v_xor_b32 v{VC+1}, 32, v{VC}
        s_lshr_b32 s58, s27, 1
        s_lshl_b32 s58, s58, 8
        s_add_u32 s58, s58, {L_Q}
        s_and_b32 s59, s27, 1
        s_lshl_b32 s59, s59, 5
        v_lshl_add_u32 v{VC+2}, v3, 10, v2
        v_xor_b32 v{VC+2}, s59, v{VC+2}
        v_add_u32 v{VC+2}, s58, v{VC+2}
        s_add_u32 s86, s74, 1
        s_cmp_lt_u32 s24, 4
        s_cselect_b32 s86, 0, s86
        v_mov_b32 v15, {OOB}
        s_lshr_b32 s88, s2, 4
        s_and_b32 s89, s2, 15
        s_cmp_lt_u32 s2, 224
        s_cselect_b32 s87, 0, {OOB}
        """)
        VM = 96
        slow = []
        A("s_load_dword s3, s[70:71], 0")
        V.need({("st", 0)})
        A("s_barrier")
        self.stamp(1)

        def csum(s):
            skip = self.lab("cs")
            A(f"s_cmp_eq_u32 s86, {s}\ns_cbranch_scc0 {skip}")
            slot = s % 3
            for f in range(3):
                for ks in range(2):
                    for rd in range(2):
                        g = 8*ks + rd
                        off = slot*16384 + g*1024 if f < 2 else slot*8192 + g*512
                        A(f"ds_read_b64_tr_b16 {vr(CF+f*8+ks*4+2*rd,2)}, v{VC+f} offset:{off}")
            A("s_waitcnt lgkmcnt(0)")
            for f in range(3):
                A(f"v_mfma_f32_16x16x32_bf16 {vr(CA+4*f,4)}, {vr(ONES,4)}, {vr(CF+f*8,4)}, 0")
                A(f"v_mfma_f32_16x16x32_bf16 {vr(CA+4*f,4)}, {vr(ONES,4)}, {vr(CF+f*8+4,4)}, {vr(CA+4*f,4)}")
            A.label(skip)

        def nonce():
            A("s_waitcnt lgkmcnt(0)\ns_cmp_eq_u32 s3, 0\ns_cbranch_scc1 L_tagslow\nL_tagback:")
            self.nonce_setup(VM)
            A(f"v_mov_b32 v2, {L_FL + FL_NON}\nv_mov_b32 v3, s3\nds_write_b32 v2, v3")
            slow.append(lambda: A(f"""
            L_tagslow:
            s_mov_b32 s57, 0
            v_mov_b32 v2, 0
            L_tagspin:
            buffer_load_dword v3, v2, s[48:51], 0 offen sc1
            s_waitcnt vmcnt(0)
            v_readfirstlane_b32 s3, v3
            s_add_u32 s57, s57, 1
            s_cmp_lg_u32 s3, 0
            s_cbranch_scc1 L_tagback
            s_sleep 4
            s_cmp_lt_u32 s57, {SPIN_MAX}
            s_cbranch_scc1 L_tagspin
            s_branch L_tagback
            """))
        def pub_cs_key():
            A(f"""
            v_lshrrev_b32 v2, 4, v1
            v_cmp_eq_u32 vcc, 1, v2
            v_cndmask_b32 v{CA}, v{CA}, v{CA+4}, vcc
            v_cmp_eq_u32 vcc, 2, v2
            v_cndmask_b32 v{CA}, v{CA}, v{CA+8}, vcc
            s_lshl_b32 s58, s27, 7
            v_lshlrev_b32 v3, 2, v1
            v_add_u32 v3, s58, v3
            s_lshl_b32 s58, s27, 6
            s_add_u32 s58, s58, {512 - 128}
            v_lshlrev_b32 v4, 2, v1
            v_add_u32 v4, s58, v4
            v_cndmask_b32 v3, v3, v4, vcc
            v_cmp_eq_u32 vcc, 3, v2
            v_cndmask_b32 v3, v3, v15, vcc
            s_lshl_b32 s58, s23, 4
            s_add_u32 s58, s58, s22
            s_lshl_b32 s58, s58, 10
            s_add_u32 s58, s58, {WS_CSP}
            """)
            A(f"v_and_b32 v4, 3, v1\nv_lshlrev_b32 v4, 3, v4\nv_lshrrev_b32 v4, v4, s60\nv_bfi_b32 v{CA}, v{VM}, v4, v{CA}")
            V.issue(f"buffer_store_dword v{CA}, v3, s[16:19], s58 offen sc1", "cs")
        def flag_s1():
            A(f"""
            v_mov_b32 v3, {L_FL + FL_KEY}
            ds_read_b128 {vr(T,4)}, v3
            v_cmp_eq_u32 vcc, {256 if self.swap else 0}, v0
            v_mov_b32 v4, 0
            v_cndmask_b32 v5, v15, v4, vcc
            s_lshl_b32 s58, s2, 3
            s_add_u32 s58, s58, {WS_KEY}
            s_waitcnt lgkmcnt(0)
            v_max_u32 v{T}, v{T}, v{T+1}
            v_max3_u32 v{T}, v{T}, v{T+2}, v{T+3}
            v_mov_b32 v{T+1}, s60
            """)
            V.issue(f"buffer_store_dwordx2 {vr(T,2)}, v5, s[16:19], s58 offen sc1", "flag")
            A(f"""
            v_and_b32 v2, 7, v1
            v_lshlrev_b32 v2, 3, v2
            v_add_u32 v3, {L_FL + FL_ST}, v2
            ds_read_b64 {vr(T+4,2)}, v3
            v_subrev_u32 v3, {256 if self.swap else 0}, v0
            v_cmp_gt_u32 vcc, 8, v3
            v_cndmask_b32 v2, v15, v2, vcc
            s_and_b32 s59, s60, 0xffff
            s_lshl_b32 s58, s22, 4
            s_add_u32 s58, s58, s23
            s_lshl_b32 s58, s58, 6
            s_add_u32 s58, s58, {WS_STAT}
            s_waitcnt lgkmcnt(0)
            v_or_b32 v{T+4}, s59, v{T+4}
            v_or_b32 v{T+5}, s62, v{T+5}
            """)
            V.issue(f"buffer_store_dwordx2 {vr(T+4,2)}, v2, s[16:19], s58 offen sc1", "flag")
        S1R, KEYS = 144, 152
        def s1_round(issue):
            A("s_mov_b32 s58, s90")
            for t in range(4):
                issue(f"buffer_load_dwordx4 {vr(S1R+4*t,4)}, v7, s[16:19], s58 offen sc1", "s1")
                if t < 3: A(f"s_add_u32 s58, s58, s{(95, 85, 74)[t]}")
        def s1_addr():
            A(f"""
            v_and_b32 v2, 15, v1
            v_lshlrev_b32 v2, 4, v2
            v_lshrrev_b32 v3, 4, v1
            v_lshl_add_u32 v2, v3, 10, v2
            s_lshl_b32 s90, s23, 14
            s_lshl_b32 s59, s27, 8
            s_add_u32 s90, s90, s59
            s_add_u32 s90, s90, {WS_CSP}
            s_lshl_b32 s59, s22, 10
            s_add_u32 s59, s59, {WS_STAT}
            s_sub_u32 s95, s28, s22
            s_lshl_b32 s95, s95, 10
            s_lshl_b32 s85, s28, 10
            s_sub_u32 s85, {WS_KEY - WS_STAT}, s85
            s_cmp_eq_u32 s27, 3
            s_cselect_b32 s90, s59, s90
            s_movk_i32 s59, 4096
            s_cselect_b32 s95, s95, s59
            s_cselect_b32 s85, s85, s59
            s_cselect_b32 s74, 1024, s59
            s_cselect_b64 vcc, -1, 0
            v_cndmask_b32 v7, v2, v{VL16}, vcc
            """)
        def s1_check(w3):
            def chk():
                if not w3:
                    for t in range(4):
                        c = S1R + 4*t
                        A(f"v_perm_b32 v{T+t}, v{c+1}, v{c}, s64\nv_perm_b32 v4, v{c+3}, v{c+2}, s65\nv_or_b32 v{T+t}, v{T+t}, v4")
                    A(f"v_max3_u32 v2, v{T}, v{T+1}, v{T+2}\nv_min3_u32 v3, v{T}, v{T+1}, v{T+2}\nv_max_u32 v2, v2, v{T+3}\nv_min_u32 v3, v3, v{T+3}")
                else:
                    A("s_mov_b32 s58, 0x05040100")
                    for t in range(4):
                        A(f"v_perm_b32 v{T+t}, v{S1R+2*t+1}, v{S1R+2*t}, s58")
                    A(f"""
                    v_max3_u32 v2, v{KEYS+1}, v{KEYS+3}, v{KEYS+5}
                    v_min3_u32 v3, v{KEYS+1}, v{KEYS+3}, v{KEYS+5}
                    v_max3_u32 v2, v2, v{KEYS+7}, v{T}
                    v_min3_u32 v3, v3, v{KEYS+7}, v{T}
                    v_max3_u32 v2, v2, v{T+1}, v{T+2}
                    v_min3_u32 v3, v3, v{T+1}, v{T+2}
                    v_max_u32 v2, v2, v{T+3}
                    v_min_u32 v3, v3, v{T+3}
                    """)
                A("v_cmp_ne_u32 vcc, s60, v2\nv_cmp_ne_u32 s[66:67], s60, v3\ns_or_b64 vcc, vcc, s[66:67]")
            V.need({"s1"})
            chk()
            sl, back = f"L_s1slow{int(w3)}", f"L_s1back{int(w3)}"
            A(f"s_cbranch_scc1 {sl}\n{back}:")
            def slowpath():
                top = self.lab("s1t")
                A(f"{sl}:\ns_mov_b32 s57, 0\n{top}:\ns_sleep 8")
                s1_round(lambda t, tag: A(t))
                A("s_waitcnt vmcnt(0)")
                chk()
                A(f"s_cbranch_scc0 {back}\ns_add_u32 s57, s57, 1\ns_cmp_lt_u32 s57, {SPIN_MAX}\ns_cbranch_scc1 {top}\ns_branch {back}")
            slow.append(slowpath)
        XSV, XST = 144, 146
        def s1_tables(w3):
            if not w3:
                for k in range(16): A(f"v_and_b32 v{S1R+k}, 0xffffff00, v{S1R+k}")
                for h in (0, 2):
                    A(f"v_pk_add_f32 {vr(S1R+h,2)}, {vr(S1R+h,2)}, {vr(S1R+4+h,2)}\nv_pk_add_f32 {vr(S1R+8+h,2)}, {vr(S1R+8+h,2)}, {vr(S1R+12+h,2)}")
                for h in (0, 2):
                    A(f"v_pk_add_f32 {vr(S1R+h,2)}, {vr(S1R+h,2)}, {vr(S1R+8+h,2)}")
                for wh in (16, 32):
                    for k in range(4): A(f"v_mov_b32 v{S1R+4+k}, v{S1R+k}")
                    for k in range(4): A(f"v_permlane{wh}_swap_b32 v{S1R+k}, v{S1R+4+k}")
                    for h in (0, 2): A(f"v_pk_add_f32 {vr(S1R+h,2)}, {vr(S1R+h,2)}, {vr(S1R+4+h,2)}")
                A(f"""
                s_lshl_b32 s58, s27, 8
                s_add_u32 s58, s58, {L_CS}
                v_and_b32 v2, 15, v1
                v_lshlrev_b32 v2, 4, v2
                v_add_u32 v2, s58, v2
                ds_write_b128 v2, {vr(S1R,4)}
                """)
                return
            for k in range(8): A(f"v_and_b32 v{S1R+k}, 0xffff0000, v{S1R+k}")
            for k in (1, 3, 5, 7): A(f"v_rcp_f32 v{S1R+k}, v{S1R+k}")
            A(f"""
            v_add_u32 v2, {L_ST2}, v{VL16}
            v_mov_b32 v{T}, v{S1R}
            v_mov_b32 v{T+1}, v{S1R+2}
            ds_write_b128 v2, {vr(S1R+4,4)}
            v_mov_b32 v{T+2}, v{S1R+1}
            v_mov_b32 v{T+3}, v{S1R+3}
            v_mul_f32 v{T+4}, {hex(LOG2E)}, v{S1R+1}
            v_mul_f32 v{T+5}, {hex(LOG2E)}, v{S1R+3}
            v_lshlrev_b32 v2, 3, v1
            v_add_u32 v2, {L_M}, v2
            ds_write_b64 v2, {vr(T,2)}
            ds_write_b64 v2, {vr(T+2,2)} offset:{L_RI-L_M}
            ds_write_b64 v2, {vr(T+4,2)} offset:{L_RL-L_M}
            v_max_u32 v{KEYS}, v{KEYS}, v{KEYS+2}
            v_max3_u32 v{KEYS}, v{KEYS}, v{KEYS+4}, v{KEYS+6}
            """)
            red_row(A, KEYS, "v_max_u32"); red_swap(A, KEYS, KEYS+1, 16, "v_max_u32"); red_swap(A, KEYS, KEYS+1, 32, "v_max_u32")
            A(f"""
            v_mov_b32 v2, {L_FL + FL_SEL}
            ds_write_b32 v2, v{KEYS}
            """)
        def xs_loads():
            self.spin_lds(6, FL_TAB, 4, 48)
            A(f"""
            ds_read_b32 v2, v6 offset:{FL_SEL}
            s_waitcnt lgkmcnt(0)
            v_readfirstlane_b32 s91, v2
            s_and_b32 s92, s91, 0x7ff
            s_sub_u32 s92, 0x7ff, s92
            s_lshl_b32 s58, s92, 11
            s_lshl_b32 s59, s89, 7
            s_add_u32 s58, s58, s59
            s_lshl_b32 s59, s27, 5
            s_add_u32 s58, s58, s59
            v_and_b32 v2, 15, v1
            v_lshlrev_b32 v2, 1, v2
            s_lshl_b32 s90, s92, 3
            s_add_u32 s90, s90, {WS_STAT}
            v_mov_b32 v148, 0
            """)
            V.issue(f"buffer_load_ushort v{XSV}, v2, s[8:11], s58 offen", "xs")
            V.issue(f"buffer_load_dwordx2 {vr(XST,2)}, v148, s[16:19], s90 offen sc1", "xs")
        MSK = 232
        def xs_process():
            V.need({"xs"})
            top, ok = self.lab("xt"), self.lab("xk")
            A(f"""
            s_mov_b32 s57, 0
            s_mov_b32 s58, 0x05040100
            {top}:
            v_perm_b32 v2, v{XST+1}, v{XST}, s58
            v_cmp_ne_u32 vcc, s60, v2
            s_add_u32 s57, s57, 1
            s_nop 1
            s_cbranch_vccz {ok}
            s_cmp_ge_u32 s57, {SPIN_MAX}
            s_cbranch_scc1 {ok}
            buffer_load_dwordx2 {vr(XST,2)}, v148, s[16:19], s90 offen sc1
            s_waitcnt vmcnt(0)
            s_branch {top}
            {ok}:
            v_and_b32 v{XST}, 0xffff0000, v{XST}
            v_and_b32 v{XST+1}, 0xffff0000, v{XST+1}
            v_rcp_f32 v{XST+1}, v{XST+1}
            v_lshlrev_b32 v{XSV}, 16, v{XSV}
            v_sub_f32 v{XSV}, v{XSV}, v{XST}
            """)
            rnd_bf16(A, XSV)
            A(f"""
            v_mul_f32 v{XSV}, v{XSV}, v{XST+1}
            v_cvt_pk_bf16_f32 v{XSV}, v{XSV}, v{XSV}
            v_and_b32 v2, 1, v1
            v_mov_b32 v3, 0xffff
            v_mov_b32 v4, 0xffff0000
            v_cmp_eq_u32 vcc, 1, v2
            v_cndmask_b32 v3, v3, v4, vcc
            v_lshrrev_b32 v2, 1, v1
            v_xor_b32 v2, v2, v1
            v_and_b32 v2, 8, v2
            v_cmp_eq_u32 vcc, 0, v2
            v_cndmask_b32 v3, 0, v3, vcc
            v_bfe_u32 v2, v1, 1, 2
            """)
            for r in range(4):
                A(f"v_cmp_eq_u32 vcc, {r}, v2\nv_cndmask_b32 v{MSK+r}, 0, v3, vcc")
        VWO = 9
        def wo_setup():
            A(f"""
            v_lshrrev_b32 v2, 5, v1
            v_bfe_u32 v3, v1, 2, 2
            v_lshl_add_u32 v3, v2, 2, v3
            v_lshlrev_b32 v3, 11, v3
            v_bfe_u32 v4, v1, 4, 1
            v_lshl_add_u32 v3, v4, 6, v3
            v_and_b32 v4, 3, v1
            v_lshlrev_b32 v2, 1, v2
            v_xor_b32 v4, v4, v2
            v_lshl_add_u32 v{VWO}, v4, 4, v3
            s_lshl_b32 s93, s27, 14
            s_lshl_b32 s58, s29, 7
            s_add_u32 s93, s93, s58
            s_and_b32 s94, s29, 7
            s_lshl_b32 s58, s28, 1
            s_add_u32 s94, s94, s58
            s_lshl_b32 s94, s94, 2
            """)
        def wo_issue(ts):
            for t in ts:
                A(f"""
                s_add_u32 s82, s94, {t}
                s_and_b32 s82, s82, 31
                s_lshl_b32 s82, s82, 16
                s_add_u32 s82, s82, s93
                s_add_u32 m0, s80, {t*4096}
                """)
                V.issue(f"buffer_load_dwordx4 v{VWO}, s[32:35], s82 offen lds", "wo")
                if self.opt.get("wothr"): A(f"s_waitcnt vmcnt({self.opt['wothr']-1})")

        GW, DW = 168, 16
        def moe_addr():
            A(f"""
            v_lshrrev_b32 v2, 5, v1
            v_and_b32 v3, 31, v1
            v_lshlrev_b32 v3, 4, v3
            v_mul_u32_u24 v97, 7168, v2
            v_add_u32 v97, v97, v3
            v_lshl_add_u32 v98, v2, 11, v3
            v_lshrrev_b32 v2, 3, v1
            v_and_b32 v3, 7, v1
            v_lshlrev_b32 v3, 4, v3
            v_lshl_add_u32 v14, v2, 11, v3
            s_lshl_b32 s68, s89, 6
            s_lshl_b32 s59, s27, 4
            s_add_u32 s68, s68, s59
            s_mul_i32 s68, s68, 7168
            s_lshl_b32 s59, s88, 9
            s_add_u32 s68, s68, s59
            s_lshl_b32 s69, s2, 15
            s_lshl_b32 s59, s27, 9
            s_add_u32 s69, s69, s59
            s_cmp_eq_u32 s87, 0
            s_cselect_b32 s68, s68, 0
            s_cselect_b32 s69, s69, 0
            s_cselect_b64 vcc, -1, 0
            v_cndmask_b32 v97, 0, v97, vcc
            v_cndmask_b32 v98, 0, v98, vcc
            """)
        def moe_ld(k):
            if k < 16:
                t, m = k >> 1, k & 1
                txt = f"buffer_load_dwordx4 {vr(GW+8*t+4*m,4)}, v97, s[{36+4*m}:{39+4*m}], s68 offen nt"
                post = f"s_add_u32 s68, s68, {2*7168}" if m == 1 else None
                return txt, ("gu", t), post
            return f"buffer_load_dwordx4 {vr(DW+4*(k-16),4)}, v98, s[44:47], s69 offen nt", "dw", "s_add_u32 s69, s69, 4096"
        runs = self.opt.get("runs", [])
        ng, gstep = self.opt.get("ngroups", 1), self.opt.get("gstep", 1)
        g1l = self.opt.get("g1", [])
        early = [k for _, ks in runs for k in ks] + g1l
        def xtile():
            A(f"""
            s_lshl_b32 s58, s28, 7
            s_lshl_b32 s59, s27, 5
            s_add_u32 s58, s58, s59
            s_lshl_b32 s58, s58, 11
            s_lshl_b32 s59, s29, 7
            s_add_u32 s58, s58, s59
            s_mul_i32 s59, s27, 4608
            """)
            for t in range(4):
                A(f"s_add_u32 m0, s59, {L_TR + 1024*t}")
                V.issue(f"buffer_load_dwordx4 v14, s[8:11], s58 offen lds", "xt")
                if t < 3: A(f"s_add_u32 s58, s58, {8*2048}")
        P = self.opt.get("s1at", 13)
        extra = {s: [] for s in range(16)}
        for s in range(5): extra[s].append(lambda s=s: csum(s))
        extra[0] += [nonce, flag_s1]
        extra[1] += [moe_addr]
        extra[5] += [pub_cs_key]
        extra[7] += [s1_addr]
        extra[8] += [wo_setup]
        for s in self.opt.get("noextra", []):
            extra[s] = [f for f in extra[s] if f in (nonce, moe_addr, wo_setup, s1_addr)]
        if runs: A(f"s_lshr_b32 s71, s2, 3\ns_mul_i32 s58, s71, {(65536+ng-1)//ng}\ns_lshr_b32 s58, s58, 16\ns_mul_i32 s58, s58, {ng}\ns_sub_u32 s71, s71, s58")
        def iteration(s, atoms, k0=0):
            here = [(g, ks) for first, ks in runs for g in range(ng) if first + g*gstep == s]
            assert len(here) <= 1
            if here:
                g, ks = here[0]
                skip = self.lab("run")
                A(f"s_cmp_eq_u32 s71, {g}\ns_cbranch_scc0 {skip}")
                for k in ks:
                    txt, tag, post = moe_ld(k)
                    A(txt)
                    if post: A(post)
                A.label(skip)
            if s + 2 < 16: issue_stage(s + 2, atoms, k0)
            else:
                for a in atoms: replay(a, A0, V.V)
            if s == P: s1_round(V.issue)
            if s == 13:
                xtile()
                for k in g1l:
                    txt, tag, post = moe_ld(k)
                    V.issue(txt, "g1")
                    if post: A(post)
            tags = {("st", s+1)}
            if self.opt.get("iters"): self.stamp(16+s)
            if here:
                assert s >= 2 and s != P+1
                V.need(tags)
                w = A0.lines.pop()
                n = int(w.split("(")[1].split(")")[0])
                a, b = self.lab("wa"), self.lab("wb")
                A(f"s_cmp_eq_u32 s71, {g}\ns_cbranch_scc0 {a}\ns_waitcnt vmcnt({min(63, n+len(ks))})\ns_branch {b}\n{a}:\ns_waitcnt vmcnt({n})\n{b}:")
            else:
                V.need(tags)
            if s == 14: A("s_waitcnt lgkmcnt(0)")
            if self.opt.get("iters"): self.stamp(32+s)
            A("s_barrier")
        for s in range(min(P+1, 15) if P < 13 else 15): iteration(s, A.record(extra[s]))
        A("s_cmp_eq_u32 s27, 3\ns_cbranch_scc1 L_path3")
        q0 = list(V.V.q)
        for w3 in (False, True):
            if w3: A.label("L_path3")
            V.V.q = list(q0)
            if P == 13:
                s1_check(w3); s1_tables(w3)
            else:
                tab = A.record([lambda: s1_tables(w3)])
                per = -(-len(tab) // (14 - (P+1)))
                for s in range(P+1, 15):
                    if s == P+1: iteration(s, A.record(extra[s] + [lambda: s1_check(w3)]), self.opt.get("k0", 4))
                    else:
                        iteration(s, A.record(extra[s]) + tab[:per]); tab = tab[per:]
                assert not tab
            if not w3: A("s_branch L_pathj")
        A.label("L_pathj")
        V.V.q = ["xt"]*4
        A(f"s_lshl_b32 s58, s27, 2\ns_add_u32 s58, s58, {L_FL + FL_TAB}\nv_mov_b32 v2, s58\nv_mov_b32 v3, 1")
        A(f"s_waitcnt vmcnt({len(g1l)}) lgkmcnt(0)")
        V.V.q = ["g1"]*len(g1l)
        A("ds_write_b32 v2, v3")
        self.stamp(18)
        A(f"""
        """)
        wo_issue([30, 31, 4, 5, 6, 7, 16, 17, 18, 19, 26, 27, 8, 9, 10, 11, 20, 21, 22, 23, 28, 29])
        V = V.V
        A(f"v_mov_b32 v6, {L_FL}")
        self.spin_lds(6, FL_C15, 4, 48)
        self.stamp(2)
        if self.opt.get("stop"):
            self.stamp_out(); A("s_endpgm")
        wo_issue([0, 1, 2, 3, 12, 13, 14, 15, 24, 25])
        xs_loads()
        thr = self.opt.get("thr", 3)
        rest = [k for k in range(24) if k not in early]
        if self.opt.get("nomoe"): rest = []
        A(f"""
        v_mov_b32 v6, {L_FL}
        s_lshl_b32 s58, s27, 2
        v_add_u32 v7, s58, v6
        v_mov_b32 v48, 1
        """)
        wo_flagged = False
        for n, k in enumerate(rest):
            txt, tag, post = moe_ld(k)
            V.issue(txt, tag)
            if post: A(post)
            if thr and n + 1 >= thr:
                A(f"s_waitcnt vmcnt({thr-1})")
                V.q = V.q[len(V.q)-(thr-1):] if thr > 1 else []
                if not wo_flagged:
                    A(f"ds_write_b32 v7, v48 offset:{FL_WO}"); wo_flagged = True
                    self.stamp(3)
        xs_process()
        AP, DT = 236, 240
        A(f"""
        v_lshrrev_b32 v8, 5, v1
        v_lshlrev_b32 v8, 2, v8
        """)
        for t in range(8):
            A(f"ds_bpermute_b32 v{50+t}, v8, v{XSV} offset:{8*t}")
        if not wo_flagged:
            V.need({"wo"})
            A(f"ds_write_b32 v7, v48 offset:{FL_WO}")
            self.stamp(3)
        if self.opt.get("nomoe"): A("s_branch L_loader_end")
        A(f"s_cmp_lg_u32 s87, 0\ns_cbranch_scc1 L_moe_done\ns_waitcnt lgkmcnt(0)")
        for t in range(8):
            ap = AP if t & 1 else 64
            for r in range(4): A(f"v_and_b32 v{ap+r}, v{50+t}, v{MSK+r}")
            V.need({("gu", t)})
            for m in range(2):
                c = "0" if t == 0 else vr(DT+4*m, 4)
                A(f"v_mfma_f32_16x16x32_bf16 {vr(DT+4*m,4)}, {vr(ap,4)}, {vr(GW+8*t+4*m,4)}, {c}")
        A(f"""
        v_and_b32 v2, 15, v1
        v_lshlrev_b32 v61, 5, v2
        v_bfe_u32 v3, v1, 4, 1
        v_lshl_add_u32 v61, v3, 4, v61
        v_lshrrev_b32 v3, 5, v1
        v_lshl_add_u32 v61, v3, 9, v61
        s_lshl_b32 s58, s27, 11
        s_add_u32 s58, s58, {L_GUS}
        v_add_u32 v2, s58, v61
        ds_write_b128 v2, {vr(DT,4)}
        ds_write_b128 v2, {vr(DT+4,4)} offset:1024
        v_and_b32 v2, 31, v1
        v_lshlrev_b32 v2, 4, v2
        s_lshl_b32 s58, s27, 9
        v_add_u32 v2, s58, v2
        v_add_u32 v3, {L_GUS}, v2
        s_waitcnt lgkmcnt(0)
        ds_write_b32 v7, v48 offset:{FL_GU}
        """)
        self.spin_lds(6, FL_GU, 4, 64)
        for w in range(4): A(f"ds_read_b128 {vr(64+4*w,4)}, v3 offset:{2048*w}")
        A("s_waitcnt lgkmcnt(0)")
        for h in (0, 2):
            A(f"v_pk_add_f32 {vr(64+h,2)}, {vr(64+h,2)}, {vr(68+h,2)}\nv_pk_add_f32 {vr(72+h,2)}, {vr(72+h,2)}, {vr(76+h,2)}")
        for h in (0, 2):
            A(f"v_pk_add_f32 {vr(64+h,2)}, {vr(64+h,2)}, {vr(72+h,2)}")
        self.tag(64, VM)
        A(f"""
        v_cmp_gt_u32 vcc, 32, v1
        v_cndmask_b32 v2, v15, v2, vcc
        s_lshl_b32 s58, s2, 11
        s_add_u32 s58, s58, {WS_GUP}
        buffer_store_dwordx4 {vr(64,4)}, v2, s[16:19], s58 offen sc1
        v_lshrrev_b32 v2, 2, v1
        v_lshlrev_b32 v2, 11, v2
        v_and_b32 v3, 3, v1
        v_lshl_add_u32 v2, v3, 4, v2
        s_lshl_b32 s58, s88, 15
        s_lshl_b32 s59, s89, 6
        s_add_u32 s58, s58, s59
        s_add_u32 s58, s58, {WS_GUP}
        s_cmp_lg_u32 s27, 0
        s_cbranch_scc1 L_hwait
        s_sleep {self.opt.get("d4", 8)}
        """)
        self.stamp(4)
        self.gather([(None, f"buffer_load_dwordx4 {vr(64+4*k,4)}, v2, s[16:19], s58 offen offset:{1024*k} sc1", 64+4*k) for k in range(2)], 72)
        V.q = []
        self.stamp(5)
        for r in (8, 4):
            for k in range(8): A(f"v_add_f32_dpp v{64+k}, v{64+k}, v{64+k} row_ror:{r} row_mask:0xf bank_mask:0xf")
        for wh in (16, 32):
            for k in range(8): A(f"v_mov_b32 v{72+k}, v{64+k}")
            for k in range(8): A(f"v_permlane{wh}_swap_b32 v{64+k}, v{72+k}")
            for h in range(0, 8, 2): A(f"v_pk_add_f32 {vr(64+h,2)}, {vr(64+h,2)}, {vr(72+h,2)}")
        for k in range(8): A(f"v_cvt_pk_bf16_f32 v{64+k}, v{64+k}, v{64+k}")
        for k in range(8): A(f"v_lshlrev_b32 v{64+k}, 16, v{64+k}")
        for k in range(4): A(f"v_mul_f32 v{72+k}, {hex(LOG2E | 0x80000000)}, v{64+k}")
        for k in range(4): A(f"v_exp_f32 v{72+k}, v{72+k}")
        for k in range(4): A(f"v_add_f32 v{72+k}, 1.0, v{72+k}")
        for k in range(4): A(f"v_rcp_f32 v{72+k}, v{72+k}")
        for k in range(4): A(f"v_mul_f32 v{64+k}, v{64+k}, v{72+k}")
        for k in range(4): A(f"v_cvt_pk_bf16_f32 v{64+k}, v{64+k}, v{64+k}")
        for k in range(4): A(f"v_lshlrev_b32 v{64+k}, 16, v{64+k}")
        for k in range(4): A(f"v_mul_f32 v{64+k}, v{64+k}, v{68+k}")
        for k in range(4): A(f"v_cvt_pk_bf16_f32 v{64+k}, v{64+k}, v{64+k}")
        A(f"""
        v_and_b32 v2, 3, v1
        v_lshlrev_b32 v2, 4, v2
        v_add_u32 v2, {L_HT}, v2
        ds_write_b128 v2, {vr(64,4)}
        s_waitcnt lgkmcnt(0)
        ds_write_b32 v6, v48 offset:{FL_H}
        L_hwait:
        v_add_u32 v3, {L_HT}, v8
        """)
        self.spin_lds(6, FL_H, 1, 64)
        A("s_waitcnt vmcnt(0)")
        for t in range(8): A(f"ds_read_b32 v{50+t}, v3 offset:{8*t}")
        A("s_waitcnt lgkmcnt(0)")
        for t in range(8):
            ap = AP if t & 1 else 64
            for r in range(4): A(f"v_and_b32 v{ap+r}, v{50+t}, v{MSK+r}")
            A(f"v_mfma_f32_16x16x32_bf16 {vr(DT,4)}, {vr(ap,4)}, {vr(DW+4*t,4)}, {'0' if t == 0 else vr(DT,4)}")
        self.tag(DT, VM)
        A(f"""
        s_lshl_b32 s58, s2, 12
        s_add_u32 s58, s58, s80
        s_add_u32 s58, s58, {WS_YP}
        buffer_store_dwordx4 {vr(DT,4)}, v61, s[16:19], s58 offen sc1
        """)
        A.label("L_moe_done")
        self.stamp(6)
        A(f"""
        s_lshr_b32 s58, s92, 7
        s_cmp_lg_u32 s58, s28
        s_cbranch_scc1 L_loader_end
        v_lshrrev_b32 v2, 4, v1
        v_lshlrev_b32 v2, 12, v2
        v_and_b32 v3, 15, v1
        v_lshl_add_u32 v2, v3, 4, v2
        s_mul_i32 s95, s27, {56*4096}
        s_lshl_b32 s59, s29, 8
        s_add_u32 s95, s95, s59
        s_add_u32 s95, s95, {WS_YP}
        """)
        def yacc(k):
            if k:
                for h in (0, 2): A(f"v_pk_add_f32 {vr(GW+h,2)}, {vr(GW+h,2)}, {vr(GW+4*k+h,2)}")
        self.gather([(f"s_add_u32 s58, s95, {4*4096*t}", f"buffer_load_dwordx4 {vr(GW+4*t,4)}, v2, s[16:19], s58 offen sc1", GW+4*t) for t in range(14)], 60, yacc)
        for k in range(4):
            red_swap(A, GW+k, 60, 16); red_swap(A, GW+k, 60, 32)
        A(f"""
        s_lshl_b32 s58, s27, 8
        s_add_u32 s58, s58, {L_YT}
        v_and_b32 v3, 15, v1
        v_lshlrev_b32 v3, 4, v3
        v_add_u32 v2, s58, v3
        ds_write_b128 v2, {vr(GW,4)}
        v_mov_b32 v6, {L_FL}
        s_lshl_b32 s58, s27, 2
        v_add_u32 v7, s58, v6
        v_mov_b32 v48, 1
        s_waitcnt lgkmcnt(0)
        ds_write_b32 v7, v48 offset:{FL_Y}
        s_cmp_lg_u32 s27, 0
        s_cbranch_scc1 L_loader_end
        """)
        self.spin_lds(6, FL_Y, 4, 64)
        A(f"v_add_u32 v2, {L_YT}, v3")
        for w in range(4): A(f"ds_read_b128 {vr(64+4*w,4)}, v2 offset:{256*w}")
        A(f"""
        s_and_b32 s58, s91, 0xffff0000
        s_ashr_i32 s59, s58, 31
        s_not_b32 s59, s59
        s_or_b32 s59, s59, 0x80000000
        s_xor_b32 s58, s58, s59
        s_and_b32 s58, s58, 0xffff0000
        v_mov_b32 v80, s58
        v_mul_f32 v80, {hex(LOG2E | 0x80000000)}, v80
        v_exp_f32 v80, v80
        v_add_f32 v80, 1.0, v80
        v_rcp_f32 v80, v80
        """)
        rnd_bf16(A, 80)
        A("s_waitcnt lgkmcnt(0)")
        for h in (0, 2):
            A(f"""
            v_pk_add_f32 {vr(64+h,2)}, {vr(64+h,2)}, {vr(68+h,2)}
            v_pk_add_f32 {vr(72+h,2)}, {vr(72+h,2)}, {vr(76+h,2)}
            v_pk_add_f32 {vr(64+h,2)}, {vr(64+h,2)}, {vr(72+h,2)}
            """)
        for k in range(4):
            rnd_bf16(A, 64+k)
            A(f"v_mul_f32 v{64+k}, v{64+k}, v80")
            rnd_bf16(A, 64+k)
        A(f"""
        v_add_u32 v2, {L_YF}, v3
        ds_write_b128 v2, {vr(64,4)}
        s_waitcnt lgkmcnt(0)
        ds_write_b32 v6, v48 offset:{FL_YF}
        L_loader_end:
        """)
        self.stamp(7)
        self.stamp_out()
        A("s_endpgm")
        for f in slow: f()
        self.A = A0

    def stats(self):
        A = self.A
        X, WR, F, T = 16, 32, 48, 80
        MEAN, MB, RINV, RACC = 92, 94, 98, 90
        A("s_waitcnt vmcnt(4)")
        for k in range(16): unpack(A, F+2*k, F+2*k+1, X+k)
        A(f"v_pk_add_f32 {vr(T,2)}, {vr(F,2)}, {vr(F+2,2)}\nv_pk_add_f32 {vr(T+2,2)}, {vr(F+4,2)}, {vr(F+6,2)}")
        for k in range(4, 16):
            a = T + 2*(k & 1)
            A(f"v_pk_add_f32 {vr(a,2)}, {vr(a,2)}, {vr(F+2*k,2)}")
        A(f"v_pk_add_f32 {vr(T,2)}, {vr(T,2)}, {vr(T+2,2)}\nv_add_f32 v{MEAN}, v{T}, v{T+1}")
        red_row(A, MEAN); red_swap(A, MEAN, T, 16)
        A(f"v_mul_f32 v{MEAN}, 0x3a800000, v{MEAN}\nv_mov_b32 v{MB}, v{MEAN}")
        rnd_bf16(A, MB)
        for k in range(16):
            d = T + 4 + 2*(k & 1); a = T + 2*(k & 1)
            A(f"v_pk_add_f32 {vr(d,2)}, {vr(F+2*k,2)}, {vr(MEAN,2)} op_sel_hi:[1,0] neg_lo:[0,1] neg_hi:[0,1]")
            if k < 2: A(f"v_pk_mul_f32 {vr(a,2)}, {vr(d,2)}, {vr(d,2)}")
            else: A(f"v_pk_fma_f32 {vr(a,2)}, {vr(d,2)}, {vr(d,2)}, {vr(a,2)}")
        A(f"v_pk_add_f32 {vr(T,2)}, {vr(T,2)}, {vr(T+2,2)}\nv_add_f32 v{RINV}, v{T}, v{T+1}")
        red_row(A, RINV); red_swap(A, RINV, T, 16)
        A(f"v_mul_f32 v{RINV}, 0x3a800000, v{RINV}")
        rnd_bf16(A, RINV)
        A(f"v_add_f32 v{RINV}, 0x3727c5ac, v{RINV}")
        rnd_bf16(A, RINV)
        A(f"v_sqrt_f32 v{RINV}, v{RINV}")
        rnd_bf16(A, RINV)
        A(f"v_mov_b32 v97, v{RINV}\nv_rcp_f32 v{RINV}, v{RINV}\nv_mov_b32 v{RACC}, 0\nv_mov_b32 v{RACC+1}, 0")
        for k in range(16):
            A(f"v_pk_add_f32 {vr(F+2*k,2)}, {vr(F+2*k,2)}, {vr(MB,2)} op_sel_hi:[1,0] neg_lo:[0,1] neg_hi:[0,1]")
        for k in range(16): A(f"v_cvt_pk_bf16_f32 v{X+k}, v{F+2*k}, v{F+2*k+1}")
        for k in range(16): unpack(A, F+2*k, F+2*k+1, X+k)
        for k in range(16):
            A(f"v_pk_mul_f32 {vr(F+2*k,2)}, {vr(F+2*k,2)}, {vr(RINV,2)} op_sel_hi:[1,0]")
        for k in range(16): A(f"v_cvt_pk_bf16_f32 v{X+k}, v{F+2*k}, v{F+2*k+1}")
        A(f"""
        v_lshrrev_b32 v2, 5, v1
        v_add_u32 v2, s85, v2
        v_sub_u32 v5, 0x7ff, v2
        v_lshrrev_b32 v2, 5, v1
        v_lshlrev_b32 v2, 3, v2
        s_lshl_b32 s58, s27, 4
        s_add_u32 s58, s58, {L_FL + FL_ST}
        v_add_u32 v2, s58, v2
        v_mov_b32 v96, v{MB}
        ds_write_b64 v2, v[96:97]
        s_waitcnt vmcnt(0)
        """)
        for k in range(16): A(f"v_dot2_f32_bf16 v{RACC+(k&1)}, v{X+k}, v{WR+k}, v{RACC+(k&1)}")
        A(f"s_nop 2\nv_add_f32 v{RACC}, v{RACC}, v{RACC+1}")
        red_row(A, RACC); red_swap(A, RACC, T, 16)
        rnd_bf16(A, RACC)
        A(f"""
        v_ashrrev_i32 v{T}, 31, v{RACC}
        v_or_b32 v{T}, 0x80000000, v{T}
        v_xor_b32 v{T}, v{T}, v{RACC}
        v_and_b32 v{T}, 0xffff0000, v{T}
        v_or_b32 v{T}, v{T}, v5
        """)
        red_swap(A, T, T+1, 32, "v_max_u32")
        A(f"""
        s_lshl_b32 s58, s27, 2
        s_add_u32 s58, s58, {L_FL + FL_KEY}
        v_mov_b32 v3, s58
        ds_write_b32 v3, v{T}
        """)

    def compute(self):
        A = self.A
        A.label("L_compute")
        self.sreg = 127
        self.stamp(0)
        srd(A, 32, 68, 0x400000)
        self.dbg_max(1, True); self.dbg_max(5)
        A('s_waitcnt vmcnt(0)') if False else None
        ACC = 128
        FA = lambda st, rf, ks: 16 + st*32 + (rf*2+ks)*4
        FB = lambda slot, ks: 80 + slot*8 + ks*4
        VA, VKV, VQ = 112, 114, 116
        N15, Q4 = 12, 13
        A(f"""
        s_lshr_b32 s36, s27, 1
        s_and_b32 s37, s27, 1
        v_and_b32 v{N15}, 15, v1
        v_lshrrev_b32 v{Q4}, 4, v1
        v_lshlrev_b32 v2, 2, v{N15}
        v_add_u32 v2, {L_FL}, v2
        v_mov_b32 v3, 0
        ds_write_b32 v2, v3
        ds_write_b32 v2, v3 offset:{FL_S3}
        s_lshl_b32 s58, s36, 13
        v_lshlrev_b32 v14, 7, v{N15}
        v_add_u32 v14, s58, v14
        v_bfe_u32 v15, v{N15}, 1, 3
        """)
        for ks in range(2):
            A(f"v_add_u32 v2, {4*ks}, v{Q4}\nv_xor_b32 v2, v2, v15\nv_lshl_add_u32 v{VA+ks}, v2, 4, v14")
        A(f"""
        v_bfe_u32 v2, v1, 2, 2
        v_lshlrev_b32 v2, 6, v2
        v_and_b32 v3, 3, v1
        v_lshl_add_u32 v2, v3, 3, v2
        v_and_b32 v3, 1, v{Q4}
        v_lshl_add_u32 v10, v3, 5, v2
        s_lshl_b32 s58, s37, 8
        v_add_u32 v4, s58, v10
        v_lshl_add_u32 v{VKV}, v{Q4}, 11, v4
        v_add_u32 v{VKV}, {L_KV}, v{VKV}
        v_xor_b32 v{VKV+1}, 32, v{VKV}
        v_lshl_add_u32 v{VQ}, v{Q4}, 10, v4
        v_add_u32 v{VQ}, {L_Q}, v{VQ}
        v_xor_b32 v{VQ+1}, 32, v{VQ}
        """)
        L = LgkmTracker(A)
        def areads(s_):
            st = s_ & 1
            return [(f"ds_read_b128 {vr(FA(st,rf,ks),4)}, v{VA+ks} offset:{(s_%3)*16384+rf*2048}", ("A",s_)) for rf in range(4) for ks in range(2)]
        def breads(s_, cf):
            r = []
            slot = (s_*6+cf) % 4
            part, half = cf//2, cf % 2
            for ks in range(2):
                for rd in range(2):
                    g = 8*ks + rd
                    if part < 2:
                        r.append((f"ds_read_b64_tr_b16 {vr(FB(slot,ks)+2*rd,2)}, v{VKV+half} offset:{(s_%3)*16384+g*1024+part*512}", ("B",s_,cf)))
                    else:
                        r.append((f"ds_read_b64_tr_b16 {vr(FB(slot,ks)+2*rd,2)}, v{VQ+half} offset:{(s_%3)*8192+g*512}", ("B",s_,cf)))
            return r
        VM = 11
        A(f"s_lshl_b32 s58, s27, 2\ns_add_u32 s58, s58, {L_FL + FL_C15}\nv_mov_b32 v123, s58\nv_mov_b32 v124, 1")
        self.stats()
        self.stamp(11)
        A(f"s_setprio {self.opt.get('prio', 2)}\ns_waitcnt lgkmcnt(0)\ns_barrier")
        self.stamp(1)
        PAT = [1,1,0,1,1,1,0,0]*2 + [1,1,1,1,1,1,0,0]
        for x in areads(0) + breads(0,0) + breads(0,1): L.issue(*x)
        for s_ in range(16):
            st = s_ & 1
            w1 = breads(s_,2) + breads(s_,3) + breads(s_,4) + breads(s_,5)
            w2 = (areads(s_+1) + breads(s_+1,0) + breads(s_+1,1)) if s_ < 15 else []
            for cf in range(6):
                slot = (s_*6+cf) % 4
                seq = [(rf,ks) for rf in range(4) for ks in ((0,1) if rf % 2 == 0 else (1,0))]
                for j,(rf,ks) in enumerate(seq):
                    g = (cf % 3)*8 + j
                    if j == 0:
                        if cf == 3:
                            L.drain()
                            if s_ < 15: A("s_barrier")
                            else: A("ds_write_b32 v123, v124")
                        else:
                            L.need({("A",s_), ("B",s_,cf)})
                    acc = ACC + (rf*6+cf)*4
                    c = "0" if (s_ == 0 and j % 2 == 0) else vr(acc,4)
                    a, b = (FA(st,rf,ks), FB(slot,ks)) if cf < 4 else (FB(slot,ks), FA(st,rf,ks))
                    A(f"v_mfma_f32_16x16x32_bf16 {vr(acc,4)}, {vr(a,4)}, {vr(b,4)}, {c}")
                    w = w1 if cf < 3 else w2
                    if w and PAT[g]: L.issue(*w.pop(0))
            assert not w1 and not w2
        self.stamp(2)
        if self.opt.get("stop"):
            self.stamp_out(); A("s_endpgm")
        A(f"v_mov_b32 v122, {L_FL}")
        self.dbg_max(2)
        self.spin_lds(122, FL_TAB, 4, 4)
        A(f"ds_read_b32 v8, v122 offset:{FL_NON}")
        self.stamp(20)
        TM, TI, TL, CS = 16, 32, 48, 248
        PK, VV, ON, KT = 68, 84, 100, 20
        U, E = 104, 108
        A(f"""
        s_lshl_b32 s58, s36, 8
        v_lshl_add_u32 v2, v{Q4}, 4, s58
        v_add_u32 v2, {L_M}, v2
        s_lshl_b32 s58, s37, 7
        v_lshl_add_u32 v3, v{N15}, 2, s58
        v_add_u32 v3, {L_CS}, v3
        s_mov_b32 s40, 0x358637bd
        s_mov_b32 s41, 0x358637bd
        """)
        for cf in range(4): A(f"ds_read_b32 v{CS+2*cf}, v3 offset:{(cf>>1)*256 + (cf&1)*64}")
        for rf in range(4):
            A(f"ds_read_b128 {vr(TM+4*rf,4)}, v2 offset:{64*rf}")
            A(f"ds_read_b128 {vr(TI+4*rf,4)}, v2 offset:{64*rf + L_RI - L_M}")
            A(f"ds_read_b128 {vr(TL+4*rf,4)}, v2 offset:{64*rf + L_RL - L_M}")
        for k in range(4): A(f"v_mov_b32 v{ON+k}, 0x3f803f80")
        A("s_waitcnt lgkmcnt(0)\nv_readfirstlane_b32 s3, v8")
        self.nonce_setup(VM)
        def bsel(reg, pos):
            base = reg & ~1; o = reg & 1
            return vr(base,2), o
        def phi4(a, m, m_b, c, c_b, rl, rl_b, ri, ri_b, dst):
            def opnd(r, b, h):
                if b:
                    p, o = bsel(r, 0); return p, o, o
                return vr(r+h,2), 0, 1
            for h in (0, 2):
                pm, ml, mh = opnd(m, m_b, h); pc, cl, ch = opnd(c, c_b, h)
                A(f"v_pk_fma_f32 {vr(U+h,2)}, {pm}, {pc}, {vr(a+h,2)} op_sel:[{ml},{cl},0] op_sel_hi:[{mh},{ch},1] neg_lo:[1,0,0] neg_hi:[1,0,0]")
            for h in (0, 2):
                p, lo, hi = opnd(rl, rl_b, h)
                A(f"v_pk_mul_f32 {vr(E+h,2)}, {vr(U+h,2)}, {p} op_sel:[0,{lo}] op_sel_hi:[1,{hi}]")
            for k in range(4): A(f"v_exp_f32 v{E+k}, v{E+k} clamp")
            for k in range(4): A(f"v_max_f32 v{U+k}, 0, v{U+k}")
            for h in (0, 2): A(f"v_pk_add_f32 {vr(E+h,2)}, {vr(E+h,2)}, s[40:41]")
            for h in (0, 2):
                p, lo, hi = opnd(ri, ri_b, h)
                A(f"v_pk_fma_f32 {vr(U+h,2)}, {vr(U+h,2)}, {p}, {vr(E+h,2)} op_sel:[0,{lo},0] op_sel_hi:[1,{hi},1]")
            A(f"v_cvt_pk_bf16_f32 v{dst}, v{U}, v{U+1}\nv_cvt_pk_bf16_f32 v{dst+1}, v{U+2}, v{U+3}")
        for rf in range(4):
            for cf in range(2):
                phi4(ACC+(rf*6+cf)*4, TM+4*rf, False, CS+2*cf, True, TL+4*rf, False, TI+4*rf, False, PK + (rf>>1)*8 + cf*4 + (rf&1)*2)
            for cf in range(2, 4):
                a = ACC+(rf*6+cf)*4
                pc, o = bsel(CS+2*cf, 0)
                for h in (0, 2):
                    A(f"v_pk_fma_f32 {vr(U+h,2)}, {vr(TM+4*rf+h,2)}, {pc}, {vr(a+h,2)} op_sel:[0,{o},0] op_sel_hi:[1,{o},1] neg_lo:[1,0,0] neg_hi:[1,0,0]")
                for h in (0, 2):
                    A(f"v_pk_mul_f32 {vr(U+h,2)}, {vr(U+h,2)}, {vr(TI+4*rf+h,2)}")
                d = VV + (rf>>1)*8 + (cf-2)*4 + (rf&1)*2
                A(f"v_cvt_pk_bf16_f32 v{d}, v{U}, v{U+1}\nv_cvt_pk_bf16_f32 v{d+1}, v{U+2}, v{U+3}")
        self.stamp(21)
        QM, QI, QL, QC = 44, 52, 60, 248
        A(f"""
        s_lshl_b32 s58, s36, 8
        v_lshl_add_u32 v2, v{N15}, 2, s58
        v_add_u32 v2, {L_M}, v2
        s_lshl_b32 s58, s37, 7
        v_lshl_add_u32 v3, v{Q4}, 4, s58
        v_add_u32 v3, {L_CS + 512}, v3
        """)
        for rf in range(4):
            A(f"ds_read_b32 v{QM+2*rf}, v2 offset:{64*rf}")
            A(f"ds_read_b32 v{QI+2*rf}, v2 offset:{64*rf + L_RI - L_M}")
            A(f"ds_read_b32 v{QL+2*rf}, v2 offset:{64*rf + L_RL - L_M}")
        for cf in range(2): A(f"ds_read_b128 {vr(QC+4*cf,4)}, v3 offset:{64*cf}")
        T = lambda eb, db: KT + (eb*2+db)*4
        for eb in range(3):
            for db in range(2):
                for ks2 in range(2):
                    b = vr(VV+ks2*8+eb*4,4) if eb < 2 else vr(ON,4)
                    c = "0" if ks2 == 0 else vr(T(eb,db),4)
                    A(f"v_mfma_f32_16x16x32_bf16 {vr(T(eb,db),4)}, {vr(PK+ks2*8+db*4,4)}, {b}, {c}")
        A(f"""
        s_lshl_b32 s42, s23, 1
        s_add_u32 s42, s42, s37
        s_lshl_b32 s43, s42, 5
        s_lshl_b32 s58, s22, 1
        s_add_u32 s58, s58, s36
        s_add_u32 s58, s58, s43
        s_lshl_b32 s59, s58, 7
        s_add_u32 s59, s59, {WS_ZP}
        s_mul_i32 s58, s58, {KVS}
        s_add_u32 s58, s58, {WS_KVP}
        v_lshlrev_b32 v120, 4, v1
        v_mov_b32 v121, {OOB}
        v_lshlrev_b32 v2, 4, v{Q4}
        v_cmp_eq_u32 vcc, 0, v{N15}
        v_cndmask_b32 v2, v121, v2, vcc
        """)
        for eb in range(2):
            for db in range(2):
                self.tag(T(eb,db), VM)
                A(f"buffer_store_dwordx4 {vr(T(eb,db),4)}, v120, s[16:19], s58 offen offset:{(eb*2+db)*1024} sc1")
        for db in range(2):
            self.tag(T(2,db), VM)
            A(f"buffer_store_dwordx4 {vr(T(2,db),4)}, v2, s[16:19], s59 offen offset:{64*db} sc1")
        self.stamp(3)
        XR, ST2 = 224, 240
        A(f"""
        v_lshrrev_b32 v2, 3, v1
        v_and_b32 v3, 7, v1
        v_lshlrev_b32 v118, 11, v2
        v_lshl_add_u32 v118, v3, 4, v118
        s_lshl_b32 s58, s27, 8
        s_add_u32 s58, s58, {L_ST2}
        v_lshl_add_u32 v119, v2, 3, s58
        s_mul_i32 s58, s27, 4608
        s_add_u32 s58, s58, {L_TR}
        v_add_u32 v2, s58, v120
        s_lshl_b32 s38, s28, 7
        s_lshl_b32 s58, s27, 5
        s_add_u32 s38, s38, s58
        s_lshl_b32 s39, s38, 11
        s_lshl_b32 s58, s29, 7
        s_add_u32 s39, s39, s58
        """)
        for t in range(4):
            A(f"ds_read_b128 {vr(XR+4*t,4)}, v2 offset:{1024*t}")
            A(f"ds_read_b64 {vr(ST2+2*t,2)}, v119 offset:{64*t}")
        PQ = 68
        A("s_waitcnt lgkmcnt(0)")
        for rf in range(4):
            for cf in range(2):
                phi4(ACC+(rf*6+4+cf)*4, QM+2*rf, True, QC+4*cf, False, QL+2*rf, True, QI+2*rf, True, PQ + rf*4 + cf*2)
        S = 128
        for t in range(4):
            m = ST2 + 2*t
            A(f"v_mov_b32 v{E}, v{m+1}")
            for k in range(4):
                x = XR + 4*t + k; d = S + 8*t + 2*k
                A(f"""
                v_lshlrev_b32 v{d}, 16, v{x}
                v_and_b32 v{d+1}, 0xffff0000, v{x}
                v_pk_add_f32 {vr(U,2)}, {vr(d,2)}, {vr(m,2)} op_sel_hi:[1,0] neg_lo:[0,1] neg_hi:[0,1]
                v_cvt_pk_bf16_f32 v{U+1}, v{U}, v{U+1}
                v_lshlrev_b32 v{U}, 16, v{U+1}
                v_and_b32 v{U+1}, 0xffff0000, v{U+1}
                v_pk_mul_f32 {vr(U,2)}, {vr(U,2)}, {vr(E,2)} op_sel_hi:[1,0]
                v_cvt_pk_bf16_f32 v{U+1}, v{U}, v{U+1}
                v_lshlrev_b32 v{U}, 16, v{U+1}
                v_and_b32 v{U+1}, 0xffff0000, v{U+1}
                v_pk_add_f32 {vr(d,2)}, {vr(d,2)}, {vr(U,2)}
                """)
        self.stamp(4)
        H1 = 16
        A(f"""
        v_lshrrev_b32 v2, 3, v1
        v_and_b32 v3, 7, v1
        v_lshlrev_b32 v3, 4, v3
        v_mul_u32_u24 v4, {KVS}, v2
        v_add_u32 v4, v4, v3
        v_lshl_add_u32 v5, v2, 7, v3
        s_lshr_b32 s58, s22, 3
        s_lshl_b32 s59, s23, 1
        s_add_u32 s45, s58, s59
        s_mul_i32 s44, s45, {32*KVS}
        s_lshl_b32 s58, s22, 9
        s_and_b32 s58, s58, 0xfff
        s_add_u32 s44, s44, s58
        s_lshl_b32 s58, s27, 7
        s_add_u32 s44, s44, s58
        s_add_u32 s44, s44, {WS_KVP}
        s_lshl_b32 s58, s23, 4
        s_add_u32 s58, s58, s22
        s_lshl_b32 s46, s58, 9
        s_lshl_b32 s59, s27, 7
        s_add_u32 s46, s46, s59
        s_add_u32 s46, s46, {WS_KVF}
        v_cmp_gt_u32 vcc, 8, v1
        v_cndmask_b32 v6, v121, v120, vcc
        """)
        def acc(b):
            def f(k):
                if k:
                    for h in (0, 2): A(f"v_pk_add_f32 {vr(b+h,2)}, {vr(b+h,2)}, {vr(b+4*k+h,2)}")
            return f
        def red81632(b):
            for k in range(4): A(f"v_add_f32_dpp v{b+k}, v{b+k}, v{b+k} row_ror:8 row_mask:0xf bank_mask:0xf")
            for wh in (16, 32):
                for k in range(4): A(f"v_mov_b32 v{b+4+k}, v{b+k}")
                for k in range(4): A(f"v_permlane{wh}_swap_b32 v{b+k}, v{b+4+k}")
                for h in (0, 2): A(f"v_pk_add_f32 {vr(b+h,2)}, {vr(b+h,2)}, {vr(b+4+h,2)}")
            self.tag(b, VM)
        if self.opt.get("d1"): A(f"s_sleep {self.opt['d1']}")
        self.gather([(f"s_add_u32 s58, s44, {8*KVS*t}", f"buffer_load_dwordx4 {vr(H1+4*t,4)}, v4, s[16:19], s58 offen sc1", H1+4*t) for t in range(4)], 48, acc(H1))
        if self.diag: A("v_writelane_b32 v127, s97, 12")
        red81632(H1)
        A(f"""
        buffer_store_dwordx4 {vr(H1,4)}, v6, s[16:19], s46 offen sc1
        s_and_b32 s58, s22, 7
        s_lshl_b32 s58, s58, 2
        s_add_u32 s58, s58, s27
        s_cmp_eq_u32 s58, 29
        s_cbranch_scc0 L_noz
        s_lshl_b32 s44, s45, 12
        s_add_u32 s44, s44, {WS_ZP}
        s_lshl_b32 s45, s45, 7
        s_add_u32 s45, s45, {WS_ZF}
        """)
        self.gather([(None, f"buffer_load_dwordx4 {vr(H1+16+4*t,4)}, v5, s[16:19], s44 offen offset:{1024*t} sc1", H1+16+4*t) for t in range(4)], 48, acc(H1+16))
        red81632(H1+16)
        A(f"""
        buffer_store_dwordx4 {vr(H1+16,4)}, v6, s[16:19], s45 offen sc1
        L_noz:
        """)
        self.stamp(5)
        ZF, KF, H2 = 48, 52, 84
        A(f"""
        s_xor_b32 s42, s42, 2
        s_lshl_b32 s46, s42, 12
        s_add_u32 s46, s46, {WS_KVF}
        s_lshl_b32 s45, s42, 7
        s_add_u32 s45, s45, {WS_ZF}
        v_lshlrev_b32 v2, 4, v{Q4}
        """)
        def cv(k):
            d = KF + 2*k if k < 4 else ZF + 2*(k-4)
            A(f"v_cvt_pk_bf16_f32 v{d}, v{H2+4*k}, v{H2+4*k+1}\nv_cvt_pk_bf16_f32 v{d+1}, v{H2+4*k+2}, v{H2+4*k+3}")
        if self.opt.get("d2"): A(f"s_sleep {self.opt['d2']}")
        self.gather([(None, f"buffer_load_dwordx4 {vr(H2+4*k,4)}, v120, s[16:19], s46 offen offset:{1024*k} sc1", H2+4*k) for k in range(4)] +
                    [(None, f"buffer_load_dwordx4 {vr(H2+16+4*k,4)}, v2, s[16:19], s45 offen offset:{64*k} sc1", H2+16+4*k) for k in range(2)], 60, cv)
        if self.diag: A("v_writelane_b32 v127, s97, 13")
        self.stamp(6)
        NT = lambda rf, eb: 160 + (rf*3+eb)*4
        for rf in range(4):
            for eb in (2, 0, 1):
                a = vr(ZF,4) if eb == 2 else vr(KF+4*eb,4)
                A(f"v_mfma_f32_16x16x32_bf16 {vr(NT(rf,eb),4)}, {a}, {vr(PQ+4*rf,4)}, 0")
        A(f"""
        s_lshl_b32 s58, s22, 3
        s_lshl_b32 s59, s36, 2
        s_add_u32 s58, s58, s59
        s_lshl_b32 s58, s58, 5
        s_add_u32 s58, s58, s42
        s_lshl_b32 s58, s58, 10
        """)
        for rf in range(4):
            d = NT(rf,2)
            A(f"v_add_f32 v{d}, s40, v{d}\nv_rcp_f32 v{d}, v{d}")
        for rf in range(4):
            d = NT(rf,2); o = 16 + 4*rf
            for eb in range(2):
                n = NT(rf,eb)
                for h in (0, 2):
                    A(f"v_pk_mul_f32 {vr(n+h,2)}, {vr(n+h,2)}, {vr(d,2)} op_sel_hi:[1,0]")
                A(f"v_cvt_pk_bf16_f32 v{o+2*eb}, v{n}, v{n+1}\nv_cvt_pk_bf16_f32 v{o+2*eb+1}, v{n+2}, v{n+3}")
            A(f"buffer_store_dwordx4 {vr(o,4)}, v120, s[16:19], s58 offen sc1")
            if rf < 3: A(f"s_add_u32 s58, s58, 32768")
        A(f"""
        s_lshl_b32 s58, s22, 4
        s_add_u32 s58, s58, s23
        s_lshl_b32 s58, s58, 7
        s_add_u32 s58, s58, {WS_OF}
        v_cmp_eq_u32 vcc, 0, v1
        v_cndmask_b32 v2, v121, v120, vcc
        v_mov_b32 v3, s60
        v_cndmask_b32 v4, 0, 1, vcc
        s_waitcnt vmcnt(0)
        ds_add_rtn_u32 v5, v122, v4 offset:{FL_OC}
        s_waitcnt lgkmcnt(0)
        v_readfirstlane_b32 s59, v5
        s_cmp_eq_u32 s59, 3
        s_cbranch_scc0 L_notlast
        buffer_store_dword v3, v2, s[16:19], s58 offen sc1
        L_notlast:
        """)
        self.stamp(7)
        G2 = 160
        B2 = lambda slot, ks: 80 + slot*8 + ks*4
        NW = self.opt.get("nw", 8)
        OW = ([16 + 8*k for k in range(8)] + [192 + 8*k for k in range(7)])[:NW]
        VW = 112
        A(f"""
        v_lshl_add_u32 v{VW}, v{Q4}, 9, v10
        v_xor_b32 v{VW+1}, 32, v{VW}
        v_add_u32 v{VW+2}, 0x10000, v{VW}
        v_add_u32 v{VW+3}, 0x10000, v{VW+1}
        v_add_u32 v116, 32768, v120
        s_lshl_b32 s47, s28, 3
        s_lshl_b32 s58, s27, 1
        s_add_u32 s47, s47, s58
        s_lshl_b32 s47, s47, 15
        s_and_b32 s48, s29, 7
        s_lshl_b32 s58, s28, 1
        s_add_u32 s48, s48, s58
        s_lshl_b32 s48, s48, 2
        v_lshlrev_b32 v117, 7, v{N15}
        s_lshl_b32 s50, s28, 11
        s_add_u32 s50, s50, {WS_OF}
        """)
        self.spin_lds(122, FL_WO, 4, 4)
        A(f"""
        s_cmp_eq_u32 s27, 0
        s_cbranch_scc0 L_s3w
        s_sleep {self.opt.get("d3", 8)}
        s_mov_b32 s57, 0
        L_s3:
        buffer_load_dword v4, v117, s[16:19], s50 offen sc1
        s_waitcnt vmcnt(0)
        v_cmp_ne_u32 vcc, s60, v4
        s_add_u32 s57, s57, 1
        s_nop 1
        s_cbranch_vccz L_s3d
        s_sleep {self.opt.get("sleep", 4)}
        s_cmp_lt_u32 s57, {SPIN_MAX}
        s_cbranch_scc1 L_s3
        L_s3d:
        v_mov_b32 v4, 1
        ds_write_b32 v122, v4 offset:{FL_S3}
        s_branch L_s3j
        L_s3w:
        """)
        self.spin_lds(122, FL_S3, 1, 4)
        A.label("L_s3j")
        self.stamp(8)
        self.dbg_max(3)
        A("s_waitcnt vmcnt(0)") if self.opt.get("span") else None
        V = VmTracker(A)
        def oload(u):
            t, rf = u >> 1, u & 1
            if u % 8 == 0:
                A(f"s_add_u32 s58, s48, {t}\ns_and_b32 s58, s58, 31\ns_lshl_b32 s58, s58, 10\ns_add_u32 s51, s58, s47")
            V.issue(f"buffer_load_dwordx4 {vr(OW[t % NW]+4*rf,4)}, v{116 if rf else 120}, s[16:19], s51 offen offset:{(t&3)*1024} sc1", ("o", t))
        PRE = self.opt.get("pre", 4)
        for u in range(2*PRE): oload(u)
        L = LgkmTracker(A)
        def wreads(pr, nf):
            slot = nf
            r = []
            for ks in range(2):
                t = 2*pr + ks
                for rd in range(2):
                    r.append((f"ds_read_b64_tr_b16 {vr(B2(slot,ks)+2*rd,2)}, v{VW + (nf&1) + 2*(t>>4)} offset:{(t&15)*4096 + rd*2048 + (nf>>1)*256}", ("W",pr,nf)))
            return r
        for nf in range(3):
            for x in wreads(0, nf): L.issue(*x)
        nxt = 2*PRE
        for pr in range(16):
            for nf in range(4):
                g = pr*4 + nf + 3
                w = wreads(g//4, g % 4) if g < 64 else []
                if nf == 0 and not self.opt.get("g2nowait"): V.need({("o", 2*pr), ("o", 2*pr+1)})
                if nf == 0 and pr in (0, 4, 8, 12) and self.opt.get("g2st"): self.stamp(16+pr//4)
                L.need({("W",pr,nf)})
                for j,(rf,ks) in enumerate(((0,0),(0,1),(1,1),(1,0))):
                    acc = G2 + (rf*4+nf)*4
                    c = "0" if (pr == 0 and j % 2 == 0) else vr(acc,4)
                    A(f"v_mfma_f32_16x16x32_bf16 {vr(acc,4)}, {vr(B2(nf,ks),4)}, {vr(OW[(2*pr+ks) % NW]+4*rf,4)}, {c}")
                    if w: L.issue(*w.pop(0))
                    if j == self.opt.get("opos", 1):
                        for _ in range(2 if (nxt >> 1) < 2*pr + NW - 2 else 1):
                            if nxt < 64 and (nxt >> 1) - NW <= 2*pr - 1:
                                oload(nxt); nxt += 1
        assert nxt == 64
        self.stamp(9)
        A(f"""
        s_mul_i32 s58, s27, 4608
        s_add_u32 s58, s58, {L_TR}
        v_mul_u32_u24 v2, 144, v{N15}
        v_lshl_add_u32 v2, v{Q4}, 3, v2
        v_add_u32 v2, s58, v2
        v_lshrrev_b32 v3, 3, v1
        v_mul_u32_u24 v3, 144, v3
        v_and_b32 v4, 7, v1
        v_lshl_add_u32 v3, v4, 4, v3
        v_add_u32 v3, s58, v3
        ds_read_b32 v6, v122 offset:{FL_SEL}
        """)
        for rf in range(2):
            for nf in range(4):
                a = G2 + (rf*4+nf)*4; d = 16 + (rf*4+nf)*2
                A(f"v_cvt_pk_bf16_f32 v{d}, v{a}, v{a+1}\nv_cvt_pk_bf16_f32 v{d+1}, v{a+2}, v{a+3}")
                A(f"ds_write_b64 v2, {vr(d,2)} offset:{rf*16*144 + nf*32}")
        A("s_waitcnt lgkmcnt(0)")
        for t in range(4): A(f"ds_read_b128 {vr(32+4*t,4)}, v3 offset:{t*8*144}")
        A(f"""
        v_readfirstlane_b32 s52, v6
        s_and_b32 s52, s52, 0x7ff
        s_sub_u32 s52, 0x7ff, s52
        s_sub_u32 s52, s52, s38
        s_cmp_lt_u32 s52, {0 if self.opt.get("nomoe") else 32}
        s_cbranch_scc0 L_no_moe
        """)
        self.spin_lds(122, FL_YF, 1, 5)
        A(f"""
        v_lshlrev_b32 v4, 5, v4
        v_add_u32 v4, {L_YF}, v4
        ds_read_b128 v[48:51], v4
        ds_read_b128 v[52:55], v4 offset:16
        v_lshrrev_b32 v5, 3, v1
        s_waitcnt lgkmcnt(0)
        """)
        for t in range(4):
            A(f"v_add_u32 v7, {8*t}, v5\nv_cmp_eq_u32 vcc, s52, v7")
            for k in range(8):
                A(f"v_cndmask_b32 v56, 0, v{48+k}, vcc\nv_add_f32 v{S+8*t+k}, v{S+8*t+k}, v56")
        A("L_no_moe:\ns_waitcnt lgkmcnt(0)")
        for t in range(4):
            for k in range(4):
                a = 32 + 4*t + k; s_ = S + 8*t + 2*k
                A(f"""
                v_lshlrev_b32 v{U}, 16, v{a}
                v_and_b32 v{U+1}, 0xffff0000, v{a}
                v_pk_add_f32 {vr(U,2)}, {vr(U,2)}, {vr(s_,2)}
                v_cvt_pk_bf16_f32 v{a}, v{U}, v{U+1}
                """)
            A(f"buffer_store_dwordx4 {vr(32+4*t,4)}, v118, s[32:35], s39 offen")
            if t < 3: A(f"s_add_u32 s39, s39, {8*2048}")
        self.stamp(10)
        self.dbg_max(4)
        self.stamp_out()
        A("L_end:\ns_endpgm")

    def build(self):
        self.prologue()
        self.loader()
        self.compute()
        body = hazard.fix(self.A.lines)
        hdr = open(os.path.join(os.path.dirname(os.path.abspath(__file__)), "header.txt")).read()
        out = hdr + f"; @launch grid=(256,1,1) block=(512,1,1) lds={LDS_SIZE}\n"
        out += f""".amdgcn_target "amdgcn-amd-amdhsa--gfx950"
.text
.globl {NAME}_kernel
.p2align 8
.type {NAME}_kernel,@function
{NAME}_kernel:
"""
        out += "\n".join(body) + "\n"
        out += f""".section .rodata,"a"
.p2align 6
.amdhsa_kernel {NAME}_kernel
  .amdhsa_next_free_vgpr 256
  .amdhsa_next_free_sgpr 102
  .amdhsa_accum_offset 256
  .amdhsa_group_segment_fixed_size 0
  .amdhsa_kernarg_size 88
  .amdhsa_user_sgpr_count 2
  .amdhsa_user_sgpr_kernarg_segment_ptr 1
  .amdhsa_system_sgpr_workgroup_id_x 1
  .amdhsa_float_denorm_mode_32 3
.end_amdhsa_kernel
"""
        return out

if __name__ == "__main__":
    diag = "--diag" in sys.argv
    out = [a for a in sys.argv[1:] if not a.startswith("--")]
    path = out[0] if out else f"cdna_kernels/{NAME}.s"
    kw = {}
    for a in sys.argv[1:]:
        if a.startswith("--") and "=" in a:
            k_, v_ = a[2:].split("="); kw[k_] = eval(v_)
    open(path, "w").write(Gen(diag=diag, **kw).build())
    print("wrote", path)
```

```python
class Asm:
    def __init__(self):
        self.lines = []
    def __call__(self, s):
        for l in s.strip("\n").split("\n"):
            l = l.strip()
            if not l: continue
            if l.endswith(":") or l.startswith(".") or l.startswith(";"):
                self.lines.append(l)
            else:
                self.lines.append("    " + l)
    def label(self, n): self.lines.append(n + ":")
    def text(self): return "\n".join(self.lines) + "\n"

def vr(b, n=1):
    return f"v{b}" if n == 1 else f"v[{b}:{b+n-1}]"
def ar(b, n=1):
    return f"a{b}" if n == 1 else f"a[{b}:{b+n-1}]"
def sr(b, n=1):
    return f"s{b}" if n == 1 else f"s[{b}:{b+n-1}]"

class LgkmTracker:
    def __init__(self, A):
        self.A = A
        self.q = []
    def issue(self, text, tag):
        self.A(text)
        self.q.append(tag)
    def need(self, tags):
        last = -1
        for i, t in enumerate(self.q):
            if t in tags: last = i
        if last < 0: return
        n = len(self.q) - 1 - last
        n = min(n, 15)
        self.A(f"s_waitcnt lgkmcnt({n})")
        self.q = self.q[len(self.q)-n:] if n > 0 else []
    def drain(self):
        if self.q:
            self.A("s_waitcnt lgkmcnt(0)")
            self.q = []

class VmTracker:
    def __init__(self, A):
        self.A = A
        self.q = []
    def issue(self, text, tag=None):
        self.A(text)
        if "_store_" not in text: self.q.append(tag)
    def need(self, tags):
        last = -1
        for i, t in enumerate(self.q):
            if t in tags: last = i
        if last < 0: return
        n = len(self.q) - 1 - last
        assert n <= 63, n
        self.A(f"s_waitcnt vmcnt({n})")
        self.q = self.q[len(self.q)-n:] if n > 0 else []
    def drain(self):
        self.A("s_waitcnt vmcnt(0)")
        self.q = []

class Rec:
    def __init__(self):
        self.atoms = []
        self._blk = None
    def _add(self, item):
        if self._blk is not None: self._blk.append(item)
        else: self.atoms.append([item])
    def __call__(self, s):
        for l in s.strip("\n").split("\n"):
            l = l.strip()
            if l: self._add(("t", l))
    def label(self, n): self._add(("t", n + ":"))
    def issue(self, text, tag=None): self._add(("i", text, tag))
    def need(self, tags): self._add(("n", tags))
    def begin(self):
        assert self._blk is None; self._blk = []
    def end(self):
        self.atoms.append(self._blk); self._blk = None

def replay(atom, A, V):
    for it in atom:
        if it[0] == "t": A(it[1])
        elif it[0] == "i": V.issue(it[1], it[2])
        else: V.need(it[1])

import re as _re
_SCC_W = ("s_cmp", "s_add", "s_sub", "s_and", "s_or", "s_xor", "s_lshl", "s_lshr", "s_ashr", "s_not", "s_bfe", "s_min", "s_max", "s_bitcmp")
_SCC_R = ("s_cselect", "s_cbranch_scc", "s_addc", "s_subb")
def group_atoms(items):
    n = len(items)
    txt = [it[1] if it[0] in "ti" else "" for it in items]
    glue = [False]*n
    def span(a, b):
        for k in range(a+1, b+1): glue[k] = True
    labs = {}
    for i, t in enumerate(txt):
        if t.endswith(":"): labs.setdefault(t[:-1], []).append(i)
        m = _re.match(r"s_c?branch\S*\s+(\S+)", t)
        if m: labs.setdefault(m.group(1), []).append(i)
    for l, idx in labs.items(): span(min(idx), max(idx))
    lastw = None
    for i, t in enumerate(txt):
        op = t.split()[0] if t else ""
        if op.startswith(_SCC_R) and lastw is not None: span(lastw, i)
        if op.startswith(_SCC_W): lastw = i
        if " m0," in t and i + 1 < n: glue[i+1] = True
        if t.endswith(":") and i > 0: glue[i] = True
    openx = None
    for i, t in enumerate(txt):
        if t.startswith("s_mov_b64 exec") or t.startswith("s_mov_b32 exec"):
            if t.endswith("-1"):
                span(openx, i); openx = None
            elif openx is None: openx = i
    atoms = []
    for i, it in enumerate(items):
        if glue[i] and atoms: atoms[-1].append(it)
        else: atoms.append([it])
    return atoms

class Switch:
    def __init__(self, A):
        self.real = A; self.V = VmTracker(A); self.rec = None
    def __call__(self, s): (self.rec or self.real)(s)
    def label(self, n): (self.rec or self.real).label(n)
    def issue(self, text, tag=None): (self.rec or self.V).issue(text, tag)
    def need(self, tags): (self.rec or self.V).need(tags)
    def record(self, fns):
        self.rec = Rec()
        for f in fns: f()
        items = [it for a in self.rec.atoms for it in a]
        self.rec = None
        return group_atoms(items)
```

```python
import sys, os
sys.path.insert(0, os.path.dirname(os.path.abspath(__file__)))
from asmlib import *
import hazard

NAME = "parallel_sum__linear_attn_block__moe_arch_mod__prompt"
WS_O, WS_ZP, WS_STAT, WS_KEY, WS_OF = 0x000000, 0x800000, 0x830000, 0x834000, 0x840000
WS_KVF, WS_ZF, WS_CSP, WS_YP, WS_DIAG, WS_GUP, WS_KVP = 0x860000, 0x880000, 0x8A0000, 0x900000, 0xA00000, 0xA80000, 0xB00000
KVS = 4096 + 128
WS_SIZE = 0x1000000
OOB = 0x40000000
L_A, L_KV = 0, 65536
L_M, L_RI, L_RL, L_CS, L_FL = 131072, 131584, 132096, 132608, 133376
L_HT, L_YT, L_YF, L_ST2, L_KVX = 133632, 133888, 134912, 135168, 136192
L_GUS = L_KVX + 6144
L_QCS = L_GUS + 8192
LDS_SIZE = L_QCS + 8192
L_TR = L_KV
F_WOA, F_WOK, F_GU, F_Y, F_GUP, F_KVX, F_G8, F_QL, F_C7, F_C15, F_PUB, F_YF, F_H, F_SEL, F_NON, F_KEY, F_ST, F_AR = 0, 4, 8, 12, 16, 20, 24, 28, 52, 56, 60, 64, 68, 72, 76, 80, 96, 160
ALL4 = 0x01010101
SPIN_MAX = 1 << 15
LOG2E, LN2, EPSL = 0x3fb8aa3b, 0x3f317218, 0x35c1a2a0

def order_tables():
    out = []
    for q in range(4):
        seq = [q]
        for g in range(4):
            others = [4*g + p for p in range(4) if p != q]
            oi = 0
            for sl in range(4):
                if sl == q and g < 3: seq.append(4*(g+1)+q)
                elif oi < 3: seq.append(others[oi]); oi += 1
        assert sorted(seq) == list(range(16))
        out.append(seq)
    return out
def pack4(seq):
    v = 0
    for i, c in enumerate(seq): v |= c << (4*i)
    return v
def srd(A, d, lo, size):
    A(f"s_mov_b32 s{d}, s{lo}\ns_mov_b32 s{d+1}, s{lo+1}\ns_mov_b32 s{d+2}, {hex(size)}\ns_mov_b32 s{d+3}, 0x20000")
def red_row(A, v, op="v_add_f32"):
    for r in (8, 4, 2, 1):
        A(f"{op}_dpp v{v}, v{v}, v{v} row_ror:{r} row_mask:0xf bank_mask:0xf")
def red_swap(A, v, t, which, op="v_add_f32"):
    A(f"v_mov_b32 v{t}, v{v}\nv_permlane{which}_swap_b32 v{v}, v{t}\n{op} v{v}, v{v}, v{t}")
def unpack(A, dlo, dhi, s):
    A(f"v_lshlrev_b32 v{dlo}, 16, v{s}\nv_and_b32 v{dhi}, 0xffff0000, v{s}")
def rnd_bf16(A, v):
    A(f"v_cvt_pk_bf16_f32 v{v}, v{v}, v{v}\nv_lshlrev_b32 v{v}, 16, v{v}")
MF = "v_mfma_f32_16x16x32_bf16"
CH4 = ((0,0),(0,1),(1,1),(1,0))

class Gen:
    def __init__(self, diag=False, **kw):
        self.A = Asm()
        self.diag = diag
        self.nlab = 0
        self.opt = dict(gate=1, d1=20, d2=12, d3=8, d4=8, sleep=10, sleep3=4, kprio=0, hprio=3, kprio2=3, hprio2=0, hprio3=3, nw=8, pre=4, ost="sc1", wopf=1,
                        ahead=3, pfat=13, early=1, sxd=4, stat_beg=-1, stat_end=0, runs=[(2, 8), (6, 8)], ngroups=4, gstep=1, runpos=13, gupos=1, dwat=26, wok=0, d2g=0, d5=40, s1at=12)
        self.opt.update(kw)
        self.slow = []
    def lab(self, p):
        self.nlab += 1
        return f"L_{p}{self.nlab}"
    def stamp(self, slot):
        if not self.diag: return
        if self.sreg is None:
            self.A(f"s_memrealtime s[98:99]\ns_waitcnt lgkmcnt(0)\ns_mov_b32 s{self.spark[slot]}, s98"); return
        self.A(f"s_memrealtime s[100:101]\ns_waitcnt lgkmcnt(0)\nv_writelane_b32 v{self.sreg}, s100, {slot}")
    def stamp_out(self):
        if not self.diag: return
        self.A(f"""
        s_lshl_b32 s56, s2, 3
        s_xor_b32 s57, s26, 4
        s_add_u32 s56, s56, s57
        s_lshl_b32 s56, s56, 8
        s_add_u32 s56, s56, {WS_DIAG}
        v_mbcnt_lo_u32_b32 v2, -1, 0
        v_mbcnt_hi_u32_b32 v2, -1, v2
        v_lshlrev_b32 v3, 2, v2
        buffer_store_dword v{self.sreg}, v3, s[16:19], s56 offen
        """)
    def nonce_setup(self):
        self.A("s_lshr_b32 s61, s60, 8\ns_lshr_b32 s62, s60, 16\ns_lshr_b32 s63, s60, 24\ns_mov_b32 s64, 0x0c0c0400\ns_mov_b32 s65, 0x04000c0c")
    def tag(self, base, vmask):
        for k in range(4): self.A(f"v_bfi_b32 v{base+k}, v{vmask}, s{60+k}, v{base+k}")
    def setflag(self, vaddr, vone, off):
        self.A(f"s_mov_b64 exec, 1\nds_write_b8 v{vaddr}, v{vone} offset:{off}\ns_mov_b64 exec, -1")
    def spin(self, vbase, off, tmp, want=ALL4):
        A = self.A
        top, done = self.lab("sl"), self.lab("sld")
        A(f"""
        s_mov_b32 s57, 0
        {top}:
        ds_read_b32 v{tmp}, v{vbase} offset:{off}
        s_waitcnt lgkmcnt(0)
        v_cmp_ne_u32 vcc, {hex(want)}, v{tmp}
        s_add_u32 s57, s57, 1
        s_nop 0
        s_cbranch_vccz {done}
        s_sleep 1
        s_cmp_lt_u32 s57, {SPIN_MAX*8}
        s_cbranch_scc1 {top}
        {done}:
        """)
    def check(self, vbase, off, tmp):
        A = self.A
        sl, bk, sp = self.lab("cs"), self.lab("cb"), self.lab("cp")
        A(f"v_cmp_ne_u32 vcc, {hex(ALL4)}, v{tmp}\ns_nop 1\ns_cbranch_vccnz {sl}\n{bk}:")
        self.slow.append(f"""
        {sl}:
        s_mov_b32 s57, 0
        {sp}:
        ds_read_b32 v{tmp}, v{vbase} offset:{off}
        s_waitcnt lgkmcnt(0)
        v_cmp_ne_u32 vcc, {hex(ALL4)}, v{tmp}
        s_add_u32 s57, s57, 1
        s_nop 0
        s_cbranch_vccz {bk}
        s_cmp_lt_u32 s57, {SPIN_MAX*16}
        s_cbranch_scc1 {sp}
        s_branch {bk}
        """)
    def gather(self, loads, tmp, after=None, post=(), store_after=None, light=False):
        A = self.A
        n = len(loads)
        for pre, txt, c in loads:
            if pre: A(pre)
            A(txt)
        for pre, txt in post:
            if pre: A(pre)
            A(txt)
        if self.diag: A("s_mov_b32 s31, 0")
        for k, (pre, txt, c) in enumerate(loads):
            ok, top, re_ = self.lab("gk"), self.lab("gt"), self.lab("gr")
            chk = f"""
            v_perm_b32 v{tmp}, v{c+1}, v{c}, s64
            v_perm_b32 v{tmp+1}, v{c+3}, v{c+2}, s65
            v_or_b32 v{tmp}, v{tmp}, v{tmp+1}
            v_cmp_ne_u32 vcc, s60, v{tmp}
            """
            A(f"s_waitcnt vmcnt({n-1-k+len(post)+(1 if store_after is not None and k > store_after else 0)})")
            A(chk)
            A(f"s_mov_b32 s57, 0\ns_nop 0\ns_cbranch_vccz {ok}\n{top}:\ns_sleep {self.opt['sleep']}")
            for pre2, txt2, c2 in (loads[k:k+1] if light else loads[k:]):
                if pre2: A(pre2)
                A(txt2)
            A("s_waitcnt vmcnt(0)")
            if self.diag: A("s_add_u32 s31, s31, 1")
            A(chk)
            A(f"s_add_u32 s57, s57, 1\ns_nop 0\ns_cbranch_vccz {re_ if light else ok}\ns_cmp_lt_u32 s57, {SPIN_MAX}\ns_cbranch_scc1 {top}")
            if light:
                A.label(re_)
                for pre2, txt2, c2 in loads[k+1:]:
                    if pre2: A(pre2)
                    A(txt2)
            A.label(ok)
            for r in range(4): A(f"v_and_b32 v{c+r}, 0xffffff00, v{c+r}")
            if after: after(k)
    def phi4(self, a, m, m_b, c, c_b, rl, rl_b, dst, U, E, sc=40):
        A = self.A
        def o(r, b, h): return (vr(r,2), 0) if b else (vr(r+h,2), 1)
        for h in (0, 2):
            (pm, mh), (pc, ch) = o(m, m_b, h), o(c, c_b, h)
            A(f"v_pk_fma_f32 {vr(U+h,2)}, {pm}, {pc}, {vr(a+h,2)} op_sel_hi:[{mh},{ch},1] neg_lo:[1,0,0] neg_hi:[1,0,0]")
        for h in (0, 2):
            p, hi = o(rl, rl_b, h)
            A(f"v_pk_mul_f32 {vr(U+h,2)}, {vr(U+h,2)}, {p} op_sel_hi:[1,{hi}]")
        for k in range(4): A(f"v_exp_f32 v{E+k}, v{U+k} clamp")
        for k in range(4): A(f"v_max_f32 v{U+k}, s{sc+2}, v{U+k}")
        for h in (0, 2): A(f"v_pk_fma_f32 {vr(U+h,2)}, {vr(U+h,2)}, s[{sc}:{sc+1}], {vr(E+h,2)}")
        A(f"v_cvt_pk_bf16_f32 v{dst}, v{U}, v{U+1}\nv_cvt_pk_bf16_f32 v{dst+1}, v{U+2}, v{U+3}")

    def order_setup(self):
        A = self.A
        tabs = [pack4(o) for o in order_tables()]
        A(f"s_sub_u32 s74, s24, s25\ns_and_b32 s74, s74, 3\ns_mov_b32 s76, {tabs[0] & 0xffffffff}\ns_mov_b32 s77, {tabs[0] >> 32}")
        for q in range(1, 4):
            A(f"s_cmp_eq_u32 s74, {q}\ns_cselect_b32 s76, {tabs[q] & 0xffffffff}, s76\ns_cselect_b32 s77, {tabs[q] >> 32}, s77")
        A(f"""
        s_lshl_b32 s75, s30, 1
        {"s_add_u32 s75, s75, s31" if self.opt.get("rot", 1) else ""}
        {"s_add_u32 s75, s75, %d" % self.opt["radd"] if self.opt.get("radd") else ""}
        s_lshl_b32 s75, s75, 2
        s_lshl_b32 s58, s23, 7
        s_xor_b32 s58, s58, 128
        s_mul_i32 s79, s27, {8*6144}
        s_add_u32 s79, s79, s58
        s_lshl_b32 s80, s27, 10
        """)
    def qpair(self, p, vq):
        base = (L_KV + p*16384) if p < 4 else (L_A + (p-4)*16384)
        out = []
        for par in range(2):
            pre = f"s_and_b32 s84, s72, 15\ns_lshr_b64 s[72:73], s[72:73], 4\ns_add_u32 s84, s84, s75\ns_and_b32 s84, s84, 15\ns_mul_i32 s84, s84, {64*6144}\ns_add_u32 s84, s84, s79"
            for pc in range(2):
                out.append(((pre if pc == 0 else f"s_add_u32 s84, s84, {32*6144}") + f"\ns_add_u32 m0, s86, {base + par*2048 + pc*1024}",
                            f"buffer_load_dwordx4 v{vq}, s[12:15], s84 offen lds", ("q", p)))
        return out
    def moe_masks(self, VL, MSK, a, b, c):
        A = self.A
        A(f"""
        v_and_b32 v{a}, 1, v{VL}
        v_mov_b32 v{b}, 0xffff
        v_mov_b32 v{c}, 0xffff0000
        v_cmp_eq_u32 vcc, 1, v{a}
        v_cndmask_b32 v{b}, v{b}, v{c}, vcc
        v_lshrrev_b32 v{a}, 1, v{VL}
        v_xor_b32 v{a}, v{a}, v{VL}
        v_and_b32 v{a}, 8, v{a}
        v_cmp_eq_u32 vcc, 0, v{a}
        v_cndmask_b32 v{b}, 0, v{b}, vcc
        v_bfe_u32 v{a}, v{VL}, 1, 2
        """)
        for r in range(4): A(f"v_cmp_eq_u32 vcc, {r}, v{a}\nv_cndmask_b32 v{MSK+r}, 0, v{b}, vcc")
    def col_off(self, VL, d, a):
        self.A(f"""
        v_and_b32 v{a}, 15, v{VL}
        v_lshlrev_b32 v{d}, 5, v{a}
        v_bfe_u32 v{a}, v{VL}, 4, 1
        v_lshl_add_u32 v{d}, v{a}, 4, v{d}
        v_lshrrev_b32 v{a}, 5, v{VL}
        v_lshl_add_u32 v{d}, v{a}, 9, v{d}
        """)

    def prologue(self):
        A = self.A
        A(f"""
        s_cmp_ge_u32 s2, 256
        s_cbranch_scc1 L_end
        s_load_dwordx4 s[4:7], s[0:1], 0
        s_load_dwordx2 s[56:57], s[0:1], 16
        s_load_dwordx8 s[60:67], s[0:1], 32
        s_load_dwordx4 s[68:71], s[0:1], 64
        s_load_dwordx2 s[72:73], s[0:1], 80
        v_lshrrev_b32 v2, 6, v0
        v_and_b32 v1, 63, v0
        s_and_b32 s20, s2, 7
        v_readfirstlane_b32 s26, v2
        s_lshr_b32 s21, s2, 3
        s_and_b32 s24, s21, 7
        s_lshr_b32 s25, s21, 3
        s_and_b32 s30, s20, 1
        s_lshl_b32 s22, s30, 3
        s_add_u32 s22, s22, s24
        s_lshr_b32 s31, s20, 1
        s_lshl_b32 s23, s31, 2
        s_add_u32 s23, s23, s25
        s_and_b32 s27, s26, 3
        s_lshl_b32 s28, s30, 3
        s_and_b32 s58, s31, 1
        s_lshl_b32 s58, s58, 2
        s_add_u32 s28, s28, s58
        s_and_b32 s58, s21, 3
        s_add_u32 s28, s28, s58
        s_lshr_b32 s29, s20, 2
        s_lshl_b32 s29, s29, 3
        s_lshr_b32 s58, s21, 2
        s_add_u32 s29, s29, s58
        s_cmp_gt_u32 s23, 3
        s_subb_u32 s33, s23, 0
        s_cmp_gt_u32 s23, 11
        s_subb_u32 s33, s33, 0
        s_lshl_b32 s33, s33, 4
        s_add_u32 s33, s33, s22
        s_and_b32 s58, s23, 7
        s_cmp_eq_u32 s58, 3
        s_cselect_b32 s3, 255, s33
        s_waitcnt lgkmcnt(0)
        """)
        srd(A, 8, 4, 0x400000)
        srd(A, 12, 6, 0x600000)
        srd(A, 16, 72, WS_SIZE)
        if self.opt["stat_beg"] < 0:
            A("s_cmp_ge_u32 s26, 4\ns_cbranch_scc1 L_helper")
            self.stat_loads()
            A("s_branch L_kwave\nL_helper:")
        else:
            A("s_cmp_lt_u32 s26, 4\ns_cbranch_scc1 L_kwave")

    def helper(self):
        A0 = self.A
        A = V = self.A = Switch(A0)
        O = self.opt
        self.sreg, self.spark = None, {1: 96, 2: 94, 16: 97, 17: 20, 18: 21}
        VF, VQ, VAS, VQo, VT = 0, 2, 4, 6, 7
        BR, ACC, ST = 8, 32, 64
        VAo, VKVo, VL16, VOOB, VM = 62, 63, 61, 60, 59
        srd(A, 48, 70, 256)
        A(f"""
        s_or_b32 s58, s2, s27
        s_cmp_eq_u32 s58, 0
        s_cbranch_scc0 L_notag
        s_memrealtime s[58:59]
        v_lshlrev_b32 v2, 20, v1
        s_waitcnt lgkmcnt(0)
        s_lshl_b32 s58, s58, 1
        s_or_b32 s58, s58, 1
        v_mov_b32 v3, s58
        buffer_store_dword v3, v2, s[48:51], 0 offen sc1
        L_notag:
        v_lshrrev_b32 v10, 3, v1
        v_lshrrev_b32 v11, 4, v1
        s_and_b32 s58, s27, 1
        s_lshl_b32 s59, s58, 2
        v_add_u32 v12, s59, v11
        v_and_b32 v13, 7, v1
        v_xor_b32 v12, v12, v13
        v_lshlrev_b32 v10, 11, v10
        v_lshl_add_u32 v{VAo}, v12, 4, v10
        v_and_b32 v14, 3, v1
        v_lshlrev_b32 v14, 4, v14
        v_bfe_u32 v15, v1, 4, 1
        v_lshl_add_u32 v14, v15, 6, v14
        v_bfe_u32 v15, v1, 2, 2
        v_lshrrev_b32 v16, 5, v1
        v_mul_u32_u24 v17, 6144, v15
        v_add_u32 v17, v17, v14
        v_lshl_add_u32 v{VKVo}, v16, 11, v17
        v_mul_u32_u24 v16, {4*6144}, v16
        v_add_u32 v{VQo}, v16, v17
        s_lshr_b32 s59, s27, 1
        s_lshl_b32 s59, s59, 5
        v_xor_b32 v{VKVo}, s59, v{VKVo}
        s_lshl_b32 s59, s58, 5
        v_xor_b32 v{VQo}, s59, v{VQo}
        """)
        self.order_setup()
        A(f"""
        s_mov_b64 s[72:73], s[76:77]
        s_lshl_b32 s58, s23, 7
        s_mul_i32 s78, s27, {4*6144}
        s_add_u32 s78, s78, s58
        s_add_u32 s78, s78, 2048
        s_lshl_b32 s86, s27, 12
        s_lshl_b32 s81, s22, 7
        s_lshl_b32 s58, s27, 3
        s_add_u32 s81, s81, s58
        s_lshl_b32 s81, s81, 11
        """)
        def stage(s, atoms=(), k0=0):
            slot = s % 4
            atoms = list(atoms)
            per = -(-len(atoms) // (8 - k0))
            cnt = [0]
            def fill():
                cnt[0] += 1
                if cnt[0] <= k0: return
                for _ in range(per):
                    if atoms: replay(atoms.pop(0), A0, V.V)
            A(f"""
            s_and_b32 s82, s76, 15
            s_lshr_b64 s[76:77], s[76:77], 4
            s_add_u32 s82, s82, s75
            s_and_b32 s82, s82, 15
            s_mul_i32 s83, s82, {64*6144}
            s_lshl_b32 s82, s82, 7
            s_add_u32 s82, s82, s81
            s_add_u32 s83, s83, s78
            """)
            for p in range(4):
                A(f"s_add_u32 m0, s80, {L_A + slot*16384 + p*4096}")
                V.issue(f"buffer_load_dwordx4 v{VAo}, s[8:11], s82 offen lds", ("st", s)); fill()
                A(f"s_add_u32 s82, s82, {32*2048}\ns_add_u32 m0, s80, {L_KV + slot*16384 + p*4096}")
                V.issue(f"buffer_load_dwordx4 v{VKVo}, s[12:15], s83 offen lds", ("st", s)); fill()
                A(f"s_add_u32 s83, s83, {16*6144}")
        qpair = lambda p: self.qpair(p, VQo)
        stage(0)
        A(f"s_setprio {O['hprio']}")
        srd(A, 32, 56, 0x200000)
        srd(A, 44, 66, 0x700000)
        CF, CA, ONES, VC, T = 200, 224, 236, 240, 244
        A(f"""
        v_and_b32 v12, 15, v1
        v_lshrrev_b32 v13, 4, v1
        v_lshlrev_b32 v14, 7, v12
        v_add_u32 v14, s86, v14
        v_bfe_u32 v15, v12, 1, 3
        v_xor_b32 v10, v13, v15
        v_lshl_add_u32 v{VAS}, v10, 4, v14
        v_add_u32 v10, 4, v13
        v_xor_b32 v10, v10, v15
        v_lshl_add_u32 v{VAS+1}, v10, 4, v14
        v_bfe_u32 v10, v1, 2, 2
        v_lshlrev_b32 v10, 6, v10
        v_and_b32 v11, 3, v1
        v_lshl_add_u32 v10, v11, 3, v10
        v_and_b32 v11, 1, v13
        v_lshl_add_u32 v10, v11, 5, v10
        v_lshl_add_u32 v{VQ}, v13, 12, v10
        v_add_u32 v{VQ}, {L_KV}, v{VQ}
        v_xor_b32 v{VQ+1}, 32, v{VQ}
        s_lshl_b32 s58, s27, 8
        s_add_u32 s58, s58, {L_KV}
        v_lshl_add_u32 v{VC}, v13, 11, v10
        v_add_u32 v{VC}, s58, v{VC}
        v_xor_b32 v{VC+1}, 32, v{VC}
        s_lshr_b32 s58, s27, 1
        s_lshl_b32 s58, s58, 8
        s_add_u32 s58, s58, {L_QCS}
        s_and_b32 s59, s27, 1
        s_lshl_b32 s59, s59, 5
        v_lshl_add_u32 v{VC+2}, v13, 10, v10
        v_xor_b32 v{VC+2}, s59, v{VC+2}
        v_add_u32 v{VC+2}, s58, v{VC+2}
        v_mov_b32 v{ONES}, 0x3f803f80
        v_mov_b32 v{ONES+1}, 0x3f803f80
        v_mov_b32 v{ONES+2}, 0x3f803f80
        v_mov_b32 v{ONES+3}, 0x3f803f80
        v_mov_b32 v{VOOB}, {OOB}
        v_mov_b32 v{VM}, 0xff
        v_mov_b32 v{VF}, {L_FL}
        s_lshr_b32 s88, s3, 4
        s_and_b32 s89, s3, 15
        v_lshlrev_b32 v{VL16}, 4, v1
        s_add_u32 s85, s74, 1
        s_cmp_lt_u32 s24, 4
        s_cselect_b32 s85, 0, s85
        """)
        AH = O['ahead']
        for s in range(1, AH): stage(s)
        A("s_load_dword s60, s[70:71], 0")
        def early():
            A(f"""
                s_add_u32 s58, s74, 4
            s_cmp_lt_u32 s24, 4
                s_cselect_b32 s58, s74, s58
            s_add_u32 s58, s58, s75
            s_and_b32 s58, s58, 15
            s_mul_i32 s84, s58, {64*6144}
            s_add_u32 s84, s84, s79
            s_add_u32 m0, s80, {L_QCS}
            """)
            V.issue(f"buffer_load_dwordx4 v{VQo}, s[12:15], s84 offen lds", "qcs")
            A(f"s_add_u32 s84, s84, {32*6144}\ns_add_u32 m0, s80, {L_QCS + 4096}")
            V.issue(f"buffer_load_dwordx4 v{VQo}, s[12:15], s84 offen lds", "qcs")
        def wopf():
            if O["wopf"]:
                A(f"s_lshl_b32 s58, s2, 13\ns_lshl_b32 s59, s27, 11\ns_add_u32 s58, s58, s59")
                V.issue(f"buffer_load_dwordx4 v[40:43], v{VL16}, s[32:35], s58 offen", "pf")
                V.issue(f"buffer_load_dwordx4 v[44:47], v{VL16}, s[32:35], s58 offen offset:1024", "pf")
        V.need({("st", 0)})
        A("s_barrier")
        self.stamp(1)
        def aread(s, dst):
            return [f"ds_read_b128 {vr(dst+(rf*2+ks)*4,4)}, v{VAS+ks} offset:{(s%4)*16384+rf*2048}" for rf in range(2) for ks in range(2)]
        def stash(s):
            for t in aread(s, ST+16*s): A(t)
        def csum(s):
            skip = self.lab("cs")
            A(f"s_cmp_eq_u32 s85, {s}\ns_cbranch_scc0 {skip}")
            for f in range(2):
                for ks in range(2):
                    for rd in range(2):
                        A(f"ds_read_b64_tr_b16 {vr(CF+f*8+ks*4+2*rd,2)}, v{VC+f} offset:{(s%4)*16384 + (8*ks+rd)*1024}")
            A("s_waitcnt lgkmcnt(0)")
            for f in range(2):
                A(f"{MF} {vr(CA+4*f,4)}, {vr(ONES,4)}, {vr(CF+f*8,4)}, 0\n{MF} {vr(CA+4*f,4)}, {vr(ONES,4)}, {vr(CF+f*8+4,4)}, {vr(CA+4*f,4)}")
            A.label(skip)
        def csum_q():
            for ks in range(2):
                for rd in range(2):
                    A(f"ds_read_b64_tr_b16 {vr(CF+16+ks*4+2*rd,2)}, v{VC+2} offset:{(8*ks+rd)*512}")
            A(f"s_waitcnt lgkmcnt(0)\n{MF} {vr(CA+8,4)}, {vr(ONES,4)}, {vr(CF+16,4)}, 0\n{MF} {vr(CA+8,4)}, {vr(ONES,4)}, {vr(CF+20,4)}, {vr(CA+8,4)}")
        def nonce():
            A("s_waitcnt lgkmcnt(0)\ns_cmp_eq_u32 s60, 0\ns_cbranch_scc1 L_tagslow\nL_tagback:")
            self.nonce_setup()
            A(f"v_mov_b32 v8, s60\ns_mov_b64 exec, 1\nds_write_b32 v{VF}, v8 offset:{F_NON}\ns_mov_b64 exec, -1")
            self.slow.append(f"""
            L_tagslow:
            s_mov_b32 s57, 0
            v_mov_b32 v8, 0
            L_tagspin:
            buffer_load_dword v9, v8, s[48:51], 0 offen sc1
            s_waitcnt vmcnt(0)
            v_readfirstlane_b32 s60, v9
            s_add_u32 s57, s57, 1
            s_cmp_lg_u32 s60, 0
            s_cbranch_scc1 L_tagback
            s_sleep 4
            s_cmp_lt_u32 s57, {SPIN_MAX}
            s_cbranch_scc1 L_tagspin
            s_branch L_tagback
            """)
        def pub_stats():
            A(f"""
            ds_read_b128 v[12:15], v{VF} offset:{F_KEY}
            v_and_b32 v8, 7, v1
            v_lshlrev_b32 v8, 3, v8
            v_add_u32 v9, {L_FL + F_ST}, v8
            ds_read_b64 v[16:17], v9
            s_lshl_b32 s58, s27, 6
            v_add_u32 v9, s58, v1
            v_cmp_gt_u32 vcc, 8, v9
            v_cndmask_b32 v8, v{VOOB}, v8, vcc
            v_cmp_eq_u32 vcc, 0, v9
            v_cndmask_b32 v9, v{VOOB}, v9, vcc
            s_and_b32 s59, s60, 0xffff
            s_waitcnt lgkmcnt(0)
            v_or_b32 v16, s59, v16
            v_or_b32 v17, s62, v17
            s_lshl_b32 s58, s22, 4
            s_add_u32 s58, s58, s23
            s_lshl_b32 s58, s58, 6
            s_add_u32 s58, s58, {WS_STAT}
            """)
            V.issue(f"buffer_store_dwordx2 v[16:17], v8, s[16:19], s58 offen sc1")
            A(f"v_max_u32 v12, v12, v13\nv_max3_u32 v12, v12, v14, v15\nv_mov_b32 v13, s60\ns_lshl_b32 s58, s2, 3\ns_add_u32 s58, s58, {WS_KEY}")
            V.issue(f"buffer_store_dwordx2 v[12:13], v9, s[16:19], s58 offen sc1")
        def pub_cs():
            A(f"""
            v_lshrrev_b32 v8, 4, v1
            v_cmp_eq_u32 vcc, 1, v8
            v_cndmask_b32 v{CA}, v{CA}, v{CA+4}, vcc
            v_cmp_eq_u32 vcc, 2, v8
            v_cndmask_b32 v{CA}, v{CA}, v{CA+8}, vcc
            s_lshl_b32 s58, s27, 7
            v_lshl_add_u32 v9, v1, 2, s58
            s_lshl_b32 s58, s27, 6
            s_add_u32 s58, s58, {512 - 128}
            v_lshl_add_u32 v10, v1, 2, s58
            v_cndmask_b32 v9, v9, v10, vcc
            v_cmp_eq_u32 vcc, 3, v8
            v_cndmask_b32 v9, v9, v{VOOB}, vcc
            v_and_b32 v10, 3, v1
            v_lshlrev_b32 v10, 3, v10
            v_lshrrev_b32 v10, v10, s60
            v_bfi_b32 v{CA}, v{VM}, v10, v{CA}
            s_lshl_b32 s58, s23, 4
            s_add_u32 s58, s58, s22
            s_lshl_b32 s58, s58, 10
            s_add_u32 s58, s58, {WS_CSP}
            """)
            V.issue(f"buffer_store_dword v{CA}, v9, s[16:19], s58 offen sc1")
        S1R, KEYS, T = 8, 16, 24
        def s1_addr():
            A(f"""
            v_and_b32 v32, 15, v1
            v_lshlrev_b32 v32, 4, v32
            v_lshrrev_b32 v33, 4, v1
            v_lshl_add_u32 v32, v33, 10, v32
            s_lshl_b32 s90, s23, 14
            s_lshl_b32 s59, s27, 8
            s_add_u32 s90, s90, s59
            s_add_u32 s90, s90, {WS_CSP}
            s_lshl_b32 s59, s22, 10
            s_add_u32 s59, s59, {WS_STAT}
            s_sub_u32 s95, s28, s22
            s_lshl_b32 s95, s95, 10
            s_lshl_b32 s87, s28, 10
            s_sub_u32 s87, {WS_KEY - WS_STAT}, s87
            s_cmp_eq_u32 s27, 3
            s_cselect_b32 s90, s59, s90
            s_movk_i32 s59, 4096
            s_cselect_b32 s95, s95, s59
            s_cselect_b32 s87, s87, s59
            s_cselect_b32 s74, 1024, s59
            s_cselect_b64 vcc, -1, 0
            v_cndmask_b32 v32, v32, v{VL16}, vcc
            """)
        def s1_round(issue):
            A("s_mov_b32 s58, s90")
            for t in range(4):
                issue(f"buffer_load_dwordx4 {vr(S1R+4*t,4)}, v32, s[16:19], s58 offen sc1", "s1")
                if t < 3: A(f"s_add_u32 s58, s58, s{(95, 87, 74)[t]}")
        def s1_check(w3):
            def chk():
                if not w3:
                    for t in range(4):
                        c = S1R + 4*t
                        A(f"v_perm_b32 v{T+t}, v{c+1}, v{c}, s64\nv_perm_b32 v35, v{c+3}, v{c+2}, s65\nv_or_b32 v{T+t}, v{T+t}, v35")
                    A(f"v_max3_u32 v33, v{T}, v{T+1}, v{T+2}\nv_min3_u32 v34, v{T}, v{T+1}, v{T+2}\nv_max_u32 v33, v33, v{T+3}\nv_min_u32 v34, v34, v{T+3}")
                else:
                    A("s_mov_b32 s58, 0x05040100")
                    for t in range(4): A(f"v_perm_b32 v{T+t}, v{S1R+2*t+1}, v{S1R+2*t}, s58")
                    A(f"""
                    v_max3_u32 v33, v{KEYS+1}, v{KEYS+3}, v{KEYS+5}
                    v_min3_u32 v34, v{KEYS+1}, v{KEYS+3}, v{KEYS+5}
                    v_max3_u32 v33, v33, v{KEYS+7}, v{T}
                    v_min3_u32 v34, v34, v{KEYS+7}, v{T}
                    v_max3_u32 v33, v33, v{T+1}, v{T+2}
                    v_min3_u32 v34, v34, v{T+1}, v{T+2}
                    v_max_u32 v33, v33, v{T+3}
                    v_min_u32 v34, v34, v{T+3}
                    """)
                A("v_cmp_ne_u32 vcc, s60, v33\nv_cmp_ne_u32 s[66:67], s60, v34\ns_or_b64 vcc, vcc, s[66:67]")
            V.need({"s1"})
            chk()
            sl, back = f"L_s1slow{int(w3)}", f"L_s1back{int(w3)}"
            A(f"s_cbranch_scc1 {sl}\n{back}:")
            keep = A.rec
            A.rec = r = Rec()
            top = self.lab("s1t")
            A(f"{sl}:\ns_mov_b32 s57, 0\n{top}:\ns_sleep 8")
            s1_round(lambda t, tag: A(t))
            A("s_waitcnt vmcnt(0)")
            chk()
            A(f"s_cbranch_scc0 {back}\ns_add_u32 s57, s57, 1\ns_cmp_lt_u32 s57, {SPIN_MAX}\ns_cbranch_scc1 {top}\ns_branch {back}")
            self.slow.append("\n".join(it[1] for a in r.atoms for it in a))
            A.rec = keep
        def s1_tables(w3):
            if not w3:
                for k in range(16): A(f"v_and_b32 v{S1R+k}, 0xffffff00, v{S1R+k}")
                for h in (0, 2):
                    A(f"v_pk_add_f32 {vr(S1R+h,2)}, {vr(S1R+h,2)}, {vr(S1R+4+h,2)}\nv_pk_add_f32 {vr(S1R+8+h,2)}, {vr(S1R+8+h,2)}, {vr(S1R+12+h,2)}")
                for h in (0, 2): A(f"v_pk_add_f32 {vr(S1R+h,2)}, {vr(S1R+h,2)}, {vr(S1R+8+h,2)}")
                for wh in (16, 32):
                    for k in range(4): A(f"v_mov_b32 v{S1R+4+k}, v{S1R+k}")
                    for k in range(4): A(f"v_permlane{wh}_swap_b32 v{S1R+k}, v{S1R+4+k}")
                    for h in (0, 2): A(f"v_pk_add_f32 {vr(S1R+h,2)}, {vr(S1R+h,2)}, {vr(S1R+4+h,2)}")
                A(f"s_lshl_b32 s58, s27, 8\ns_add_u32 s58, s58, {L_CS}\nv_and_b32 v33, 15, v1\nv_lshl_add_u32 v33, v33, 4, s58\nds_write_b128 v33, {vr(S1R,4)}")
            else:
                for k in range(8): A(f"v_and_b32 v{S1R+k}, 0xffff0000, v{S1R+k}")
                for k in (1, 3, 5, 7): A(f"v_rcp_f32 v{S1R+k}, v{S1R+k}")
                A(f"""
                v_add_u32 v33, {L_ST2}, v{VL16}
                v_mov_b32 v{T}, v{S1R}
                v_mov_b32 v{T+1}, v{S1R+2}
                ds_write_b128 v33, {vr(S1R+4,4)}
                v_mov_b32 v{T+2}, v{S1R+1}
                v_mov_b32 v{T+3}, v{S1R+3}
                v_mul_f32 v{T+4}, {hex(LOG2E)}, v{S1R+1}
                v_mul_f32 v{T+5}, {hex(LOG2E)}, v{S1R+3}
                v_lshlrev_b32 v33, 3, v1
                v_add_u32 v33, {L_M}, v33
                ds_write_b64 v33, {vr(T,2)}
                ds_write_b64 v33, {vr(T+2,2)} offset:{L_RI-L_M}
                ds_write_b64 v33, {vr(T+4,2)} offset:{L_RL-L_M}
                v_max_u32 v{KEYS}, v{KEYS}, v{KEYS+2}
                v_max3_u32 v{KEYS}, v{KEYS}, v{KEYS+4}, v{KEYS+6}
                """)
                red_row(A, KEYS, "v_max_u32"); red_swap(A, KEYS, KEYS+1, 16, "v_max_u32"); red_swap(A, KEYS, KEYS+1, 32, "v_max_u32")
                A(f"s_mov_b64 exec, 1\nds_write_b32 v{VF}, v{KEYS} offset:{F_SEL}\ns_mov_b64 exec, -1")
        P = O["s1at"]
        extra = {s: [] for s in range(16)}
        for s in range(12): extra[s].append(lambda s=s: stash(s))
        for s in range(5): extra[s].append(lambda s=s: csum(s))
        extra[1] += [nonce]
        extra[O['early']+2] += [csum_q]
        extra[max(5, O['early']+3)] += [pub_cs]
        extra[O["stat_end"]+1] += [pub_stats]
        extra[7] += [s1_addr]
        def iteration(s, atoms, k0=0):
            if s + AH < 16:
                stage(s + AH, atoms, k0); atoms = []
            if s == O["early"]: early()
            if s == P: s1_round(V.issue)
            if s == O['pfat']: wopf()
            if s >= 13:
                atoms = list(atoms)
                per = -(-len(atoms) // 4)
                for pre, d, tg in qpair(s - 13):
                    A(pre); V.issue(d, tg)
                    for _ in range(per):
                        if atoms: replay(atoms.pop(0), A0, V.V)
            tags = {("st", s+1)}
            if s == O["early"] + 1: tags.add("qcs")
            if s == 15: tags.add(("q", 1))
            V.need(tags)
            A("s_waitcnt lgkmcnt(0)\ns_barrier")
        for s in range(P+1): iteration(s, A.record(extra[s]))
        A("s_cmp_eq_u32 s27, 3\ns_cbranch_scc1 L_path3")
        q0 = list(V.V.q)
        for w3 in (False, True):
            if w3: A.label("L_path3")
            V.V.q = list(q0)
            tab = A.record([lambda: s1_tables(w3)])
            per = -(-len(tab) // (15 - (P+1)))
            for s in range(P+1, 16):
                if s == P+1: iteration(s, A.record(extra[s] + [lambda: s1_check(w3)]), 4 if s+AH < 16 else 0)
                else:
                    iteration(s, A.record(extra[s]) + tab[:per]); tab = tab[per:]
            assert not tab
            if not w3: A("s_branch L_pathj")
        A.label("L_pathj")
        V = V.V
        for pre, d, tg in qpair(3):
            A(pre); V.issue(d, tg)
        self.stamp(2)
        A(f"s_setprio {O['hprio2']}")
        A(f"v_add_u32 v1, s27, v{VF}")
        L = LgkmTracker(A)
        def wreads(g):
            u, cf = g >> 2, g & 3
            return [(f"ds_read_b64_tr_b16 {vr(BR+(g%3)*8+ks*4+2*rd,2)}, v{VQ+(cf&1)} offset:{((u>>1)&3)*16384 + (u&1)*2048 + ks*1024 + rd*512 + (cf>>1)*256}", ("W", g))
                    for ks in range(2) for rd in range(2)]
        def flag(off):
            A(f"v_mov_b32 v{VT}, 1\ns_mov_b64 exec, 1")
            L.issue(f"ds_write_b8 v1, v{VT} offset:{off}", ("F", off))
            A("s_mov_b64 exec, -1")
        GW, VD, VWO, DW = 128, 5, 6, 128
        def late_addr():
            A(f"""
            v_mbcnt_lo_u32_b32 v{VT}, -1, 0
            v_mbcnt_hi_u32_b32 v{VT}, -1, v{VT}
            v_lshrrev_b32 v{VWO}, 5, v{VT}
            v_and_b32 v{VD}, 31, v{VT}
            v_lshlrev_b32 v{VD}, 4, v{VD}
            v_lshl_add_u32 v{VD}, v{VWO}, 11, v{VD}
            v_bfe_u32 v4, v{VT}, 2, 2
            v_lshl_add_u32 v4, v{VWO}, 2, v4
            v_lshlrev_b32 v4, 11, v4
            v_lshlrev_b32 v{VWO}, 1, v{VWO}
            v_xor_b32 v{VWO}, v{VWO}, v{VT}
            v_and_b32 v{VWO}, 3, v{VWO}
            v_lshl_add_u32 v4, v{VWO}, 4, v4
            v_bfe_u32 v{VWO}, v{VT}, 4, 1
            v_lshl_add_u32 v{VWO}, v{VWO}, 6, v4
            s_lshl_b32 s93, s27, 14
            s_lshl_b32 s58, s29, 7
            s_add_u32 s93, s93, s58
            s_and_b32 s92, s29, 7
            s_lshl_b32 s58, s28, 1
            s_add_u32 s92, s92, s58
            s_lshl_b32 s92, s92, 2
            s_lshl_b32 s69, s3, 15
            s_lshl_b32 s59, s27, 9
            s_add_u32 s69, s69, s59
            s_cmp_lt_u32 s3, 224
            s_cselect_b32 s69, s69, 0
            s_cselect_b64 vcc, -1, 0
            v_cndmask_b32 v{VD}, 0, v{VD}, vcc
            """)
        dwl = [] if O.get("nomoe") else [("s_add_u32 s69, s69, 4096" if k else None, f"buffer_load_dwordx4 {vr(DW+4*k,4)}, v{VD}, s[44:47], s69 offen nt", "dw") for k in range(8)]
        wol = [(f"s_add_u32 s82, s92, {t}\ns_and_b32 s82, s82, 31\ns_lshl_b32 s82, s82, 16\ns_add_u32 s82, s82, s93\ns_add_u32 m0, s80, {(t+16)*4096}",
                f"buffer_load_dwordx4 v{VWO}, s[32:35], s82 offen lds", "wok") for t in range(16)] if O["wok"] else []
        assert not O["wok"] or (33 <= O["wok"] <= 48 and O["wok"] % 8 not in (5, 6))
        def emit(it):
            if it[0]: A(it[0])
            V.issue(it[1], it[2])
        if O["gate"]: self.spin(VF, F_PUB, VT)
        for g in range(2):
            for x in wreads(g): L.issue(*x)
        sig = {3: 2, 9: 3, 24: 4, 30: 5, 38: 6, 46: 7}
        pend = []
        for g in range(64):
            u, cf = g >> 2, g & 3
            a = ST + 16*(u if u < 12 else u-12)
            gn = g + 2
            if gn < 64 and gn % 8 == 0:
                if gn >= 16:
                    L.need({("C", gn//8)}); self.check(VF, F_QL + 4*(gn//8 - 2), VT)
                if gn == 32: A(f"v_subrev_u32 v{VQ}, {L_KV}, v{VQ}\nv_subrev_u32 v{VQ+1}, {L_KV}, v{VQ+1}")
            if g == O["wok"]:
                L.need({("C7",)}); self.check(VF, F_C7, VT)
            w = wreads(gn) if gn < 64 else []
            need = {("W", g)}
            if u >= 12 and cf == 0: need.add(("A", u))
            L.need(need)
            for j, (rf, ks) in enumerate(CH4):
                acc = ACC + (rf*4+cf)*4
                c = "0" if (u == 0 and j % 2 == 0) else vr(acc,4)
                A(f"{MF} {vr(acc,4)}, {vr(BR+(g%3)*8+ks*4,4)}, {vr(a+(rf*2+ks)*4,4)}, {c}")
                if w: L.issue(*w.pop(0))
                if j == 2 and pend: emit(pend.pop(0))
                if j == 2 and dwl and g >= O["dwat"]: emit(dwl.pop(0))
                if j == 1 and wol and g >= O["wok"]: emit(wol.pop(0))
            if 1 <= u <= 4 and cf == 0:
                for t in aread(11+u, ST+16*(u-1)): L.issue(t, ("A", 11+u))
            if 1 <= u <= 4 and cf == 2:
                L.need({("A", 11+u)}); pend += qpair(3+u)
            if g in sig:
                V.need({("q", sig[g])}); flag(F_QL + 4*(sig[g]-2))
            if g in (15, 31, 47) and O.get("p2st"): self.stamp(16 + g//16)
            if g == 23: late_addr()
            if g == 31: flag(F_C7)
            if g == O["wok"] - 1: L.issue(f"ds_read_b32 v{VT}, v{VF} offset:{F_C7}", ("C7",))
            if (g + 4) % 8 == 0 and 16 <= g + 4 < 64:
                L.issue(f"ds_read_b32 v{VT}, v{VF} offset:{F_QL + 4*((g+4)//8 - 2)}", ("C", (g+4)//8))
        ONE, VL, VM, VOOB, VL16, TMP = 112, 113, 114, 115, 116, 117
        self.sreg = 127
        if self.diag:
            A("s_nop 7")
            for sl in (1, 2, 16, 17, 18): A(f"v_writelane_b32 v127, s{self.spark[sl]}, {sl}")
        self.stamp(3)
        A(f"s_setprio {O['hprio3']}")
        QM, QL, QC, U, E, PQ, KX, ZX, NT0, OF = 8, 12, 16, 64, 68, 240, 208, 224, 192, 72
        A(f"""
        v_mov_b32 v{ONE}, 1
        s_mov_b64 exec, 1
        ds_write_b8 v1, v{ONE} offset:{F_C15}
        s_mov_b64 exec, -1
        v_mbcnt_lo_u32_b32 v{VL}, -1, 0
        v_mbcnt_hi_u32_b32 v{VL}, -1, v{VL}
        v_and_b32 v118, 15, v{VL}
        s_lshl_b32 s58, s27, 7
        s_add_u32 s58, s58, {L_M}
        v_lshl_add_u32 v118, v118, 2, s58
        v_lshrrev_b32 v119, 4, v{VL}
        v_lshlrev_b32 v119, 4, v119
        v_add_u32 v119, {L_CS + 512}, v119
        """)
        for rf in range(2):
            A(f"ds_read_b32 v{QM+2*rf}, v118 offset:{64*rf}\nds_read_b32 v{QL+2*rf}, v118 offset:{64*rf + L_RL - L_M}")
        for cf in range(4): A(f"ds_read_b128 {vr(QC+4*cf,4)}, v119 offset:{64*cf}")
        A(f"""
        v_mov_b32 v{VM}, 0xff
        v_mov_b32 v{VOOB}, {OOB}
        v_lshlrev_b32 v{VL16}, 4, v{VL}
        s_mov_b32 s52, {hex(LN2)}
        s_mov_b32 s53, {hex(LN2)}
        s_mov_b32 s54, {hex(EPSL)}
        s_waitcnt lgkmcnt(0)
        """)
        for rf in range(2):
            for cf in range(4):
                self.phi4(ACC+(rf*4+cf)*4, QM+2*rf, True, QC+4*cf, False, QL+2*rf, True, PQ + (rf*2+(cf>>1))*4 + (cf&1)*2, U, E, 52)
        self.stamp(4)
        self.spin(VF, F_KVX, TMP)
        A(f"v_add_u32 v118, {L_KVX}, v{VL16}")
        for h in range(2):
            for eb in range(2): A(f"ds_read_b128 {vr(KX+(h*2+eb)*4,4)}, v118 offset:{h*3072+eb*1024}")
            A(f"ds_read_b128 {vr(ZX+4*h,4)}, v118 offset:{h*3072+2048}")
        A(f"""
        s_lshl_b32 s58, s22, 3
        s_lshl_b32 s59, s27, 1
        s_add_u32 s58, s58, s59
        s_lshl_b32 s58, s58, 5
        s_xor_b32 s59, s23, 1
        s_lshl_b32 s59, s59, 1
        s_add_u32 s58, s58, s59
        s_lshl_b32 s58, s58, 10
        s_add_u32 s59, s58, 32768
        s_mov_b32 s55, 0x358637bd
        s_waitcnt lgkmcnt(0)
        """)
        self.stamp(5)
        NT = lambda k, e: 8 + (k*3+e)*4
        for k in range(4):
            rf, h = k >> 1, k & 1
            for e in (2, 0, 1):
                A(f"{MF} {vr(NT(k,e),4)}, {vr(ZX+4*h,4) if e == 2 else vr(KX+(h*2+e)*4,4)}, {vr(PQ+4*k,4)}, 0")
        for k in range(4): A(f"v_add_f32 v{NT(k,2)}, s55, v{NT(k,2)}\nv_rcp_f32 v{NT(k,2)}, v{NT(k,2)}")
        for k in range(4):
            d, o = NT(k,2), NT0 + 4*k
            for e in range(2):
                n = NT(k,e)
                for h in (0, 2): A(f"v_pk_mul_f32 {vr(n+h,2)}, {vr(n+h,2)}, {vr(d,2)} op_sel_hi:[1,0]")
                A(f"v_cvt_pk_bf16_f32 v{o+2*e}, v{n}, v{n+1}\nv_cvt_pk_bf16_f32 v{o+2*e+1}, v{n+2}, v{n+3}")
            A(f"buffer_store_dwordx4 {vr(o,4)}, v{VL16}, s[16:19], s{58+(k>>1)} offen offset:{1024*(k&1)} sc1")
        A(f"""
        s_lshl_b32 s58, s22, 2
        s_add_u32 s58, s58, s27
        s_lshl_b32 s58, s58, 4
        s_add_u32 s58, s58, s23
        s_lshl_b32 s58, s58, 7
        s_add_u32 s58, s58, {WS_OF}
        v_lshlrev_b32 v118, 24, v{VL}
        v_mov_b32 v119, s60
        s_mov_b64 exec, 1
        ds_write_b8 v1, v{ONE} offset:{F_AR}
        s_mov_b64 exec, -1
        s_waitcnt vmcnt(0)
        buffer_store_dword v119, v118, s[16:19], s58 offen sc1
        """)
        V.q = []
        if O["wok"]: self.setflag(1, ONE, F_WOK)
        self.stamp(6)
        if O.get("nomoe"): A("s_branch L_helper_end")
        MSK, AP, DT, BP, R = 12, 16, 24, 32, 40
        for it in dwl: emit(it)
        A(f"ds_read_b32 v118, v{VF} offset:{F_SEL}")
        self.moe_masks(VL, MSK, 119, 120, 121)
        self.col_off(VL, 122, 119)
        A(f"""
        v_lshrrev_b32 v121, 5, v{VL}
        v_lshlrev_b32 v121, 2, v121
        s_waitcnt lgkmcnt(0)
        v_readfirstlane_b32 s91, v118
        s_and_b32 s92, s91, 0x7ff
        s_sub_u32 s92, 0x7ff, s92
        s_cmp_ge_u32 s3, 224
        s_cbranch_scc1 L_moe_done
        v_add_u32 v119, {L_HT}, v121
        """)
        self.spin(VF, F_H, TMP, 1)
        for t in range(8): A(f"ds_read_b32 v{BP+t}, v119 offset:{8*t}")
        A("s_waitcnt vmcnt(0) lgkmcnt(0)")
        for t in range(8):
            ap = AP + 4*(t & 1)
            for r in range(4): A(f"v_and_b32 v{ap+r}, v{BP+t}, v{MSK+r}")
            A(f"{MF} {vr(DT,4)}, {vr(ap,4)}, {vr(DW+4*t,4)}, {'0' if t == 0 else vr(DT,4)}")
        self.tag(DT, VM)
        A(f"""
        s_lshl_b32 s58, s3, 12
        s_add_u32 s58, s58, s80
        s_add_u32 s58, s58, {WS_YP}
        buffer_store_dwordx4 {vr(DT,4)}, v122, s[16:19], s58 offen sc1
        L_moe_done:
        """)
        self.stamp(9)
        A(f"""
        s_lshr_b32 s58, s92, 7
        s_cmp_lg_u32 s58, s28
        s_cbranch_scc1 L_helper_end
        v_lshrrev_b32 v118, 4, v{VL}
        v_lshlrev_b32 v118, 12, v118
        v_and_b32 v119, 15, v{VL}
        v_lshlrev_b32 v119, 4, v119
        v_add_u32 v118, v118, v119
        s_mul_i32 s95, s27, {56*4096}
        s_lshl_b32 s59, s29, 8
        s_add_u32 s95, s95, s59
        s_add_u32 s95, s95, {WS_YP}
        s_waitcnt vmcnt(0)
        s_sleep {O["d5"]}
        """)
        def yacc(k):
            if k:
                for h in (0, 2): A(f"v_pk_add_f32 {vr(GW+h,2)}, {vr(GW+h,2)}, {vr(GW+4*k+h,2)}")
        self.gather([(f"s_add_u32 s58, s95, {4*4096*t}", f"buffer_load_dwordx4 {vr(GW+4*t,4)}, v118, s[16:19], s58 offen sc1", GW+4*t) for t in range(14)], 60, yacc, light=True)
        for k in range(4):
            red_swap(A, GW+k, 60, 16); red_swap(A, GW+k, 60, 32)
        A(f"s_lshl_b32 s58, s27, 8\ns_add_u32 s58, s58, {L_YT}\nv_add_u32 v118, s58, v119\nds_write_b128 v118, {vr(GW,4)}\ns_waitcnt lgkmcnt(0)")
        self.setflag(1, ONE, F_Y)
        A("s_cmp_lg_u32 s27, 0\ns_cbranch_scc1 L_helper_end")
        self.spin(VF, F_Y, TMP)
        A(f"v_add_u32 v118, {L_YT}, v119")
        for w in range(4): A(f"ds_read_b128 {vr(R+4*w,4)}, v118 offset:{256*w}")
        A(f"""
        s_and_b32 s58, s91, 0xffff0000
        s_ashr_i32 s59, s58, 31
        s_not_b32 s59, s59
        s_or_b32 s59, s59, 0x80000000
        s_xor_b32 s58, s58, s59
        s_and_b32 s58, s58, 0xffff0000
        v_mov_b32 v60, s58
        v_mul_f32 v60, {hex(LOG2E | 0x80000000)}, v60
        v_exp_f32 v60, v60
        v_add_f32 v60, 1.0, v60
        v_rcp_f32 v60, v60
        """)
        rnd_bf16(A, 60)
        A("s_waitcnt lgkmcnt(0)")
        for h in (0, 2): A(f"v_pk_add_f32 {vr(R+h,2)}, {vr(R+h,2)}, {vr(R+4+h,2)}\nv_pk_add_f32 {vr(R+8+h,2)}, {vr(R+8+h,2)}, {vr(R+12+h,2)}")
        for h in (0, 2): A(f"v_pk_add_f32 {vr(R+h,2)}, {vr(R+h,2)}, {vr(R+8+h,2)}")
        for k in range(4):
            rnd_bf16(A, R+k); A(f"v_mul_f32 v{R+k}, v{R+k}, v60"); rnd_bf16(A, R+k)
        A(f"""
        v_add_u32 v118, {L_YF}, v119
        ds_write_b128 v118, {vr(R,4)}
        s_mov_b64 exec, 1
        s_waitcnt lgkmcnt(0)
        ds_write_b32 v{VF}, v{ONE} offset:{F_YF}
        s_mov_b64 exec, -1
        L_helper_end:
        """)
        self.stamp(10)
        self.stamp_out()
        A("s_endpgm")
        self.A = A0
        for t in self.slow: A0(t)
        self.slow = []

    def stat_loads(self):
        A, O = self.A, self.opt
        srd(A, 44, 60, 2048)
        A(f"""
        v_and_b32 v2, 31, v1
        v_lshlrev_b32 v2, 4, v2
        v_lshrrev_b32 v3, 5, v1
        v_lshl_add_u32 v4, v3, 11, v2
        s_lshl_b32 s85, s22, 7
        s_lshl_b32 s58, s23, 3
        s_add_u32 s85, s85, s58
        s_lshl_b32 s58, s27, 1
        s_add_u32 s85, s85, s58
        s_lshl_b32 s58, s85, 11
        {"s_sleep %d" % O["sxd"] if O["stat_beg"] >= 0 else ""}
        """)
        for t in range(4): A(f"buffer_load_dwordx4 {vr(192+4*t,4)}, v4, s[8:11], s58 offen offset:{512*t}")
        for t in range(4): A(f"buffer_load_dwordx4 {vr(208+4*t,4)}, v2, s[44:47], 0 offen offset:{512*t}")

    def stats(self):
        A = self.A
        X, WR, S1, S2, SR, SW, ON, T, MB = 192, 208, 224, 226, 228, 230, 232, 233, 236
        A("s_waitcnt vmcnt(0)")
        A(f"v_mov_b32 v{ON}, 0x3f803f80")
        for k in range(16):
            for d, a, b in ((S1, X+k, ON), (S2, X+k, X+k), (SR, X+k, WR+k), (SW, WR+k, ON)):
                A(f"v_dot2_f32_bf16 v{d+(k&1)}, v{a}, v{b}, {'0' if k < 2 else 'v%d' % (d+(k&1))}")
        A("s_nop 2")
        for d in (S1, S2, SR, SW): A(f"v_add_f32 v{d}, v{d}, v{d+1}")
        for r in (8, 4, 2, 1):
            for d in (S1, S2, SR, SW): A(f"v_add_f32_dpp v{d}, v{d}, v{d} row_ror:{r} row_mask:0xf bank_mask:0xf")
        for d in (S1, S2, SR, SW): A(f"v_mov_b32 v{d+1}, v{d}")
        for d in (S1, S2, SR, SW): A(f"v_permlane16_swap_b32 v{d}, v{d+1}")
        for d in (S1, S2, SR, SW): A(f"v_add_f32 v{d}, v{d}, v{d+1}")
        A(f"""
        v_mul_f32 v{S1}, 0x3a800000, v{S1}
        v_mul_f32 v{S2}, 0x3a800000, v{S2}
        v_cvt_pk_bf16_f32 v{MB}, v{S1}, v{S1}
        v_fma_f32 v{S2}, -v{S1}, v{S1}, v{S2}
        v_lshlrev_b32 v{MB}, 16, v{MB}
        v_max_f32 v{S2}, 0, v{S2}
        v_fma_f32 v{SR}, -v{MB}, v{SW}, v{SR}
        """)
        rnd_bf16(A, S2)
        A(f"v_add_f32 v{S2}, 0x3727c5ac, v{S2}")
        rnd_bf16(A, S2)
        A(f"v_sqrt_f32 v{S2}, v{S2}\nv_lshrrev_b32 v{T}, 5, v1\nv_cvt_pk_bf16_f32 v{S2}, v{S2}, v{S2}\nv_lshlrev_b32 v{MB+1}, 16, v{S2}")
        A(f"""
        v_rcp_f32 v{S2}, v{MB+1}
        v_add_u32 v{T+1}, s85, v{T}
        v_sub_u32 v{T+1}, 0x7ff, v{T+1}
        v_mul_f32 v{SR}, v{SR}, v{S2}
        s_lshl_b32 s58, s27, 4
        s_add_u32 s58, s58, {L_FL + F_ST}
        v_lshl_add_u32 v{T}, v{T}, 3, s58
        """)
        rnd_bf16(A, SR)
        A(f"""
        s_mov_b32 exec_lo, 1
        s_mov_b32 exec_hi, 1
        ds_write_b64 v{T}, {vr(MB,2)}
        s_mov_b64 exec, -1
        v_ashrrev_i32 v{T}, 31, v{SR}
        v_or_b32 v{T}, 0x80000000, v{T}
        v_xor_b32 v{T}, v{T}, v{SR}
        v_and_b32 v{T}, 0xffff0000, v{T}
        v_or_b32 v{T}, v{T}, v{T+1}
        """)
        red_swap(A, T, T+1, 32, "v_max_u32")
        A(f"s_lshl_b32 s58, s27, 2\ns_add_u32 s58, s58, {L_FL + F_KEY}\nv_mov_b32 v{T+1}, s58\ns_mov_b64 exec, 1\nds_write_b32 v{T+1}, v{T}\ns_mov_b64 exec, -1")

    def kwave(self):
        A = self.A
        O = self.opt
        A.label("L_kwave")
        self.sreg = 127
        self.stamp(0)
        ACC = 128
        FA = lambda st, rf, ks: 16 + st*32 + (rf*2+ks)*4
        FB = lambda slot, ks: 80 + slot*8 + ks*4
        VA, VKV, N15, Q4, VM, VF, VFB, ONE = 112, 114, 12, 13, 11, 122, 123, 124
        A(f"""
        s_lshr_b32 s36, s27, 1
        s_and_b32 s37, s27, 1
        v_and_b32 v{N15}, 15, v1
        v_lshrrev_b32 v{Q4}, 4, v1
        v_mov_b32 v{VF}, {L_FL}
        v_add_u32 v{VFB}, s27, v{VF}
        v_mov_b32 v{ONE}, 1
        v_lshl_add_u32 v2, v1, 2, v{VF}
        v_mov_b32 v3, 0
        s_mov_b64 exec, 0x3ffff
        ds_write_b32 v2, v3
        ds_write_b32 v2, v3 offset:{F_AR}
        s_mov_b64 exec, -1
        s_lshl_b32 s58, s36, 13
        v_lshlrev_b32 v14, 7, v{N15}
        v_add_u32 v14, s58, v14
        v_bfe_u32 v15, v{N15}, 1, 3
        """)
        for ks in range(2):
            A(f"v_add_u32 v2, {4*ks}, v{Q4}\nv_xor_b32 v2, v2, v15\nv_lshl_add_u32 v{VA+ks}, v2, 4, v14")
        A(f"""
        v_bfe_u32 v2, v1, 2, 2
        v_lshlrev_b32 v2, 6, v2
        v_and_b32 v3, 3, v1
        v_lshl_add_u32 v2, v3, 3, v2
        v_and_b32 v3, 1, v{Q4}
        v_lshl_add_u32 v10, v3, 5, v2
        s_lshl_b32 s58, s37, 8
        v_add_u32 v4, s58, v10
        v_lshl_add_u32 v{VKV}, v{Q4}, 11, v4
        v_add_u32 v{VKV}, {L_KV}, v{VKV}
        v_xor_b32 v{VKV+1}, 32, v{VKV}
        """)
        VD, VWO, VG, GW = 125, 126, 9, 192
        srd(A, 92, 56, 0x200000)
        srd(A, 52, 62, 0x700000)
        srd(A, 88, 64, 0x700000)
        A(f"""
        s_lshl_b32 s80, s27, 10
        v_and_b32 v2, 3, v1
        v_bfe_u32 v3, v1, 4, 1
        v_lshlrev_b32 v3, 6, v3
        v_bfe_u32 v4, v1, 2, 2
        v_lshrrev_b32 v5, 5, v1
        v_lshl_add_u32 v4, v5, 2, v4
        v_lshlrev_b32 v6, 1, v5
        v_xor_b32 v2, v2, v6
        v_lshl_add_u32 v7, v2, 4, v3
        v_lshl_add_u32 v{VWO}, v4, 11, v7
        v_and_b32 v2, 31, v1
        v_lshlrev_b32 v2, 4, v2
        v_mul_u32_u24 v{VG}, 7168, v5
        v_add_u32 v{VG}, v{VG}, v2
        s_lshl_b32 s81, s27, 14
        s_lshl_b32 s58, s29, 7
        s_add_u32 s81, s81, s58
        s_and_b32 s48, s29, 7
        s_lshl_b32 s58, s28, 1
        s_add_u32 s48, s48, s58
        s_lshl_b32 s48, s48, 2
        s_lshr_b32 s34, s3, 4
        s_and_b32 s87, s3, 15
        s_lshl_b32 s78, s87, 6
        s_lshl_b32 s59, s27, 4
        s_add_u32 s78, s78, s59
        s_mul_i32 s78, s78, 7168
        s_lshl_b32 s59, s34, 9
        s_add_u32 s78, s78, s59
        s_and_b32 s71, s21, {O["ngroups"]-1}
        s_cmp_lt_u32 s3, 224
        s_cselect_b32 s78, s78, 0
        s_cselect_b32 s71, s71, -1
        s_cselect_b64 vcc, -1, 0
        v_cndmask_b32 v{VG}, 0, v{VG}, vcc
        """)
        srd(A, 32, 68, 0x400000)
        if O['stat_beg'] >= 0: self.stat_loads()
        sw = self.A = Switch(A)
        stq = sw.record([self.stats])
        self.A = A
        if O["stat_beg"] < 0:
            for a_ in stq: replay(a_, A, None)
            stq = []
        self.stamp(11)
        A(f"s_setprio {O['kprio']}\ns_waitcnt lgkmcnt(0)\ns_barrier")
        self.stamp(1)
        L = LgkmTracker(A)
        def areads(s_):
            return [(f"ds_read_b128 {vr(FA(s_&1,rf,ks),4)}, v{VA+ks} offset:{(s_%4)*16384+rf*2048}", ("A",s_)) for rf in range(4) for ks in range(2)]
        def breads(s_, cf):
            return [(f"ds_read_b64_tr_b16 {vr(FB(cf,ks)+2*rd,2)}, v{VKV+(cf&1)} offset:{(s_%4)*16384+(8*ks+rd)*1024+(cf>>1)*512}", ("B",s_,cf)) for ks in range(2) for rd in range(2)]
        for x in areads(0) + breads(0,0) + breads(0,1): L.issue(*x)
        def gu_items(ks):
            return [] if O.get("nomoe") else [(f"s_add_u32 s78, s78, {2*7168}" if (k & 1 == 0 and k) else None,
                     f"buffer_load_dwordx4 {vr(GW+4*k,4)}, v{VG}, s[{(52,88)[k&1]}:{(55,91)[k&1]}], s78 offen nt") for k in ks]
        runs = [] if O.get("nomoe") else O["runs"]
        n0 = sum(n for _, n in runs)
        P1 = [1,1,1,0,1,1,1,0,1,1,0,0]
        P2 = [1,1,1,1,0,1,1,1,1,0,1,1,1,1,0,1,1,1,1,0]
        for s_ in range(16):
            st = s_ & 1
            w1 = breads(s_,2) + breads(s_,3)
            w2 = (areads(s_+1) + breads(s_+1,0) + breads(s_+1,1)) if s_ < 15 else []
            g = 0
            for cf in range(4):
                for j,(rf,ks) in enumerate([(rf,ks) for rf in range(4) for ks in ((0,1) if rf % 2 == 0 else (1,0))]):
                    if g == 12:
                        if s_ == O["stat_end"]:
                            assert not stq
                            A("s_waitcnt lgkmcnt(0)"); L.q = []
                        L.drain(); A("s_barrier")
                    if g == O["runpos"]:
                        k0 = 0
                        for first, n in runs:
                            for grp in range(O["ngroups"]):
                                if first + grp*O["gstep"] == s_:
                                    sk = self.lab("run")
                                    A(f"s_cmp_eq_u32 s71, {grp}\ns_cbranch_scc0 {sk}")
                                    for pre, txt in gu_items(range(k0, k0+n)):
                                        if pre: A(pre)
                                        A(txt)
                                    A.label(sk)
                            k0 += n
                    if g == 12: pass
                    elif j == 0: L.need({("A",s_), ("B",s_,cf)})
                    acc = ACC + (rf*4+cf)*4
                    c = "0" if (s_ == 0 and j % 2 == 0) else vr(acc,4)
                    A(f"{MF} {vr(acc,4)}, {vr(FA(st,rf,ks),4)}, {vr(FB(cf,ks),4)}, {c}")
                    if g < 12:
                        if w1 and P1[g]: L.issue(*w1.pop(0))
                    elif w2 and P2[g-12]: L.issue(*w2.pop(0))
                    if O["stat_beg"] <= s_ <= O["stat_end"] and stq:
                        left = (O["stat_end"] - s_ + 1)*32 - g - 20
                        n = 1 if (len(stq) >= left or not (P1+P2)[g] or g % 2 == 0) else 0
                        if len(stq) > left: n = 2
                        for _ in range(n):
                            if stq: replay(stq.pop(0), A, None)
                    if s_ == 15 and g == 12: tabq = self.k_tables()
                    if s_ == 15 and g >= 13 and tabq: A(tabq.pop(0))
                    g += 1
            assert not w1 and not w2
        for t in tabq: A(t)
        A(f"s_setprio {O['kprio2']}")
        self.stamp(2)
        TB = lambda rf: (16, 28, 48, 60)[rf]
        CS, ON, U, E = 40, 72, 96, 100
        PK = lambda ks2, db: (80, 128)[ks2] + 4*db
        VV = lambda ks2, eb: (88, 136)[ks2] + 4*eb
        T = lambda eb, db: (144, 148, 152, 156, 16, 20)[eb*2+db]
        for rf in (2, 3):
            for k, off in enumerate((0, L_RL - L_M, L_RI - L_M)): A(f"ds_read_b128 {vr(TB(rf)+4*k,4)}, v2 offset:{64*rf + off}")
        for k in range(4): A(f"v_mov_b32 v{ON+k}, 0x3f803f80")
        A(f"""
        s_mov_b32 s40, {hex(LN2)}
        s_mov_b32 s41, {hex(LN2)}
        s_mov_b32 s42, {hex(EPSL)}
        v_mov_b32 v{VM}, 0xff
        s_waitcnt lgkmcnt(6)
        v_readfirstlane_b32 s60, v41
        v_readfirstlane_b32 s49, v43
        """)
        self.nonce_setup()
        for rf in range(4):
            if rf == 2: A("s_waitcnt lgkmcnt(0)")
            for cf in range(2):
                self.phi4(ACC+(rf*4+cf)*4, TB(rf), False, CS+2*cf, True, TB(rf)+4, False, PK(rf>>1, cf) + (rf&1)*2, U + 8*cf, E + 8*cf)
            for cf in range(2, 4):
                a = ACC+(rf*4+cf)*4; u_ = U + 8*(cf&1)
                for h in (0, 2): A(f"v_pk_fma_f32 {vr(u_+h,2)}, {vr(TB(rf)+h,2)}, {vr(CS+2*cf,2)}, {vr(a+h,2)} op_sel_hi:[1,0,1] neg_lo:[1,0,0] neg_hi:[1,0,0]")
                for h in (0, 2): A(f"v_pk_mul_f32 {vr(u_+h,2)}, {vr(u_+h,2)}, {vr(TB(rf)+8+h,2)}")
                d = VV(rf>>1, cf-2) + (rf&1)*2
                A(f"v_cvt_pk_bf16_f32 v{d}, v{u_}, v{u_+1}\nv_cvt_pk_bf16_f32 v{d+1}, v{u_+2}, v{u_+3}")
            if rf & 1:
                ks2 = rf >> 1
                for eb in range(3):
                    for db in range(2):
                        A(f"{MF} {vr(T(eb,db),4)}, {vr(PK(ks2,db),4)}, {vr(VV(ks2,eb),4) if eb < 2 else vr(ON,4)}, {'0' if ks2 == 0 else vr(T(eb,db),4)}")
        self.setflag(VFB, ONE, F_PUB)
        A(f"""
        s_lshl_b32 s43, s23, 1
        s_add_u32 s43, s43, s37
        s_lshl_b32 s58, s43, 5
        s_lshl_b32 s59, s22, 1
        s_add_u32 s58, s58, s59
        s_add_u32 s58, s58, s36
        s_lshl_b32 s59, s58, 7
        s_add_u32 s59, s59, {WS_ZP}
        s_mul_i32 s58, s58, {KVS}
        s_add_u32 s58, s58, {WS_KVP}
        v_lshlrev_b32 v120, 4, v1
        v_mov_b32 v121, {OOB}
        v_lshlrev_b32 v2, 4, v{Q4}
        v_cmp_eq_u32 vcc, 0, v{N15}
        v_cndmask_b32 v2, v121, v2, vcc
        """)
        for eb in range(2):
            for db in range(2):
                self.tag(T(eb,db), VM)
                A(f"buffer_store_dwordx4 {vr(T(eb,db),4)}, v120, s[16:19], s58 offen offset:{(eb*2+db)*1024} sc1")
        for db in range(2):
            self.tag(T(2,db), VM)
            A(f"buffer_store_dwordx4 {vr(T(2,db),4)}, v2, s[16:19], s59 offen offset:{64*db} sc1")
        self.stamp(3)
        H1, XSV, XST, MSK, AP, DT, BP, R, DW = 24, 60, 62, 64, 68, 76, 84, 92, 160
        A(f"""
        v_lshrrev_b32 v2, 3, v1
        v_and_b32 v3, 7, v1
        v_lshlrev_b32 v118, 11, v2
        v_lshl_add_u32 v118, v3, 4, v118
        s_lshl_b32 s58, s27, 8
        s_add_u32 s58, s58, {L_ST2}
        v_lshl_add_u32 v119, v2, 3, s58
        v_lshlrev_b32 v3, 4, v3
        v_mul_u32_u24 v4, {KVS}, v2
        v_add_u32 v4, v4, v3
        v_lshl_add_u32 v5, v2, 7, v3
        s_lshr_b32 s58, s22, 3
        s_lshl_b32 s59, s23, 1
        s_add_u32 s45, s58, s59
        s_mul_i32 s44, s45, {32*KVS}
        s_lshl_b32 s58, s22, 9
        s_and_b32 s58, s58, 0xfff
        s_add_u32 s44, s44, s58
        s_lshl_b32 s58, s27, 7
        s_add_u32 s44, s44, s58
        s_add_u32 s44, s44, {WS_KVP}
        s_lshl_b32 s58, s23, 4
        s_add_u32 s58, s58, s22
        s_lshl_b32 s46, s58, 9
        s_lshl_b32 s59, s27, 7
        s_add_u32 s46, s46, s59
        s_add_u32 s46, s46, {WS_KVF}
        v_cmp_gt_u32 vcc, 8, v1
        v_cndmask_b32 v6, v121, v120, vcc
        s_and_b32 s72, s49, 0x7ff
        s_sub_u32 s72, 0x7ff, s72
        s_lshl_b32 s49, s72, 3
        s_add_u32 s49, s49, {WS_STAT}
        s_lshl_b32 s73, s72, 11
        s_lshl_b32 s59, s87, 7
        s_add_u32 s73, s73, s59
        s_lshl_b32 s59, s27, 5
        s_add_u32 s73, s73, s59
        v_lshlrev_b32 v7, 1, v{N15}
        v_mov_b32 v8, 0
        buffer_load_ushort v{XSV}, v7, s[8:11], s73 offen
        buffer_load_dwordx2 {vr(XST,2)}, v8, s[16:19], s49 offen sc1
        """)
        self.moe_masks(1, MSK, 2, 3, 7)
        self.col_off(1, 117, 2)
        def acc(b):
            def f(k):
                if k:
                    for h in (0, 2): A(f"v_pk_add_f32 {vr(b+h,2)}, {vr(b+h,2)}, {vr(b+4*k+h,2)}")
            return f
        def red81632(b):
            for k in range(4): A(f"v_add_f32_dpp v{b+k}, v{b+k}, v{b+k} row_ror:8 row_mask:0xf bank_mask:0xf")
            for wh in (16, 32):
                for k in range(4): A(f"v_mov_b32 v{b+4+k}, v{b+k}")
                for k in range(4): A(f"v_permlane{wh}_swap_b32 v{b+k}, v{b+4+k}")
                for h in (0, 2): A(f"v_pk_add_f32 {vr(b+h,2)}, {vr(b+h,2)}, {vr(b+4+h,2)}")
            self.tag(b, VM)
        def wo_items(ts):
            return [(f"s_add_u32 s82, s48, {t}\ns_and_b32 s82, s82, 31\ns_lshl_b32 s82, s82, 16\ns_add_u32 s82, s82, s81\ns_add_u32 m0, s80, {((t+16)%32)*4096}",
                     f"buffer_load_dwordx4 v{VWO}, s[92:95], s82 offen lds") for t in ts]
        def gu_compute():
            sk, xt, xk = self.lab("ng"), self.lab("xt"), self.lab("xk")
            A(f"""
            s_cmp_ge_u32 s3, {0 if O.get('nomoe') else 224}
            s_cbranch_scc1 {sk}
            s_mov_b32 s57, 0
            s_mov_b32 s58, 0x05040100
            {xt}:
            v_perm_b32 v2, v{XST+1}, v{XST}, s58
            v_cmp_ne_u32 vcc, s60, v2
            s_add_u32 s57, s57, 1
            s_nop 0
            s_cbranch_vccz {xk}
            s_cmp_ge_u32 s57, {SPIN_MAX}
            s_cbranch_scc1 {xk}
            v_mov_b32 v2, 0
            buffer_load_dwordx2 {vr(XST,2)}, v2, s[16:19], s49 offen sc1
            s_waitcnt vmcnt(0)
            s_branch {xt}
            {xk}:
            v_and_b32 v{XST}, 0xffff0000, v{XST}
            v_and_b32 v{XST+1}, 0xffff0000, v{XST+1}
            v_rcp_f32 v{XST+1}, v{XST+1}
            v_lshlrev_b32 v{XSV}, 16, v{XSV}
            v_sub_f32 v{XSV}, v{XSV}, v{XST}
            """)
            rnd_bf16(A, XSV)
            A(f"v_mul_f32 v{XSV}, v{XSV}, v{XST+1}\nv_cvt_pk_bf16_f32 v{XSV}, v{XSV}, v{XSV}\nv_lshrrev_b32 v2, 5, v1\nv_lshlrev_b32 v2, 2, v2")
            for t in range(8): A(f"ds_bpermute_b32 v{BP+t}, v2, v{XSV} offset:{8*t}")
            A(f"s_lshl_b32 s58, s27, 11\ns_add_u32 s58, s58, {L_GUS}\nv_add_u32 v3, s58, v117\ns_waitcnt lgkmcnt(0)")
            for t in range(8):
                ap = AP + 4*(t & 1)
                for r in range(4): A(f"v_and_b32 v{ap+r}, v{BP+t}, v{MSK+r}")
                for m in range(2):
                    A(f"{MF} {vr(DT+4*m,4)}, {vr(ap,4)}, {vr(GW+8*t+4*m,4)}, {'0' if t == 0 else vr(DT+4*m,4)}")
            A(f"""
            ds_write_b128 v3, {vr(DT,4)}
            ds_write_b128 v3, {vr(DT+4,4)} offset:1024
            v_and_b32 v2, 31, v1
            v_lshlrev_b32 v2, 4, v2
            s_lshl_b32 s58, s27, 9
            v_add_u32 v2, s58, v2
            v_add_u32 v3, {L_GUS}, v2
            s_waitcnt lgkmcnt(0)
            """)
            self.setflag(VFB, ONE, F_GU)
            self.spin(VF, F_GU, 7)
            for w in range(4): A(f"ds_read_b128 {vr(R+4*w,4)}, v3 offset:{2048*w}")
            A("s_waitcnt lgkmcnt(0)")
            for h in (0, 2): A(f"v_pk_add_f32 {vr(R+h,2)}, {vr(R+h,2)}, {vr(R+4+h,2)}\nv_pk_add_f32 {vr(R+8+h,2)}, {vr(R+8+h,2)}, {vr(R+12+h,2)}")
            for h in (0, 2): A(f"v_pk_add_f32 {vr(R+h,2)}, {vr(R+h,2)}, {vr(R+8+h,2)}")
            self.tag(R, VM)
            A(f"""
            v_cmp_gt_u32 vcc, 32, v1
            v_cndmask_b32 v2, v121, v2, vcc
            s_lshl_b32 s58, s3, 11
            s_add_u32 s58, s58, {WS_GUP}
            buffer_store_dwordx4 {vr(R,4)}, v2, s[16:19], s58 offen sc1
            {sk}:
            """)
        gupos = O["gupos"] if n0 == 16 else 2
        if gupos == 0:
            A("s_waitcnt vmcnt(0)"); gu_compute()
        self.stamp(4)
        if O["d1"]: A(f"s_sleep {O['d1']}")
        post1 = gu_items(range(n0, 16))
        kvl = [(f"s_add_u32 s58, s44, {8*KVS*t}", f"buffer_load_dwordx4 {vr(H1+4*t,4)}, v4, s[16:19], s58 offen sc1", H1+4*t) for t in range(4)]
        zl = [(None, f"buffer_load_dwordx4 {vr(H1+16+4*t,4)}, v5, s[16:19], s47 offen offset:{1024*t} sc1", H1+16+4*t) for t in range(4)]
        A(f"""
        s_and_b32 s58, s22, 7
        s_lshl_b32 s58, s58, 2
        s_add_u32 s58, s58, s27
        s_cmp_eq_u32 s58, 29
        s_cbranch_scc1 L_zwave
        """)
        self.gather(kvl, 56, acc(H1), post1)
        red81632(H1)
        A(f"""
        buffer_store_dwordx4 {vr(H1,4)}, v6, s[16:19], s46 offen sc1
        s_branch L_noz
        L_zwave:
        s_lshl_b32 s47, s45, 12
        s_add_u32 s47, s47, {WS_ZP}
        s_lshl_b32 s45, s45, 7
        s_add_u32 s45, s45, {WS_ZF}
        """)
        def both(k):
            if k < 4: acc(H1+16)(k)
            else: acc(H1)(k-4)
            if k == 3:
                red81632(H1+16); A(f"buffer_store_dwordx4 {vr(H1+16,4)}, v6, s[16:19], s45 offen sc1")
        self.gather(zl + kvl, 56, both, post1, 3)
        red81632(H1)
        A(f"buffer_store_dwordx4 {vr(H1,4)}, v6, s[16:19], s46 offen sc1\nL_noz:")
        if self.diag: A("v_writelane_b32 v127, s31, 12")
        self.stamp(5)
        if gupos == 1: gu_compute()
        H2, FR = 128, 144
        A(f"""
        s_xor_b32 s43, s43, 2
        s_lshl_b32 s46, s43, 12
        s_lshl_b32 s58, s36, 11
        s_add_u32 s46, s46, s58
        s_add_u32 s46, s46, {WS_KVF}
        s_lshl_b32 s45, s43, 7
        s_add_u32 s45, s45, {WS_ZF}
        v_lshlrev_b32 v4, 4, v{Q4}
        s_mul_i32 s58, s37, 3072
        s_add_u32 s58, s58, {L_KVX}
        v_add_u32 v5, s58, v120
        s_lshl_b32 s58, s36, 10
        v_add_u32 v6, s58, v5
        s_lshl_b32 s38, s28, 7
        s_lshl_b32 s58, s27, 5
        s_add_u32 s38, s38, s58
        s_lshl_b32 s39, s38, 11
        s_lshl_b32 s58, s29, 7
        s_add_u32 s39, s39, s58
        """)
        def cv(k):
            A(f"v_cvt_pk_bf16_f32 v{FR+2*k}, v{H2+4*k}, v{H2+4*k+1}\nv_cvt_pk_bf16_f32 v{FR+2*k+1}, v{H2+4*k+2}, v{H2+4*k+3}")
            if k == 1: A(f"ds_write_b128 v6, {vr(FR,4)}")
            if k == 3: A(f"ds_write_b128 v5, {vr(FR+4,4)} offset:2048")
        d2 = O["d2"] if gupos != 1 or O.get("nomoe") else O["d2g"]
        if d2: A(f"s_sleep {d2}")
        XR, ST2, S, U, E = 96, 16, 128, 24, 26
        xl = [(f"s_add_u32 s59, s39, {8*2048*t}", f"buffer_load_dwordx4 {vr(XR+4*t,4)}, v118, s[8:11], s59 offen") for t in range(4)]
        if gupos == 2: XR = 40; xl = [(p, t.replace(vr(96+4*k,4), vr(40+4*k,4))) for k, (p, t) in enumerate(xl)]
        tail2 = [] if O["wok"] else wo_items(range(16))
        self.gather([(None, f"buffer_load_dwordx4 {vr(H2+4*k,4)}, v120, s[16:19], s46 offen offset:{1024*k} sc1", H2+4*k) for k in range(2)] +
                    [(None, f"buffer_load_dwordx4 {vr(H2+8+4*k,4)}, v4, s[16:19], s45 offen offset:{64*k} sc1", H2+8+4*k) for k in range(2)], 56, cv, xl)
        A("s_waitcnt lgkmcnt(0)")
        self.setflag(VFB, ONE, F_KVX)
        if self.diag: A("v_writelane_b32 v127, s31, 13")
        self.stamp(6)
        A("s_setprio 0")
        if tail2: self.spin(VF, F_C7, 56)
        for pre, txt in tail2:
            if pre: A(pre)
            A(txt)
        if gupos == 2: gu_compute()
        for t in range(4): A(f"ds_read_b64 {vr(ST2+2*t,2)}, v119 offset:{64*t}")
        A(f"s_waitcnt vmcnt({len(tail2)}) lgkmcnt(0)")
        for t in range(4):
            m = ST2 + 2*t
            A(f"v_mov_b32 v{E}, v{m+1}")
            for k in range(4):
                x = XR + 4*t + k; d = S + 8*t + 2*k
                A(f"""
                v_lshlrev_b32 v{d}, 16, v{x}
                v_and_b32 v{d+1}, 0xffff0000, v{x}
                v_pk_add_f32 {vr(U,2)}, {vr(d,2)}, {vr(m,2)} op_sel_hi:[1,0] neg_lo:[0,1] neg_hi:[0,1]
                v_cvt_pk_bf16_f32 v{U+1}, v{U}, v{U+1}
                v_lshlrev_b32 v{U}, 16, v{U+1}
                v_and_b32 v{U+1}, 0xffff0000, v{U+1}
                v_pk_mul_f32 {vr(U,2)}, {vr(U,2)}, {vr(E,2)} op_sel_hi:[1,0]
                v_cvt_pk_bf16_f32 v{U+1}, v{U}, v{U+1}
                v_lshlrev_b32 v{U}, 16, v{U+1}
                v_and_b32 v{U+1}, 0xffff0000, v{U+1}
                v_pk_add_f32 {vr(d,2)}, {vr(d,2)}, {vr(U,2)}
                """)
        if tail2:
            A("s_waitcnt vmcnt(0)"); self.setflag(VFB, ONE, F_WOK)
        G = 32
        A(f"""
        s_cmp_ge_u32 s3, {0 if O.get('nomoe') else 224}
        s_cbranch_scc1 L_noh
        s_cmp_lg_u32 s27, 0
        s_cbranch_scc1 L_noh
        v_lshrrev_b32 v2, 2, v1
        v_lshlrev_b32 v2, 11, v2
        v_and_b32 v3, 3, v1
        v_lshl_add_u32 v2, v3, 4, v2
        s_lshr_b32 s58, s3, 4
        s_lshl_b32 s58, s58, 15
        s_lshl_b32 s59, s87, 6
        s_add_u32 s58, s58, s59
        s_add_u32 s58, s58, {WS_GUP}
        """)
        self.gather([(None, f"buffer_load_dwordx4 {vr(G+4*k,4)}, v2, s[16:19], s58 offen offset:{1024*k} sc1", G+4*k) for k in range(2)], 56)
        for r in (8, 4):
            for k in range(8): A(f"v_add_f32_dpp v{G+k}, v{G+k}, v{G+k} row_ror:{r} row_mask:0xf bank_mask:0xf")
        for wh in (16, 32):
            for k in range(8): A(f"v_mov_b32 v{G+8+k}, v{G+k}")
            for k in range(8): A(f"v_permlane{wh}_swap_b32 v{G+k}, v{G+8+k}")
            for h in range(0, 8, 2): A(f"v_pk_add_f32 {vr(G+h,2)}, {vr(G+h,2)}, {vr(G+8+h,2)}")
        for k in range(8): A(f"v_cvt_pk_bf16_f32 v{G+k}, v{G+k}, v{G+k}")
        for k in range(8): A(f"v_lshlrev_b32 v{G+k}, 16, v{G+k}")
        for k in range(4): A(f"v_mul_f32 v{G+8+k}, {hex(LOG2E | 0x80000000)}, v{G+k}")
        for k in range(4): A(f"v_exp_f32 v{G+8+k}, v{G+8+k}")
        for k in range(4): A(f"v_add_f32 v{G+8+k}, 1.0, v{G+8+k}")
        for k in range(4): A(f"v_rcp_f32 v{G+8+k}, v{G+8+k}")
        for k in range(4): A(f"v_mul_f32 v{G+k}, v{G+k}, v{G+8+k}")
        for k in range(4): A(f"v_cvt_pk_bf16_f32 v{G+k}, v{G+k}, v{G+k}")
        for k in range(4): A(f"v_lshlrev_b32 v{G+k}, 16, v{G+k}")
        for k in range(4): A(f"v_mul_f32 v{G+k}, v{G+k}, v{G+4+k}")
        for k in range(4): A(f"v_cvt_pk_bf16_f32 v{G+k}, v{G+k}, v{G+k}")
        A(f"""
        v_add_u32 v2, {L_HT}, v120
        s_mov_b64 exec, 15
        ds_write_b128 v2, {vr(G,4)}
        s_mov_b64 exec, 1
        s_waitcnt lgkmcnt(0)
        ds_write_b32 v{VF}, v{ONE} offset:{F_H}
        s_mov_b64 exec, -1
        L_noh:
        """)
        self.stamp(14)
        self.spin(VF, F_AR, 7)
        for pre, txt in wo_items(range(16, 32)): A(pre); A(txt)
        G2 = 160
        B2 = lambda slot, ks: 80 + slot*8 + ks*4
        NW = O["nw"]
        OW = ([16 + 8*k for k in range(8)] + [192 + 8*k for k in range(7)])[:NW]
        VW = 112
        A(f"""
        v_lshl_add_u32 v{VW+2}, v{Q4}, 9, v10
        v_xor_b32 v{VW+3}, 32, v{VW+2}
        v_add_u32 v{VW}, 0x10000, v{VW+2}
        v_add_u32 v{VW+1}, 0x10000, v{VW+3}
        v_add_u32 v116, 32768, v120
        s_lshl_b32 s47, s28, 3
        s_lshl_b32 s58, s27, 1
        s_add_u32 s47, s47, s58
        s_lshl_b32 s47, s47, 15
        v_lshlrev_b32 v117, 7, v{N15}
        s_lshl_b32 s50, s28, 2
        s_add_u32 s50, s50, s27
        s_lshl_b32 s50, s50, 11
        s_add_u32 s50, s50, {WS_OF}
        """)
        self.spin(VF, F_WOK, 4)
        A("s_setprio 3")
        self.stamp(7)
        A(f"""
        s_sleep {O["d3"]}
        s_mov_b32 s57, 0
        L_s3:
        buffer_load_dword v4, v117, s[16:19], s50 offen sc1
        s_waitcnt vmcnt(0)
        v_cmp_ne_u32 vcc, s60, v4
        s_add_u32 s57, s57, 1
        s_nop 0
        s_cbranch_vccz L_s3d
        s_sleep {O["sleep3"]}
        s_cmp_lt_u32 s57, {SPIN_MAX}
        s_cbranch_scc1 L_s3
        L_s3d:
        """)
        self.setflag(VFB, ONE, F_WOA)
        self.stamp(8)
        V = VmTracker(A)
        def oload(u):
            t, rf = u >> 1, u & 1
            if u % 8 == 0:
                A(f"s_add_u32 s58, s48, {t}\ns_and_b32 s58, s58, 31\ns_lshl_b32 s58, s58, 10\ns_add_u32 s51, s58, s47")
            V.issue(f"buffer_load_dwordx4 {vr(OW[t % NW]+4*rf,4)}, v{116 if rf else 120}, s[16:19], s51 offen offset:{(t&3)*1024} sc1", ("o", t))
        PRE = O["pre"]
        for u in range(2*PRE): oload(u)
        L = LgkmTracker(A)
        def wreads(pr, nf):
            return [(f"ds_read_b64_tr_b16 {vr(B2(nf,ks)+2*rd,2)}, v{VW + (nf&1) + 2*((2*pr+ks)>>4)} offset:{((2*pr+ks)&15)*4096 + rd*2048 + (nf>>1)*256}", ("W",pr,nf))
                    for ks in range(2) for rd in range(2)]
        for nf in range(3):
            for x in wreads(0, nf): L.issue(*x)
        nxt = 2*PRE
        for pr in range(16):
            for nf in range(4):
                g = pr*4 + nf + 3
                if g == 32:
                    L.need({("CA",)}); self.check(VF, F_WOA, 4)
                w = wreads(g//4, g % 4) if g < 64 else []
                if nf == 0: V.need({("o", 2*pr), ("o", 2*pr+1)})
                L.need({("W",pr,nf)})
                for j,(rf,ks) in enumerate(CH4):
                    acc_ = G2 + (rf*4+nf)*4
                    c = "0" if (pr == 0 and j % 2 == 0) else vr(acc_,4)
                    A(f"{MF} {vr(acc_,4)}, {vr(B2(nf,ks),4)}, {vr(OW[(2*pr+ks) % NW]+4*rf,4)}, {c}")
                    if w: L.issue(*w.pop(0))
                    if j == 1:
                        for _ in range(2 if (nxt >> 1) < 2*pr + NW - 2 else 1):
                            if nxt < 64 and (nxt >> 1) - NW <= 2*pr - 1:
                                oload(nxt); nxt += 1
                if g == 30: L.issue(f"ds_read_b32 v4, v{VF} offset:{F_WOA}", ("CA",))
                if pr == 3 and nf == 0:
                    A("s_mov_b64 exec, 1"); L.issue(f"ds_write_b8 v{VFB}, v{ONE} offset:{F_G8}", ("F",)); A("s_mov_b64 exec, -1")
                if pr == 14 and nf == 0:
                    L.issue(f"ds_read_b32 v4, v{VF} offset:{F_G8}", ("CG",))
        assert nxt == 64
        self.stamp(9)
        A(f"""
        s_mul_i32 s58, s27, 4608
        s_add_u32 s58, s58, {L_TR}
        v_mul_u32_u24 v2, 144, v{N15}
        v_lshl_add_u32 v2, v{Q4}, 3, v2
        v_add_u32 v2, s58, v2
        v_lshrrev_b32 v3, 3, v1
        v_mul_u32_u24 v3, 144, v3
        v_and_b32 v7, 7, v1
        v_lshl_add_u32 v3, v7, 4, v3
        v_add_u32 v3, s58, v3
        """)
        L.drain()
        self.check(VF, F_G8, 4)
        for rf in range(2):
            for nf in range(4):
                a = G2 + (rf*4+nf)*4; d = 16 + (rf*4+nf)*2
                A(f"v_cvt_pk_bf16_f32 v{d}, v{a}, v{a+1}\nv_cvt_pk_bf16_f32 v{d+1}, v{a+2}, v{a+3}")
                A(f"ds_write_b64 v2, {vr(d,2)} offset:{rf*16*144 + nf*32}")
        A("s_waitcnt lgkmcnt(0)")
        for t in range(4): A(f"ds_read_b128 {vr(32+4*t,4)}, v3 offset:{t*8*144}")
        A(f"""
        s_sub_u32 s52, s72, s38
        s_cmp_lt_u32 s52, {0 if O.get("nomoe") else 32}
        s_cbranch_scc0 L_no_moe
        """)
        self.spin(VF, F_YF, 5, 1)
        A(f"v_lshlrev_b32 v4, 5, v7\nv_add_u32 v4, {L_YF}, v4\nds_read_b128 v[48:51], v4\nds_read_b128 v[52:55], v4 offset:16\nv_lshrrev_b32 v5, 3, v1\ns_waitcnt lgkmcnt(0)")
        for t in range(4):
            A(f"v_add_u32 v7, {8*t}, v5\nv_cmp_eq_u32 vcc, s52, v7")
            for k in range(8): A(f"v_cndmask_b32 v56, 0, v{48+k}, vcc\nv_add_f32 v{S+8*t+k}, v{S+8*t+k}, v56")
        A("L_no_moe:\ns_waitcnt lgkmcnt(0)")
        for t in range(4):
            for k in range(4):
                a = 32 + 4*t + k; s_ = S + 8*t + 2*k; u_ = 60 + 2*(k & 1)
                A(f"v_lshlrev_b32 v{u_}, 16, v{a}\nv_and_b32 v{u_+1}, 0xffff0000, v{a}\nv_pk_add_f32 {vr(u_,2)}, {vr(u_,2)}, {vr(s_,2)}\nv_cvt_pk_bf16_f32 v{a}, v{u_}, v{u_+1}")
            A(f"buffer_store_dwordx4 {vr(32+4*t,4)}, v118, s[32:35], s39 offen {O['ost']}")
            if t < 3: A(f"s_add_u32 s39, s39, {8*2048}")
        self.stamp(10)
        self.stamp_out()
        A("L_end:\ns_endpgm")
        for t in self.slow: A(t)
        self.slow = []

    def k_tables(self):
        q = [f"s_lshl_b32 s58, s36, 8\nv_lshl_add_u32 v2, v13, 4, s58", f"v_add_u32 v2, {L_M}, v2", f"s_lshl_b32 s58, s37, 7\nv_lshl_add_u32 v3, v12, 2, s58", f"v_add_u32 v3, {L_CS}, v3"]
        q += [f"ds_read_b32 v{40+2*cf}, v3 offset:{(cf>>1)*256 + (cf&1)*64}" for cf in range(4)]
        q += [f"ds_read_b32 v41, v122 offset:{F_NON}", f"ds_read_b32 v43, v122 offset:{F_SEL}"]
        for rf in range(2):
            q += [f"ds_read_b128 {vr((16,28)[rf]+4*k,4)}, v2 offset:{64*rf + off}" for k, off in enumerate((0, L_RL - L_M, L_RI - L_M))]
        return q

    def build(self):
        self.prologue()
        self.helper()
        self.kwave()
        body = hazard.fix(self.A.lines)
        hdr = open(os.path.join(os.path.dirname(os.path.abspath(__file__)), "header.txt")).read()
        out = hdr + f"; @launch grid=(256,1,1) block=(512,1,1) lds={LDS_SIZE}\n"
        out += f""".amdgcn_target "amdgcn-amd-amdhsa--gfx950"
.text
.globl {NAME}_kernel
.p2align 8
.type {NAME}_kernel,@function
{NAME}_kernel:
"""
        out += "\n".join(body) + "\n"
        out += f""".section .rodata,"a"
.p2align 6
.amdhsa_kernel {NAME}_kernel
  .amdhsa_next_free_vgpr 256
  .amdhsa_next_free_sgpr 102
  .amdhsa_accum_offset 256
  .amdhsa_group_segment_fixed_size 0
  .amdhsa_kernarg_size 88
  .amdhsa_user_sgpr_count 2
  .amdhsa_user_sgpr_kernarg_segment_ptr 1
  .amdhsa_system_sgpr_workgroup_id_x 1
  .amdhsa_float_denorm_mode_32 3
.end_amdhsa_kernel
"""
        return out

if __name__ == "__main__":
    diag = "--diag" in sys.argv
    out = [a for a in sys.argv[1:] if not a.startswith("--")]
    path = out[0] if out else f"cdna_kernels/{NAME}.s"
    kw = {}
    for a in sys.argv[1:]:
        if a.startswith("--") and "=" in a:
            k_, v_ = a[2:].split("="); kw[k_] = eval(v_)
    open(path, "w").write(Gen(diag=diag, **kw).build())
    print("wrote", path)
```

```python
import sys, os
sys.path.insert(0, os.path.dirname(os.path.abspath(__file__)))
from asmlib import *
import hazard

NAME = "parallel_sum__linear_attn_block__moe_arch_mod__prompt"
WS_O, WS_ZP, WS_STAT, WS_KEY, WS_OF = 0x000000, 0x800000, 0x830000, 0x834000, 0x840000
WS_KVF, WS_ZF, WS_CSP, WS_YP, WS_DIAG, WS_GUP, WS_KVP = 0x860000, 0x880000, 0x8A0000, 0x900000, 0xA00000, 0xA80000, 0xB00000
KVS = 4096 + 128
WS_SIZE = 0x1000000
OOB = 0x40000000
L_A, L_KV = 0, 65536
L_M, L_RI, L_RL, L_CS, L_FL = 131072, 131584, 132096, 132608, 133376
L_HT, L_YT, L_YF, L_ST2, L_KVX = 133632, 133888, 134912, 135168, 136192
L_GUS = L_KVX + 6144
L_QCS = L_GUS + 8192
LDS_SIZE = L_QCS + 8192
L_TR = L_KV
F_WOA, F_WOK, F_GU, F_Y, F_GUP, F_KVX, F_G8, F_QL, F_C7, F_C15, F_PUB, F_YF, F_H, F_SEL, F_NON, F_KEY, F_ST, F_AR = 0, 4, 8, 12, 16, 20, 24, 28, 52, 56, 60, 64, 68, 72, 76, 80, 96, 160
ALL4 = 0x01010101
SPIN_MAX = 1 << 15
LOG2E, LN2, EPSL = 0x3fb8aa3b, 0x3f317218, 0x35c1a2a0

def order_tables():
    out = []
    for q in range(4):
        seq = [q]
        for g in range(4):
            others = [4*g + p for p in range(4) if p != q]
            oi = 0
            for sl in range(4):
                if sl == q and g < 3: seq.append(4*(g+1)+q)
                elif oi < 3: seq.append(others[oi]); oi += 1
        assert sorted(seq) == list(range(16))
        out.append(seq)
    return out
def pack4(seq):
    v = 0
    for i, c in enumerate(seq): v |= c << (4*i)
    return v
def srd(A, d, lo, size):
    A(f"s_mov_b32 s{d}, s{lo}\ns_mov_b32 s{d+1}, s{lo+1}\ns_mov_b32 s{d+2}, {hex(size)}\ns_mov_b32 s{d+3}, 0x20000")
def red_row(A, v, op="v_add_f32"):
    for r in (8, 4, 2, 1):
        A(f"{op}_dpp v{v}, v{v}, v{v} row_ror:{r} row_mask:0xf bank_mask:0xf")
def red_swap(A, v, t, which, op="v_add_f32"):
    A(f"v_mov_b32 v{t}, v{v}\nv_permlane{which}_swap_b32 v{v}, v{t}\n{op} v{v}, v{v}, v{t}")
def unpack(A, dlo, dhi, s):
    A(f"v_lshlrev_b32 v{dlo}, 16, v{s}\nv_and_b32 v{dhi}, 0xffff0000, v{s}")
def rnd_bf16(A, v):
    A(f"v_cvt_pk_bf16_f32 v{v}, v{v}, v{v}\nv_lshlrev_b32 v{v}, 16, v{v}")
MF = "v_mfma_f32_16x16x32_bf16"
CH4 = ((0,0),(0,1),(1,1),(1,0))

class Gen:
    def __init__(self, diag=False, **kw):
        self.A = Asm()
        self.diag = diag
        self.nlab = 0
        self.opt = dict(gate=1, d1=20, d2=12, d3=8, d4=8, sleep=10, sleep3=4, kprio=0, hprio=3, kprio2=3, hprio2=0, hprio3=3, nw=8, pre=4, ost="sc1", wopf=1,
                        ahead=3, pfat=13, early=1, sxd=4, stat_beg=-1, stat_end=0, runs=[(2, 8), (6, 8)], ngroups=4, gstep=1, runpos=13, gupos=1, dwat=26, wok=0, d2g=0, d5=40, s1at=12)
        self.opt.update(kw)
        self.slow = []
    def lab(self, p):
        self.nlab += 1
        return f"L_{p}{self.nlab}"
    def stamp(self, slot):
        if not self.diag: return
        if self.sreg is None:
            self.A(f"s_memrealtime s[98:99]\ns_waitcnt lgkmcnt(0)\ns_mov_b32 s{self.spark[slot]}, s98"); return
        self.A(f"s_memrealtime s[100:101]\ns_waitcnt lgkmcnt(0)\nv_writelane_b32 v{self.sreg}, s100, {slot}")
    def dbg_max(self, word, inv=False):
        if not self.opt.get("span"): return
        sk = self.lab("dm")
        self.A(f"""
        s_and_b32 s96, s2, 0x31
        s_add_u32 s96, s96, s27
        s_cmp_eq_u32 s96, 0
        s_cbranch_scc0 {sk}
        s_memrealtime s[100:101]
        v_lshlrev_b32 v2, 20, v1
        s_mov_b32 s96, s74
        s_mov_b32 s97, s75
        s_mov_b32 s98, 256
        s_mov_b32 s99, 0x20000
        s_waitcnt lgkmcnt(0)
        {"s_not_b32 s100, s100" if inv else ""}
        v_mov_b32 v3, s100
        buffer_atomic_umax v3, v2, s[96:99], 0 offen offset:{4*word}
        {sk}:
        """)
    def stamp_out(self):
        if not self.diag: return
        self.A(f"""
        s_lshl_b32 s56, s2, 3
        s_xor_b32 s57, s26, 4
        s_add_u32 s56, s56, s57
        s_lshl_b32 s56, s56, 8
        s_add_u32 s56, s56, {WS_DIAG}
        v_mbcnt_lo_u32_b32 v2, -1, 0
        v_mbcnt_hi_u32_b32 v2, -1, v2
        v_lshlrev_b32 v3, 2, v2
        buffer_store_dword v{self.sreg}, v3, s[16:19], s56 offen
        """)
    def nonce_setup(self):
        self.A("s_lshr_b32 s61, s60, 8\ns_lshr_b32 s62, s60, 16\ns_lshr_b32 s63, s60, 24\ns_mov_b32 s64, 0x0c0c0400\ns_mov_b32 s65, 0x04000c0c")
    def tag(self, base, vmask):
        for k in range(4): self.A(f"v_bfi_b32 v{base+k}, v{vmask}, s{60+k}, v{base+k}")
    def setflag(self, vaddr, vone, off):
        self.A(f"s_mov_b64 exec, 1\nds_write_b8 v{vaddr}, v{vone} offset:{off}\ns_mov_b64 exec, -1")
    def spin(self, vbase, off, tmp, want=ALL4):
        A = self.A
        top, done = self.lab("sl"), self.lab("sld")
        A(f"""
        s_mov_b32 s57, 0
        {top}:
        ds_read_b32 v{tmp}, v{vbase} offset:{off}
        s_waitcnt lgkmcnt(0)
        v_cmp_ne_u32 vcc, {hex(want)}, v{tmp}
        s_add_u32 s57, s57, 1
        s_nop 0
        s_cbranch_vccz {done}
        s_sleep 1
        s_cmp_lt_u32 s57, {SPIN_MAX*8}
        s_cbranch_scc1 {top}
        {done}:
        """)
    def check(self, vbase, off, tmp):
        A = self.A
        sl, bk, sp = self.lab("cs"), self.lab("cb"), self.lab("cp")
        A(f"v_cmp_ne_u32 vcc, {hex(ALL4)}, v{tmp}\ns_nop 1\ns_cbranch_vccnz {sl}\n{bk}:")
        self.slow.append(f"""
        {sl}:
        s_mov_b32 s57, 0
        {sp}:
        ds_read_b32 v{tmp}, v{vbase} offset:{off}
        s_waitcnt lgkmcnt(0)
        v_cmp_ne_u32 vcc, {hex(ALL4)}, v{tmp}
        s_add_u32 s57, s57, 1
        s_nop 0
        s_cbranch_vccz {bk}
        s_cmp_lt_u32 s57, {SPIN_MAX*16}
        s_cbranch_scc1 {sp}
        s_branch {bk}
        """)
    def gather(self, loads, tmp, after=None, post=(), store_after=None, light=False):
        A = self.A
        n = len(loads)
        for pre, txt, c in loads:
            if pre: A(pre)
            A(txt)
        for pre, txt in post:
            if pre: A(pre)
            A(txt)
        if self.diag: A("s_mov_b32 s31, 0")
        for k, (pre, txt, c) in enumerate(loads):
            ok, top, re_ = self.lab("gk"), self.lab("gt"), self.lab("gr")
            chk = f"""
            v_perm_b32 v{tmp}, v{c+1}, v{c}, s64
            v_perm_b32 v{tmp+1}, v{c+3}, v{c+2}, s65
            v_or_b32 v{tmp}, v{tmp}, v{tmp+1}
            v_cmp_ne_u32 vcc, s60, v{tmp}
            """
            A(f"s_waitcnt vmcnt({n-1-k+len(post)+(1 if store_after is not None and k > store_after else 0)})")
            A(chk)
            A(f"s_mov_b32 s57, 0\ns_nop 0\ns_cbranch_vccz {ok}\n{top}:\ns_sleep {self.opt['sleep']}")
            for pre2, txt2, c2 in (loads[k:k+1] if light else loads[k:]):
                if pre2: A(pre2)
                A(txt2)
            A("s_waitcnt vmcnt(0)")
            if self.diag: A("s_add_u32 s31, s31, 1")
            A(chk)
            A(f"s_add_u32 s57, s57, 1\ns_nop 0\ns_cbranch_vccz {re_ if light else ok}\ns_cmp_lt_u32 s57, {SPIN_MAX}\ns_cbranch_scc1 {top}")
            if light:
                A.label(re_)
                for pre2, txt2, c2 in loads[k+1:]:
                    if pre2: A(pre2)
                    A(txt2)
            A.label(ok)
            for r in range(4): A(f"v_and_b32 v{c+r}, 0xffffff00, v{c+r}")
            if after: after(k)
    def phi4(self, a, m, m_b, c, c_b, rl, rl_b, dst, U, E, sc=40):
        A = self.A
        def o(r, b, h): return (vr(r,2), 0) if b else (vr(r+h,2), 1)
        for h in (0, 2):
            (pm, mh), (pc, ch) = o(m, m_b, h), o(c, c_b, h)
            A(f"v_pk_fma_f32 {vr(U+h,2)}, {pm}, {pc}, {vr(a+h,2)} op_sel_hi:[{mh},{ch},1] neg_lo:[1,0,0] neg_hi:[1,0,0]")
        for h in (0, 2):
            p, hi = o(rl, rl_b, h)
            A(f"v_pk_mul_f32 {vr(U+h,2)}, {vr(U+h,2)}, {p} op_sel_hi:[1,{hi}]")
        for k in range(4): A(f"v_exp_f32 v{E+k}, v{U+k} clamp")
        for k in range(4): A(f"v_max_f32 v{U+k}, s{sc+2}, v{U+k}")
        for h in (0, 2): A(f"v_pk_fma_f32 {vr(U+h,2)}, {vr(U+h,2)}, s[{sc}:{sc+1}], {vr(E+h,2)}")
        A(f"v_cvt_pk_bf16_f32 v{dst}, v{U}, v{U+1}\nv_cvt_pk_bf16_f32 v{dst+1}, v{U+2}, v{U+3}")

    def order_setup(self):
        A = self.A
        tabs = [pack4(o) for o in order_tables()]
        A(f"s_sub_u32 s74, s24, s25\ns_and_b32 s74, s74, 3\ns_mov_b32 s76, {tabs[0] & 0xffffffff}\ns_mov_b32 s77, {tabs[0] >> 32}")
        for q in range(1, 4):
            A(f"s_cmp_eq_u32 s74, {q}\ns_cselect_b32 s76, {tabs[q] & 0xffffffff}, s76\ns_cselect_b32 s77, {tabs[q] >> 32}, s77")
        A(f"""
        s_lshl_b32 s75, s30, 1
        {"s_add_u32 s75, s75, s31" if self.opt.get("rot", 1) else ""}
        {"s_add_u32 s75, s75, %d" % self.opt["radd"] if self.opt.get("radd") else ""}
        s_lshl_b32 s75, s75, 2
        s_lshl_b32 s58, s23, 7
        s_xor_b32 s58, s58, 128
        s_mul_i32 s79, s27, {8*6144}
        s_add_u32 s79, s79, s58
        s_lshl_b32 s80, s27, 10
        """)
    def qpair(self, p, vq):
        base = (L_KV + p*16384) if p < 4 else (L_A + (p-4)*16384)
        out = []
        for par in range(2):
            pre = f"s_and_b32 s84, s72, 15\ns_lshr_b64 s[72:73], s[72:73], 4\ns_add_u32 s84, s84, s75\ns_and_b32 s84, s84, 15\ns_mul_i32 s84, s84, {64*6144}\ns_add_u32 s84, s84, s79"
            for pc in range(2):
                out.append(((pre if pc == 0 else f"s_add_u32 s84, s84, {32*6144}") + f"\ns_add_u32 m0, s86, {base + par*2048 + pc*1024}",
                            f"buffer_load_dwordx4 v{vq}, s[12:15], s84 offen lds", ("q", p)))
        return out
    def moe_masks(self, VL, MSK, a, b, c):
        A = self.A
        A(f"""
        v_and_b32 v{a}, 1, v{VL}
        v_mov_b32 v{b}, 0xffff
        v_mov_b32 v{c}, 0xffff0000
        v_cmp_eq_u32 vcc, 1, v{a}
        v_cndmask_b32 v{b}, v{b}, v{c}, vcc
        v_lshrrev_b32 v{a}, 1, v{VL}
        v_xor_b32 v{a}, v{a}, v{VL}
        v_and_b32 v{a}, 8, v{a}
        v_cmp_eq_u32 vcc, 0, v{a}
        v_cndmask_b32 v{b}, 0, v{b}, vcc
        v_bfe_u32 v{a}, v{VL}, 1, 2
        """)
        for r in range(4): A(f"v_cmp_eq_u32 vcc, {r}, v{a}\nv_cndmask_b32 v{MSK+r}, 0, v{b}, vcc")
    def col_off(self, VL, d, a):
        self.A(f"""
        v_and_b32 v{a}, 15, v{VL}
        v_lshlrev_b32 v{d}, 5, v{a}
        v_bfe_u32 v{a}, v{VL}, 4, 1
        v_lshl_add_u32 v{d}, v{a}, 4, v{d}
        v_lshrrev_b32 v{a}, 5, v{VL}
        v_lshl_add_u32 v{d}, v{a}, 9, v{d}
        """)

    def prologue(self):
        A = self.A
        A(f"""
        s_cmp_ge_u32 s2, 256
        s_cbranch_scc1 L_end
        s_load_dwordx4 s[4:7], s[0:1], 0
        s_load_dwordx2 s[56:57], s[0:1], 16
        s_load_dwordx8 s[60:67], s[0:1], 32
        s_load_dwordx4 s[68:71], s[0:1], 64
        s_load_dwordx2 s[72:73], s[0:1], 80
        v_lshrrev_b32 v2, 6, v0
        v_and_b32 v1, 63, v0
        s_and_b32 s20, s2, 7
        v_readfirstlane_b32 s26, v2
        s_lshr_b32 s21, s2, 3
        s_and_b32 s24, s21, 7
        s_lshr_b32 s25, s21, 3
        s_and_b32 s30, s20, 1
        s_lshl_b32 s22, s30, 3
        s_add_u32 s22, s22, s24
        s_lshr_b32 s31, s20, 1
        s_lshl_b32 s23, s31, 2
        s_add_u32 s23, s23, s25
        s_and_b32 s27, s26, 3
        s_lshl_b32 s28, s30, 3
        s_and_b32 s58, s31, 1
        s_lshl_b32 s58, s58, 2
        s_add_u32 s28, s28, s58
        s_and_b32 s58, s21, 3
        s_add_u32 s28, s28, s58
        s_lshr_b32 s29, s20, 2
        s_lshl_b32 s29, s29, 3
        s_lshr_b32 s58, s21, 2
        s_add_u32 s29, s29, s58
        s_cmp_gt_u32 s23, 3
        s_subb_u32 s33, s23, 0
        s_cmp_gt_u32 s23, 11
        s_subb_u32 s33, s33, 0
        s_lshl_b32 s33, s33, 4
        s_add_u32 s33, s33, s22
        s_and_b32 s58, s23, 7
        s_cmp_eq_u32 s58, 3
        s_cselect_b32 s3, 255, s33
        s_waitcnt lgkmcnt(0)
        """)
        srd(A, 8, 4, 0x400000)
        srd(A, 12, 6, 0x600000)
        srd(A, 16, 72, WS_SIZE)
        if self.opt["stat_beg"] < 0:
            A("s_cmp_ge_u32 s26, 4\ns_cbranch_scc1 L_helper")
            self.stat_loads()
            A("s_branch L_kwave\nL_helper:")
        else:
            A("s_cmp_lt_u32 s26, 4\ns_cbranch_scc1 L_kwave")

    def helper(self):
        A0 = self.A
        A = V = self.A = Switch(A0)
        O = self.opt
        self.sreg, self.spark = None, {1: 96, 2: 94, 16: 97, 17: 20, 18: 21}
        VF, VQ, VAS, VQo, VT = 0, 2, 4, 6, 7
        BR, ACC, ST = 8, 32, 64
        VAo, VKVo, VL16, VOOB, VM = 62, 63, 61, 60, 59
        srd(A, 48, 70, 256)
        A(f"""
        s_or_b32 s58, s2, s27
        s_cmp_eq_u32 s58, 0
        s_cbranch_scc0 L_notag
        s_memrealtime s[58:59]
        v_lshlrev_b32 v2, 20, v1
        s_waitcnt lgkmcnt(0)
        s_lshl_b32 s58, s58, 1
        s_or_b32 s58, s58, 1
        v_mov_b32 v3, s58
        buffer_store_dword v3, v2, s[48:51], 0 offen sc1
        L_notag:
        v_lshrrev_b32 v10, 3, v1
        v_lshrrev_b32 v11, 4, v1
        s_and_b32 s58, s27, 1
        s_lshl_b32 s59, s58, 2
        v_add_u32 v12, s59, v11
        v_and_b32 v13, 7, v1
        v_xor_b32 v12, v12, v13
        v_lshlrev_b32 v10, 11, v10
        v_lshl_add_u32 v{VAo}, v12, 4, v10
        v_and_b32 v14, 3, v1
        v_lshlrev_b32 v14, 4, v14
        v_bfe_u32 v15, v1, 4, 1
        v_lshl_add_u32 v14, v15, 6, v14
        v_bfe_u32 v15, v1, 2, 2
        v_lshrrev_b32 v16, 5, v1
        v_mul_u32_u24 v17, 6144, v15
        v_add_u32 v17, v17, v14
        v_lshl_add_u32 v{VKVo}, v16, 11, v17
        v_mul_u32_u24 v16, {4*6144}, v16
        v_add_u32 v{VQo}, v16, v17
        s_lshr_b32 s59, s27, 1
        s_lshl_b32 s59, s59, 5
        v_xor_b32 v{VKVo}, s59, v{VKVo}
        s_lshl_b32 s59, s58, 5
        v_xor_b32 v{VQo}, s59, v{VQo}
        """)
        self.order_setup()
        A(f"""
        s_mov_b64 s[72:73], s[76:77]
        s_lshl_b32 s58, s23, 7
        s_mul_i32 s78, s27, {4*6144}
        s_add_u32 s78, s78, s58
        s_add_u32 s78, s78, 2048
        s_lshl_b32 s86, s27, 12
        s_lshl_b32 s81, s22, 7
        s_lshl_b32 s58, s27, 3
        s_add_u32 s81, s81, s58
        s_lshl_b32 s81, s81, 11
        """)
        def stage(s, atoms=(), k0=0):
            slot = s % 4
            atoms = list(atoms)
            per = -(-len(atoms) // (8 - k0))
            cnt = [0]
            def fill():
                cnt[0] += 1
                if cnt[0] <= k0: return
                for _ in range(per):
                    if atoms: replay(atoms.pop(0), A0, V.V)
            A(f"""
            s_and_b32 s82, s76, 15
            s_lshr_b64 s[76:77], s[76:77], 4
            s_add_u32 s82, s82, s75
            s_and_b32 s82, s82, 15
            s_mul_i32 s83, s82, {64*6144}
            s_lshl_b32 s82, s82, 7
            s_add_u32 s82, s82, s81
            s_add_u32 s83, s83, s78
            """)
            for p in range(4):
                A(f"s_add_u32 m0, s80, {L_A + slot*16384 + p*4096}")
                V.issue(f"buffer_load_dwordx4 v{VAo}, s[8:11], s82 offen lds", ("st", s)); fill()
                A(f"s_add_u32 s82, s82, {32*2048}\ns_add_u32 m0, s80, {L_KV + slot*16384 + p*4096}")
                V.issue(f"buffer_load_dwordx4 v{VKVo}, s[12:15], s83 offen lds", ("st", s)); fill()
                A(f"s_add_u32 s83, s83, {16*6144}")
        qpair = lambda p: self.qpair(p, VQo)
        stage(0)
        A(f"s_setprio {O['hprio']}")
        srd(A, 32, 56, 0x200000)
        srd(A, 44, 66, 0x700000)
        CF, CA, ONES, VC, T = 200, 224, 236, 240, 244
        A(f"""
        v_and_b32 v12, 15, v1
        v_lshrrev_b32 v13, 4, v1
        v_lshlrev_b32 v14, 7, v12
        v_add_u32 v14, s86, v14
        v_bfe_u32 v15, v12, 1, 3
        v_xor_b32 v10, v13, v15
        v_lshl_add_u32 v{VAS}, v10, 4, v14
        v_add_u32 v10, 4, v13
        v_xor_b32 v10, v10, v15
        v_lshl_add_u32 v{VAS+1}, v10, 4, v14
        v_bfe_u32 v10, v1, 2, 2
        v_lshlrev_b32 v10, 6, v10
        v_and_b32 v11, 3, v1
        v_lshl_add_u32 v10, v11, 3, v10
        v_and_b32 v11, 1, v13
        v_lshl_add_u32 v10, v11, 5, v10
        v_lshl_add_u32 v{VQ}, v13, 12, v10
        v_add_u32 v{VQ}, {L_KV}, v{VQ}
        v_xor_b32 v{VQ+1}, 32, v{VQ}
        s_lshl_b32 s58, s27, 8
        s_add_u32 s58, s58, {L_KV}
        v_lshl_add_u32 v{VC}, v13, 11, v10
        v_add_u32 v{VC}, s58, v{VC}
        v_xor_b32 v{VC+1}, 32, v{VC}
        s_lshr_b32 s58, s27, 1
        s_lshl_b32 s58, s58, 8
        s_add_u32 s58, s58, {L_QCS}
        s_and_b32 s59, s27, 1
        s_lshl_b32 s59, s59, 5
        v_lshl_add_u32 v{VC+2}, v13, 10, v10
        v_xor_b32 v{VC+2}, s59, v{VC+2}
        v_add_u32 v{VC+2}, s58, v{VC+2}
        v_mov_b32 v{ONES}, 0x3f803f80
        v_mov_b32 v{ONES+1}, 0x3f803f80
        v_mov_b32 v{ONES+2}, 0x3f803f80
        v_mov_b32 v{ONES+3}, 0x3f803f80
        v_mov_b32 v{VOOB}, {OOB}
        v_mov_b32 v{VM}, 0xff
        v_mov_b32 v{VF}, {L_FL}
        s_lshr_b32 s88, s3, 4
        s_and_b32 s89, s3, 15
        v_lshlrev_b32 v{VL16}, 4, v1
        s_add_u32 s85, s74, 1
        s_cmp_lt_u32 s24, 4
        s_cselect_b32 s85, 0, s85
        """)
        AH = O['ahead']
        for s in range(1, AH): stage(s)
        A("s_load_dword s60, s[70:71], 0")
        def early():
            A(f"""
                s_add_u32 s58, s74, 4
            s_cmp_lt_u32 s24, 4
                s_cselect_b32 s58, s74, s58
            s_add_u32 s58, s58, s75
            s_and_b32 s58, s58, 15
            s_mul_i32 s84, s58, {64*6144}
            s_add_u32 s84, s84, s79
            s_add_u32 m0, s80, {L_QCS}
            """)
            V.issue(f"buffer_load_dwordx4 v{VQo}, s[12:15], s84 offen lds", "qcs")
            A(f"s_add_u32 s84, s84, {32*6144}\ns_add_u32 m0, s80, {L_QCS + 4096}")
            V.issue(f"buffer_load_dwordx4 v{VQo}, s[12:15], s84 offen lds", "qcs")
        def wopf():
            if O["wopf"]:
                A(f"s_lshl_b32 s58, s2, 13\ns_lshl_b32 s59, s27, 11\ns_add_u32 s58, s58, s59")
                V.issue(f"buffer_load_dwordx4 v[40:43], v{VL16}, s[32:35], s58 offen", "pf")
                V.issue(f"buffer_load_dwordx4 v[44:47], v{VL16}, s[32:35], s58 offen offset:1024", "pf")
        V.need({("st", 0)})
        A("s_barrier")
        self.stamp(1)
        def aread(s, dst):
            return [f"ds_read_b128 {vr(dst+(rf*2+ks)*4,4)}, v{VAS+ks} offset:{(s%4)*16384+rf*2048}" for rf in range(2) for ks in range(2)]
        def stash(s):
            for t in aread(s, ST+16*s): A(t)
        def csum(s):
            skip = self.lab("cs")
            A(f"s_cmp_eq_u32 s85, {s}\ns_cbranch_scc0 {skip}")
            for f in range(2):
                for ks in range(2):
                    for rd in range(2):
                        A(f"ds_read_b64_tr_b16 {vr(CF+f*8+ks*4+2*rd,2)}, v{VC+f} offset:{(s%4)*16384 + (8*ks+rd)*1024}")
            A("s_waitcnt lgkmcnt(0)")
            for f in range(2):
                A(f"{MF} {vr(CA+4*f,4)}, {vr(ONES,4)}, {vr(CF+f*8,4)}, 0\n{MF} {vr(CA+4*f,4)}, {vr(ONES,4)}, {vr(CF+f*8+4,4)}, {vr(CA+4*f,4)}")
            A.label(skip)
        def csum_q():
            for ks in range(2):
                for rd in range(2):
                    A(f"ds_read_b64_tr_b16 {vr(CF+16+ks*4+2*rd,2)}, v{VC+2} offset:{(8*ks+rd)*512}")
            A(f"s_waitcnt lgkmcnt(0)\n{MF} {vr(CA+8,4)}, {vr(ONES,4)}, {vr(CF+16,4)}, 0\n{MF} {vr(CA+8,4)}, {vr(ONES,4)}, {vr(CF+20,4)}, {vr(CA+8,4)}")
        def nonce():
            A("s_waitcnt lgkmcnt(0)\ns_cmp_eq_u32 s60, 0\ns_cbranch_scc1 L_tagslow\nL_tagback:")
            self.nonce_setup()
            A(f"v_mov_b32 v8, s60\ns_mov_b64 exec, 1\nds_write_b32 v{VF}, v8 offset:{F_NON}\ns_mov_b64 exec, -1")
            self.slow.append(f"""
            L_tagslow:
            s_mov_b32 s57, 0
            v_mov_b32 v8, 0
            L_tagspin:
            buffer_load_dword v9, v8, s[48:51], 0 offen sc1
            s_waitcnt vmcnt(0)
            v_readfirstlane_b32 s60, v9
            s_add_u32 s57, s57, 1
            s_cmp_lg_u32 s60, 0
            s_cbranch_scc1 L_tagback
            s_sleep 4
            s_cmp_lt_u32 s57, {SPIN_MAX}
            s_cbranch_scc1 L_tagspin
            s_branch L_tagback
            """)
        def pub_stats():
            A(f"""
            ds_read_b128 v[12:15], v{VF} offset:{F_KEY}
            v_and_b32 v8, 7, v1
            v_lshlrev_b32 v8, 3, v8
            v_add_u32 v9, {L_FL + F_ST}, v8
            ds_read_b64 v[16:17], v9
            s_lshl_b32 s58, s27, 6
            v_add_u32 v9, s58, v1
            v_cmp_gt_u32 vcc, 8, v9
            v_cndmask_b32 v8, v{VOOB}, v8, vcc
            v_cmp_eq_u32 vcc, 0, v9
            v_cndmask_b32 v9, v{VOOB}, v9, vcc
            s_and_b32 s59, s60, 0xffff
            s_waitcnt lgkmcnt(0)
            v_or_b32 v16, s59, v16
            v_or_b32 v17, s62, v17
            s_lshl_b32 s58, s22, 4
            s_add_u32 s58, s58, s23
            s_lshl_b32 s58, s58, 6
            s_add_u32 s58, s58, {WS_STAT}
            """)
            V.issue(f"buffer_store_dwordx2 v[16:17], v8, s[16:19], s58 offen sc1")
            A(f"v_max_u32 v12, v12, v13\nv_max3_u32 v12, v12, v14, v15\nv_mov_b32 v13, s60\ns_lshl_b32 s58, s2, 3\ns_add_u32 s58, s58, {WS_KEY}")
            V.issue(f"buffer_store_dwordx2 v[12:13], v9, s[16:19], s58 offen sc1")
        def pub_cs():
            A(f"""
            v_lshrrev_b32 v8, 4, v1
            v_cmp_eq_u32 vcc, 1, v8
            v_cndmask_b32 v{CA}, v{CA}, v{CA+4}, vcc
            v_cmp_eq_u32 vcc, 2, v8
            v_cndmask_b32 v{CA}, v{CA}, v{CA+8}, vcc
            s_lshl_b32 s58, s27, 7
            v_lshl_add_u32 v9, v1, 2, s58
            s_lshl_b32 s58, s27, 6
            s_add_u32 s58, s58, {512 - 128}
            v_lshl_add_u32 v10, v1, 2, s58
            v_cndmask_b32 v9, v9, v10, vcc
            v_cmp_eq_u32 vcc, 3, v8
            v_cndmask_b32 v9, v9, v{VOOB}, vcc
            v_and_b32 v10, 3, v1
            v_lshlrev_b32 v10, 3, v10
            v_lshrrev_b32 v10, v10, s60
            v_bfi_b32 v{CA}, v{VM}, v10, v{CA}
            s_lshl_b32 s58, s23, 4
            s_add_u32 s58, s58, s22
            s_lshl_b32 s58, s58, 10
            s_add_u32 s58, s58, {WS_CSP}
            """)
            V.issue(f"buffer_store_dword v{CA}, v9, s[16:19], s58 offen sc1")
        S1R, KEYS, T = 8, 16, 24
        def s1_addr():
            A(f"""
            v_and_b32 v32, 15, v1
            v_lshlrev_b32 v32, 4, v32
            v_lshrrev_b32 v33, 4, v1
            v_lshl_add_u32 v32, v33, 10, v32
            s_lshl_b32 s90, s23, 14
            s_lshl_b32 s59, s27, 8
            s_add_u32 s90, s90, s59
            s_add_u32 s90, s90, {WS_CSP}
            s_lshl_b32 s59, s22, 10
            s_add_u32 s59, s59, {WS_STAT}
            s_sub_u32 s95, s28, s22
            s_lshl_b32 s95, s95, 10
            s_lshl_b32 s87, s28, 10
            s_sub_u32 s87, {WS_KEY - WS_STAT}, s87
            s_cmp_eq_u32 s27, 3
            s_cselect_b32 s90, s59, s90
            s_movk_i32 s59, 4096
            s_cselect_b32 s95, s95, s59
            s_cselect_b32 s87, s87, s59
            s_cselect_b32 s74, 1024, s59
            s_cselect_b64 vcc, -1, 0
            v_cndmask_b32 v32, v32, v{VL16}, vcc
            """)
        def s1_round(issue):
            A("s_mov_b32 s58, s90")
            for t in range(4):
                issue(f"buffer_load_dwordx4 {vr(S1R+4*t,4)}, v32, s[16:19], s58 offen sc1", "s1")
                if t < 3: A(f"s_add_u32 s58, s58, s{(95, 87, 74)[t]}")
        def s1_check(w3):
            def chk():
                if not w3:
                    for t in range(4):
                        c = S1R + 4*t
                        A(f"v_perm_b32 v{T+t}, v{c+1}, v{c}, s64\nv_perm_b32 v35, v{c+3}, v{c+2}, s65\nv_or_b32 v{T+t}, v{T+t}, v35")
                    A(f"v_max3_u32 v33, v{T}, v{T+1}, v{T+2}\nv_min3_u32 v34, v{T}, v{T+1}, v{T+2}\nv_max_u32 v33, v33, v{T+3}\nv_min_u32 v34, v34, v{T+3}")
                else:
                    A("s_mov_b32 s58, 0x05040100")
                    for t in range(4): A(f"v_perm_b32 v{T+t}, v{S1R+2*t+1}, v{S1R+2*t}, s58")
                    A(f"""
                    v_max3_u32 v33, v{KEYS+1}, v{KEYS+3}, v{KEYS+5}
                    v_min3_u32 v34, v{KEYS+1}, v{KEYS+3}, v{KEYS+5}
                    v_max3_u32 v33, v33, v{KEYS+7}, v{T}
                    v_min3_u32 v34, v34, v{KEYS+7}, v{T}
                    v_max3_u32 v33, v33, v{T+1}, v{T+2}
                    v_min3_u32 v34, v34, v{T+1}, v{T+2}
                    v_max_u32 v33, v33, v{T+3}
                    v_min_u32 v34, v34, v{T+3}
                    """)
                A("v_cmp_ne_u32 vcc, s60, v33\nv_cmp_ne_u32 s[66:67], s60, v34\ns_or_b64 vcc, vcc, s[66:67]")
            V.need({"s1"})
            chk()
            sl, back = f"L_s1slow{int(w3)}", f"L_s1back{int(w3)}"
            A(f"s_cbranch_scc1 {sl}\n{back}:")
            keep = A.rec
            A.rec = r = Rec()
            top = self.lab("s1t")
            A(f"{sl}:\ns_mov_b32 s57, 0\n{top}:\ns_sleep 8")
            s1_round(lambda t, tag: A(t))
            A("s_waitcnt vmcnt(0)")
            chk()
            A(f"s_cbranch_scc0 {back}\ns_add_u32 s57, s57, 1\ns_cmp_lt_u32 s57, {SPIN_MAX}\ns_cbranch_scc1 {top}\ns_branch {back}")
            self.slow.append("\n".join(it[1] for a in r.atoms for it in a))
            A.rec = keep
        def s1_tables(w3):
            if not w3:
                for k in range(16): A(f"v_and_b32 v{S1R+k}, 0xffffff00, v{S1R+k}")
                for h in (0, 2):
                    A(f"v_pk_add_f32 {vr(S1R+h,2)}, {vr(S1R+h,2)}, {vr(S1R+4+h,2)}\nv_pk_add_f32 {vr(S1R+8+h,2)}, {vr(S1R+8+h,2)}, {vr(S1R+12+h,2)}")
                for h in (0, 2): A(f"v_pk_add_f32 {vr(S1R+h,2)}, {vr(S1R+h,2)}, {vr(S1R+8+h,2)}")
                for wh in (16, 32):
                    for k in range(4): A(f"v_mov_b32 v{S1R+4+k}, v{S1R+k}")
                    for k in range(4): A(f"v_permlane{wh}_swap_b32 v{S1R+k}, v{S1R+4+k}")
                    for h in (0, 2): A(f"v_pk_add_f32 {vr(S1R+h,2)}, {vr(S1R+h,2)}, {vr(S1R+4+h,2)}")
                A(f"s_lshl_b32 s58, s27, 8\ns_add_u32 s58, s58, {L_CS}\nv_and_b32 v33, 15, v1\nv_lshl_add_u32 v33, v33, 4, s58\nds_write_b128 v33, {vr(S1R,4)}")
            else:
                for k in range(8): A(f"v_and_b32 v{S1R+k}, 0xffff0000, v{S1R+k}")
                for k in (1, 3, 5, 7): A(f"v_rcp_f32 v{S1R+k}, v{S1R+k}")
                A(f"""
                v_add_u32 v33, {L_ST2}, v{VL16}
                v_mov_b32 v{T}, v{S1R}
                v_mov_b32 v{T+1}, v{S1R+2}
                ds_write_b128 v33, {vr(S1R+4,4)}
                v_mov_b32 v{T+2}, v{S1R+1}
                v_mov_b32 v{T+3}, v{S1R+3}
                v_mul_f32 v{T+4}, {hex(LOG2E)}, v{S1R+1}
                v_mul_f32 v{T+5}, {hex(LOG2E)}, v{S1R+3}
                v_lshlrev_b32 v33, 3, v1
                v_add_u32 v33, {L_M}, v33
                ds_write_b64 v33, {vr(T,2)}
                ds_write_b64 v33, {vr(T+2,2)} offset:{L_RI-L_M}
                ds_write_b64 v33, {vr(T+4,2)} offset:{L_RL-L_M}
                v_max_u32 v{KEYS}, v{KEYS}, v{KEYS+2}
                v_max3_u32 v{KEYS}, v{KEYS}, v{KEYS+4}, v{KEYS+6}
                """)
                red_row(A, KEYS, "v_max_u32"); red_swap(A, KEYS, KEYS+1, 16, "v_max_u32"); red_swap(A, KEYS, KEYS+1, 32, "v_max_u32")
                A(f"s_mov_b64 exec, 1\nds_write_b32 v{VF}, v{KEYS} offset:{F_SEL}\ns_mov_b64 exec, -1")
        P = O["s1at"]
        extra = {s: [] for s in range(16)}
        for s in range(12): extra[s].append(lambda s=s: stash(s))
        for s in range(5): extra[s].append(lambda s=s: csum(s))
        extra[1] += [nonce]
        extra[O['early']+2] += [csum_q]
        extra[max(5, O['early']+3)] += [pub_cs]
        extra[O["stat_end"]+1] += [pub_stats]
        extra[7] += [s1_addr]
        def iteration(s, atoms, k0=0):
            if s + AH < 16:
                stage(s + AH, atoms, k0); atoms = []
            if s == O["early"]: early()
            if s == P: s1_round(V.issue)
            if s == O['pfat']: wopf()
            if s >= 13:
                atoms = list(atoms)
                per = -(-len(atoms) // 4)
                for pre, d, tg in qpair(s - 13):
                    A(pre); V.issue(d, tg)
                    for _ in range(per):
                        if atoms: replay(atoms.pop(0), A0, V.V)
            tags = {("st", s+1)}
            if s == O["early"] + 1: tags.add("qcs")
            if s == 15: tags.add(("q", 1))
            V.need(tags)
            A("s_waitcnt lgkmcnt(0)\ns_barrier")
        for s in range(P+1): iteration(s, A.record(extra[s]))
        A("s_cmp_eq_u32 s27, 3\ns_cbranch_scc1 L_path3")
        q0 = list(V.V.q)
        for w3 in (False, True):
            if w3: A.label("L_path3")
            V.V.q = list(q0)
            tab = A.record([lambda: s1_tables(w3)])
            per = -(-len(tab) // (15 - (P+1)))
            for s in range(P+1, 16):
                if s == P+1: iteration(s, A.record(extra[s] + [lambda: s1_check(w3)]), 4 if s+AH < 16 else 0)
                else:
                    iteration(s, A.record(extra[s]) + tab[:per]); tab = tab[per:]
            assert not tab
            if not w3: A("s_branch L_pathj")
        A.label("L_pathj")
        V = V.V
        for pre, d, tg in qpair(3):
            A(pre); V.issue(d, tg)
        self.stamp(2)
        A(f"s_setprio {O['hprio2']}")
        A(f"v_add_u32 v1, s27, v{VF}")
        L = LgkmTracker(A)
        def wreads(g):
            u, cf = g >> 2, g & 3
            return [(f"ds_read_b64_tr_b16 {vr(BR+(g%3)*8+ks*4+2*rd,2)}, v{VQ+(cf&1)} offset:{((u>>1)&3)*16384 + (u&1)*2048 + ks*1024 + rd*512 + (cf>>1)*256}", ("W", g))
                    for ks in range(2) for rd in range(2)]
        def flag(off):
            A(f"v_mov_b32 v{VT}, 1\ns_mov_b64 exec, 1")
            L.issue(f"ds_write_b8 v1, v{VT} offset:{off}", ("F", off))
            A("s_mov_b64 exec, -1")
        GW, VD, VWO, DW = 128, 5, 6, 128
        def late_addr():
            A(f"""
            v_mbcnt_lo_u32_b32 v{VT}, -1, 0
            v_mbcnt_hi_u32_b32 v{VT}, -1, v{VT}
            v_lshrrev_b32 v{VWO}, 5, v{VT}
            v_and_b32 v{VD}, 31, v{VT}
            v_lshlrev_b32 v{VD}, 4, v{VD}
            v_lshl_add_u32 v{VD}, v{VWO}, 11, v{VD}
            v_bfe_u32 v4, v{VT}, 2, 2
            v_lshl_add_u32 v4, v{VWO}, 2, v4
            v_lshlrev_b32 v4, 11, v4
            v_lshlrev_b32 v{VWO}, 1, v{VWO}
            v_xor_b32 v{VWO}, v{VWO}, v{VT}
            v_and_b32 v{VWO}, 3, v{VWO}
            v_lshl_add_u32 v4, v{VWO}, 4, v4
            v_bfe_u32 v{VWO}, v{VT}, 4, 1
            v_lshl_add_u32 v{VWO}, v{VWO}, 6, v4
            s_lshl_b32 s93, s27, 14
            s_lshl_b32 s58, s29, 7
            s_add_u32 s93, s93, s58
            s_and_b32 s92, s29, 7
            s_lshl_b32 s58, s28, 1
            s_add_u32 s92, s92, s58
            s_lshl_b32 s92, s92, 2
            s_lshl_b32 s69, s3, 15
            s_lshl_b32 s59, s27, 9
            s_add_u32 s69, s69, s59
            s_cmp_lt_u32 s3, 224
            s_cselect_b32 s69, s69, 0
            s_cselect_b64 vcc, -1, 0
            v_cndmask_b32 v{VD}, 0, v{VD}, vcc
            """)
        dwl = [] if O.get("nomoe") else [("s_add_u32 s69, s69, 4096" if k else None, f"buffer_load_dwordx4 {vr(DW+4*k,4)}, v{VD}, s[44:47], s69 offen nt", "dw") for k in range(8)]
        wol = [(f"s_add_u32 s82, s92, {t}\ns_and_b32 s82, s82, 31\ns_lshl_b32 s82, s82, 16\ns_add_u32 s82, s82, s93\ns_add_u32 m0, s80, {(t+16)*4096}",
                f"buffer_load_dwordx4 v{VWO}, s[32:35], s82 offen lds", "wok") for t in range(16)] if O["wok"] else []
        assert not O["wok"] or (33 <= O["wok"] <= 48 and O["wok"] % 8 not in (5, 6))
        def emit(it):
            if it[0]: A(it[0])
            V.issue(it[1], it[2])
        if O["gate"]: self.spin(VF, F_PUB, VT)
        for g in range(2):
            for x in wreads(g): L.issue(*x)
        sig = {3: 2, 9: 3, 24: 4, 30: 5, 38: 6, 46: 7}
        pend = []
        for g in range(64):
            u, cf = g >> 2, g & 3
            a = ST + 16*(u if u < 12 else u-12)
            gn = g + 2
            if gn < 64 and gn % 8 == 0:
                if gn >= 16:
                    L.need({("C", gn//8)}); self.check(VF, F_QL + 4*(gn//8 - 2), VT)
                if gn == 32: A(f"v_subrev_u32 v{VQ}, {L_KV}, v{VQ}\nv_subrev_u32 v{VQ+1}, {L_KV}, v{VQ+1}")
            if g == O["wok"]:
                L.need({("C7",)}); self.check(VF, F_C7, VT)
            w = wreads(gn) if gn < 64 else []
            need = {("W", g)}
            if u >= 12 and cf == 0: need.add(("A", u))
            L.need(need)
            for j, (rf, ks) in enumerate(CH4):
                acc = ACC + (rf*4+cf)*4
                c = "0" if (u == 0 and j % 2 == 0) else vr(acc,4)
                A(f"{MF} {vr(acc,4)}, {vr(BR+(g%3)*8+ks*4,4)}, {vr(a+(rf*2+ks)*4,4)}, {c}")
                if w: L.issue(*w.pop(0))
                if j == 2 and pend: emit(pend.pop(0))
                if j == 2 and dwl and g >= O["dwat"]: emit(dwl.pop(0))
                if j == 1 and wol and g >= O["wok"]: emit(wol.pop(0))
            if 1 <= u <= 4 and cf == 0:
                for t in aread(11+u, ST+16*(u-1)): L.issue(t, ("A", 11+u))
            if 1 <= u <= 4 and cf == 2:
                L.need({("A", 11+u)}); pend += qpair(3+u)
            if g in sig:
                V.need({("q", sig[g])}); flag(F_QL + 4*(sig[g]-2))
            if g in (15, 31, 47) and O.get("p2st"): self.stamp(16 + g//16)
            if g == 23: late_addr()
            if g == 31: flag(F_C7)
            if g == O["wok"] - 1: L.issue(f"ds_read_b32 v{VT}, v{VF} offset:{F_C7}", ("C7",))
            if (g + 4) % 8 == 0 and 16 <= g + 4 < 64:
                L.issue(f"ds_read_b32 v{VT}, v{VF} offset:{F_QL + 4*((g+4)//8 - 2)}", ("C", (g+4)//8))
        ONE, VL, VM, VOOB, VL16, TMP = 112, 113, 114, 115, 116, 117
        self.sreg = 127
        if self.diag:
            A("s_nop 7")
            for sl in (1, 2, 16, 17, 18): A(f"v_writelane_b32 v127, s{self.spark[sl]}, {sl}")
        self.stamp(3)
        A(f"s_setprio {O['hprio3']}")
        QM, QL, QC, U, E, PQ, KX, ZX, NT0, OF = 8, 12, 16, 64, 68, 240, 208, 224, 192, 72
        A(f"""
        v_mov_b32 v{ONE}, 1
        s_mov_b64 exec, 1
        ds_write_b8 v1, v{ONE} offset:{F_C15}
        s_mov_b64 exec, -1
        v_mbcnt_lo_u32_b32 v{VL}, -1, 0
        v_mbcnt_hi_u32_b32 v{VL}, -1, v{VL}
        v_and_b32 v118, 15, v{VL}
        s_lshl_b32 s58, s27, 7
        s_add_u32 s58, s58, {L_M}
        v_lshl_add_u32 v118, v118, 2, s58
        v_lshrrev_b32 v119, 4, v{VL}
        v_lshlrev_b32 v119, 4, v119
        v_add_u32 v119, {L_CS + 512}, v119
        """)
        for rf in range(2):
            A(f"ds_read_b32 v{QM+2*rf}, v118 offset:{64*rf}\nds_read_b32 v{QL+2*rf}, v118 offset:{64*rf + L_RL - L_M}")
        for cf in range(4): A(f"ds_read_b128 {vr(QC+4*cf,4)}, v119 offset:{64*cf}")
        A(f"""
        v_mov_b32 v{VM}, 0xff
        v_mov_b32 v{VOOB}, {OOB}
        v_lshlrev_b32 v{VL16}, 4, v{VL}
        s_mov_b32 s52, {hex(LN2)}
        s_mov_b32 s53, {hex(LN2)}
        s_mov_b32 s54, {hex(EPSL)}
        s_waitcnt lgkmcnt(0)
        """)
        for rf in range(2):
            for cf in range(4):
                self.phi4(ACC+(rf*4+cf)*4, QM+2*rf, True, QC+4*cf, False, QL+2*rf, True, PQ + (rf*2+(cf>>1))*4 + (cf&1)*2, U, E, 52)
        self.stamp(4)
        self.spin(VF, F_KVX, TMP)
        A(f"v_add_u32 v118, {L_KVX}, v{VL16}")
        for h in range(2):
            for eb in range(2): A(f"ds_read_b128 {vr(KX+(h*2+eb)*4,4)}, v118 offset:{h*3072+eb*1024}")
            A(f"ds_read_b128 {vr(ZX+4*h,4)}, v118 offset:{h*3072+2048}")
        A(f"""
        s_lshl_b32 s58, s22, 3
        s_lshl_b32 s59, s27, 1
        s_add_u32 s58, s58, s59
        s_lshl_b32 s58, s58, 5
        s_xor_b32 s59, s23, 1
        s_lshl_b32 s59, s59, 1
        s_add_u32 s58, s58, s59
        s_lshl_b32 s58, s58, 10
        s_add_u32 s59, s58, 32768
        s_mov_b32 s55, 0x358637bd
        s_waitcnt lgkmcnt(0)
        """)
        self.stamp(5)
        NT = lambda k, e: 8 + (k*3+e)*4
        for k in range(4):
            rf, h = k >> 1, k & 1
            for e in (2, 0, 1):
                A(f"{MF} {vr(NT(k,e),4)}, {vr(ZX+4*h,4) if e == 2 else vr(KX+(h*2+e)*4,4)}, {vr(PQ+4*k,4)}, 0")
        for k in range(4): A(f"v_add_f32 v{NT(k,2)}, s55, v{NT(k,2)}\nv_rcp_f32 v{NT(k,2)}, v{NT(k,2)}")
        for k in range(4):
            d, o = NT(k,2), NT0 + 4*k
            for e in range(2):
                n = NT(k,e)
                for h in (0, 2): A(f"v_pk_mul_f32 {vr(n+h,2)}, {vr(n+h,2)}, {vr(d,2)} op_sel_hi:[1,0]")
                A(f"v_cvt_pk_bf16_f32 v{o+2*e}, v{n}, v{n+1}\nv_cvt_pk_bf16_f32 v{o+2*e+1}, v{n+2}, v{n+3}")
            A(f"buffer_store_dwordx4 {vr(o,4)}, v{VL16}, s[16:19], s{58+(k>>1)} offen offset:{1024*(k&1)} sc1")
        A(f"""
        s_lshl_b32 s58, s22, 2
        s_add_u32 s58, s58, s27
        s_lshl_b32 s58, s58, 4
        s_add_u32 s58, s58, s23
        s_lshl_b32 s58, s58, 7
        s_add_u32 s58, s58, {WS_OF}
        v_lshlrev_b32 v118, 24, v{VL}
        v_mov_b32 v119, s60
        s_mov_b64 exec, 1
        ds_write_b8 v1, v{ONE} offset:{F_AR}
        s_mov_b64 exec, -1
        s_waitcnt vmcnt(0)
        buffer_store_dword v119, v118, s[16:19], s58 offen sc1
        """)
        V.q = []
        if O["wok"]: self.setflag(1, ONE, F_WOK)
        self.stamp(6)
        if O.get("nomoe"): A("s_branch L_helper_end")
        MSK, AP, DT, BP, R = 12, 16, 24, 32, 40
        for it in dwl: emit(it)
        A(f"ds_read_b32 v118, v{VF} offset:{F_SEL}")
        self.moe_masks(VL, MSK, 119, 120, 121)
        self.col_off(VL, 122, 119)
        A(f"""
        v_lshrrev_b32 v121, 5, v{VL}
        v_lshlrev_b32 v121, 2, v121
        s_waitcnt lgkmcnt(0)
        v_readfirstlane_b32 s91, v118
        s_and_b32 s92, s91, 0x7ff
        s_sub_u32 s92, 0x7ff, s92
        s_cmp_ge_u32 s3, 224
        s_cbranch_scc1 L_moe_done
        v_add_u32 v119, {L_HT}, v121
        """)
        self.spin(VF, F_H, TMP, 1)
        for t in range(8): A(f"ds_read_b32 v{BP+t}, v119 offset:{8*t}")
        A("s_waitcnt vmcnt(0) lgkmcnt(0)")
        for t in range(8):
            ap = AP + 4*(t & 1)
            for r in range(4): A(f"v_and_b32 v{ap+r}, v{BP+t}, v{MSK+r}")
            A(f"{MF} {vr(DT,4)}, {vr(ap,4)}, {vr(DW+4*t,4)}, {'0' if t == 0 else vr(DT,4)}")
        self.tag(DT, VM)
        A(f"""
        s_lshl_b32 s58, s3, 12
        s_add_u32 s58, s58, s80
        s_add_u32 s58, s58, {WS_YP}
        buffer_store_dwordx4 {vr(DT,4)}, v122, s[16:19], s58 offen sc1
        L_moe_done:
        """)
        self.stamp(9)
        A(f"""
        s_lshr_b32 s58, s92, 7
        s_cmp_lg_u32 s58, s28
        s_cbranch_scc1 L_helper_end
        v_lshrrev_b32 v118, 4, v{VL}
        v_lshlrev_b32 v118, 12, v118
        v_and_b32 v119, 15, v{VL}
        v_lshlrev_b32 v119, 4, v119
        v_add_u32 v118, v118, v119
        s_mul_i32 s95, s27, {56*4096}
        s_lshl_b32 s59, s29, 8
        s_add_u32 s95, s95, s59
        s_add_u32 s95, s95, {WS_YP}
        s_waitcnt vmcnt(0)
        s_sleep {O["d5"]}
        """)
        def yacc(k):
            if k:
                for h in (0, 2): A(f"v_pk_add_f32 {vr(GW+h,2)}, {vr(GW+h,2)}, {vr(GW+4*k+h,2)}")
        self.gather([(f"s_add_u32 s58, s95, {4*4096*t}", f"buffer_load_dwordx4 {vr(GW+4*t,4)}, v118, s[16:19], s58 offen sc1", GW+4*t) for t in range(14)], 60, yacc, light=True)
        for k in range(4):
            red_swap(A, GW+k, 60, 16); red_swap(A, GW+k, 60, 32)
        A(f"s_lshl_b32 s58, s27, 8\ns_add_u32 s58, s58, {L_YT}\nv_add_u32 v118, s58, v119\nds_write_b128 v118, {vr(GW,4)}\ns_waitcnt lgkmcnt(0)")
        self.setflag(1, ONE, F_Y)
        A("s_cmp_lg_u32 s27, 0\ns_cbranch_scc1 L_helper_end")
        self.spin(VF, F_Y, TMP)
        A(f"v_add_u32 v118, {L_YT}, v119")
        for w in range(4): A(f"ds_read_b128 {vr(R+4*w,4)}, v118 offset:{256*w}")
        A(f"""
        s_and_b32 s58, s91, 0xffff0000
        s_ashr_i32 s59, s58, 31
        s_not_b32 s59, s59
        s_or_b32 s59, s59, 0x80000000
        s_xor_b32 s58, s58, s59
        s_and_b32 s58, s58, 0xffff0000
        v_mov_b32 v60, s58
        v_mul_f32 v60, {hex(LOG2E | 0x80000000)}, v60
        v_exp_f32 v60, v60
        v_add_f32 v60, 1.0, v60
        v_rcp_f32 v60, v60
        """)
        rnd_bf16(A, 60)
        A("s_waitcnt lgkmcnt(0)")
        for h in (0, 2): A(f"v_pk_add_f32 {vr(R+h,2)}, {vr(R+h,2)}, {vr(R+4+h,2)}\nv_pk_add_f32 {vr(R+8+h,2)}, {vr(R+8+h,2)}, {vr(R+12+h,2)}")
        for h in (0, 2): A(f"v_pk_add_f32 {vr(R+h,2)}, {vr(R+h,2)}, {vr(R+8+h,2)}")
        for k in range(4):
            rnd_bf16(A, R+k); A(f"v_mul_f32 v{R+k}, v{R+k}, v60"); rnd_bf16(A, R+k)
        A(f"""
        v_add_u32 v118, {L_YF}, v119
        ds_write_b128 v118, {vr(R,4)}
        s_mov_b64 exec, 1
        s_waitcnt lgkmcnt(0)
        ds_write_b32 v{VF}, v{ONE} offset:{F_YF}
        s_mov_b64 exec, -1
        L_helper_end:
        """)
        self.stamp(10)
        self.stamp_out()
        A("s_endpgm")
        self.A = A0
        for t in self.slow: A0(t)
        self.slow = []

    def stat_loads(self):
        A, O = self.A, self.opt
        srd(A, 44, 60, 2048)
        A(f"""
        v_and_b32 v2, 31, v1
        v_lshlrev_b32 v2, 4, v2
        v_lshrrev_b32 v3, 5, v1
        v_lshl_add_u32 v4, v3, 11, v2
        s_lshl_b32 s85, s22, 7
        s_lshl_b32 s58, s23, 3
        s_add_u32 s85, s85, s58
        s_lshl_b32 s58, s27, 1
        s_add_u32 s85, s85, s58
        s_lshl_b32 s58, s85, 11
        {"s_sleep %d" % O["sxd"] if O["stat_beg"] >= 0 else ""}
        """)
        for t in range(4): A(f"buffer_load_dwordx4 {vr(192+4*t,4)}, v4, s[8:11], s58 offen offset:{512*t}")
        for t in range(4): A(f"buffer_load_dwordx4 {vr(208+4*t,4)}, v2, s[44:47], 0 offen offset:{512*t}")

    def stats(self):
        A = self.A
        X, WR, S1, S2, SR, SW, ON, T, MB = 192, 208, 224, 226, 228, 230, 232, 233, 236
        A("s_waitcnt vmcnt(0)")
        A(f"v_mov_b32 v{ON}, 0x3f803f80")
        for k in range(16):
            for d, a, b in ((S1, X+k, ON), (S2, X+k, X+k), (SR, X+k, WR+k), (SW, WR+k, ON)):
                A(f"v_dot2_f32_bf16 v{d+(k&1)}, v{a}, v{b}, {'0' if k < 2 else 'v%d' % (d+(k&1))}")
        A("s_nop 2")
        for d in (S1, S2, SR, SW): A(f"v_add_f32 v{d}, v{d}, v{d+1}")
        for r in (8, 4, 2, 1):
            for d in (S1, S2, SR, SW): A(f"v_add_f32_dpp v{d}, v{d}, v{d} row_ror:{r} row_mask:0xf bank_mask:0xf")
        for d in (S1, S2, SR, SW): A(f"v_mov_b32 v{d+1}, v{d}")
        for d in (S1, S2, SR, SW): A(f"v_permlane16_swap_b32 v{d}, v{d+1}")
        for d in (S1, S2, SR, SW): A(f"v_add_f32 v{d}, v{d}, v{d+1}")
        A(f"""
        v_mul_f32 v{S1}, 0x3a800000, v{S1}
        v_mul_f32 v{S2}, 0x3a800000, v{S2}
        v_cvt_pk_bf16_f32 v{MB}, v{S1}, v{S1}
        v_fma_f32 v{S2}, -v{S1}, v{S1}, v{S2}
        v_lshlrev_b32 v{MB}, 16, v{MB}
        v_max_f32 v{S2}, 0, v{S2}
        v_fma_f32 v{SR}, -v{MB}, v{SW}, v{SR}
        """)
        rnd_bf16(A, S2)
        A(f"v_add_f32 v{S2}, 0x3727c5ac, v{S2}")
        rnd_bf16(A, S2)
        A(f"v_sqrt_f32 v{S2}, v{S2}\nv_lshrrev_b32 v{T}, 5, v1\nv_cvt_pk_bf16_f32 v{S2}, v{S2}, v{S2}\nv_lshlrev_b32 v{MB+1}, 16, v{S2}")
        A(f"""
        v_rcp_f32 v{S2}, v{MB+1}
        v_add_u32 v{T+1}, s85, v{T}
        v_sub_u32 v{T+1}, 0x7ff, v{T+1}
        v_mul_f32 v{SR}, v{SR}, v{S2}
        s_lshl_b32 s58, s27, 4
        s_add_u32 s58, s58, {L_FL + F_ST}
        v_lshl_add_u32 v{T}, v{T}, 3, s58
        """)
        rnd_bf16(A, SR)
        A(f"""
        s_mov_b32 exec_lo, 1
        s_mov_b32 exec_hi, 1
        ds_write_b64 v{T}, {vr(MB,2)}
        s_mov_b64 exec, -1
        v_ashrrev_i32 v{T}, 31, v{SR}
        v_or_b32 v{T}, 0x80000000, v{T}
        v_xor_b32 v{T}, v{T}, v{SR}
        v_and_b32 v{T}, 0xffff0000, v{T}
        v_or_b32 v{T}, v{T}, v{T+1}
        """)
        red_swap(A, T, T+1, 32, "v_max_u32")
        A(f"s_lshl_b32 s58, s27, 2\ns_add_u32 s58, s58, {L_FL + F_KEY}\nv_mov_b32 v{T+1}, s58\ns_mov_b64 exec, 1\nds_write_b32 v{T+1}, v{T}\ns_mov_b64 exec, -1")

    def kwave(self):
        A = self.A
        O = self.opt
        A.label("L_kwave")
        self.sreg = 127
        self.stamp(0)
        if O.get("span"): A("s_mov_b32 s74, s70\ns_mov_b32 s75, s71")
        self.dbg_max(1, True)
        ACC = 128
        FA = lambda st, rf, ks: 16 + st*32 + (rf*2+ks)*4
        FB = lambda slot, ks: 80 + slot*8 + ks*4
        VA, VKV, N15, Q4, VM, VF, VFB, ONE = 112, 114, 12, 13, 11, 122, 123, 124
        A(f"""
        s_lshr_b32 s36, s27, 1
        s_and_b32 s37, s27, 1
        v_and_b32 v{N15}, 15, v1
        v_lshrrev_b32 v{Q4}, 4, v1
        v_mov_b32 v{VF}, {L_FL}
        v_add_u32 v{VFB}, s27, v{VF}
        v_mov_b32 v{ONE}, 1
        v_lshl_add_u32 v2, v1, 2, v{VF}
        v_mov_b32 v3, 0
        s_mov_b64 exec, 0x3ffff
        ds_write_b32 v2, v3
        ds_write_b32 v2, v3 offset:{F_AR}
        s_mov_b64 exec, -1
        s_lshl_b32 s58, s36, 13
        v_lshlrev_b32 v14, 7, v{N15}
        v_add_u32 v14, s58, v14
        v_bfe_u32 v15, v{N15}, 1, 3
        """)
        for ks in range(2):
            A(f"v_add_u32 v2, {4*ks}, v{Q4}\nv_xor_b32 v2, v2, v15\nv_lshl_add_u32 v{VA+ks}, v2, 4, v14")
        A(f"""
        v_bfe_u32 v2, v1, 2, 2
        v_lshlrev_b32 v2, 6, v2
        v_and_b32 v3, 3, v1
        v_lshl_add_u32 v2, v3, 3, v2
        v_and_b32 v3, 1, v{Q4}
        v_lshl_add_u32 v10, v3, 5, v2
        s_lshl_b32 s58, s37, 8
        v_add_u32 v4, s58, v10
        v_lshl_add_u32 v{VKV}, v{Q4}, 11, v4
        v_add_u32 v{VKV}, {L_KV}, v{VKV}
        v_xor_b32 v{VKV+1}, 32, v{VKV}
        """)
        VD, VWO, VG, GW = 125, 126, 9, 192
        srd(A, 92, 56, 0x200000)
        srd(A, 52, 62, 0x700000)
        srd(A, 88, 64, 0x700000)
        A(f"""
        s_lshl_b32 s80, s27, 10
        v_and_b32 v2, 3, v1
        v_bfe_u32 v3, v1, 4, 1
        v_lshlrev_b32 v3, 6, v3
        v_bfe_u32 v4, v1, 2, 2
        v_lshrrev_b32 v5, 5, v1
        v_lshl_add_u32 v4, v5, 2, v4
        v_lshlrev_b32 v6, 1, v5
        v_xor_b32 v2, v2, v6
        v_lshl_add_u32 v7, v2, 4, v3
        v_lshl_add_u32 v{VWO}, v4, 11, v7
        v_and_b32 v2, 31, v1
        v_lshlrev_b32 v2, 4, v2
        v_mul_u32_u24 v{VG}, 7168, v5
        v_add_u32 v{VG}, v{VG}, v2
        s_lshl_b32 s81, s27, 14
        s_lshl_b32 s58, s29, 7
        s_add_u32 s81, s81, s58
        s_and_b32 s48, s29, 7
        s_lshl_b32 s58, s28, 1
        s_add_u32 s48, s48, s58
        s_lshl_b32 s48, s48, 2
        s_lshr_b32 s34, s3, 4
        s_and_b32 s87, s3, 15
        s_lshl_b32 s78, s87, 6
        s_lshl_b32 s59, s27, 4
        s_add_u32 s78, s78, s59
        s_mul_i32 s78, s78, 7168
        s_lshl_b32 s59, s34, 9
        s_add_u32 s78, s78, s59
        s_and_b32 s71, s21, {O["ngroups"]-1}
        s_cmp_lt_u32 s3, 224
        s_cselect_b32 s78, s78, 0
        s_cselect_b32 s71, s71, -1
        s_cselect_b64 vcc, -1, 0
        v_cndmask_b32 v{VG}, 0, v{VG}, vcc
        """)
        srd(A, 32, 68, 0x400000)
        if O['stat_beg'] >= 0: self.stat_loads()
        sw = self.A = Switch(A)
        stq = sw.record([self.stats])
        self.A = A
        if O["stat_beg"] < 0:
            for a_ in stq: replay(a_, A, None)
            stq = []
        self.stamp(11)
        A(f"s_setprio {O['kprio']}\ns_waitcnt lgkmcnt(0)\ns_barrier")
        self.stamp(1)
        L = LgkmTracker(A)
        def areads(s_):
            return [(f"ds_read_b128 {vr(FA(s_&1,rf,ks),4)}, v{VA+ks} offset:{(s_%4)*16384+rf*2048}", ("A",s_)) for rf in range(4) for ks in range(2)]
        def breads(s_, cf):
            return [(f"ds_read_b64_tr_b16 {vr(FB(cf,ks)+2*rd,2)}, v{VKV+(cf&1)} offset:{(s_%4)*16384+(8*ks+rd)*1024+(cf>>1)*512}", ("B",s_,cf)) for ks in range(2) for rd in range(2)]
        for x in areads(0) + breads(0,0) + breads(0,1): L.issue(*x)
        def gu_items(ks):
            return [] if O.get("nomoe") else [(f"s_add_u32 s78, s78, {2*7168}" if (k & 1 == 0 and k) else None,
                     f"buffer_load_dwordx4 {vr(GW+4*k,4)}, v{VG}, s[{(52,88)[k&1]}:{(55,91)[k&1]}], s78 offen nt") for k in ks]
        runs = [] if O.get("nomoe") else O["runs"]
        n0 = sum(n for _, n in runs)
        P1 = [1,1,1,0,1,1,1,0,1,1,0,0]
        P2 = [1,1,1,1,0,1,1,1,1,0,1,1,1,1,0,1,1,1,1,0]
        for s_ in range(16):
            st = s_ & 1
            w1 = breads(s_,2) + breads(s_,3)
            w2 = (areads(s_+1) + breads(s_+1,0) + breads(s_+1,1)) if s_ < 15 else []
            g = 0
            for cf in range(4):
                for j,(rf,ks) in enumerate([(rf,ks) for rf in range(4) for ks in ((0,1) if rf % 2 == 0 else (1,0))]):
                    if g == 12:
                        if s_ == O["stat_end"]:
                            assert not stq
                            A("s_waitcnt lgkmcnt(0)"); L.q = []
                        L.drain(); A("s_barrier")
                    if g == O["runpos"]:
                        k0 = 0
                        for first, n in runs:
                            for grp in range(O["ngroups"]):
                                if first + grp*O["gstep"] == s_:
                                    sk = self.lab("run")
                                    A(f"s_cmp_eq_u32 s71, {grp}\ns_cbranch_scc0 {sk}")
                                    for pre, txt in gu_items(range(k0, k0+n)):
                                        if pre: A(pre)
                                        A(txt)
                                    A.label(sk)
                            k0 += n
                    if g == 12: pass
                    elif j == 0: L.need({("A",s_), ("B",s_,cf)})
                    acc = ACC + (rf*4+cf)*4
                    c = "0" if (s_ == 0 and j % 2 == 0) else vr(acc,4)
                    A(f"{MF} {vr(acc,4)}, {vr(FA(st,rf,ks),4)}, {vr(FB(cf,ks),4)}, {c}")
                    if g < 12:
                        if w1 and P1[g]: L.issue(*w1.pop(0))
                    elif w2 and P2[g-12]: L.issue(*w2.pop(0))
                    if O["stat_beg"] <= s_ <= O["stat_end"] and stq:
                        left = (O["stat_end"] - s_ + 1)*32 - g - 20
                        n = 1 if (len(stq) >= left or not (P1+P2)[g] or g % 2 == 0) else 0
                        if len(stq) > left: n = 2
                        for _ in range(n):
                            if stq: replay(stq.pop(0), A, None)
                    if s_ == 15 and g == 12: tabq = self.k_tables()
                    if s_ == 15 and g >= 13 and tabq: A(tabq.pop(0))
                    g += 1
            assert not w1 and not w2
        for t in tabq: A(t)
        A(f"s_setprio {O['kprio2']}")
        A("v_mov_b32 v8, v2") if O.get("span") else None
        self.dbg_max(2)
        A("v_mov_b32 v2, v8") if O.get("span") else None
        self.stamp(2)
        TB = lambda rf: (16, 28, 48, 60)[rf]
        CS, ON, U, E = 40, 72, 96, 100
        PK = lambda ks2, db: (80, 128)[ks2] + 4*db
        VV = lambda ks2, eb: (88, 136)[ks2] + 4*eb
        T = lambda eb, db: (144, 148, 152, 156, 16, 20)[eb*2+db]
        for rf in (2, 3):
            for k, off in enumerate((0, L_RL - L_M, L_RI - L_M)): A(f"ds_read_b128 {vr(TB(rf)+4*k,4)}, v2 offset:{64*rf + off}")
        for k in range(4): A(f"v_mov_b32 v{ON+k}, 0x3f803f80")
        A(f"""
        s_mov_b32 s40, {hex(LN2)}
        s_mov_b32 s41, {hex(LN2)}
        s_mov_b32 s42, {hex(EPSL)}
        v_mov_b32 v{VM}, 0xff
        s_waitcnt lgkmcnt(6)
        v_readfirstlane_b32 s60, v41
        v_readfirstlane_b32 s49, v43
        """)
        self.nonce_setup()
        for rf in range(4):
            if rf == 2: A("s_waitcnt lgkmcnt(0)")
            for cf in range(2):
                self.phi4(ACC+(rf*4+cf)*4, TB(rf), False, CS+2*cf, True, TB(rf)+4, False, PK(rf>>1, cf) + (rf&1)*2, U + 8*cf, E + 8*cf)
            for cf in range(2, 4):
                a = ACC+(rf*4+cf)*4; u_ = U + 8*(cf&1)
                for h in (0, 2): A(f"v_pk_fma_f32 {vr(u_+h,2)}, {vr(TB(rf)+h,2)}, {vr(CS+2*cf,2)}, {vr(a+h,2)} op_sel_hi:[1,0,1] neg_lo:[1,0,0] neg_hi:[1,0,0]")
                for h in (0, 2): A(f"v_pk_mul_f32 {vr(u_+h,2)}, {vr(u_+h,2)}, {vr(TB(rf)+8+h,2)}")
                d = VV(rf>>1, cf-2) + (rf&1)*2
                A(f"v_cvt_pk_bf16_f32 v{d}, v{u_}, v{u_+1}\nv_cvt_pk_bf16_f32 v{d+1}, v{u_+2}, v{u_+3}")
            if rf & 1:
                ks2 = rf >> 1
                for eb in range(3):
                    for db in range(2):
                        A(f"{MF} {vr(T(eb,db),4)}, {vr(PK(ks2,db),4)}, {vr(VV(ks2,eb),4) if eb < 2 else vr(ON,4)}, {'0' if ks2 == 0 else vr(T(eb,db),4)}")
        self.setflag(VFB, ONE, F_PUB)
        A(f"""
        s_lshl_b32 s43, s23, 1
        s_add_u32 s43, s43, s37
        s_lshl_b32 s58, s43, 5
        s_lshl_b32 s59, s22, 1
        s_add_u32 s58, s58, s59
        s_add_u32 s58, s58, s36
        s_lshl_b32 s59, s58, 7
        s_add_u32 s59, s59, {WS_ZP}
        s_mul_i32 s58, s58, {KVS}
        s_add_u32 s58, s58, {WS_KVP}
        v_lshlrev_b32 v120, 4, v1
        v_mov_b32 v121, {OOB}
        v_lshlrev_b32 v2, 4, v{Q4}
        v_cmp_eq_u32 vcc, 0, v{N15}
        v_cndmask_b32 v2, v121, v2, vcc
        """)
        for eb in range(2):
            for db in range(2):
                self.tag(T(eb,db), VM)
                A(f"buffer_store_dwordx4 {vr(T(eb,db),4)}, v120, s[16:19], s58 offen offset:{(eb*2+db)*1024} sc1")
        for db in range(2):
            self.tag(T(2,db), VM)
            A(f"buffer_store_dwordx4 {vr(T(2,db),4)}, v2, s[16:19], s59 offen offset:{64*db} sc1")
        self.stamp(3)
        H1, XSV, XST, MSK, AP, DT, BP, R, DW = 24, 60, 62, 64, 68, 76, 84, 92, 160
        A(f"""
        v_lshrrev_b32 v2, 3, v1
        v_and_b32 v3, 7, v1
        v_lshlrev_b32 v118, 11, v2
        v_lshl_add_u32 v118, v3, 4, v118
        s_lshl_b32 s58, s27, 8
        s_add_u32 s58, s58, {L_ST2}
        v_lshl_add_u32 v119, v2, 3, s58
        v_lshlrev_b32 v3, 4, v3
        v_mul_u32_u24 v4, {KVS}, v2
        v_add_u32 v4, v4, v3
        v_lshl_add_u32 v5, v2, 7, v3
        s_lshr_b32 s58, s22, 3
        s_lshl_b32 s59, s23, 1
        s_add_u32 s45, s58, s59
        s_mul_i32 s44, s45, {32*KVS}
        s_lshl_b32 s58, s22, 9
        s_and_b32 s58, s58, 0xfff
        s_add_u32 s44, s44, s58
        s_lshl_b32 s58, s27, 7
        s_add_u32 s44, s44, s58
        s_add_u32 s44, s44, {WS_KVP}
        s_lshl_b32 s58, s23, 4
        s_add_u32 s58, s58, s22
        s_lshl_b32 s46, s58, 9
        s_lshl_b32 s59, s27, 7
        s_add_u32 s46, s46, s59
        s_add_u32 s46, s46, {WS_KVF}
        v_cmp_gt_u32 vcc, 8, v1
        v_cndmask_b32 v6, v121, v120, vcc
        s_and_b32 s72, s49, 0x7ff
        s_sub_u32 s72, 0x7ff, s72
        s_lshl_b32 s49, s72, 3
        s_add_u32 s49, s49, {WS_STAT}
        s_lshl_b32 s73, s72, 11
        s_lshl_b32 s59, s87, 7
        s_add_u32 s73, s73, s59
        s_lshl_b32 s59, s27, 5
        s_add_u32 s73, s73, s59
        v_lshlrev_b32 v7, 1, v{N15}
        v_mov_b32 v8, 0
        buffer_load_ushort v{XSV}, v7, s[8:11], s73 offen
        buffer_load_dwordx2 {vr(XST,2)}, v8, s[16:19], s49 offen sc1
        """)
        self.moe_masks(1, MSK, 2, 3, 7)
        self.col_off(1, 117, 2)
        def acc(b):
            def f(k):
                if k:
                    for h in (0, 2): A(f"v_pk_add_f32 {vr(b+h,2)}, {vr(b+h,2)}, {vr(b+4*k+h,2)}")
            return f
        def red81632(b):
            for k in range(4): A(f"v_add_f32_dpp v{b+k}, v{b+k}, v{b+k} row_ror:8 row_mask:0xf bank_mask:0xf")
            for wh in (16, 32):
                for k in range(4): A(f"v_mov_b32 v{b+4+k}, v{b+k}")
                for k in range(4): A(f"v_permlane{wh}_swap_b32 v{b+k}, v{b+4+k}")
                for h in (0, 2): A(f"v_pk_add_f32 {vr(b+h,2)}, {vr(b+h,2)}, {vr(b+4+h,2)}")
            self.tag(b, VM)
        def wo_items(ts):
            return [(f"s_add_u32 s82, s48, {t}\ns_and_b32 s82, s82, 31\ns_lshl_b32 s82, s82, 16\ns_add_u32 s82, s82, s81\ns_add_u32 m0, s80, {((t+16)%32)*4096}",
                     f"buffer_load_dwordx4 v{VWO}, s[92:95], s82 offen lds") for t in ts]
        def gu_compute():
            sk, xt, xk = self.lab("ng"), self.lab("xt"), self.lab("xk")
            A(f"""
            s_cmp_ge_u32 s3, {0 if O.get('nomoe') else 224}
            s_cbranch_scc1 {sk}
            s_mov_b32 s57, 0
            s_mov_b32 s58, 0x05040100
            {xt}:
            v_perm_b32 v2, v{XST+1}, v{XST}, s58
            v_cmp_ne_u32 vcc, s60, v2
            s_add_u32 s57, s57, 1
            s_nop 0
            s_cbranch_vccz {xk}
            s_cmp_ge_u32 s57, {SPIN_MAX}
            s_cbranch_scc1 {xk}
            v_mov_b32 v2, 0
            buffer_load_dwordx2 {vr(XST,2)}, v2, s[16:19], s49 offen sc1
            s_waitcnt vmcnt(0)
            s_branch {xt}
            {xk}:
            v_and_b32 v{XST}, 0xffff0000, v{XST}
            v_and_b32 v{XST+1}, 0xffff0000, v{XST+1}
            v_rcp_f32 v{XST+1}, v{XST+1}
            v_lshlrev_b32 v{XSV}, 16, v{XSV}
            v_sub_f32 v{XSV}, v{XSV}, v{XST}
            """)
            rnd_bf16(A, XSV)
            A(f"v_mul_f32 v{XSV}, v{XSV}, v{XST+1}\nv_cvt_pk_bf16_f32 v{XSV}, v{XSV}, v{XSV}\nv_lshrrev_b32 v2, 5, v1\nv_lshlrev_b32 v2, 2, v2")
            for t in range(8): A(f"ds_bpermute_b32 v{BP+t}, v2, v{XSV} offset:{8*t}")
            A(f"s_lshl_b32 s58, s27, 11\ns_add_u32 s58, s58, {L_GUS}\nv_add_u32 v3, s58, v117\ns_waitcnt lgkmcnt(0)")
            for t in range(8):
                ap = AP + 4*(t & 1)
                for r in range(4): A(f"v_and_b32 v{ap+r}, v{BP+t}, v{MSK+r}")
                for m in range(2):
                    A(f"{MF} {vr(DT+4*m,4)}, {vr(ap,4)}, {vr(GW+8*t+4*m,4)}, {'0' if t == 0 else vr(DT+4*m,4)}")
            A(f"""
            ds_write_b128 v3, {vr(DT,4)}
            ds_write_b128 v3, {vr(DT+4,4)} offset:1024
            v_and_b32 v2, 31, v1
            v_lshlrev_b32 v2, 4, v2
            s_lshl_b32 s58, s27, 9
            v_add_u32 v2, s58, v2
            v_add_u32 v3, {L_GUS}, v2
            s_waitcnt lgkmcnt(0)
            """)
            self.setflag(VFB, ONE, F_GU)
            self.spin(VF, F_GU, 7)
            for w in range(4): A(f"ds_read_b128 {vr(R+4*w,4)}, v3 offset:{2048*w}")
            A("s_waitcnt lgkmcnt(0)")
            for h in (0, 2): A(f"v_pk_add_f32 {vr(R+h,2)}, {vr(R+h,2)}, {vr(R+4+h,2)}\nv_pk_add_f32 {vr(R+8+h,2)}, {vr(R+8+h,2)}, {vr(R+12+h,2)}")
            for h in (0, 2): A(f"v_pk_add_f32 {vr(R+h,2)}, {vr(R+h,2)}, {vr(R+8+h,2)}")
            self.tag(R, VM)
            A(f"""
            v_cmp_gt_u32 vcc, 32, v1
            v_cndmask_b32 v2, v121, v2, vcc
            s_lshl_b32 s58, s3, 11
            s_add_u32 s58, s58, {WS_GUP}
            buffer_store_dwordx4 {vr(R,4)}, v2, s[16:19], s58 offen sc1
            {sk}:
            """)
        gupos = O["gupos"] if n0 == 16 else 2
        if gupos == 0:
            A("s_waitcnt vmcnt(0)"); gu_compute()
        self.stamp(4)
        if O["d1"]: A(f"s_sleep {O['d1']}")
        post1 = gu_items(range(n0, 16))
        kvl = [(f"s_add_u32 s58, s44, {8*KVS*t}", f"buffer_load_dwordx4 {vr(H1+4*t,4)}, v4, s[16:19], s58 offen sc1", H1+4*t) for t in range(4)]
        zl = [(None, f"buffer_load_dwordx4 {vr(H1+16+4*t,4)}, v5, s[16:19], s47 offen offset:{1024*t} sc1", H1+16+4*t) for t in range(4)]
        A(f"""
        s_and_b32 s58, s22, 7
        s_lshl_b32 s58, s58, 2
        s_add_u32 s58, s58, s27
        s_cmp_eq_u32 s58, 29
        s_cbranch_scc1 L_zwave
        """)
        self.gather(kvl, 56, acc(H1), post1)
        red81632(H1)
        A(f"""
        buffer_store_dwordx4 {vr(H1,4)}, v6, s[16:19], s46 offen sc1
        s_branch L_noz
        L_zwave:
        s_lshl_b32 s47, s45, 12
        s_add_u32 s47, s47, {WS_ZP}
        s_lshl_b32 s45, s45, 7
        s_add_u32 s45, s45, {WS_ZF}
        """)
        def both(k):
            if k < 4: acc(H1+16)(k)
            else: acc(H1)(k-4)
            if k == 3:
                red81632(H1+16); A(f"buffer_store_dwordx4 {vr(H1+16,4)}, v6, s[16:19], s45 offen sc1")
        self.gather(zl + kvl, 56, both, post1, 3)
        red81632(H1)
        A(f"buffer_store_dwordx4 {vr(H1,4)}, v6, s[16:19], s46 offen sc1\nL_noz:")
        if self.diag: A("v_writelane_b32 v127, s31, 12")
        self.stamp(5)
        if gupos == 1: gu_compute()
        H2, FR = 128, 144
        A(f"""
        s_xor_b32 s43, s43, 2
        s_lshl_b32 s46, s43, 12
        s_lshl_b32 s58, s36, 11
        s_add_u32 s46, s46, s58
        s_add_u32 s46, s46, {WS_KVF}
        s_lshl_b32 s45, s43, 7
        s_add_u32 s45, s45, {WS_ZF}
        v_lshlrev_b32 v4, 4, v{Q4}
        s_mul_i32 s58, s37, 3072
        s_add_u32 s58, s58, {L_KVX}
        v_add_u32 v5, s58, v120
        s_lshl_b32 s58, s36, 10
        v_add_u32 v6, s58, v5
        s_lshl_b32 s38, s28, 7
        s_lshl_b32 s58, s27, 5
        s_add_u32 s38, s38, s58
        s_lshl_b32 s39, s38, 11
        s_lshl_b32 s58, s29, 7
        s_add_u32 s39, s39, s58
        """)
        def cv(k):
            A(f"v_cvt_pk_bf16_f32 v{FR+2*k}, v{H2+4*k}, v{H2+4*k+1}\nv_cvt_pk_bf16_f32 v{FR+2*k+1}, v{H2+4*k+2}, v{H2+4*k+3}")
            if k == 1: A(f"ds_write_b128 v6, {vr(FR,4)}")
            if k == 3: A(f"ds_write_b128 v5, {vr(FR+4,4)} offset:2048")
        d2 = O["d2"] if gupos != 1 or O.get("nomoe") else O["d2g"]
        if d2: A(f"s_sleep {d2}")
        XR, ST2, S, U, E = 96, 16, 128, 24, 26
        xl = [(f"s_add_u32 s59, s39, {8*2048*t}", f"buffer_load_dwordx4 {vr(XR+4*t,4)}, v118, s[8:11], s59 offen") for t in range(4)]
        if gupos == 2: XR = 40; xl = [(p, t.replace(vr(96+4*k,4), vr(40+4*k,4))) for k, (p, t) in enumerate(xl)]
        tail2 = [] if O["wok"] else wo_items(range(16))
        self.gather([(None, f"buffer_load_dwordx4 {vr(H2+4*k,4)}, v120, s[16:19], s46 offen offset:{1024*k} sc1", H2+4*k) for k in range(2)] +
                    [(None, f"buffer_load_dwordx4 {vr(H2+8+4*k,4)}, v4, s[16:19], s45 offen offset:{64*k} sc1", H2+8+4*k) for k in range(2)], 56, cv, xl)
        A("s_waitcnt lgkmcnt(0)")
        self.setflag(VFB, ONE, F_KVX)
        if self.diag: A("v_writelane_b32 v127, s31, 13")
        self.stamp(6)
        self.dbg_max(3)
        A("s_setprio 0")
        if tail2: self.spin(VF, F_C7, 56)
        for pre, txt in tail2:
            if pre: A(pre)
            A(txt)
        if gupos == 2: gu_compute()
        for t in range(4): A(f"ds_read_b64 {vr(ST2+2*t,2)}, v119 offset:{64*t}")
        A(f"s_waitcnt vmcnt({len(tail2)}) lgkmcnt(0)")
        for t in range(4):
            m = ST2 + 2*t
            A(f"v_mov_b32 v{E}, v{m+1}")
            for k in range(4):
                x = XR + 4*t + k; d = S + 8*t + 2*k
                A(f"""
                v_lshlrev_b32 v{d}, 16, v{x}
                v_and_b32 v{d+1}, 0xffff0000, v{x}
                v_pk_add_f32 {vr(U,2)}, {vr(d,2)}, {vr(m,2)} op_sel_hi:[1,0] neg_lo:[0,1] neg_hi:[0,1]
                v_cvt_pk_bf16_f32 v{U+1}, v{U}, v{U+1}
                v_lshlrev_b32 v{U}, 16, v{U+1}
                v_and_b32 v{U+1}, 0xffff0000, v{U+1}
                v_pk_mul_f32 {vr(U,2)}, {vr(U,2)}, {vr(E,2)} op_sel_hi:[1,0]
                v_cvt_pk_bf16_f32 v{U+1}, v{U}, v{U+1}
                v_lshlrev_b32 v{U}, 16, v{U+1}
                v_and_b32 v{U+1}, 0xffff0000, v{U+1}
                v_pk_add_f32 {vr(d,2)}, {vr(d,2)}, {vr(U,2)}
                """)
        if tail2:
            A("s_waitcnt vmcnt(0)"); self.setflag(VFB, ONE, F_WOK)
        G = 32
        A(f"""
        s_cmp_ge_u32 s3, {0 if O.get('nomoe') else 224}
        s_cbranch_scc1 L_noh
        s_cmp_lg_u32 s27, 0
        s_cbranch_scc1 L_noh
        v_lshrrev_b32 v2, 2, v1
        v_lshlrev_b32 v2, 11, v2
        v_and_b32 v3, 3, v1
        v_lshl_add_u32 v2, v3, 4, v2
        s_lshr_b32 s58, s3, 4
        s_lshl_b32 s58, s58, 15
        s_lshl_b32 s59, s87, 6
        s_add_u32 s58, s58, s59
        s_add_u32 s58, s58, {WS_GUP}
        """)
        self.gather([(None, f"buffer_load_dwordx4 {vr(G+4*k,4)}, v2, s[16:19], s58 offen offset:{1024*k} sc1", G+4*k) for k in range(2)], 56)
        for r in (8, 4):
            for k in range(8): A(f"v_add_f32_dpp v{G+k}, v{G+k}, v{G+k} row_ror:{r} row_mask:0xf bank_mask:0xf")
        for wh in (16, 32):
            for k in range(8): A(f"v_mov_b32 v{G+8+k}, v{G+k}")
            for k in range(8): A(f"v_permlane{wh}_swap_b32 v{G+k}, v{G+8+k}")
            for h in range(0, 8, 2): A(f"v_pk_add_f32 {vr(G+h,2)}, {vr(G+h,2)}, {vr(G+8+h,2)}")
        for k in range(8): A(f"v_cvt_pk_bf16_f32 v{G+k}, v{G+k}, v{G+k}")
        for k in range(8): A(f"v_lshlrev_b32 v{G+k}, 16, v{G+k}")
        for k in range(4): A(f"v_mul_f32 v{G+8+k}, {hex(LOG2E | 0x80000000)}, v{G+k}")
        for k in range(4): A(f"v_exp_f32 v{G+8+k}, v{G+8+k}")
        for k in range(4): A(f"v_add_f32 v{G+8+k}, 1.0, v{G+8+k}")
        for k in range(4): A(f"v_rcp_f32 v{G+8+k}, v{G+8+k}")
        for k in range(4): A(f"v_mul_f32 v{G+k}, v{G+k}, v{G+8+k}")
        for k in range(4): A(f"v_cvt_pk_bf16_f32 v{G+k}, v{G+k}, v{G+k}")
        for k in range(4): A(f"v_lshlrev_b32 v{G+k}, 16, v{G+k}")
        for k in range(4): A(f"v_mul_f32 v{G+k}, v{G+k}, v{G+4+k}")
        for k in range(4): A(f"v_cvt_pk_bf16_f32 v{G+k}, v{G+k}, v{G+k}")
        A(f"""
        v_add_u32 v2, {L_HT}, v120
        s_mov_b64 exec, 15
        ds_write_b128 v2, {vr(G,4)}
        s_mov_b64 exec, 1
        s_waitcnt lgkmcnt(0)
        ds_write_b32 v{VF}, v{ONE} offset:{F_H}
        s_mov_b64 exec, -1
        L_noh:
        """)
        self.stamp(14)
        self.spin(VF, F_AR, 7)
        for pre, txt in wo_items(range(16, 32)): A(pre); A(txt)
        G2 = 160
        B2 = lambda slot, ks: 80 + slot*8 + ks*4
        NW = O["nw"]
        OW = ([16 + 8*k for k in range(8)] + [192 + 8*k for k in range(7)])[:NW]
        VW = 112
        A(f"""
        v_lshl_add_u32 v{VW+2}, v{Q4}, 9, v10
        v_xor_b32 v{VW+3}, 32, v{VW+2}
        v_add_u32 v{VW}, 0x10000, v{VW+2}
        v_add_u32 v{VW+1}, 0x10000, v{VW+3}
        v_add_u32 v116, 32768, v120
        s_lshl_b32 s47, s28, 3
        s_lshl_b32 s58, s27, 1
        s_add_u32 s47, s47, s58
        s_lshl_b32 s47, s47, 15
        v_lshlrev_b32 v117, 7, v{N15}
        s_lshl_b32 s50, s28, 2
        s_add_u32 s50, s50, s27
        s_lshl_b32 s50, s50, 11
        s_add_u32 s50, s50, {WS_OF}
        """)
        self.spin(VF, F_WOK, 4)
        A("s_setprio 3")
        self.stamp(7)
        A(f"""
        s_sleep {O["d3"]}
        s_mov_b32 s57, 0
        L_s3:
        buffer_load_dword v4, v117, s[16:19], s50 offen sc1
        s_waitcnt vmcnt(0)
        v_cmp_ne_u32 vcc, s60, v4
        s_add_u32 s57, s57, 1
        s_nop 0
        s_cbranch_vccz L_s3d
        s_sleep {O["sleep3"]}
        s_cmp_lt_u32 s57, {SPIN_MAX}
        s_cbranch_scc1 L_s3
        L_s3d:
        """)
        self.setflag(VFB, ONE, F_WOA)
        self.stamp(8)
        self.dbg_max(4)
        V = VmTracker(A)
        def oload(u):
            t, rf = u >> 1, u & 1
            if u % 8 == 0:
                A(f"s_add_u32 s58, s48, {t}\ns_and_b32 s58, s58, 31\ns_lshl_b32 s58, s58, 10\ns_add_u32 s51, s58, s47")
            V.issue(f"buffer_load_dwordx4 {vr(OW[t % NW]+4*rf,4)}, v{116 if rf else 120}, s[16:19], s51 offen offset:{(t&3)*1024} sc1", ("o", t))
        PRE = O["pre"]
        for u in range(2*PRE): oload(u)
        L = LgkmTracker(A)
        def wreads(pr, nf):
            return [(f"ds_read_b64_tr_b16 {vr(B2(nf,ks)+2*rd,2)}, v{VW + (nf&1) + 2*((2*pr+ks)>>4)} offset:{((2*pr+ks)&15)*4096 + rd*2048 + (nf>>1)*256}", ("W",pr,nf))
                    for ks in range(2) for rd in range(2)]
        for nf in range(3):
            for x in wreads(0, nf): L.issue(*x)
        nxt = 2*PRE
        for pr in range(16):
            for nf in range(4):
                g = pr*4 + nf + 3
                if g == 32:
                    L.need({("CA",)}); self.check(VF, F_WOA, 4)
                w = wreads(g//4, g % 4) if g < 64 else []
                if nf == 0: V.need({("o", 2*pr), ("o", 2*pr+1)})
                L.need({("W",pr,nf)})
                for j,(rf,ks) in enumerate(CH4):
                    acc_ = G2 + (rf*4+nf)*4
                    c = "0" if (pr == 0 and j % 2 == 0) else vr(acc_,4)
                    A(f"{MF} {vr(acc_,4)}, {vr(B2(nf,ks),4)}, {vr(OW[(2*pr+ks) % NW]+4*rf,4)}, {c}")
                    if w: L.issue(*w.pop(0))
                    if j == 1:
                        for _ in range(2 if (nxt >> 1) < 2*pr + NW - 2 else 1):
                            if nxt < 64 and (nxt >> 1) - NW <= 2*pr - 1:
                                oload(nxt); nxt += 1
                if g == 30: L.issue(f"ds_read_b32 v4, v{VF} offset:{F_WOA}", ("CA",))
                if pr == 3 and nf == 0:
                    A("s_mov_b64 exec, 1"); L.issue(f"ds_write_b8 v{VFB}, v{ONE} offset:{F_G8}", ("F",)); A("s_mov_b64 exec, -1")
                if pr == 14 and nf == 0:
                    L.issue(f"ds_read_b32 v4, v{VF} offset:{F_G8}", ("CG",))
        assert nxt == 64
        self.stamp(9)
        A(f"""
        s_mul_i32 s58, s27, 4608
        s_add_u32 s58, s58, {L_TR}
        v_mul_u32_u24 v2, 144, v{N15}
        v_lshl_add_u32 v2, v{Q4}, 3, v2
        v_add_u32 v2, s58, v2
        v_lshrrev_b32 v3, 3, v1
        v_mul_u32_u24 v3, 144, v3
        v_and_b32 v7, 7, v1
        v_lshl_add_u32 v3, v7, 4, v3
        v_add_u32 v3, s58, v3
        """)
        L.drain()
        self.check(VF, F_G8, 4)
        for rf in range(2):
            for nf in range(4):
                a = G2 + (rf*4+nf)*4; d = 16 + (rf*4+nf)*2
                A(f"v_cvt_pk_bf16_f32 v{d}, v{a}, v{a+1}\nv_cvt_pk_bf16_f32 v{d+1}, v{a+2}, v{a+3}")
                A(f"ds_write_b64 v2, {vr(d,2)} offset:{rf*16*144 + nf*32}")
        A("s_waitcnt lgkmcnt(0)")
        for t in range(4): A(f"ds_read_b128 {vr(32+4*t,4)}, v3 offset:{t*8*144}")
        A(f"""
        s_sub_u32 s52, s72, s38
        s_cmp_lt_u32 s52, {0 if O.get("nomoe") else 32}
        s_cbranch_scc0 L_no_moe
        """)
        self.spin(VF, F_YF, 5, 1)
        A(f"v_lshlrev_b32 v4, 5, v7\nv_add_u32 v4, {L_YF}, v4\nds_read_b128 v[48:51], v4\nds_read_b128 v[52:55], v4 offset:16\nv_lshrrev_b32 v5, 3, v1\ns_waitcnt lgkmcnt(0)")
        for t in range(4):
            A(f"v_add_u32 v7, {8*t}, v5\nv_cmp_eq_u32 vcc, s52, v7")
            for k in range(8): A(f"v_cndmask_b32 v56, 0, v{48+k}, vcc\nv_add_f32 v{S+8*t+k}, v{S+8*t+k}, v56")
        A("L_no_moe:\ns_waitcnt lgkmcnt(0)")
        for t in range(4):
            for k in range(4):
                a = 32 + 4*t + k; s_ = S + 8*t + 2*k; u_ = 60 + 2*(k & 1)
                A(f"v_lshlrev_b32 v{u_}, 16, v{a}\nv_and_b32 v{u_+1}, 0xffff0000, v{a}\nv_pk_add_f32 {vr(u_,2)}, {vr(u_,2)}, {vr(s_,2)}\nv_cvt_pk_bf16_f32 v{a}, v{u_}, v{u_+1}")
            A(f"buffer_store_dwordx4 {vr(32+4*t,4)}, v118, s[32:35], s39 offen {O['ost']}")
            if t < 3: A(f"s_add_u32 s39, s39, {8*2048}")
        self.stamp(10)
        self.dbg_max(5)
        self.stamp_out()
        A("L_end:\ns_endpgm")
        for t in self.slow: A(t)
        self.slow = []

    def k_tables(self):
        q = [f"s_lshl_b32 s58, s36, 8\nv_lshl_add_u32 v2, v13, 4, s58", f"v_add_u32 v2, {L_M}, v2", f"s_lshl_b32 s58, s37, 7\nv_lshl_add_u32 v3, v12, 2, s58", f"v_add_u32 v3, {L_CS}, v3"]
        q += [f"ds_read_b32 v{40+2*cf}, v3 offset:{(cf>>1)*256 + (cf&1)*64}" for cf in range(4)]
        q += [f"ds_read_b32 v41, v122 offset:{F_NON}", f"ds_read_b32 v43, v122 offset:{F_SEL}"]
        for rf in range(2):
            q += [f"ds_read_b128 {vr((16,28)[rf]+4*k,4)}, v2 offset:{64*rf + off}" for k, off in enumerate((0, L_RL - L_M, L_RI - L_M))]
        return q

    def build(self):
        self.prologue()
        self.helper()
        self.kwave()
        body = hazard.fix(self.A.lines)
        hdr = open(os.path.join(os.path.dirname(os.path.abspath(__file__)), "header.txt")).read()
        out = hdr + f"; @launch grid=(256,1,1) block=(512,1,1) lds={LDS_SIZE}\n"
        out += f""".amdgcn_target "amdgcn-amd-amdhsa--gfx950"
.text
.globl {NAME}_kernel
.p2align 8
.type {NAME}_kernel,@function
{NAME}_kernel:
"""
        out += "\n".join(body) + "\n"
        out += f""".section .rodata,"a"
.p2align 6
.amdhsa_kernel {NAME}_kernel
  .amdhsa_next_free_vgpr 256
  .amdhsa_next_free_sgpr 102
  .amdhsa_accum_offset 256
  .amdhsa_group_segment_fixed_size 0
  .amdhsa_kernarg_size 88
  .amdhsa_user_sgpr_count 2
  .amdhsa_user_sgpr_kernarg_segment_ptr 1
  .amdhsa_system_sgpr_workgroup_id_x 1
  .amdhsa_float_denorm_mode_32 3
.end_amdhsa_kernel
"""
        return out

if __name__ == "__main__":
    diag = "--diag" in sys.argv
    out = [a for a in sys.argv[1:] if not a.startswith("--")]
    path = out[0] if out else f"cdna_kernels/{NAME}.s"
    kw = {}
    for a in sys.argv[1:]:
        if a.startswith("--") and "=" in a:
            k_, v_ = a[2:].split("="); kw[k_] = eval(v_)
    open(path, "w").write(Gen(diag=diag, **kw).build())
    print("wrote", path)
```

```python
import sys, os
sys.path.insert(0, os.path.dirname(os.path.abspath(__file__)))
from asmlib import *
import hazard

NAME = "parallel_sum__linear_attn_block__moe_arch_mod__prompt"
WS_O, WS_ZP, WS_STAT, WS_KEY, WS_OF = 0x000000, 0x800000, 0x830000, 0x834000, 0x840000
WS_KVF, WS_ZF, WS_CSP, WS_YP, WS_DIAG, WS_GUP, WS_KVP = 0x860000, 0x880000, 0x8A0000, 0x900000, 0xA00000, 0xA80000, 0xB00000
KVS = 4096 + 128
WS_SIZE = 0x1000000
OOB = 0x40000000
L_A, L_KV = 0, 65536
L_M, L_RI, L_RL, L_CS, L_FL = 131072, 131584, 132096, 132608, 133376
L_HT, L_YT, L_YF, L_ST2, L_KVX = 133632, 133888, 134912, 135168, 136192
L_GUS = L_KVX + 6144
L_QCS = L_GUS + 8192
LDS_SIZE = L_QCS + 8192
L_TR = L_KV
F_WOA, F_WOK, F_GU, F_Y, F_GUP, F_KVX, F_G8, F_QL, F_C7, F_C15, F_PUB, F_YF, F_H, F_SEL, F_NON, F_KEY, F_ST, F_AR = 0, 4, 8, 12, 16, 20, 24, 28, 52, 56, 60, 64, 68, 72, 76, 80, 96, 160
ALL4 = 0x01010101
SPIN_MAX = 1 << 15
LOG2E, LN2, EPSL = 0x3fb8aa3b, 0x3f317218, 0x35c1a2a0

def order_tables():
    out = []
    for q in range(4):
        seq = [q]
        for g in range(4):
            others = [4*g + p for p in range(4) if p != q]
            oi = 0
            for sl in range(4):
                if sl == q and g < 3: seq.append(4*(g+1)+q)
                elif oi < 3: seq.append(others[oi]); oi += 1
        assert sorted(seq) == list(range(16))
        out.append(seq)
    return out
def pack4(seq):
    v = 0
    for i, c in enumerate(seq): v |= c << (4*i)
    return v
def srd(A, d, lo, size):
    A(f"s_mov_b32 s{d}, s{lo}\ns_mov_b32 s{d+1}, s{lo+1}\ns_mov_b32 s{d+2}, {hex(size)}\ns_mov_b32 s{d+3}, 0x20000")
def red_row(A, v, op="v_add_f32"):
    for r in (8, 4, 2, 1):
        A(f"{op}_dpp v{v}, v{v}, v{v} row_ror:{r} row_mask:0xf bank_mask:0xf")
def red_swap(A, v, t, which, op="v_add_f32"):
    A(f"v_mov_b32 v{t}, v{v}\nv_permlane{which}_swap_b32 v{v}, v{t}\n{op} v{v}, v{v}, v{t}")
def unpack(A, dlo, dhi, s):
    A(f"v_lshlrev_b32 v{dlo}, 16, v{s}\nv_and_b32 v{dhi}, 0xffff0000, v{s}")
def rnd_bf16(A, v):
    A(f"v_cvt_pk_bf16_f32 v{v}, v{v}, v{v}\nv_lshlrev_b32 v{v}, 16, v{v}")
MF = "v_mfma_f32_16x16x32_bf16"
CH4 = ((0,0),(0,1),(1,1),(1,0))

class Gen:
    def __init__(self, diag=False, **kw):
        self.A = Asm()
        self.diag = diag
        self.nlab = 0
        self.opt = dict(gate=1, d1=20, d2=12, d3=8, d4=8, sleep=10, sleep3=4, kprio=0, hprio=3, kprio2=3, hprio2=0, hprio3=3, nw=8, pre=4, ost="sc1", wopf=1,
                        ahead=3, pfat=13, early=1, sxd=4, stat_beg=-1, stat_end=0, runs=[(2, 8), (6, 8)], ngroups=4, gstep=1, runpos=13, gupos=1, dwat=26, wok=0, d2g=0, d5=40, s1at=12)
        self.opt.update(kw)
        self.slow = []
    def lab(self, p):
        self.nlab += 1
        return f"L_{p}{self.nlab}"
    def stamp(self, slot):
        if not self.diag: return
        if self.sreg is None:
            self.A(f"s_memrealtime s[98:99]\ns_waitcnt lgkmcnt(0)\ns_mov_b32 s{self.spark[slot]}, s98"); return
        self.A(f"s_memrealtime s[100:101]\ns_waitcnt lgkmcnt(0)\nv_writelane_b32 v{self.sreg}, s100, {slot}")
    def dbg_max(self, word, inv=False):
        if not self.opt.get("span"): return
        sk = self.lab("dm")
        self.A(f"""
        s_and_b32 s96, s2, 0x31
        s_add_u32 s96, s96, s27
        s_cmp_eq_u32 s96, 0
        s_cbranch_scc0 {sk}
        s_memrealtime s[100:101]
        v_lshlrev_b32 v2, 20, v1
        s_mov_b32 s96, s74
        s_mov_b32 s97, s75
        s_mov_b32 s98, 256
        s_mov_b32 s99, 0x20000
        s_waitcnt lgkmcnt(0)
        {"s_not_b32 s100, s100" if inv else ""}
        v_mov_b32 v3, s100
        buffer_atomic_umax v3, v2, s[96:99], 0 offen offset:{4*word}
        {sk}:
        """)
    def stamp_out(self):
        if not self.diag: return
        self.A(f"""
        s_lshl_b32 s56, s2, 3
        s_xor_b32 s57, s26, 4
        s_add_u32 s56, s56, s57
        s_lshl_b32 s56, s56, 8
        s_add_u32 s56, s56, {WS_DIAG}
        v_mbcnt_lo_u32_b32 v2, -1, 0
        v_mbcnt_hi_u32_b32 v2, -1, v2
        v_lshlrev_b32 v3, 2, v2
        buffer_store_dword v{self.sreg}, v3, s[16:19], s56 offen
        """)
    def nonce_setup(self):
        self.A("s_lshr_b32 s61, s60, 8\ns_lshr_b32 s62, s60, 16\ns_lshr_b32 s63, s60, 24\ns_mov_b32 s64, 0x0c0c0400\ns_mov_b32 s65, 0x04000c0c")
    def tag(self, base, vmask):
        for k in range(4): self.A(f"v_bfi_b32 v{base+k}, v{vmask}, s{60+k}, v{base+k}")
    def setflag(self, vaddr, vone, off):
        self.A(f"s_mov_b64 exec, 1\nds_write_b8 v{vaddr}, v{vone} offset:{off}\ns_mov_b64 exec, -1")
    def spin(self, vbase, off, tmp, want=ALL4):
        A = self.A
        top, done = self.lab("sl"), self.lab("sld")
        A(f"""
        s_mov_b32 s57, 0
        {top}:
        ds_read_b32 v{tmp}, v{vbase} offset:{off}
        s_waitcnt lgkmcnt(0)
        v_cmp_ne_u32 vcc, {hex(want)}, v{tmp}
        s_add_u32 s57, s57, 1
        s_nop 0
        s_cbranch_vccz {done}
        s_sleep 1
        s_cmp_lt_u32 s57, {SPIN_MAX*8}
        s_cbranch_scc1 {top}
        {done}:
        """)
    def check(self, vbase, off, tmp):
        A = self.A
        sl, bk, sp = self.lab("cs"), self.lab("cb"), self.lab("cp")
        A(f"v_cmp_ne_u32 vcc, {hex(ALL4)}, v{tmp}\ns_nop 1\ns_cbranch_vccnz {sl}\n{bk}:")
        self.slow.append(f"""
        {sl}:
        s_mov_b32 s57, 0
        {sp}:
        ds_read_b32 v{tmp}, v{vbase} offset:{off}
        s_waitcnt lgkmcnt(0)
        v_cmp_ne_u32 vcc, {hex(ALL4)}, v{tmp}
        s_add_u32 s57, s57, 1
        s_nop 0
        s_cbranch_vccz {bk}
        s_cmp_lt_u32 s57, {SPIN_MAX*16}
        s_cbranch_scc1 {sp}
        s_branch {bk}
        """)
    def gather(self, loads, tmp, after=None, post=(), store_after=None, light=False):
        A = self.A
        n = len(loads)
        for pre, txt, c in loads:
            if pre: A(pre)
            A(txt)
        for pre, txt in post:
            if pre: A(pre)
            A(txt)
        if self.diag: A("s_mov_b32 s31, 0")
        for k, (pre, txt, c) in enumerate(loads):
            ok, top, re_ = self.lab("gk"), self.lab("gt"), self.lab("gr")
            chk = f"""
            v_perm_b32 v{tmp}, v{c+1}, v{c}, s64
            v_perm_b32 v{tmp+1}, v{c+3}, v{c+2}, s65
            v_or_b32 v{tmp}, v{tmp}, v{tmp+1}
            v_cmp_ne_u32 vcc, s60, v{tmp}
            """
            A(f"s_waitcnt vmcnt({n-1-k+len(post)+(1 if store_after is not None and k > store_after else 0)})")
            A(chk)
            A(f"s_mov_b32 s57, 0\ns_nop 0\ns_cbranch_vccz {ok}\n{top}:\ns_sleep {self.opt['sleep']}")
            for pre2, txt2, c2 in (loads[k:k+1] if light else loads[k:]):
                if pre2: A(pre2)
                A(txt2)
            A("s_waitcnt vmcnt(0)")
            if self.diag: A("s_add_u32 s31, s31, 1")
            A(chk)
            A(f"s_add_u32 s57, s57, 1\ns_nop 0\ns_cbranch_vccz {re_ if light else ok}\ns_cmp_lt_u32 s57, {SPIN_MAX}\ns_cbranch_scc1 {top}")
            if light:
                A.label(re_)
                for pre2, txt2, c2 in loads[k+1:]:
                    if pre2: A(pre2)
                    A(txt2)
            A.label(ok)
            for r in range(4): A(f"v_and_b32 v{c+r}, 0xffffff00, v{c+r}")
            if after: after(k)
    def phi4(self, a, m, m_b, c, c_b, rl, rl_b, dst, U, E, sc=40):
        A = self.A
        def o(r, b, h): return (vr(r,2), 0) if b else (vr(r+h,2), 1)
        for h in (0, 2):
            (pm, mh), (pc, ch) = o(m, m_b, h), o(c, c_b, h)
            A(f"v_pk_fma_f32 {vr(U+h,2)}, {pm}, {pc}, {vr(a+h,2)} op_sel_hi:[{mh},{ch},1] neg_lo:[1,0,0] neg_hi:[1,0,0]")
        for h in (0, 2):
            p, hi = o(rl, rl_b, h)
            A(f"v_pk_mul_f32 {vr(U+h,2)}, {vr(U+h,2)}, {p} op_sel_hi:[1,{hi}]")
        for k in range(4): A(f"v_exp_f32 v{E+k}, v{U+k} clamp")
        for k in range(4): A(f"v_max_f32 v{U+k}, s{sc+2}, v{U+k}")
        for h in (0, 2): A(f"v_pk_fma_f32 {vr(U+h,2)}, {vr(U+h,2)}, s[{sc}:{sc+1}], {vr(E+h,2)}")
        A(f"v_cvt_pk_bf16_f32 v{dst}, v{U}, v{U+1}\nv_cvt_pk_bf16_f32 v{dst+1}, v{U+2}, v{U+3}")

    def order_setup(self):
        A = self.A
        tabs = [pack4(o) for o in order_tables()]
        A(f"s_sub_u32 s74, s24, s25\ns_and_b32 s74, s74, 3\ns_mov_b32 s76, {tabs[0] & 0xffffffff}\ns_mov_b32 s77, {tabs[0] >> 32}")
        for q in range(1, 4):
            A(f"s_cmp_eq_u32 s74, {q}\ns_cselect_b32 s76, {tabs[q] & 0xffffffff}, s76\ns_cselect_b32 s77, {tabs[q] >> 32}, s77")
        A(f"""
        s_lshl_b32 s75, s30, 1
        {"s_add_u32 s75, s75, s31" if self.opt.get("rot", 1) else ""}
        {"s_add_u32 s75, s75, %d" % self.opt["radd"] if self.opt.get("radd") else ""}
        s_lshl_b32 s75, s75, 2
        s_lshl_b32 s58, s23, 7
        s_xor_b32 s58, s58, 128
        s_mul_i32 s79, s27, {8*6144}
        s_add_u32 s79, s79, s58
        s_lshl_b32 s80, s27, 10
        """)
    def qpair(self, p, vq):
        base = (L_KV + p*16384) if p < 4 else (L_A + (p-4)*16384)
        out = []
        for par in range(2):
            pre = f"s_and_b32 s84, s72, 15\ns_lshr_b64 s[72:73], s[72:73], 4\ns_add_u32 s84, s84, s75\ns_and_b32 s84, s84, 15\ns_mul_i32 s84, s84, {64*6144}\ns_add_u32 s84, s84, s79"
            for pc in range(2):
                out.append(((pre if pc == 0 else f"s_add_u32 s84, s84, {32*6144}") + f"\ns_add_u32 m0, s86, {base + par*2048 + pc*1024}",
                            f"buffer_load_dwordx4 v{vq}, s[12:15], s84 offen {'nt ' if self.opt.get('ntq') else ''}lds", ("q", p)))
        return out
    def moe_masks(self, VL, MSK, a, b, c):
        A = self.A
        A(f"""
        v_and_b32 v{a}, 1, v{VL}
        v_mov_b32 v{b}, 0xffff
        v_mov_b32 v{c}, 0xffff0000
        v_cmp_eq_u32 vcc, 1, v{a}
        v_cndmask_b32 v{b}, v{b}, v{c}, vcc
        v_lshrrev_b32 v{a}, 1, v{VL}
        v_xor_b32 v{a}, v{a}, v{VL}
        v_and_b32 v{a}, 8, v{a}
        v_cmp_eq_u32 vcc, 0, v{a}
        v_cndmask_b32 v{b}, 0, v{b}, vcc
        v_bfe_u32 v{a}, v{VL}, 1, 2
        """)
        for r in range(4): A(f"v_cmp_eq_u32 vcc, {r}, v{a}\nv_cndmask_b32 v{MSK+r}, 0, v{b}, vcc")
    def col_off(self, VL, d, a):
        self.A(f"""
        v_and_b32 v{a}, 15, v{VL}
        v_lshlrev_b32 v{d}, 5, v{a}
        v_bfe_u32 v{a}, v{VL}, 4, 1
        v_lshl_add_u32 v{d}, v{a}, 4, v{d}
        v_lshrrev_b32 v{a}, 5, v{VL}
        v_lshl_add_u32 v{d}, v{a}, 9, v{d}
        """)

    def prologue(self):
        A = self.A
        A(f"""
        s_cmp_ge_u32 s2, 256
        s_cbranch_scc1 L_end
        s_load_dwordx4 s[4:7], s[0:1], 0
        s_load_dwordx2 s[56:57], s[0:1], 16
        s_load_dwordx8 s[60:67], s[0:1], 32
        s_load_dwordx4 s[68:71], s[0:1], 64
        s_load_dwordx2 s[72:73], s[0:1], 80
        v_lshrrev_b32 v2, 6, v0
        v_and_b32 v1, 63, v0
        s_and_b32 s20, s2, 7
        v_readfirstlane_b32 s26, v2
        s_lshr_b32 s21, s2, 3
        s_and_b32 s24, s21, 7
        s_lshr_b32 s25, s21, 3
        s_and_b32 s30, s20, 1
        s_lshl_b32 s22, s30, 3
        s_add_u32 s22, s22, s24
        s_lshr_b32 s31, s20, 1
        s_lshl_b32 s23, s31, 2
        s_add_u32 s23, s23, s25
        s_and_b32 s27, s26, 3
        s_lshl_b32 s28, s30, 3
        s_and_b32 s58, s31, 1
        s_lshl_b32 s58, s58, 2
        s_add_u32 s28, s28, s58
        s_and_b32 s58, s21, 3
        s_add_u32 s28, s28, s58
        s_lshr_b32 s29, s20, 2
        s_lshl_b32 s29, s29, 3
        s_lshr_b32 s58, s21, 2
        s_add_u32 s29, s29, s58
        s_cmp_gt_u32 s23, 3
        s_subb_u32 s33, s23, 0
        s_cmp_gt_u32 s23, 11
        s_subb_u32 s33, s33, 0
        s_lshl_b32 s33, s33, 4
        s_add_u32 s33, s33, s22
        s_and_b32 s58, s23, 7
        s_cmp_eq_u32 s58, 3
        s_cselect_b32 s3, 255, s33
        s_waitcnt lgkmcnt(0)
        """)
        srd(A, 8, 4, 0x400000)
        srd(A, 12, 6, 0x600000)
        srd(A, 16, 72, WS_SIZE)
        if self.opt["stat_beg"] < 0:
            A("s_cmp_ge_u32 s26, 4\ns_cbranch_scc1 L_helper")
            self.stat_loads()
            A("s_branch L_kwave\nL_helper:")
        else:
            A("s_cmp_lt_u32 s26, 4\ns_cbranch_scc1 L_kwave")

    def helper(self):
        A0 = self.A
        A = V = self.A = Switch(A0)
        O = self.opt
        self.sreg, self.spark = None, {1: 96, 2: 94, 16: 97, 17: 20, 18: 21}
        VF, VQ, VAS, VQo, VT = 0, 2, 4, 6, 7
        BR, ACC, ST = 8, 32, 64
        VAo, VKVo, VL16, VOOB, VM = 62, 63, 61, 60, 59
        srd(A, 48, 70, 256)
        A(f"""
        s_or_b32 s58, s2, s27
        s_cmp_eq_u32 s58, 0
        s_cbranch_scc0 L_notag
        s_memrealtime s[58:59]
        v_lshlrev_b32 v2, 20, v1
        s_waitcnt lgkmcnt(0)
        s_lshl_b32 s58, s58, 1
        s_or_b32 s58, s58, 1
        v_mov_b32 v3, s58
        buffer_store_dword v3, v2, s[48:51], 0 offen sc1
        L_notag:
        v_lshrrev_b32 v10, 3, v1
        v_lshrrev_b32 v11, 4, v1
        s_and_b32 s58, s27, 1
        s_lshl_b32 s59, s58, 2
        v_add_u32 v12, s59, v11
        v_and_b32 v13, 7, v1
        v_xor_b32 v12, v12, v13
        v_lshlrev_b32 v10, 11, v10
        v_lshl_add_u32 v{VAo}, v12, 4, v10
        v_and_b32 v14, 3, v1
        v_lshlrev_b32 v14, 4, v14
        v_bfe_u32 v15, v1, 4, 1
        v_lshl_add_u32 v14, v15, 6, v14
        v_bfe_u32 v15, v1, 2, 2
        v_lshrrev_b32 v16, 5, v1
        v_mul_u32_u24 v17, 6144, v15
        v_add_u32 v17, v17, v14
        v_lshl_add_u32 v{VKVo}, v16, 11, v17
        v_mul_u32_u24 v16, {4*6144}, v16
        v_add_u32 v{VQo}, v16, v17
        s_lshr_b32 s59, s27, 1
        s_lshl_b32 s59, s59, 5
        v_xor_b32 v{VKVo}, s59, v{VKVo}
        s_lshl_b32 s59, s58, 5
        v_xor_b32 v{VQo}, s59, v{VQo}
        """)
        self.order_setup()
        A(f"""
        s_mov_b64 s[72:73], s[76:77]
        s_lshl_b32 s58, s23, 7
        s_mul_i32 s78, s27, {4*6144}
        s_add_u32 s78, s78, s58
        s_add_u32 s78, s78, 2048
        s_lshl_b32 s86, s27, 12
        s_lshl_b32 s81, s22, 7
        s_lshl_b32 s58, s27, 3
        s_add_u32 s81, s81, s58
        s_lshl_b32 s81, s81, 11
        """)
        def stage(s, atoms=(), k0=0):
            slot = s % 4
            atoms = list(atoms)
            per = -(-len(atoms) // (8 - k0))
            cnt = [0]
            nta = "nt " if s < O.get("nta", 0) else ""
            ntb = "nt " if s < O.get("ntb", 0) else ""
            def fill():
                cnt[0] += 1
                if cnt[0] <= k0: return
                for _ in range(per):
                    if atoms: replay(atoms.pop(0), A0, V.V)
            A(f"""
            s_and_b32 s82, s76, 15
            s_lshr_b64 s[76:77], s[76:77], 4
            s_add_u32 s82, s82, s75
            s_and_b32 s82, s82, 15
            s_mul_i32 s83, s82, {64*6144}
            s_lshl_b32 s82, s82, 7
            s_add_u32 s82, s82, s81
            s_add_u32 s83, s83, s78
            """)
            for p in range(4):
                A(f"s_add_u32 m0, s80, {L_A + slot*16384 + p*4096}")
                V.issue(f"buffer_load_dwordx4 v{VAo}, s[8:11], s82 offen {nta}lds", ("st", s)); fill()
                A(f"s_add_u32 s82, s82, {32*2048}\ns_add_u32 m0, s80, {L_KV + slot*16384 + p*4096}")
                V.issue(f"buffer_load_dwordx4 v{VKVo}, s[12:15], s83 offen {ntb}lds", ("st", s)); fill()
                A(f"s_add_u32 s83, s83, {16*6144}")
        qpair = lambda p: self.qpair(p, VQo)
        stage(0)
        A(f"s_setprio {O['hprio']}")
        srd(A, 32, 56, 0x200000)
        srd(A, 44, 66, 0x700000)
        CF, CA, ONES, VC, T = 200, 224, 236, 240, 244
        A(f"""
        v_and_b32 v12, 15, v1
        v_lshrrev_b32 v13, 4, v1
        v_lshlrev_b32 v14, 7, v12
        v_add_u32 v14, s86, v14
        v_bfe_u32 v15, v12, 1, 3
        v_xor_b32 v10, v13, v15
        v_lshl_add_u32 v{VAS}, v10, 4, v14
        v_add_u32 v10, 4, v13
        v_xor_b32 v10, v10, v15
        v_lshl_add_u32 v{VAS+1}, v10, 4, v14
        v_bfe_u32 v10, v1, 2, 2
        v_lshlrev_b32 v10, 6, v10
        v_and_b32 v11, 3, v1
        v_lshl_add_u32 v10, v11, 3, v10
        v_and_b32 v11, 1, v13
        v_lshl_add_u32 v10, v11, 5, v10
        v_lshl_add_u32 v{VQ}, v13, 12, v10
        v_add_u32 v{VQ}, {L_KV}, v{VQ}
        v_xor_b32 v{VQ+1}, 32, v{VQ}
        s_lshl_b32 s58, s27, 8
        s_add_u32 s58, s58, {L_KV}
        v_lshl_add_u32 v{VC}, v13, 11, v10
        v_add_u32 v{VC}, s58, v{VC}
        v_xor_b32 v{VC+1}, 32, v{VC}
        s_lshr_b32 s58, s27, 1
        s_lshl_b32 s58, s58, 8
        s_add_u32 s58, s58, {L_QCS}
        s_and_b32 s59, s27, 1
        s_lshl_b32 s59, s59, 5
        v_lshl_add_u32 v{VC+2}, v13, 10, v10
        v_xor_b32 v{VC+2}, s59, v{VC+2}
        v_add_u32 v{VC+2}, s58, v{VC+2}
        v_mov_b32 v{ONES}, 0x3f803f80
        v_mov_b32 v{ONES+1}, 0x3f803f80
        v_mov_b32 v{ONES+2}, 0x3f803f80
        v_mov_b32 v{ONES+3}, 0x3f803f80
        v_mov_b32 v{VOOB}, {OOB}
        v_mov_b32 v{VM}, 0xff
        v_mov_b32 v{VF}, {L_FL}
        s_lshr_b32 s88, s3, 4
        s_and_b32 s89, s3, 15
        v_lshlrev_b32 v{VL16}, 4, v1
        s_add_u32 s85, s74, 1
        s_cmp_lt_u32 s24, 4
        s_cselect_b32 s85, 0, s85
        """)
        AH = O['ahead']
        for s in range(1, AH): stage(s)
        A("s_load_dword s60, s[70:71], 0")
        def early():
            A(f"""
                s_add_u32 s58, s74, 4
            s_cmp_lt_u32 s24, 4
                s_cselect_b32 s58, s74, s58
            s_add_u32 s58, s58, s75
            s_and_b32 s58, s58, 15
            s_mul_i32 s84, s58, {64*6144}
            s_add_u32 s84, s84, s79
            s_add_u32 m0, s80, {L_QCS}
            """)
            V.issue(f"buffer_load_dwordx4 v{VQo}, s[12:15], s84 offen lds", "qcs")
            A(f"s_add_u32 s84, s84, {32*6144}\ns_add_u32 m0, s80, {L_QCS + 4096}")
            V.issue(f"buffer_load_dwordx4 v{VQo}, s[12:15], s84 offen lds", "qcs")
        def wopf():
            if O["wopf"]:
                A(f"s_lshl_b32 s58, s2, 13\ns_lshl_b32 s59, s27, 11\ns_add_u32 s58, s58, s59")
                V.issue(f"buffer_load_dwordx4 v[40:43], v{VL16}, s[32:35], s58 offen", "pf")
                V.issue(f"buffer_load_dwordx4 v[44:47], v{VL16}, s[32:35], s58 offen offset:1024", "pf")
        V.need({("st", 0)})
        A("s_barrier")
        self.stamp(1)
        def aread(s, dst):
            return [f"ds_read_b128 {vr(dst+(rf*2+ks)*4,4)}, v{VAS+ks} offset:{(s%4)*16384+rf*2048}" for rf in range(2) for ks in range(2)]
        def stash(s):
            for t in aread(s, ST+16*s): A(t)
        def csum(s):
            skip = self.lab("cs")
            A(f"s_cmp_eq_u32 s85, {s}\ns_cbranch_scc0 {skip}")
            for f in range(2):
                for ks in range(2):
                    for rd in range(2):
                        A(f"ds_read_b64_tr_b16 {vr(CF+f*8+ks*4+2*rd,2)}, v{VC+f} offset:{(s%4)*16384 + (8*ks+rd)*1024}")
            A("s_waitcnt lgkmcnt(0)")
            for f in range(2):
                A(f"{MF} {vr(CA+4*f,4)}, {vr(ONES,4)}, {vr(CF+f*8,4)}, 0\n{MF} {vr(CA+4*f,4)}, {vr(ONES,4)}, {vr(CF+f*8+4,4)}, {vr(CA+4*f,4)}")
            A.label(skip)
        def csum_q():
            for ks in range(2):
                for rd in range(2):
                    A(f"ds_read_b64_tr_b16 {vr(CF+16+ks*4+2*rd,2)}, v{VC+2} offset:{(8*ks+rd)*512}")
            A(f"s_waitcnt lgkmcnt(0)\n{MF} {vr(CA+8,4)}, {vr(ONES,4)}, {vr(CF+16,4)}, 0\n{MF} {vr(CA+8,4)}, {vr(ONES,4)}, {vr(CF+20,4)}, {vr(CA+8,4)}")
        def nonce():
            A("s_waitcnt lgkmcnt(0)\ns_cmp_eq_u32 s60, 0\ns_cbranch_scc1 L_tagslow\nL_tagback:")
            self.nonce_setup()
            A(f"v_mov_b32 v8, s60\ns_mov_b64 exec, 1\nds_write_b32 v{VF}, v8 offset:{F_NON}\ns_mov_b64 exec, -1")
            self.slow.append(f"""
            L_tagslow:
            s_mov_b32 s57, 0
            v_mov_b32 v8, 0
            L_tagspin:
            buffer_load_dword v9, v8, s[48:51], 0 offen sc1
            s_waitcnt vmcnt(0)
            v_readfirstlane_b32 s60, v9
            s_add_u32 s57, s57, 1
            s_cmp_lg_u32 s60, 0
            s_cbranch_scc1 L_tagback
            s_sleep 4
            s_cmp_lt_u32 s57, {SPIN_MAX}
            s_cbranch_scc1 L_tagspin
            s_branch L_tagback
            """)
        def pub_stats():
            A(f"""
            ds_read_b128 v[12:15], v{VF} offset:{F_KEY}
            v_and_b32 v8, 7, v1
            v_lshlrev_b32 v8, 3, v8
            v_add_u32 v9, {L_FL + F_ST}, v8
            ds_read_b64 v[16:17], v9
            s_lshl_b32 s58, s27, 6
            v_add_u32 v9, s58, v1
            v_cmp_gt_u32 vcc, 8, v9
            v_cndmask_b32 v8, v{VOOB}, v8, vcc
            v_cmp_eq_u32 vcc, 0, v9
            v_cndmask_b32 v9, v{VOOB}, v9, vcc
            s_and_b32 s59, s60, 0xffff
            s_waitcnt lgkmcnt(0)
            v_or_b32 v16, s59, v16
            v_or_b32 v17, s62, v17
            s_lshl_b32 s58, s22, 4
            s_add_u32 s58, s58, s23
            s_lshl_b32 s58, s58, 6
            s_add_u32 s58, s58, {WS_STAT}
            """)
            V.issue(f"buffer_store_dwordx2 v[16:17], v8, s[16:19], s58 offen sc1")
            A(f"v_max_u32 v12, v12, v13\nv_max3_u32 v12, v12, v14, v15\nv_mov_b32 v13, s60\ns_lshl_b32 s58, s2, 3\ns_add_u32 s58, s58, {WS_KEY}")
            V.issue(f"buffer_store_dwordx2 v[12:13], v9, s[16:19], s58 offen sc1")
        def pub_cs():
            A(f"""
            v_lshrrev_b32 v8, 4, v1
            v_cmp_eq_u32 vcc, 1, v8
            v_cndmask_b32 v{CA}, v{CA}, v{CA+4}, vcc
            v_cmp_eq_u32 vcc, 2, v8
            v_cndmask_b32 v{CA}, v{CA}, v{CA+8}, vcc
            s_lshl_b32 s58, s27, 7
            v_lshl_add_u32 v9, v1, 2, s58
            s_lshl_b32 s58, s27, 6
            s_add_u32 s58, s58, {512 - 128}
            v_lshl_add_u32 v10, v1, 2, s58
            v_cndmask_b32 v9, v9, v10, vcc
            v_cmp_eq_u32 vcc, 3, v8
            v_cndmask_b32 v9, v9, v{VOOB}, vcc
            v_and_b32 v10, 3, v1
            v_lshlrev_b32 v10, 3, v10
            v_lshrrev_b32 v10, v10, s60
            v_bfi_b32 v{CA}, v{VM}, v10, v{CA}
            s_lshl_b32 s58, s23, 4
            s_add_u32 s58, s58, s22
            s_lshl_b32 s58, s58, 10
            s_add_u32 s58, s58, {WS_CSP}
            """)
            V.issue(f"buffer_store_dword v{CA}, v9, s[16:19], s58 offen sc1")
        S1R, KEYS, T = 8, 16, 24
        def s1_addr():
            A(f"""
            v_and_b32 v32, 15, v1
            v_lshlrev_b32 v32, 4, v32
            v_lshrrev_b32 v33, 4, v1
            v_lshl_add_u32 v32, v33, 10, v32
            s_lshl_b32 s90, s23, 14
            s_lshl_b32 s59, s27, 8
            s_add_u32 s90, s90, s59
            s_add_u32 s90, s90, {WS_CSP}
            s_lshl_b32 s59, s22, 10
            s_add_u32 s59, s59, {WS_STAT}
            s_sub_u32 s95, s28, s22
            s_lshl_b32 s95, s95, 10
            s_lshl_b32 s87, s28, 10
            s_sub_u32 s87, {WS_KEY - WS_STAT}, s87
            s_cmp_eq_u32 s27, 3
            s_cselect_b32 s90, s59, s90
            s_movk_i32 s59, 4096
            s_cselect_b32 s95, s95, s59
            s_cselect_b32 s87, s87, s59
            s_cselect_b32 s74, 1024, s59
            s_cselect_b64 vcc, -1, 0
            v_cndmask_b32 v32, v32, v{VL16}, vcc
            """)
        def s1_round(issue):
            A("s_mov_b32 s58, s90")
            for t in range(4):
                issue(f"buffer_load_dwordx4 {vr(S1R+4*t,4)}, v32, s[16:19], s58 offen sc1", "s1")
                if t < 3: A(f"s_add_u32 s58, s58, s{(95, 87, 74)[t]}")
        def s1_check(w3):
            def chk():
                if not w3:
                    for t in range(4):
                        c = S1R + 4*t
                        A(f"v_perm_b32 v{T+t}, v{c+1}, v{c}, s64\nv_perm_b32 v35, v{c+3}, v{c+2}, s65\nv_or_b32 v{T+t}, v{T+t}, v35")
                    A(f"v_max3_u32 v33, v{T}, v{T+1}, v{T+2}\nv_min3_u32 v34, v{T}, v{T+1}, v{T+2}\nv_max_u32 v33, v33, v{T+3}\nv_min_u32 v34, v34, v{T+3}")
                else:
                    A("s_mov_b32 s58, 0x05040100")
                    for t in range(4): A(f"v_perm_b32 v{T+t}, v{S1R+2*t+1}, v{S1R+2*t}, s58")
                    A(f"""
                    v_max3_u32 v33, v{KEYS+1}, v{KEYS+3}, v{KEYS+5}
                    v_min3_u32 v34, v{KEYS+1}, v{KEYS+3}, v{KEYS+5}
                    v_max3_u32 v33, v33, v{KEYS+7}, v{T}
                    v_min3_u32 v34, v34, v{KEYS+7}, v{T}
                    v_max3_u32 v33, v33, v{T+1}, v{T+2}
                    v_min3_u32 v34, v34, v{T+1}, v{T+2}
                    v_max_u32 v33, v33, v{T+3}
                    v_min_u32 v34, v34, v{T+3}
                    """)
                A("v_cmp_ne_u32 vcc, s60, v33\nv_cmp_ne_u32 s[66:67], s60, v34\ns_or_b64 vcc, vcc, s[66:67]")
            V.need({"s1"})
            chk()
            sl, back = f"L_s1slow{int(w3)}", f"L_s1back{int(w3)}"
            A(f"s_cbranch_scc1 {sl}\n{back}:")
            keep = A.rec
            A.rec = r = Rec()
            top = self.lab("s1t")
            A(f"{sl}:\ns_mov_b32 s57, 0\n{top}:\ns_sleep 8")
            s1_round(lambda t, tag: A(t))
            A("s_waitcnt vmcnt(0)")
            chk()
            A(f"s_cbranch_scc0 {back}\ns_add_u32 s57, s57, 1\ns_cmp_lt_u32 s57, {SPIN_MAX}\ns_cbranch_scc1 {top}\ns_branch {back}")
            self.slow.append("\n".join(it[1] for a in r.atoms for it in a))
            A.rec = keep
        def s1_tables(w3):
            if not w3:
                for k in range(16): A(f"v_and_b32 v{S1R+k}, 0xffffff00, v{S1R+k}")
                for h in (0, 2):
                    A(f"v_pk_add_f32 {vr(S1R+h,2)}, {vr(S1R+h,2)}, {vr(S1R+4+h,2)}\nv_pk_add_f32 {vr(S1R+8+h,2)}, {vr(S1R+8+h,2)}, {vr(S1R+12+h,2)}")
                for h in (0, 2): A(f"v_pk_add_f32 {vr(S1R+h,2)}, {vr(S1R+h,2)}, {vr(S1R+8+h,2)}")
                for wh in (16, 32):
                    for k in range(4): A(f"v_mov_b32 v{S1R+4+k}, v{S1R+k}")
                    for k in range(4): A(f"v_permlane{wh}_swap_b32 v{S1R+k}, v{S1R+4+k}")
                    for h in (0, 2): A(f"v_pk_add_f32 {vr(S1R+h,2)}, {vr(S1R+h,2)}, {vr(S1R+4+h,2)}")
                A(f"s_lshl_b32 s58, s27, 8\ns_add_u32 s58, s58, {L_CS}\nv_and_b32 v33, 15, v1\nv_lshl_add_u32 v33, v33, 4, s58\nds_write_b128 v33, {vr(S1R,4)}")
            else:
                for k in range(8): A(f"v_and_b32 v{S1R+k}, 0xffff0000, v{S1R+k}")
                for k in (1, 3, 5, 7): A(f"v_rcp_f32 v{S1R+k}, v{S1R+k}")
                A(f"""
                v_add_u32 v33, {L_ST2}, v{VL16}
                v_mov_b32 v{T}, v{S1R}
                v_mov_b32 v{T+1}, v{S1R+2}
                ds_write_b128 v33, {vr(S1R+4,4)}
                v_mov_b32 v{T+2}, v{S1R+1}
                v_mov_b32 v{T+3}, v{S1R+3}
                v_mul_f32 v{T+4}, {hex(LOG2E)}, v{S1R+1}
                v_mul_f32 v{T+5}, {hex(LOG2E)}, v{S1R+3}
                v_lshlrev_b32 v33, 3, v1
                v_add_u32 v33, {L_M}, v33
                ds_write_b64 v33, {vr(T,2)}
                ds_write_b64 v33, {vr(T+2,2)} offset:{L_RI-L_M}
                ds_write_b64 v33, {vr(T+4,2)} offset:{L_RL-L_M}
                v_max_u32 v{KEYS}, v{KEYS}, v{KEYS+2}
                v_max3_u32 v{KEYS}, v{KEYS}, v{KEYS+4}, v{KEYS+6}
                """)
                red_row(A, KEYS, "v_max_u32"); red_swap(A, KEYS, KEYS+1, 16, "v_max_u32"); red_swap(A, KEYS, KEYS+1, 32, "v_max_u32")
                A(f"s_mov_b64 exec, 1\nds_write_b32 v{VF}, v{KEYS} offset:{F_SEL}\ns_mov_b64 exec, -1")
        P = O["s1at"]
        extra = {s: [] for s in range(16)}
        for s in range(12): extra[s].append(lambda s=s: stash(s))
        for s in range(5): extra[s].append(lambda s=s: csum(s))
        extra[1] += [nonce]
        extra[O['early']+2] += [csum_q]
        extra[max(5, O['early']+3)] += [pub_cs]
        extra[O["stat_end"]+1] += [pub_stats]
        extra[7] += [s1_addr]
        def iteration(s, atoms, k0=0):
            if s + AH < 16:
                stage(s + AH, atoms, k0); atoms = []
            if s == O["early"]: early()
            if s == P: s1_round(V.issue)
            if s == O['pfat']: wopf()
            if s >= 13:
                atoms = list(atoms)
                per = -(-len(atoms) // 4)
                for pre, d, tg in qpair(s - 13):
                    A(pre); V.issue(d, tg)
                    for _ in range(per):
                        if atoms: replay(atoms.pop(0), A0, V.V)
            tags = {("st", s+1)}
            if s == O["early"] + 1: tags.add("qcs")
            if s == 15: tags.add(("q", 1))
            V.need(tags)
            A("s_waitcnt lgkmcnt(0)\ns_barrier")
        for s in range(P+1): iteration(s, A.record(extra[s]))
        A("s_cmp_eq_u32 s27, 3\ns_cbranch_scc1 L_path3")
        q0 = list(V.V.q)
        for w3 in (False, True):
            if w3: A.label("L_path3")
            V.V.q = list(q0)
            tab = A.record([lambda: s1_tables(w3)])
            per = -(-len(tab) // (15 - (P+1)))
            for s in range(P+1, 16):
                if s == P+1: iteration(s, A.record(extra[s] + [lambda: s1_check(w3)]), 4 if s+AH < 16 else 0)
                else:
                    iteration(s, A.record(extra[s]) + tab[:per]); tab = tab[per:]
            assert not tab
            if not w3: A("s_branch L_pathj")
        A.label("L_pathj")
        V = V.V
        for pre, d, tg in qpair(3):
            A(pre); V.issue(d, tg)
        self.stamp(2)
        A(f"s_setprio {O['hprio2']}")
        A(f"v_add_u32 v1, s27, v{VF}")
        L = LgkmTracker(A)
        def wreads(g):
            u, cf = g >> 2, g & 3
            return [(f"ds_read_b64_tr_b16 {vr(BR+(g%3)*8+ks*4+2*rd,2)}, v{VQ+(cf&1)} offset:{((u>>1)&3)*16384 + (u&1)*2048 + ks*1024 + rd*512 + (cf>>1)*256}", ("W", g))
                    for ks in range(2) for rd in range(2)]
        def flag(off):
            A(f"v_mov_b32 v{VT}, 1\ns_mov_b64 exec, 1")
            L.issue(f"ds_write_b8 v1, v{VT} offset:{off}", ("F", off))
            A("s_mov_b64 exec, -1")
        GW, VD, VWO, DW = 128, 5, 6, 128
        def late_addr():
            A(f"""
            v_mbcnt_lo_u32_b32 v{VT}, -1, 0
            v_mbcnt_hi_u32_b32 v{VT}, -1, v{VT}
            v_lshrrev_b32 v{VWO}, 5, v{VT}
            v_and_b32 v{VD}, 31, v{VT}
            v_lshlrev_b32 v{VD}, 4, v{VD}
            v_lshl_add_u32 v{VD}, v{VWO}, 11, v{VD}
            v_bfe_u32 v4, v{VT}, 2, 2
            v_lshl_add_u32 v4, v{VWO}, 2, v4
            v_lshlrev_b32 v4, 11, v4
            v_lshlrev_b32 v{VWO}, 1, v{VWO}
            v_xor_b32 v{VWO}, v{VWO}, v{VT}
            v_and_b32 v{VWO}, 3, v{VWO}
            v_lshl_add_u32 v4, v{VWO}, 4, v4
            v_bfe_u32 v{VWO}, v{VT}, 4, 1
            v_lshl_add_u32 v{VWO}, v{VWO}, 6, v4
            s_lshl_b32 s93, s27, 14
            s_lshl_b32 s58, s29, 7
            s_add_u32 s93, s93, s58
            s_and_b32 s92, s29, 7
            s_lshl_b32 s58, s28, 1
            s_add_u32 s92, s92, s58
            s_lshl_b32 s92, s92, 2
            s_lshl_b32 s69, s3, 15
            s_lshl_b32 s59, s27, 9
            s_add_u32 s69, s69, s59
            s_cmp_lt_u32 s3, 224
            s_cselect_b32 s69, s69, 0
            s_cselect_b64 vcc, -1, 0
            v_cndmask_b32 v{VD}, 0, v{VD}, vcc
            """)
        dwl = [] if O.get("nomoe") else [("s_add_u32 s69, s69, 4096" if k else None, f"buffer_load_dwordx4 {vr(DW+4*k,4)}, v{VD}, s[44:47], s69 offen nt", "dw") for k in range(8)]
        wol = [(f"s_add_u32 s82, s92, {t}\ns_and_b32 s82, s82, 31\ns_lshl_b32 s82, s82, 16\ns_add_u32 s82, s82, s93\ns_add_u32 m0, s80, {(t+16)*4096}",
                f"buffer_load_dwordx4 v{VWO}, s[32:35], s82 offen lds", "wok") for t in range(16)] if O["wok"] else []
        assert not O["wok"] or (33 <= O["wok"] <= 48 and O["wok"] % 8 not in (5, 6))
        def emit(it):
            if it[0]: A(it[0])
            V.issue(it[1], it[2])
        if O["gate"]: self.spin(VF, F_PUB, VT)
        for g in range(2):
            for x in wreads(g): L.issue(*x)
        sig = {3: 2, 9: 3, 24: 4, 30: 5, 38: 6, 46: 7}
        pend = []
        for g in range(64):
            u, cf = g >> 2, g & 3
            a = ST + 16*(u if u < 12 else u-12)
            gn = g + 2
            if gn < 64 and gn % 8 == 0:
                if gn >= 16:
                    L.need({("C", gn//8)}); self.check(VF, F_QL + 4*(gn//8 - 2), VT)
                if gn == 32: A(f"v_subrev_u32 v{VQ}, {L_KV}, v{VQ}\nv_subrev_u32 v{VQ+1}, {L_KV}, v{VQ+1}")
            if g == O["wok"]:
                L.need({("C7",)}); self.check(VF, F_C7, VT)
            w = wreads(gn) if gn < 64 else []
            need = {("W", g)}
            if u >= 12 and cf == 0: need.add(("A", u))
            L.need(need)
            for j, (rf, ks) in enumerate(CH4):
                acc = ACC + (rf*4+cf)*4
                c = "0" if (u == 0 and j % 2 == 0) else vr(acc,4)
                A(f"{MF} {vr(acc,4)}, {vr(BR+(g%3)*8+ks*4,4)}, {vr(a+(rf*2+ks)*4,4)}, {c}")
                if w: L.issue(*w.pop(0))
                if j == 2 and pend: emit(pend.pop(0))
                if j == 2 and dwl and g >= O["dwat"]: emit(dwl.pop(0))
                if j == 1 and wol and g >= O["wok"]: emit(wol.pop(0))
            if 1 <= u <= 4 and cf == 0:
                for t in aread(11+u, ST+16*(u-1)): L.issue(t, ("A", 11+u))
            if 1 <= u <= 4 and cf == 2:
                L.need({("A", 11+u)}); pend += qpair(3+u)
            if g in sig:
                V.need({("q", sig[g])}); flag(F_QL + 4*(sig[g]-2))
            if g in (15, 31, 47) and O.get("p2st"): self.stamp(16 + g//16)
            if g == 23: late_addr()
            if g == 31: flag(F_C7)
            if g == O["wok"] - 1: L.issue(f"ds_read_b32 v{VT}, v{VF} offset:{F_C7}", ("C7",))
            if (g + 4) % 8 == 0 and 16 <= g + 4 < 64:
                L.issue(f"ds_read_b32 v{VT}, v{VF} offset:{F_QL + 4*((g+4)//8 - 2)}", ("C", (g+4)//8))
        ONE, VL, VM, VOOB, VL16, TMP = 112, 113, 114, 115, 116, 117
        self.sreg = 127
        if self.diag:
            A("s_nop 7")
            for sl in (1, 2, 16, 17, 18): A(f"v_writelane_b32 v127, s{self.spark[sl]}, {sl}")
        self.stamp(3)
        A(f"s_setprio {O['hprio3']}")
        QM, QL, QC, U, E, PQ, KX, ZX, NT0, OF = 8, 12, 16, 64, 68, 240, 208, 224, 192, 72
        A(f"""
        v_mov_b32 v{ONE}, 1
        s_mov_b64 exec, 1
        ds_write_b8 v1, v{ONE} offset:{F_C15}
        s_mov_b64 exec, -1
        v_mbcnt_lo_u32_b32 v{VL}, -1, 0
        v_mbcnt_hi_u32_b32 v{VL}, -1, v{VL}
        v_and_b32 v118, 15, v{VL}
        s_lshl_b32 s58, s27, 7
        s_add_u32 s58, s58, {L_M}
        v_lshl_add_u32 v118, v118, 2, s58
        v_lshrrev_b32 v119, 4, v{VL}
        v_lshlrev_b32 v119, 4, v119
        v_add_u32 v119, {L_CS + 512}, v119
        """)
        for rf in range(2):
            A(f"ds_read_b32 v{QM+2*rf}, v118 offset:{64*rf}\nds_read_b32 v{QL+2*rf}, v118 offset:{64*rf + L_RL - L_M}")
        for cf in range(4): A(f"ds_read_b128 {vr(QC+4*cf,4)}, v119 offset:{64*cf}")
        A(f"""
        v_mov_b32 v{VM}, 0xff
        v_mov_b32 v{VOOB}, {OOB}
        v_lshlrev_b32 v{VL16}, 4, v{VL}
        s_mov_b32 s52, {hex(LN2)}
        s_mov_b32 s53, {hex(LN2)}
        s_mov_b32 s54, {hex(EPSL)}
        s_waitcnt lgkmcnt(0)
        """)
        for rf in range(2):
            for cf in range(4):
                self.phi4(ACC+(rf*4+cf)*4, QM+2*rf, True, QC+4*cf, False, QL+2*rf, True, PQ + (rf*2+(cf>>1))*4 + (cf&1)*2, U, E, 52)
        self.stamp(4)
        self.spin(VF, F_KVX, TMP)
        A(f"v_add_u32 v118, {L_KVX}, v{VL16}")
        for h in range(2):
            for eb in range(2): A(f"ds_read_b128 {vr(KX+(h*2+eb)*4,4)}, v118 offset:{h*3072+eb*1024}")
            A(f"ds_read_b128 {vr(ZX+4*h,4)}, v118 offset:{h*3072+2048}")
        A(f"""
        s_lshl_b32 s58, s22, 3
        s_lshl_b32 s59, s27, 1
        s_add_u32 s58, s58, s59
        s_lshl_b32 s58, s58, 5
        s_xor_b32 s59, s23, 1
        s_lshl_b32 s59, s59, 1
        s_add_u32 s58, s58, s59
        s_lshl_b32 s58, s58, 10
        s_add_u32 s59, s58, 32768
        s_mov_b32 s55, 0x358637bd
        s_waitcnt lgkmcnt(0)
        """)
        self.stamp(5)
        NT = lambda k, e: 8 + (k*3+e)*4
        for k in range(4):
            rf, h = k >> 1, k & 1
            for e in (2, 0, 1):
                A(f"{MF} {vr(NT(k,e),4)}, {vr(ZX+4*h,4) if e == 2 else vr(KX+(h*2+e)*4,4)}, {vr(PQ+4*k,4)}, 0")
        for k in range(4): A(f"v_add_f32 v{NT(k,2)}, s55, v{NT(k,2)}\nv_rcp_f32 v{NT(k,2)}, v{NT(k,2)}")
        for k in range(4):
            d, o = NT(k,2), NT0 + 4*k
            for e in range(2):
                n = NT(k,e)
                for h in (0, 2): A(f"v_pk_mul_f32 {vr(n+h,2)}, {vr(n+h,2)}, {vr(d,2)} op_sel_hi:[1,0]")
                A(f"v_cvt_pk_bf16_f32 v{o+2*e}, v{n}, v{n+1}\nv_cvt_pk_bf16_f32 v{o+2*e+1}, v{n+2}, v{n+3}")
            A(f"buffer_store_dwordx4 {vr(o,4)}, v{VL16}, s[16:19], s{58+(k>>1)} offen offset:{1024*(k&1)} sc1")
        A(f"""
        s_lshl_b32 s58, s22, 2
        s_add_u32 s58, s58, s27
        s_lshl_b32 s58, s58, 4
        s_add_u32 s58, s58, s23
        s_lshl_b32 s58, s58, 7
        s_add_u32 s58, s58, {WS_OF}
        v_lshlrev_b32 v118, 24, v{VL}
        v_mov_b32 v119, s60
        s_mov_b64 exec, 1
        ds_write_b8 v1, v{ONE} offset:{F_AR}
        s_mov_b64 exec, -1
        s_waitcnt vmcnt(0)
        buffer_store_dword v119, v118, s[16:19], s58 offen sc1
        """)
        V.q = []
        if O["wok"]: self.setflag(1, ONE, F_WOK)
        self.stamp(6)
        if O.get("nomoe"): A("s_branch L_helper_end")
        MSK, AP, DT, BP, R = 12, 16, 24, 32, 40
        for it in dwl: emit(it)
        A(f"ds_read_b32 v118, v{VF} offset:{F_SEL}")
        self.moe_masks(VL, MSK, 119, 120, 121)
        self.col_off(VL, 122, 119)
        A(f"""
        v_lshrrev_b32 v121, 5, v{VL}
        v_lshlrev_b32 v121, 2, v121
        s_waitcnt lgkmcnt(0)
        v_readfirstlane_b32 s91, v118
        s_and_b32 s92, s91, 0x7ff
        s_sub_u32 s92, 0x7ff, s92
        s_cmp_ge_u32 s3, 224
        s_cbranch_scc1 L_moe_done
        v_add_u32 v119, {L_HT}, v121
        """)
        self.spin(VF, F_H, TMP, 1)
        for t in range(8): A(f"ds_read_b32 v{BP+t}, v119 offset:{8*t}")
        A("s_waitcnt vmcnt(0) lgkmcnt(0)")
        for t in range(8):
            ap = AP + 4*(t & 1)
            for r in range(4): A(f"v_and_b32 v{ap+r}, v{BP+t}, v{MSK+r}")
            A(f"{MF} {vr(DT,4)}, {vr(ap,4)}, {vr(DW+4*t,4)}, {'0' if t == 0 else vr(DT,4)}")
        self.tag(DT, VM)
        A(f"""
        s_lshl_b32 s58, s3, 12
        s_add_u32 s58, s58, s80
        s_add_u32 s58, s58, {WS_YP}
        buffer_store_dwordx4 {vr(DT,4)}, v122, s[16:19], s58 offen sc1
        L_moe_done:
        """)
        self.stamp(9)
        A(f"""
        s_lshr_b32 s58, s92, 7
        s_cmp_lg_u32 s58, s28
        s_cbranch_scc1 L_helper_end
        v_lshrrev_b32 v118, 4, v{VL}
        v_lshlrev_b32 v118, 12, v118
        v_and_b32 v119, 15, v{VL}
        v_lshlrev_b32 v119, 4, v119
        v_add_u32 v118, v118, v119
        s_mul_i32 s95, s27, {56*4096}
        s_lshl_b32 s59, s29, 8
        s_add_u32 s95, s95, s59
        s_add_u32 s95, s95, {WS_YP}
        s_waitcnt vmcnt(0)
        s_sleep {O["d5"]}
        """)
        def yacc(k):
            if k:
                for h in (0, 2): A(f"v_pk_add_f32 {vr(GW+h,2)}, {vr(GW+h,2)}, {vr(GW+4*k+h,2)}")
        self.gather([(f"s_add_u32 s58, s95, {4*4096*t}", f"buffer_load_dwordx4 {vr(GW+4*t,4)}, v118, s[16:19], s58 offen sc1", GW+4*t) for t in range(14)], 60, yacc, light=True)
        for k in range(4):
            red_swap(A, GW+k, 60, 16); red_swap(A, GW+k, 60, 32)
        A(f"s_lshl_b32 s58, s27, 8\ns_add_u32 s58, s58, {L_YT}\nv_add_u32 v118, s58, v119\nds_write_b128 v118, {vr(GW,4)}\ns_waitcnt lgkmcnt(0)")
        self.setflag(1, ONE, F_Y)
        A("s_cmp_lg_u32 s27, 0\ns_cbranch_scc1 L_helper_end")
        self.spin(VF, F_Y, TMP)
        A(f"v_add_u32 v118, {L_YT}, v119")
        for w in range(4): A(f"ds_read_b128 {vr(R+4*w,4)}, v118 offset:{256*w}")
        A(f"""
        s_and_b32 s58, s91, 0xffff0000
        s_ashr_i32 s59, s58, 31
        s_not_b32 s59, s59
        s_or_b32 s59, s59, 0x80000000
        s_xor_b32 s58, s58, s59
        s_and_b32 s58, s58, 0xffff0000
        v_mov_b32 v60, s58
        v_mul_f32 v60, {hex(LOG2E | 0x80000000)}, v60
        v_exp_f32 v60, v60
        v_add_f32 v60, 1.0, v60
        v_rcp_f32 v60, v60
        """)
        rnd_bf16(A, 60)
        A("s_waitcnt lgkmcnt(0)")
        for h in (0, 2): A(f"v_pk_add_f32 {vr(R+h,2)}, {vr(R+h,2)}, {vr(R+4+h,2)}\nv_pk_add_f32 {vr(R+8+h,2)}, {vr(R+8+h,2)}, {vr(R+12+h,2)}")
        for h in (0, 2): A(f"v_pk_add_f32 {vr(R+h,2)}, {vr(R+h,2)}, {vr(R+8+h,2)}")
        for k in range(4):
            rnd_bf16(A, R+k); A(f"v_mul_f32 v{R+k}, v{R+k}, v60"); rnd_bf16(A, R+k)
        A(f"""
        v_add_u32 v118, {L_YF}, v119
        ds_write_b128 v118, {vr(R,4)}
        s_mov_b64 exec, 1
        s_waitcnt lgkmcnt(0)
        ds_write_b32 v{VF}, v{ONE} offset:{F_YF}
        s_mov_b64 exec, -1
        L_helper_end:
        """)
        self.stamp(10)
        self.stamp_out()
        A("s_endpgm")
        self.A = A0
        for t in self.slow: A0(t)
        self.slow = []

    def stat_loads(self):
        A, O = self.A, self.opt
        srd(A, 44, 60, 2048)
        A(f"""
        v_and_b32 v2, 31, v1
        v_lshlrev_b32 v2, 4, v2
        v_lshrrev_b32 v3, 5, v1
        v_lshl_add_u32 v4, v3, 11, v2
        s_lshl_b32 s85, s22, 7
        s_lshl_b32 s58, s23, 3
        s_add_u32 s85, s85, s58
        s_lshl_b32 s58, s27, 1
        s_add_u32 s85, s85, s58
        s_lshl_b32 s58, s85, 11
        {"s_sleep %d" % O["sxd"] if O["stat_beg"] >= 0 else ""}
        """)
        for t in range(4): A(f"buffer_load_dwordx4 {vr(192+4*t,4)}, v4, s[8:11], s58 offen offset:{512*t}{' nt' if O.get('ntsx') else ''}")
        for t in range(4): A(f"buffer_load_dwordx4 {vr(208+4*t,4)}, v2, s[44:47], 0 offen offset:{512*t}")

    def stats(self):
        A = self.A
        X, WR, S1, S2, SR, SW, ON, T, MB = 192, 208, 224, 226, 228, 230, 232, 233, 236
        A("s_waitcnt vmcnt(0)")
        A(f"v_mov_b32 v{ON}, 0x3f803f80")
        for k in range(16):
            for d, a, b in ((S1, X+k, ON), (S2, X+k, X+k), (SR, X+k, WR+k), (SW, WR+k, ON)):
                A(f"v_dot2_f32_bf16 v{d+(k&1)}, v{a}, v{b}, {'0' if k < 2 else 'v%d' % (d+(k&1))}")
        A("s_nop 2")
        for d in (S1, S2, SR, SW): A(f"v_add_f32 v{d}, v{d}, v{d+1}")
        for r in (8, 4, 2, 1):
            for d in (S1, S2, SR, SW): A(f"v_add_f32_dpp v{d}, v{d}, v{d} row_ror:{r} row_mask:0xf bank_mask:0xf")
        for d in (S1, S2, SR, SW): A(f"v_mov_b32 v{d+1}, v{d}")
        for d in (S1, S2, SR, SW): A(f"v_permlane16_swap_b32 v{d}, v{d+1}")
        for d in (S1, S2, SR, SW): A(f"v_add_f32 v{d}, v{d}, v{d+1}")
        A(f"""
        v_mul_f32 v{S1}, 0x3a800000, v{S1}
        v_mul_f32 v{S2}, 0x3a800000, v{S2}
        v_cvt_pk_bf16_f32 v{MB}, v{S1}, v{S1}
        v_fma_f32 v{S2}, -v{S1}, v{S1}, v{S2}
        v_lshlrev_b32 v{MB}, 16, v{MB}
        v_max_f32 v{S2}, 0, v{S2}
        v_fma_f32 v{SR}, -v{MB}, v{SW}, v{SR}
        """)
        rnd_bf16(A, S2)
        A(f"v_add_f32 v{S2}, 0x3727c5ac, v{S2}")
        rnd_bf16(A, S2)
        A(f"v_sqrt_f32 v{S2}, v{S2}\nv_lshrrev_b32 v{T}, 5, v1\nv_cvt_pk_bf16_f32 v{S2}, v{S2}, v{S2}\nv_lshlrev_b32 v{MB+1}, 16, v{S2}")
        A(f"""
        v_rcp_f32 v{S2}, v{MB+1}
        v_add_u32 v{T+1}, s85, v{T}
        v_sub_u32 v{T+1}, 0x7ff, v{T+1}
        v_mul_f32 v{SR}, v{SR}, v{S2}
        s_lshl_b32 s58, s27, 4
        s_add_u32 s58, s58, {L_FL + F_ST}
        v_lshl_add_u32 v{T}, v{T}, 3, s58
        """)
        rnd_bf16(A, SR)
        A(f"""
        s_mov_b32 exec_lo, 1
        s_mov_b32 exec_hi, 1
        ds_write_b64 v{T}, {vr(MB,2)}
        s_mov_b64 exec, -1
        v_ashrrev_i32 v{T}, 31, v{SR}
        v_or_b32 v{T}, 0x80000000, v{T}
        v_xor_b32 v{T}, v{T}, v{SR}
        v_and_b32 v{T}, 0xffff0000, v{T}
        v_or_b32 v{T}, v{T}, v{T+1}
        """)
        red_swap(A, T, T+1, 32, "v_max_u32")
        A(f"s_lshl_b32 s58, s27, 2\ns_add_u32 s58, s58, {L_FL + F_KEY}\nv_mov_b32 v{T+1}, s58\ns_mov_b64 exec, 1\nds_write_b32 v{T+1}, v{T}\ns_mov_b64 exec, -1")

    def kwave(self):
        A = self.A
        O = self.opt
        A.label("L_kwave")
        self.sreg = 127
        self.stamp(0)
        if O.get("span"): A("s_mov_b32 s74, s70\ns_mov_b32 s75, s71")
        self.dbg_max(1, True)
        ACC = 128
        FA = lambda st, rf, ks: 16 + st*32 + (rf*2+ks)*4
        FB = lambda slot, ks: 80 + slot*8 + ks*4
        VA, VKV, N15, Q4, VM, VF, VFB, ONE = 112, 114, 12, 13, 11, 122, 123, 124
        A(f"""
        s_lshr_b32 s36, s27, 1
        s_and_b32 s37, s27, 1
        v_and_b32 v{N15}, 15, v1
        v_lshrrev_b32 v{Q4}, 4, v1
        v_mov_b32 v{VF}, {L_FL}
        v_add_u32 v{VFB}, s27, v{VF}
        v_mov_b32 v{ONE}, 1
        v_lshl_add_u32 v2, v1, 2, v{VF}
        v_mov_b32 v3, 0
        s_mov_b64 exec, 0x3ffff
        ds_write_b32 v2, v3
        ds_write_b32 v2, v3 offset:{F_AR}
        s_mov_b64 exec, -1
        s_lshl_b32 s58, s36, 13
        v_lshlrev_b32 v14, 7, v{N15}
        v_add_u32 v14, s58, v14
        v_bfe_u32 v15, v{N15}, 1, 3
        """)
        for ks in range(2):
            A(f"v_add_u32 v2, {4*ks}, v{Q4}\nv_xor_b32 v2, v2, v15\nv_lshl_add_u32 v{VA+ks}, v2, 4, v14")
        A(f"""
        v_bfe_u32 v2, v1, 2, 2
        v_lshlrev_b32 v2, 6, v2
        v_and_b32 v3, 3, v1
        v_lshl_add_u32 v2, v3, 3, v2
        v_and_b32 v3, 1, v{Q4}
        v_lshl_add_u32 v10, v3, 5, v2
        s_lshl_b32 s58, s37, 8
        v_add_u32 v4, s58, v10
        v_lshl_add_u32 v{VKV}, v{Q4}, 11, v4
        v_add_u32 v{VKV}, {L_KV}, v{VKV}
        v_xor_b32 v{VKV+1}, 32, v{VKV}
        """)
        VD, VWO, VG, GW = 125, 126, 9, 192
        srd(A, 92, 56, 0x200000)
        srd(A, 52, 62, 0x700000)
        srd(A, 88, 64, 0x700000)
        A(f"""
        s_lshl_b32 s80, s27, 10
        v_and_b32 v2, 3, v1
        v_bfe_u32 v3, v1, 4, 1
        v_lshlrev_b32 v3, 6, v3
        v_bfe_u32 v4, v1, 2, 2
        v_lshrrev_b32 v5, 5, v1
        v_lshl_add_u32 v4, v5, 2, v4
        v_lshlrev_b32 v6, 1, v5
        v_xor_b32 v2, v2, v6
        v_lshl_add_u32 v7, v2, 4, v3
        v_lshl_add_u32 v{VWO}, v4, 11, v7
        v_and_b32 v2, 31, v1
        v_lshlrev_b32 v2, 4, v2
        v_mul_u32_u24 v{VG}, 7168, v5
        v_add_u32 v{VG}, v{VG}, v2
        s_lshl_b32 s81, s27, 14
        s_lshl_b32 s58, s29, 7
        s_add_u32 s81, s81, s58
        s_and_b32 s48, s29, 7
        s_lshl_b32 s58, s28, 1
        s_add_u32 s48, s48, s58
        s_lshl_b32 s48, s48, 2
        s_lshr_b32 s34, s3, 4
        s_and_b32 s87, s3, 15
        s_lshl_b32 s78, s87, 6
        s_lshl_b32 s59, s27, 4
        s_add_u32 s78, s78, s59
        s_mul_i32 s78, s78, 7168
        s_lshl_b32 s59, s34, 9
        s_add_u32 s78, s78, s59
        s_and_b32 s71, s21, {O["ngroups"]-1}
        s_cmp_lt_u32 s3, 224
        s_cselect_b32 s78, s78, 0
        s_cselect_b32 s71, s71, -1
        s_cselect_b64 vcc, -1, 0
        v_cndmask_b32 v{VG}, 0, v{VG}, vcc
        """)
        srd(A, 32, 68, 0x400000)
        if O['stat_beg'] >= 0: self.stat_loads()
        sw = self.A = Switch(A)
        stq = sw.record([self.stats])
        self.A = A
        if O["stat_beg"] < 0:
            for a_ in stq: replay(a_, A, None)
            stq = []
        self.stamp(11)
        A(f"s_setprio {O['kprio']}\ns_waitcnt lgkmcnt(0)\ns_barrier")
        self.stamp(1)
        L = LgkmTracker(A)
        def areads(s_):
            return [(f"ds_read_b128 {vr(FA(s_&1,rf,ks),4)}, v{VA+ks} offset:{(s_%4)*16384+rf*2048}", ("A",s_)) for rf in range(4) for ks in range(2)]
        def breads(s_, cf):
            return [(f"ds_read_b64_tr_b16 {vr(FB(cf,ks)+2*rd,2)}, v{VKV+(cf&1)} offset:{(s_%4)*16384+(8*ks+rd)*1024+(cf>>1)*512}", ("B",s_,cf)) for ks in range(2) for rd in range(2)]
        for x in areads(0) + breads(0,0) + breads(0,1): L.issue(*x)
        def gu_items(ks):
            return [] if O.get("nomoe") else [(f"s_add_u32 s78, s78, {2*7168}" if (k & 1 == 0 and k) else None,
                     f"buffer_load_dwordx4 {vr(GW+4*k,4)}, v{VG}, s[{(52,88)[k&1]}:{(55,91)[k&1]}], s78 offen nt") for k in ks]
        runs = [] if O.get("nomoe") else O["runs"]
        n0 = sum(n for _, n in runs)
        P1 = [1,1,1,0,1,1,1,0,1,1,0,0]
        P2 = [1,1,1,1,0,1,1,1,1,0,1,1,1,1,0,1,1,1,1,0]
        for s_ in range(16):
            st = s_ & 1
            w1 = breads(s_,2) + breads(s_,3)
            w2 = (areads(s_+1) + breads(s_+1,0) + breads(s_+1,1)) if s_ < 15 else []
            g = 0
            for cf in range(4):
                for j,(rf,ks) in enumerate([(rf,ks) for rf in range(4) for ks in ((0,1) if rf % 2 == 0 else (1,0))]):
                    if g == 12:
                        if s_ == O["stat_end"]:
                            assert not stq
                            A("s_waitcnt lgkmcnt(0)"); L.q = []
                        L.drain(); A("s_barrier")
                    if g == O["runpos"]:
                        k0 = 0
                        for first, n in runs:
                            for grp in range(O["ngroups"]):
                                if first + grp*O["gstep"] == s_:
                                    sk = self.lab("run")
                                    A(f"s_cmp_eq_u32 s71, {grp}\ns_cbranch_scc0 {sk}")
                                    for pre, txt in gu_items(range(k0, k0+n)):
                                        if pre: A(pre)
                                        A(txt)
                                    A.label(sk)
                            k0 += n
                    if g == 12: pass
                    elif j == 0: L.need({("A",s_), ("B",s_,cf)})
                    acc = ACC + (rf*4+cf)*4
                    c = "0" if (s_ == 0 and j % 2 == 0) else vr(acc,4)
                    A(f"{MF} {vr(acc,4)}, {vr(FA(st,rf,ks),4)}, {vr(FB(cf,ks),4)}, {c}")
                    if g < 12:
                        if w1 and P1[g]: L.issue(*w1.pop(0))
                    elif w2 and P2[g-12]: L.issue(*w2.pop(0))
                    if O["stat_beg"] <= s_ <= O["stat_end"] and stq:
                        left = (O["stat_end"] - s_ + 1)*32 - g - 20
                        n = 1 if (len(stq) >= left or not (P1+P2)[g] or g % 2 == 0) else 0
                        if len(stq) > left: n = 2
                        for _ in range(n):
                            if stq: replay(stq.pop(0), A, None)
                    if s_ == 15 and g == 12: tabq = self.k_tables()
                    if s_ == 15 and g >= 13 and tabq: A(tabq.pop(0))
                    g += 1
            assert not w1 and not w2
        for t in tabq: A(t)
        A(f"s_setprio {O['kprio2']}")
        A("v_mov_b32 v8, v2") if O.get("span") else None
        self.dbg_max(2)
        A("v_mov_b32 v2, v8") if O.get("span") else None
        self.stamp(2)
        TB = lambda rf: (16, 28, 48, 60)[rf]
        CS, ON, U, E = 40, 72, 96, 100
        PK = lambda ks2, db: (80, 128)[ks2] + 4*db
        VV = lambda ks2, eb: (88, 136)[ks2] + 4*eb
        T = lambda eb, db: (144, 148, 152, 156, 16, 20)[eb*2+db]
        for rf in (2, 3):
            for k, off in enumerate((0, L_RL - L_M, L_RI - L_M)): A(f"ds_read_b128 {vr(TB(rf)+4*k,4)}, v2 offset:{64*rf + off}")
        for k in range(4): A(f"v_mov_b32 v{ON+k}, 0x3f803f80")
        A(f"""
        s_mov_b32 s40, {hex(LN2)}
        s_mov_b32 s41, {hex(LN2)}
        s_mov_b32 s42, {hex(EPSL)}
        v_mov_b32 v{VM}, 0xff
        s_waitcnt lgkmcnt(6)
        v_readfirstlane_b32 s60, v41
        v_readfirstlane_b32 s49, v43
        """)
        self.nonce_setup()
        for rf in range(4):
            if rf == 2: A("s_waitcnt lgkmcnt(0)")
            for cf in range(2):
                self.phi4(ACC+(rf*4+cf)*4, TB(rf), False, CS+2*cf, True, TB(rf)+4, False, PK(rf>>1, cf) + (rf&1)*2, U + 8*cf, E + 8*cf)
            for cf in range(2, 4):
                a = ACC+(rf*4+cf)*4; u_ = U + 8*(cf&1)
                for h in (0, 2): A(f"v_pk_fma_f32 {vr(u_+h,2)}, {vr(TB(rf)+h,2)}, {vr(CS+2*cf,2)}, {vr(a+h,2)} op_sel_hi:[1,0,1] neg_lo:[1,0,0] neg_hi:[1,0,0]")
                for h in (0, 2): A(f"v_pk_mul_f32 {vr(u_+h,2)}, {vr(u_+h,2)}, {vr(TB(rf)+8+h,2)}")
                d = VV(rf>>1, cf-2) + (rf&1)*2
                A(f"v_cvt_pk_bf16_f32 v{d}, v{u_}, v{u_+1}\nv_cvt_pk_bf16_f32 v{d+1}, v{u_+2}, v{u_+3}")
            if rf & 1:
                ks2 = rf >> 1
                for eb in range(3):
                    for db in range(2):
                        A(f"{MF} {vr(T(eb,db),4)}, {vr(PK(ks2,db),4)}, {vr(VV(ks2,eb),4) if eb < 2 else vr(ON,4)}, {'0' if ks2 == 0 else vr(T(eb,db),4)}")
        self.setflag(VFB, ONE, F_PUB)
        A(f"""
        s_lshl_b32 s43, s23, 1
        s_add_u32 s43, s43, s37
        s_lshl_b32 s58, s43, 5
        s_lshl_b32 s59, s22, 1
        s_add_u32 s58, s58, s59
        s_add_u32 s58, s58, s36
        s_lshl_b32 s59, s58, 7
        s_add_u32 s59, s59, {WS_ZP}
        s_mul_i32 s58, s58, {KVS}
        s_add_u32 s58, s58, {WS_KVP}
        v_lshlrev_b32 v120, 4, v1
        v_mov_b32 v121, {OOB}
        v_lshlrev_b32 v2, 4, v{Q4}
        v_cmp_eq_u32 vcc, 0, v{N15}
        v_cndmask_b32 v2, v121, v2, vcc
        """)
        for eb in range(2):
            for db in range(2):
                self.tag(T(eb,db), VM)
                A(f"buffer_store_dwordx4 {vr(T(eb,db),4)}, v120, s[16:19], s58 offen offset:{(eb*2+db)*1024} sc1")
        for db in range(2):
            self.tag(T(2,db), VM)
            A(f"buffer_store_dwordx4 {vr(T(2,db),4)}, v2, s[16:19], s59 offen offset:{64*db} sc1")
        self.stamp(3)
        H1, XSV, XST, MSK, AP, DT, BP, R, DW = 24, 60, 62, 64, 68, 76, 84, 92, 160
        A(f"""
        v_lshrrev_b32 v2, 3, v1
        v_and_b32 v3, 7, v1
        v_lshlrev_b32 v118, 11, v2
        v_lshl_add_u32 v118, v3, 4, v118
        s_lshl_b32 s58, s27, 8
        s_add_u32 s58, s58, {L_ST2}
        v_lshl_add_u32 v119, v2, 3, s58
        v_lshlrev_b32 v3, 4, v3
        v_mul_u32_u24 v4, {KVS}, v2
        v_add_u32 v4, v4, v3
        v_lshl_add_u32 v5, v2, 7, v3
        s_lshr_b32 s58, s22, 3
        s_lshl_b32 s59, s23, 1
        s_add_u32 s45, s58, s59
        s_mul_i32 s44, s45, {32*KVS}
        s_lshl_b32 s58, s22, 9
        s_and_b32 s58, s58, 0xfff
        s_add_u32 s44, s44, s58
        s_lshl_b32 s58, s27, 7
        s_add_u32 s44, s44, s58
        s_add_u32 s44, s44, {WS_KVP}
        s_lshl_b32 s58, s23, 4
        s_add_u32 s58, s58, s22
        s_lshl_b32 s46, s58, 9
        s_lshl_b32 s59, s27, 7
        s_add_u32 s46, s46, s59
        s_add_u32 s46, s46, {WS_KVF}
        v_cmp_gt_u32 vcc, 8, v1
        v_cndmask_b32 v6, v121, v120, vcc
        s_and_b32 s72, s49, 0x7ff
        s_sub_u32 s72, 0x7ff, s72
        s_lshl_b32 s49, s72, 3
        s_add_u32 s49, s49, {WS_STAT}
        s_lshl_b32 s73, s72, 11
        s_lshl_b32 s59, s87, 7
        s_add_u32 s73, s73, s59
        s_lshl_b32 s59, s27, 5
        s_add_u32 s73, s73, s59
        v_lshlrev_b32 v7, 1, v{N15}
        v_mov_b32 v8, 0
        buffer_load_ushort v{XSV}, v7, s[8:11], s73 offen
        buffer_load_dwordx2 {vr(XST,2)}, v8, s[16:19], s49 offen sc1
        """)
        self.moe_masks(1, MSK, 2, 3, 7)
        self.col_off(1, 117, 2)
        def acc(b):
            def f(k):
                if k:
                    for h in (0, 2): A(f"v_pk_add_f32 {vr(b+h,2)}, {vr(b+h,2)}, {vr(b+4*k+h,2)}")
            return f
        def red81632(b):
            for k in range(4): A(f"v_add_f32_dpp v{b+k}, v{b+k}, v{b+k} row_ror:8 row_mask:0xf bank_mask:0xf")
            for wh in (16, 32):
                for k in range(4): A(f"v_mov_b32 v{b+4+k}, v{b+k}")
                for k in range(4): A(f"v_permlane{wh}_swap_b32 v{b+k}, v{b+4+k}")
                for h in (0, 2): A(f"v_pk_add_f32 {vr(b+h,2)}, {vr(b+h,2)}, {vr(b+4+h,2)}")
            self.tag(b, VM)
        def wo_items(ts):
            return [(f"s_add_u32 s82, s48, {t}\ns_and_b32 s82, s82, 31\ns_lshl_b32 s82, s82, 16\ns_add_u32 s82, s82, s81\ns_add_u32 m0, s80, {((t+16)%32)*4096}",
                     f"buffer_load_dwordx4 v{VWO}, s[92:95], s82 offen {'nt ' if O.get('ntwo') else ''}lds") for t in ts]
        def gu_compute():
            sk, xt, xk = self.lab("ng"), self.lab("xt"), self.lab("xk")
            A(f"""
            s_cmp_ge_u32 s3, {0 if O.get('nomoe') else 224}
            s_cbranch_scc1 {sk}
            s_mov_b32 s57, 0
            s_mov_b32 s58, 0x05040100
            {xt}:
            v_perm_b32 v2, v{XST+1}, v{XST}, s58
            v_cmp_ne_u32 vcc, s60, v2
            s_add_u32 s57, s57, 1
            s_nop 0
            s_cbranch_vccz {xk}
            s_cmp_ge_u32 s57, {SPIN_MAX}
            s_cbranch_scc1 {xk}
            v_mov_b32 v2, 0
            buffer_load_dwordx2 {vr(XST,2)}, v2, s[16:19], s49 offen sc1
            s_waitcnt vmcnt(0)
            s_branch {xt}
            {xk}:
            v_and_b32 v{XST}, 0xffff0000, v{XST}
            v_and_b32 v{XST+1}, 0xffff0000, v{XST+1}
            v_rcp_f32 v{XST+1}, v{XST+1}
            v_lshlrev_b32 v{XSV}, 16, v{XSV}
            v_sub_f32 v{XSV}, v{XSV}, v{XST}
            """)
            rnd_bf16(A, XSV)
            A(f"v_mul_f32 v{XSV}, v{XSV}, v{XST+1}\nv_cvt_pk_bf16_f32 v{XSV}, v{XSV}, v{XSV}\nv_lshrrev_b32 v2, 5, v1\nv_lshlrev_b32 v2, 2, v2")
            for t in range(8): A(f"ds_bpermute_b32 v{BP+t}, v2, v{XSV} offset:{8*t}")
            A(f"s_lshl_b32 s58, s27, 11\ns_add_u32 s58, s58, {L_GUS}\nv_add_u32 v3, s58, v117\ns_waitcnt lgkmcnt(0)")
            for t in range(8):
                ap = AP + 4*(t & 1)
                for r in range(4): A(f"v_and_b32 v{ap+r}, v{BP+t}, v{MSK+r}")
                for m in range(2):
                    A(f"{MF} {vr(DT+4*m,4)}, {vr(ap,4)}, {vr(GW+8*t+4*m,4)}, {'0' if t == 0 else vr(DT+4*m,4)}")
            A(f"""
            ds_write_b128 v3, {vr(DT,4)}
            ds_write_b128 v3, {vr(DT+4,4)} offset:1024
            v_and_b32 v2, 31, v1
            v_lshlrev_b32 v2, 4, v2
            s_lshl_b32 s58, s27, 9
            v_add_u32 v2, s58, v2
            v_add_u32 v3, {L_GUS}, v2
            s_waitcnt lgkmcnt(0)
            """)
            self.setflag(VFB, ONE, F_GU)
            self.spin(VF, F_GU, 7)
            for w in range(4): A(f"ds_read_b128 {vr(R+4*w,4)}, v3 offset:{2048*w}")
            A("s_waitcnt lgkmcnt(0)")
            for h in (0, 2): A(f"v_pk_add_f32 {vr(R+h,2)}, {vr(R+h,2)}, {vr(R+4+h,2)}\nv_pk_add_f32 {vr(R+8+h,2)}, {vr(R+8+h,2)}, {vr(R+12+h,2)}")
            for h in (0, 2): A(f"v_pk_add_f32 {vr(R+h,2)}, {vr(R+h,2)}, {vr(R+8+h,2)}")
            self.tag(R, VM)
            A(f"""
            v_cmp_gt_u32 vcc, 32, v1
            v_cndmask_b32 v2, v121, v2, vcc
            s_lshl_b32 s58, s3, 11
            s_add_u32 s58, s58, {WS_GUP}
            buffer_store_dwordx4 {vr(R,4)}, v2, s[16:19], s58 offen sc1
            {sk}:
            """)
        gupos = O["gupos"] if n0 == 16 else 2
        if gupos == 0:
            A("s_waitcnt vmcnt(0)"); gu_compute()
        self.stamp(4)
        if O["d1"]: A(f"s_sleep {O['d1']}")
        post1 = gu_items(range(n0, 16))
        kvl = [(f"s_add_u32 s58, s44, {8*KVS*t}", f"buffer_load_dwordx4 {vr(H1+4*t,4)}, v4, s[16:19], s58 offen sc1", H1+4*t) for t in range(4)]
        zl = [(None, f"buffer_load_dwordx4 {vr(H1+16+4*t,4)}, v5, s[16:19], s47 offen offset:{1024*t} sc1", H1+16+4*t) for t in range(4)]
        A(f"""
        s_and_b32 s58, s22, 7
        s_lshl_b32 s58, s58, 2
        s_add_u32 s58, s58, s27
        s_cmp_eq_u32 s58, 29
        s_cbranch_scc1 L_zwave
        """)
        self.gather(kvl, 56, acc(H1), post1)
        red81632(H1)
        A(f"""
        buffer_store_dwordx4 {vr(H1,4)}, v6, s[16:19], s46 offen sc1
        s_branch L_noz
        L_zwave:
        s_lshl_b32 s47, s45, 12
        s_add_u32 s47, s47, {WS_ZP}
        s_lshl_b32 s45, s45, 7
        s_add_u32 s45, s45, {WS_ZF}
        """)
        def both(k):
            if k < 4: acc(H1+16)(k)
            else: acc(H1)(k-4)
            if k == 3:
                red81632(H1+16); A(f"buffer_store_dwordx4 {vr(H1+16,4)}, v6, s[16:19], s45 offen sc1")
        self.gather(zl + kvl, 56, both, post1, 3)
        red81632(H1)
        A(f"buffer_store_dwordx4 {vr(H1,4)}, v6, s[16:19], s46 offen sc1\nL_noz:")
        if self.diag: A("v_writelane_b32 v127, s31, 12")
        self.stamp(5)
        if gupos == 1: gu_compute()
        H2, FR = 128, 144
        A(f"""
        s_xor_b32 s43, s43, 2
        s_lshl_b32 s46, s43, 12
        s_lshl_b32 s58, s36, 11
        s_add_u32 s46, s46, s58
        s_add_u32 s46, s46, {WS_KVF}
        s_lshl_b32 s45, s43, 7
        s_add_u32 s45, s45, {WS_ZF}
        v_lshlrev_b32 v4, 4, v{Q4}
        s_mul_i32 s58, s37, 3072
        s_add_u32 s58, s58, {L_KVX}
        v_add_u32 v5, s58, v120
        s_lshl_b32 s58, s36, 10
        v_add_u32 v6, s58, v5
        s_lshl_b32 s38, s28, 7
        s_lshl_b32 s58, s27, 5
        s_add_u32 s38, s38, s58
        s_lshl_b32 s39, s38, 11
        s_lshl_b32 s58, s29, 7
        s_add_u32 s39, s39, s58
        """)
        def cv(k):
            A(f"v_cvt_pk_bf16_f32 v{FR+2*k}, v{H2+4*k}, v{H2+4*k+1}\nv_cvt_pk_bf16_f32 v{FR+2*k+1}, v{H2+4*k+2}, v{H2+4*k+3}")
            if k == 1: A(f"ds_write_b128 v6, {vr(FR,4)}")
            if k == 3: A(f"ds_write_b128 v5, {vr(FR+4,4)} offset:2048")
        d2 = O["d2"] if gupos != 1 or O.get("nomoe") else O["d2g"]
        if d2: A(f"s_sleep {d2}")
        XR, ST2, S, U, E = 96, 16, 128, 24, 26
        xl = [(f"s_add_u32 s59, s39, {8*2048*t}", f"buffer_load_dwordx4 {vr(XR+4*t,4)}, v118, s[8:11], s59 offen") for t in range(4)]
        if gupos == 2: XR = 40; xl = [(p, t.replace(vr(96+4*k,4), vr(40+4*k,4))) for k, (p, t) in enumerate(xl)]
        tail2 = [] if O["wok"] else wo_items(range(16))
        self.gather([(None, f"buffer_load_dwordx4 {vr(H2+4*k,4)}, v120, s[16:19], s46 offen offset:{1024*k} sc1", H2+4*k) for k in range(2)] +
                    [(None, f"buffer_load_dwordx4 {vr(H2+8+4*k,4)}, v4, s[16:19], s45 offen offset:{64*k} sc1", H2+8+4*k) for k in range(2)], 56, cv, xl)
        A("s_waitcnt lgkmcnt(0)")
        self.setflag(VFB, ONE, F_KVX)
        if self.diag: A("v_writelane_b32 v127, s31, 13")
        self.stamp(6)
        self.dbg_max(3)
        A("s_setprio 0")
        if tail2: self.spin(VF, F_C7, 56)
        for pre, txt in tail2:
            if pre: A(pre)
            A(txt)
        if gupos == 2: gu_compute()
        for t in range(4): A(f"ds_read_b64 {vr(ST2+2*t,2)}, v119 offset:{64*t}")
        A(f"s_waitcnt vmcnt({len(tail2)}) lgkmcnt(0)")
        for t in range(4):
            m = ST2 + 2*t
            A(f"v_mov_b32 v{E}, v{m+1}")
            for k in range(4):
                x = XR + 4*t + k; d = S + 8*t + 2*k
                A(f"""
                v_lshlrev_b32 v{d}, 16, v{x}
                v_and_b32 v{d+1}, 0xffff0000, v{x}
                v_pk_add_f32 {vr(U,2)}, {vr(d,2)}, {vr(m,2)} op_sel_hi:[1,0] neg_lo:[0,1] neg_hi:[0,1]
                v_cvt_pk_bf16_f32 v{U+1}, v{U}, v{U+1}
                v_lshlrev_b32 v{U}, 16, v{U+1}
                v_and_b32 v{U+1}, 0xffff0000, v{U+1}
                v_pk_mul_f32 {vr(U,2)}, {vr(U,2)}, {vr(E,2)} op_sel_hi:[1,0]
                v_cvt_pk_bf16_f32 v{U+1}, v{U}, v{U+1}
                v_lshlrev_b32 v{U}, 16, v{U+1}
                v_and_b32 v{U+1}, 0xffff0000, v{U+1}
                v_pk_add_f32 {vr(d,2)}, {vr(d,2)}, {vr(U,2)}
                """)
        if tail2:
            A("s_waitcnt vmcnt(0)"); self.setflag(VFB, ONE, F_WOK)
        G = 32
        A(f"""
        s_cmp_ge_u32 s3, {0 if O.get('nomoe') else 224}
        s_cbranch_scc1 L_noh
        s_cmp_lg_u32 s27, 0
        s_cbranch_scc1 L_noh
        v_lshrrev_b32 v2, 2, v1
        v_lshlrev_b32 v2, 11, v2
        v_and_b32 v3, 3, v1
        v_lshl_add_u32 v2, v3, 4, v2
        s_lshr_b32 s58, s3, 4
        s_lshl_b32 s58, s58, 15
        s_lshl_b32 s59, s87, 6
        s_add_u32 s58, s58, s59
        s_add_u32 s58, s58, {WS_GUP}
        """)
        self.gather([(None, f"buffer_load_dwordx4 {vr(G+4*k,4)}, v2, s[16:19], s58 offen offset:{1024*k} sc1", G+4*k) for k in range(2)], 56)
        for r in (8, 4):
            for k in range(8): A(f"v_add_f32_dpp v{G+k}, v{G+k}, v{G+k} row_ror:{r} row_mask:0xf bank_mask:0xf")
        for wh in (16, 32):
            for k in range(8): A(f"v_mov_b32 v{G+8+k}, v{G+k}")
            for k in range(8): A(f"v_permlane{wh}_swap_b32 v{G+k}, v{G+8+k}")
            for h in range(0, 8, 2): A(f"v_pk_add_f32 {vr(G+h,2)}, {vr(G+h,2)}, {vr(G+8+h,2)}")
        for k in range(8): A(f"v_cvt_pk_bf16_f32 v{G+k}, v{G+k}, v{G+k}")
        for k in range(8): A(f"v_lshlrev_b32 v{G+k}, 16, v{G+k}")
        for k in range(4): A(f"v_mul_f32 v{G+8+k}, {hex(LOG2E | 0x80000000)}, v{G+k}")
        for k in range(4): A(f"v_exp_f32 v{G+8+k}, v{G+8+k}")
        for k in range(4): A(f"v_add_f32 v{G+8+k}, 1.0, v{G+8+k}")
        for k in range(4): A(f"v_rcp_f32 v{G+8+k}, v{G+8+k}")
        for k in range(4): A(f"v_mul_f32 v{G+k}, v{G+k}, v{G+8+k}")
        for k in range(4): A(f"v_cvt_pk_bf16_f32 v{G+k}, v{G+k}, v{G+k}")
        for k in range(4): A(f"v_lshlrev_b32 v{G+k}, 16, v{G+k}")
        for k in range(4): A(f"v_mul_f32 v{G+k}, v{G+k}, v{G+4+k}")
        for k in range(4): A(f"v_cvt_pk_bf16_f32 v{G+k}, v{G+k}, v{G+k}")
        A(f"""
        v_add_u32 v2, {L_HT}, v120
        s_mov_b64 exec, 15
        ds_write_b128 v2, {vr(G,4)}
        s_mov_b64 exec, 1
        s_waitcnt lgkmcnt(0)
        ds_write_b32 v{VF}, v{ONE} offset:{F_H}
        s_mov_b64 exec, -1
        L_noh:
        """)
        self.stamp(14)
        self.spin(VF, F_AR, 7)
        for pre, txt in wo_items(range(16, 32)): A(pre); A(txt)
        G2 = 160
        B2 = lambda slot, ks: 80 + slot*8 + ks*4
        NW = O["nw"]
        OW = ([16 + 8*k for k in range(8)] + [192 + 8*k for k in range(7)])[:NW]
        VW = 112
        A(f"""
        v_lshl_add_u32 v{VW+2}, v{Q4}, 9, v10
        v_xor_b32 v{VW+3}, 32, v{VW+2}
        v_add_u32 v{VW}, 0x10000, v{VW+2}
        v_add_u32 v{VW+1}, 0x10000, v{VW+3}
        v_add_u32 v116, 32768, v120
        s_lshl_b32 s47, s28, 3
        s_lshl_b32 s58, s27, 1
        s_add_u32 s47, s47, s58
        s_lshl_b32 s47, s47, 15
        v_lshlrev_b32 v117, 7, v{N15}
        s_lshl_b32 s50, s28, 2
        s_add_u32 s50, s50, s27
        s_lshl_b32 s50, s50, 11
        s_add_u32 s50, s50, {WS_OF}
        """)
        self.spin(VF, F_WOK, 4)
        A("s_setprio 3")
        self.stamp(7)
        A(f"""
        s_sleep {O["d3"]}
        s_mov_b32 s57, 0
        L_s3:
        buffer_load_dword v4, v117, s[16:19], s50 offen sc1
        s_waitcnt vmcnt(0)
        v_cmp_ne_u32 vcc, s60, v4
        s_add_u32 s57, s57, 1
        s_nop 0
        s_cbranch_vccz L_s3d
        s_sleep {O["sleep3"]}
        s_cmp_lt_u32 s57, {SPIN_MAX}
        s_cbranch_scc1 L_s3
        L_s3d:
        """)
        self.setflag(VFB, ONE, F_WOA)
        self.stamp(8)
        self.dbg_max(4)
        V = VmTracker(A)
        def oload(u):
            t, rf = u >> 1, u & 1
            if u % 8 == 0:
                A(f"s_add_u32 s58, s48, {t}\ns_and_b32 s58, s58, 31\ns_lshl_b32 s58, s58, 10\ns_add_u32 s51, s58, s47")
            V.issue(f"buffer_load_dwordx4 {vr(OW[t % NW]+4*rf,4)}, v{116 if rf else 120}, s[16:19], s51 offen offset:{(t&3)*1024} sc1", ("o", t))
        PRE = O["pre"]
        for u in range(2*PRE): oload(u)
        L = LgkmTracker(A)
        def wreads(pr, nf):
            return [(f"ds_read_b64_tr_b16 {vr(B2(nf,ks)+2*rd,2)}, v{VW + (nf&1) + 2*((2*pr+ks)>>4)} offset:{((2*pr+ks)&15)*4096 + rd*2048 + (nf>>1)*256}", ("W",pr,nf))
                    for ks in range(2) for rd in range(2)]
        for nf in range(3):
            for x in wreads(0, nf): L.issue(*x)
        nxt = 2*PRE
        for pr in range(16):
            for nf in range(4):
                g = pr*4 + nf + 3
                if g == 32:
                    L.need({("CA",)}); self.check(VF, F_WOA, 4)
                w = wreads(g//4, g % 4) if g < 64 else []
                if nf == 0: V.need({("o", 2*pr), ("o", 2*pr+1)})
                L.need({("W",pr,nf)})
                for j,(rf,ks) in enumerate(CH4):
                    acc_ = G2 + (rf*4+nf)*4
                    c = "0" if (pr == 0 and j % 2 == 0) else vr(acc_,4)
                    A(f"{MF} {vr(acc_,4)}, {vr(B2(nf,ks),4)}, {vr(OW[(2*pr+ks) % NW]+4*rf,4)}, {c}")
                    if w: L.issue(*w.pop(0))
                    if j == 1:
                        for _ in range(2 if (nxt >> 1) < 2*pr + NW - 2 else 1):
                            if nxt < 64 and (nxt >> 1) - NW <= 2*pr - 1:
                                oload(nxt); nxt += 1
                if g == 30: L.issue(f"ds_read_b32 v4, v{VF} offset:{F_WOA}", ("CA",))
                if pr == 3 and nf == 0:
                    A("s_mov_b64 exec, 1"); L.issue(f"ds_write_b8 v{VFB}, v{ONE} offset:{F_G8}", ("F",)); A("s_mov_b64 exec, -1")
                if pr == 14 and nf == 0:
                    L.issue(f"ds_read_b32 v4, v{VF} offset:{F_G8}", ("CG",))
        assert nxt == 64
        self.stamp(9)
        A(f"""
        s_mul_i32 s58, s27, 4608
        s_add_u32 s58, s58, {L_TR}
        v_mul_u32_u24 v2, 144, v{N15}
        v_lshl_add_u32 v2, v{Q4}, 3, v2
        v_add_u32 v2, s58, v2
        v_lshrrev_b32 v3, 3, v1
        v_mul_u32_u24 v3, 144, v3
        v_and_b32 v7, 7, v1
        v_lshl_add_u32 v3, v7, 4, v3
        v_add_u32 v3, s58, v3
        """)
        L.drain()
        self.check(VF, F_G8, 4)
        for rf in range(2):
            for nf in range(4):
                a = G2 + (rf*4+nf)*4; d = 16 + (rf*4+nf)*2
                A(f"v_cvt_pk_bf16_f32 v{d}, v{a}, v{a+1}\nv_cvt_pk_bf16_f32 v{d+1}, v{a+2}, v{a+3}")
                A(f"ds_write_b64 v2, {vr(d,2)} offset:{rf*16*144 + nf*32}")
        A("s_waitcnt lgkmcnt(0)")
        for t in range(4): A(f"ds_read_b128 {vr(32+4*t,4)}, v3 offset:{t*8*144}")
        A(f"""
        s_sub_u32 s52, s72, s38
        s_cmp_lt_u32 s52, {0 if O.get("nomoe") else 32}
        s_cbranch_scc0 L_no_moe
        """)
        self.spin(VF, F_YF, 5, 1)
        A(f"v_lshlrev_b32 v4, 5, v7\nv_add_u32 v4, {L_YF}, v4\nds_read_b128 v[48:51], v4\nds_read_b128 v[52:55], v4 offset:16\nv_lshrrev_b32 v5, 3, v1\ns_waitcnt lgkmcnt(0)")
        for t in range(4):
            A(f"v_add_u32 v7, {8*t}, v5\nv_cmp_eq_u32 vcc, s52, v7")
            for k in range(8): A(f"v_cndmask_b32 v56, 0, v{48+k}, vcc\nv_add_f32 v{S+8*t+k}, v{S+8*t+k}, v56")
        A("L_no_moe:\ns_waitcnt lgkmcnt(0)")
        for t in range(4):
            for k in range(4):
                a = 32 + 4*t + k; s_ = S + 8*t + 2*k; u_ = 60 + 2*(k & 1)
                A(f"v_lshlrev_b32 v{u_}, 16, v{a}\nv_and_b32 v{u_+1}, 0xffff0000, v{a}\nv_pk_add_f32 {vr(u_,2)}, {vr(u_,2)}, {vr(s_,2)}\nv_cvt_pk_bf16_f32 v{a}, v{u_}, v{u_+1}")
            A(f"buffer_store_dwordx4 {vr(32+4*t,4)}, v118, s[32:35], s39 offen {O['ost']}")
            if t < 3: A(f"s_add_u32 s39, s39, {8*2048}")
        self.stamp(10)
        self.dbg_max(5)
        self.stamp_out()
        A("L_end:\ns_endpgm")
        for t in self.slow: A(t)
        self.slow = []

    def k_tables(self):
        q = [f"s_lshl_b32 s58, s36, 8\nv_lshl_add_u32 v2, v13, 4, s58", f"v_add_u32 v2, {L_M}, v2", f"s_lshl_b32 s58, s37, 7\nv_lshl_add_u32 v3, v12, 2, s58", f"v_add_u32 v3, {L_CS}, v3"]
        q += [f"ds_read_b32 v{40+2*cf}, v3 offset:{(cf>>1)*256 + (cf&1)*64}" for cf in range(4)]
        q += [f"ds_read_b32 v41, v122 offset:{F_NON}", f"ds_read_b32 v43, v122 offset:{F_SEL}"]
        for rf in range(2):
            q += [f"ds_read_b128 {vr((16,28)[rf]+4*k,4)}, v2 offset:{64*rf + off}" for k, off in enumerate((0, L_RL - L_M, L_RI - L_M))]
        return q

    def build(self):
        self.prologue()
        self.helper()
        self.kwave()
        body = hazard.fix(self.A.lines)
        hdr = open(os.path.join(os.path.dirname(os.path.abspath(__file__)), "header.txt")).read()
        out = hdr + f"; @launch grid=(256,1,1) block=(512,1,1) lds={LDS_SIZE}\n"
        out += f""".amdgcn_target "amdgcn-amd-amdhsa--gfx950"
.text
.globl {NAME}_kernel
.p2align 8
.type {NAME}_kernel,@function
{NAME}_kernel:
"""
        out += "\n".join(body) + "\n"
        out += f""".section .rodata,"a"
.p2align 6
.amdhsa_kernel {NAME}_kernel
  .amdhsa_next_free_vgpr 256
  .amdhsa_next_free_sgpr 102
  .amdhsa_accum_offset 256
  .amdhsa_group_segment_fixed_size 0
  .amdhsa_kernarg_size 88
  .amdhsa_user_sgpr_count 2
  .amdhsa_user_sgpr_kernarg_segment_ptr 1
  .amdhsa_system_sgpr_workgroup_id_x 1
  .amdhsa_float_denorm_mode_32 3
.end_amdhsa_kernel
"""
        return out

if __name__ == "__main__":
    diag = "--diag" in sys.argv
    out = [a for a in sys.argv[1:] if not a.startswith("--")]
    path = out[0] if out else f"cdna_kernels/{NAME}.s"
    kw = {}
    for a in sys.argv[1:]:
        if a.startswith("--") and "=" in a:
            k_, v_ = a[2:].split("="); kw[k_] = eval(v_)
    open(path, "w").write(Gen(diag=diag, **kw).build())
    print("wrote", path)
```

```python
import sys, os
sys.path.insert(0, os.path.dirname(os.path.abspath(__file__)))
from asmlib import *
import hazard

NAME = "parallel_sum__linear_attn_block__moe_arch_mod__prompt"
WS_O, WS_ZP, WS_STAT, WS_KEY, WS_OF = 0x000000, 0x800000, 0x830000, 0x834000, 0x840000
WS_KVF, WS_ZF, WS_CSP, WS_YP, WS_DIAG, WS_GUP, WS_KVP = 0x860000, 0x880000, 0x8A0000, 0x900000, 0xA00000, 0xA80000, 0xB00000
WS_Y2 = 0x9F0000
KVS = 4096 + 128
WS_SIZE = 0x1000000
OOB = 0x40000000
L_A, L_KV = 0, 65536
L_M, L_RI, L_RL, L_CS, L_FL = 131072, 131584, 132096, 132608, 133376
L_HT, L_YT, L_YF, L_ST2, L_KVX = 133632, 133888, 134912, 135168, 136192
L_GUS = L_KVX + 6144
L_QCS = L_GUS + 8192
LDS_SIZE = L_QCS + 8192
L_TR = L_KV
F_WOA, F_WOK, F_GU, F_PR, F_GUP, F_KVX, F_G8, F_QL, F_C7, F_C15, F_PUB, F_YF, F_H, F_SEL, F_NON, F_KEY, F_ST, F_AR = 0, 4, 8, 12, 16, 20, 24, 28, 52, 56, 60, 64, 68, 72, 76, 80, 96, 160
ALL4 = 0x01010101
SPIN_MAX = 1 << 15
LOG2E, LN2, EPSL = 0x3fb8aa3b, 0x3f317218, 0x35c1a2a0

def order_tables():
    out = []
    for q in range(4):
        seq = [q]
        for g in range(4):
            others = [4*g + p for p in range(4) if p != q]
            oi = 0
            for sl in range(4):
                if sl == q and g < 3: seq.append(4*(g+1)+q)
                elif oi < 3: seq.append(others[oi]); oi += 1
        assert sorted(seq) == list(range(16))
        out.append(seq)
    return out
def pack4(seq):
    v = 0
    for i, c in enumerate(seq): v |= c << (4*i)
    return v
def srd(A, d, lo, size):
    A(f"s_mov_b32 s{d}, s{lo}\ns_mov_b32 s{d+1}, s{lo+1}\ns_mov_b32 s{d+2}, {hex(size)}\ns_mov_b32 s{d+3}, 0x20000")
def red_row(A, v, op="v_add_f32"):
    for r in (8, 4, 2, 1):
        A(f"{op}_dpp v{v}, v{v}, v{v} row_ror:{r} row_mask:0xf bank_mask:0xf")
def red_swap(A, v, t, which, op="v_add_f32"):
    A(f"v_mov_b32 v{t}, v{v}\nv_permlane{which}_swap_b32 v{v}, v{t}\n{op} v{v}, v{v}, v{t}")
def unpack(A, dlo, dhi, s):
    A(f"v_lshlrev_b32 v{dlo}, 16, v{s}\nv_and_b32 v{dhi}, 0xffff0000, v{s}")
def rnd_bf16(A, v):
    A(f"v_cvt_pk_bf16_f32 v{v}, v{v}, v{v}\nv_lshlrev_b32 v{v}, 16, v{v}")
MF = "v_mfma_f32_16x16x32_bf16"
CH4 = ((0,0),(0,1),(1,1),(1,0))

class Gen:
    def __init__(self, diag=False, **kw):
        self.A = Asm()
        self.diag = diag
        self.nlab = 0
        self.opt = dict(gate=1, d1=20, d2=12, d3=8, d4=8, sleep=6, sleep3=4, kprio=0, hprio=3, kprio2=3, hprio2=0, hprio3=3, nw=8, pre=4, ost="sc1", wopf=1,
                        ahead=3, pfat=13, early=1, sxd=4, stat_beg=-1, stat_end=0, runs=[(3, 8)], ngroups=4, gstep=2, runpos=13, opf=0, weave=1, gupos=1, gue=8, dwat=26, wok=0, wokpos=0, latepub=1, d2g=0, d5=6, d6=34, s1at=10, s1gap=2, k0=0)
        self.opt.update(kw)
        self.slow = []
    def lab(self, p):
        self.nlab += 1
        return f"L_{p}{self.nlab}"
    def stamp(self, slot):
        if not self.diag: return
        if self.sreg is None:
            self.A(f"s_memrealtime s[98:99]\ns_waitcnt lgkmcnt(0)\ns_mov_b32 s{self.spark[slot]}, s98"); return
        self.A(f"s_memrealtime s[100:101]\ns_waitcnt lgkmcnt(0)\nv_writelane_b32 v{self.sreg}, s100, {slot}")
    def dbg_max(self, word, inv=False):
        if not self.opt.get("span"): return
        sk = self.lab("dm")
        self.A(f"""
        s_and_b32 s96, s2, 0x31
        s_add_u32 s96, s96, s27
        s_cmp_eq_u32 s96, 0
        s_cbranch_scc0 {sk}
        s_memrealtime s[100:101]
        v_lshlrev_b32 v2, 20, v1
        s_mov_b32 s96, s74
        s_mov_b32 s97, s75
        s_mov_b32 s98, 256
        s_mov_b32 s99, 0x20000
        s_waitcnt lgkmcnt(0)
        {"s_not_b32 s100, s100" if inv else ""}
        v_mov_b32 v3, s100
        buffer_atomic_umax v3, v2, s[96:99], 0 offen offset:{4*word}
        {sk}:
        """)
    def stamp_out(self):
        if not self.diag: return
        self.A(f"""
        s_lshl_b32 s56, s2, 3
        s_xor_b32 s57, s26, 4
        s_add_u32 s56, s56, s57
        s_lshl_b32 s56, s56, 8
        s_add_u32 s56, s56, {WS_DIAG}
        v_mbcnt_lo_u32_b32 v2, -1, 0
        v_mbcnt_hi_u32_b32 v2, -1, v2
        v_lshlrev_b32 v3, 2, v2
        buffer_store_dword v{self.sreg}, v3, s[16:19], s56 offen
        """)
    def nonce_setup(self):
        self.A("s_lshr_b32 s61, s60, 8\ns_lshr_b32 s62, s60, 16\ns_lshr_b32 s63, s60, 24\ns_mov_b32 s64, 0x0c0c0400\ns_mov_b32 s65, 0x04000c0c")
    def tag(self, base, vmask):
        for k in range(4): self.A(f"v_bfi_b32 v{base+k}, v{vmask}, s{60+k}, v{base+k}")
    def setflag(self, vaddr, vone, off):
        self.A(f"s_mov_b64 exec, 1\nds_write_b8 v{vaddr}, v{vone} offset:{off}\ns_mov_b64 exec, -1")
    def spin(self, vbase, off, tmp, want=ALL4):
        A = self.A
        top, done = self.lab("sl"), self.lab("sld")
        A(f"""
        s_mov_b32 s57, 0
        {top}:
        ds_read_b32 v{tmp}, v{vbase} offset:{off}
        s_waitcnt lgkmcnt(0)
        v_cmp_ne_u32 vcc, {hex(want)}, v{tmp}
        s_add_u32 s57, s57, 1
        s_nop 0
        s_cbranch_vccz {done}
        s_sleep 1
        s_cmp_lt_u32 s57, {SPIN_MAX*8}
        s_cbranch_scc1 {top}
        {done}:
        """)
    def check(self, vbase, off, tmp):
        A = self.A
        sl, bk, sp = self.lab("cs"), self.lab("cb"), self.lab("cp")
        A(f"v_cmp_ne_u32 vcc, {hex(ALL4)}, v{tmp}\ns_nop 1\ns_cbranch_vccnz {sl}\n{bk}:")
        self.slow.append(f"""
        {sl}:
        s_mov_b32 s57, 0
        {sp}:
        ds_read_b32 v{tmp}, v{vbase} offset:{off}
        s_waitcnt lgkmcnt(0)
        v_cmp_ne_u32 vcc, {hex(ALL4)}, v{tmp}
        s_add_u32 s57, s57, 1
        s_nop 0
        s_cbranch_vccz {bk}
        s_cmp_lt_u32 s57, {SPIN_MAX*16}
        s_cbranch_scc1 {sp}
        s_branch {bk}
        """)
    def gather(self, loads, tmp, after=None, post=(), store_after=None, light=False):
        A = self.A
        n = len(loads)
        for pre, txt, c in loads:
            if pre: A(pre)
            A(txt)
        for pre, txt in post:
            if pre: A(pre)
            A(txt)
        if self.diag: A("s_mov_b32 s31, 0")
        for k, (pre, txt, c) in enumerate(loads):
            ok, top, re_ = self.lab("gk"), self.lab("gt"), self.lab("gr")
            chk = f"""
            v_perm_b32 v{tmp}, v{c+1}, v{c}, s64
            v_perm_b32 v{tmp+1}, v{c+3}, v{c+2}, s65
            v_or_b32 v{tmp}, v{tmp}, v{tmp+1}
            v_cmp_ne_u32 vcc, s60, v{tmp}
            """
            A(f"s_waitcnt vmcnt({n-1-k+len(post)+(1 if store_after is not None and k > store_after else 0)})")
            A(chk)
            A(f"s_mov_b32 s57, 0\ns_nop 0\ns_cbranch_vccz {ok}\n{top}:\ns_sleep {self.opt['sleep']}")
            for pre2, txt2, c2 in (loads[k:k+1] if light else loads[k:]):
                if pre2: A(pre2)
                A(txt2)
            A("s_waitcnt vmcnt(0)")
            if self.diag: A("s_add_u32 s31, s31, 1")
            A(chk)
            A(f"s_add_u32 s57, s57, 1\ns_nop 0\ns_cbranch_vccz {re_ if light else ok}\ns_cmp_lt_u32 s57, {SPIN_MAX}\ns_cbranch_scc1 {top}")
            if light:
                A.label(re_)
                for pre2, txt2, c2 in loads[k+1:]:
                    if pre2: A(pre2)
                    A(txt2)
            A.label(ok)
            for r in range(4): A(f"v_and_b32 v{c+r}, 0xffffff00, v{c+r}")
            if after: after(k)
    def phi4(self, a, m, m_b, c, c_b, rl, rl_b, dst, U, E, sc=40):
        A = self.A
        def o(r, b, h): return (vr(r,2), 0) if b else (vr(r+h,2), 1)
        for h in (0, 2):
            (pm, mh), (pc, ch) = o(m, m_b, h), o(c, c_b, h)
            A(f"v_pk_fma_f32 {vr(U+h,2)}, {pm}, {pc}, {vr(a+h,2)} op_sel_hi:[{mh},{ch},1] neg_lo:[1,0,0] neg_hi:[1,0,0]")
        for h in (0, 2):
            p, hi = o(rl, rl_b, h)
            A(f"v_pk_mul_f32 {vr(U+h,2)}, {vr(U+h,2)}, {p} op_sel_hi:[1,{hi}]")
        for k in range(4): A(f"v_exp_f32 v{E+k}, v{U+k} clamp")
        for k in range(4): A(f"v_max_f32 v{U+k}, s{sc+2}, v{U+k}")
        for h in (0, 2): A(f"v_pk_fma_f32 {vr(U+h,2)}, {vr(U+h,2)}, s[{sc}:{sc+1}], {vr(E+h,2)}")
        A(f"v_cvt_pk_bf16_f32 v{dst}, v{U}, v{U+1}\nv_cvt_pk_bf16_f32 v{dst+1}, v{U+2}, v{U+3}")

    def hidden(self, VL, VL16, VF, ONE, G, a, b, tmp, sp, gate=None):
        A, O = self.A, self.opt
        sk = self.lab("nh")
        A(f"""
        s_cmp_ge_u32 s3, {0 if O.get('nomoe') else 224}
        s_cbranch_scc1 {sk}
        s_cmp_lg_u32 s27, 0
        s_cbranch_scc1 {sk}
        v_lshrrev_b32 v{a}, 2, v{VL}
        v_lshlrev_b32 v{a}, 11, v{a}
        v_and_b32 v{b}, 3, v{VL}
        v_lshl_add_u32 v{a}, v{b}, 4, v{a}
        """)
        if gate: gate()
        A(f"""
        s_lshr_b32 s58, s3, 4
        s_lshl_b32 s58, s58, 15
        s_lshl_b32 s59, s{sp}, 6
        s_add_u32 s58, s58, s59
        s_add_u32 s58, s58, {WS_GUP}
        """)
        self.gather([(None, f"buffer_load_dwordx4 {vr(G+4*k,4)}, v{a}, s[16:19], s58 offen offset:{1024*k} sc1", G+4*k) for k in range(2)], tmp)
        for r in (8, 4):
            for k in range(8): A(f"v_add_f32_dpp v{G+k}, v{G+k}, v{G+k} row_ror:{r} row_mask:0xf bank_mask:0xf")
        for wh in (16, 32):
            for k in range(8): A(f"v_mov_b32 v{G+8+k}, v{G+k}")
            for k in range(8): A(f"v_permlane{wh}_swap_b32 v{G+k}, v{G+8+k}")
            for h in range(0, 8, 2): A(f"v_pk_add_f32 {vr(G+h,2)}, {vr(G+h,2)}, {vr(G+8+h,2)}")
        for k in range(8): A(f"v_cvt_pk_bf16_f32 v{G+k}, v{G+k}, v{G+k}")
        for k in range(8): A(f"v_lshlrev_b32 v{G+k}, 16, v{G+k}")
        for k in range(4): A(f"v_mul_f32 v{G+8+k}, {hex(LOG2E | 0x80000000)}, v{G+k}")
        for k in range(4): A(f"v_exp_f32 v{G+8+k}, v{G+8+k}")
        for k in range(4): A(f"v_add_f32 v{G+8+k}, 1.0, v{G+8+k}")
        for k in range(4): A(f"v_rcp_f32 v{G+8+k}, v{G+8+k}")
        for k in range(4): A(f"v_mul_f32 v{G+k}, v{G+k}, v{G+8+k}")
        for k in range(4): A(f"v_cvt_pk_bf16_f32 v{G+k}, v{G+k}, v{G+k}")
        for k in range(4): A(f"v_lshlrev_b32 v{G+k}, 16, v{G+k}")
        for k in range(4): A(f"v_mul_f32 v{G+k}, v{G+k}, v{G+4+k}")
        for k in range(4): A(f"v_cvt_pk_bf16_f32 v{G+k}, v{G+k}, v{G+k}")
        A(f"""
        v_add_u32 v{a}, {L_HT}, v{VL16}
        s_mov_b64 exec, 15
        ds_write_b128 v{a}, {vr(G,4)}
        s_mov_b64 exec, 1
        s_waitcnt lgkmcnt(0)
        ds_write_b32 v{VF}, v{ONE} offset:{F_H}
        s_mov_b64 exec, -1
        {sk}:
        """)
    def weave(self, fns):
        real = self.A
        streams = []
        for f in fns:
            self.A = r = Rec(); f()
            streams.append([it[1] for a in r.atoms for it in a])
        self.A = real
        while any(streams):
            for st in streams:
                if st: real(st.pop(0))
    def order_setup(self):
        A = self.A
        tabs = [pack4(o) for o in order_tables()]
        A(f"s_sub_u32 s74, s24, s25\ns_and_b32 s74, s74, 3\ns_mov_b32 s76, {tabs[0] & 0xffffffff}\ns_mov_b32 s77, {tabs[0] >> 32}")
        for q in range(1, 4):
            A(f"s_cmp_eq_u32 s74, {q}\ns_cselect_b32 s76, {tabs[q] & 0xffffffff}, s76\ns_cselect_b32 s77, {tabs[q] >> 32}, s77")
        A(f"""
        s_lshl_b32 s75, s30, 1
        {"s_add_u32 s75, s75, s31" if self.opt.get("rot", 1) else ""}
        {"s_add_u32 s75, s75, %d" % self.opt["radd"] if self.opt.get("radd") else ""}
        s_lshl_b32 s75, s75, 2
        s_lshl_b32 s58, s23, 7
        s_xor_b32 s58, s58, 128
        s_mul_i32 s79, s27, {8*6144}
        s_add_u32 s79, s79, s58
        s_lshl_b32 s80, s27, 10
        """)
    def qpair(self, p, vq):
        base = (L_KV + p*16384) if p < 4 else (L_A + (p-4)*16384)
        out = []
        for par in range(2):
            pre = f"s_and_b32 s84, s72, 15\ns_lshr_b64 s[72:73], s[72:73], 4\ns_add_u32 s84, s84, s75\ns_and_b32 s84, s84, 15\ns_mul_i32 s84, s84, {64*6144}\ns_add_u32 s84, s84, s79"
            for pc in range(2):
                out.append(((pre if pc == 0 else f"s_add_u32 s84, s84, {32*6144}") + f"\ns_add_u32 m0, s86, {base + par*2048 + pc*1024}",
                            f"buffer_load_dwordx4 v{vq}, s[12:15], s84 offen {'nt ' if self.opt.get('ntq') else ''}lds", ("q", p)))
        return out
    def moe_masks(self, VL, MSK, a, b, c):
        A = self.A
        A(f"""
        v_and_b32 v{a}, 1, v{VL}
        v_mov_b32 v{b}, 0xffff
        v_mov_b32 v{c}, 0xffff0000
        v_cmp_eq_u32 vcc, 1, v{a}
        v_cndmask_b32 v{b}, v{b}, v{c}, vcc
        v_lshrrev_b32 v{a}, 1, v{VL}
        v_xor_b32 v{a}, v{a}, v{VL}
        v_and_b32 v{a}, 8, v{a}
        v_cmp_eq_u32 vcc, 0, v{a}
        v_cndmask_b32 v{b}, 0, v{b}, vcc
        v_bfe_u32 v{a}, v{VL}, 1, 2
        """)
        for r in range(4): A(f"v_cmp_eq_u32 vcc, {r}, v{a}\nv_cndmask_b32 v{MSK+r}, 0, v{b}, vcc")
    def col_off(self, VL, d, a):
        self.A(f"""
        v_and_b32 v{a}, 15, v{VL}
        v_lshlrev_b32 v{d}, 5, v{a}
        v_bfe_u32 v{a}, v{VL}, 4, 1
        v_lshl_add_u32 v{d}, v{a}, 4, v{d}
        v_lshrrev_b32 v{a}, 5, v{VL}
        v_lshl_add_u32 v{d}, v{a}, 9, v{d}
        """)

    def prologue(self):
        A = self.A
        A(f"""
        s_cmp_ge_u32 s2, 256
        s_cbranch_scc1 L_end
        s_load_dwordx4 s[4:7], s[0:1], 0
        s_load_dwordx2 s[56:57], s[0:1], 16
        s_load_dwordx8 s[60:67], s[0:1], 32
        s_load_dwordx4 s[68:71], s[0:1], 64
        s_load_dwordx2 s[72:73], s[0:1], 80
        v_lshrrev_b32 v2, 6, v0
        v_and_b32 v1, 63, v0
        s_and_b32 s20, s2, 7
        v_readfirstlane_b32 s26, v2
        s_lshr_b32 s21, s2, 3
        s_and_b32 s24, s21, 7
        s_lshr_b32 s25, s21, 3
        s_and_b32 s30, s20, 1
        s_lshl_b32 s22, s30, 3
        s_add_u32 s22, s22, s24
        s_lshr_b32 s31, s20, 1
        s_lshl_b32 s23, s31, 2
        s_add_u32 s23, s23, s25
        s_and_b32 s27, s26, 3
        s_lshl_b32 s28, s30, 3
        s_and_b32 s58, s31, 1
        s_lshl_b32 s58, s58, 2
        s_add_u32 s28, s28, s58
        s_and_b32 s58, s21, 3
        s_add_u32 s28, s28, s58
        s_lshr_b32 s29, s20, 2
        s_lshl_b32 s29, s29, 3
        s_lshr_b32 s58, s21, 2
        s_add_u32 s29, s29, s58
        s_cmp_gt_u32 s23, 3
        s_subb_u32 s33, s23, 0
        s_cmp_gt_u32 s23, 11
        s_subb_u32 s33, s33, 0
        s_lshl_b32 s33, s33, 4
        s_add_u32 s33, s33, s22
        s_and_b32 s58, s23, 7
        s_cmp_eq_u32 s58, 3
        s_cselect_b32 s3, 255, s33
        s_waitcnt lgkmcnt(0)
        """)
        srd(A, 8, 4, 0x400000)
        srd(A, 12, 6, 0x600000)
        srd(A, 16, 72, WS_SIZE)
        if self.opt["stat_beg"] < 0:
            A("s_cmp_ge_u32 s26, 4\ns_cbranch_scc1 L_helper")
            if not self.opt.get("nostat"): self.stat_loads()
            A("s_branch L_kwave\nL_helper:")
        else:
            A("s_cmp_lt_u32 s26, 4\ns_cbranch_scc1 L_kwave")

    def helper(self):
        A0 = self.A
        A = V = self.A = Switch(A0)
        O = self.opt
        self.sreg, self.spark = None, {1: 96, 2: 94, 16: 97, 17: 20, 18: 21}
        VF, VQ, VAS, VQo, VT = 0, 2, 4, 6, 7
        BR, ACC, ST = 8, 32, 64
        VAo, VKVo, VL16, VOOB, VM = 62, 63, 61, 60, 59
        srd(A, 48, 70, 256)
        A(f"""
        s_or_b32 s58, s2, s27
        s_cmp_eq_u32 s58, 0
        s_cbranch_scc0 L_notag
        s_memrealtime s[58:59]
        v_lshlrev_b32 v2, 20, v1
        s_waitcnt lgkmcnt(0)
        s_lshl_b32 s58, s58, 1
        s_or_b32 s58, s58, 1
        v_mov_b32 v3, s58
        buffer_store_dword v3, v2, s[48:51], 0 offen sc1
        L_notag:
        v_lshrrev_b32 v10, 3, v1
        v_lshrrev_b32 v11, 4, v1
        s_and_b32 s58, s27, 1
        s_lshl_b32 s59, s58, 2
        v_add_u32 v12, s59, v11
        v_and_b32 v13, 7, v1
        v_xor_b32 v12, v12, v13
        v_lshlrev_b32 v10, 11, v10
        v_lshl_add_u32 v{VAo}, v12, 4, v10
        v_and_b32 v14, 3, v1
        v_lshlrev_b32 v14, 4, v14
        v_bfe_u32 v15, v1, 4, 1
        v_lshl_add_u32 v14, v15, 6, v14
        v_bfe_u32 v15, v1, 2, 2
        v_lshrrev_b32 v16, 5, v1
        v_mul_u32_u24 v17, 6144, v15
        v_add_u32 v17, v17, v14
        v_lshl_add_u32 v{VKVo}, v16, 11, v17
        v_mul_u32_u24 v16, {4*6144}, v16
        v_add_u32 v{VQo}, v16, v17
        s_lshr_b32 s59, s27, 1
        s_lshl_b32 s59, s59, 5
        v_xor_b32 v{VKVo}, s59, v{VKVo}
        s_lshl_b32 s59, s58, 5
        v_xor_b32 v{VQo}, s59, v{VQo}
        """)
        self.order_setup()
        A(f"""
        s_mov_b64 s[72:73], s[76:77]
        s_lshl_b32 s58, s23, 7
        s_mul_i32 s78, s27, {4*6144}
        s_add_u32 s78, s78, s58
        s_add_u32 s78, s78, 2048
        s_lshl_b32 s86, s27, 12
        s_lshl_b32 s81, s22, 7
        s_lshl_b32 s58, s27, 3
        s_add_u32 s81, s81, s58
        s_lshl_b32 s81, s81, 11
        """)
        def stage(s, atoms=(), k0=0):
            slot = s % 4
            atoms = list(atoms)
            per = -(-len(atoms) // (8 - k0))
            cnt = [0]
            nta = "nt " if s < O.get("nta", 0) else ""
            ntb = "nt " if s < O.get("ntb", 0) else ""
            def fill():
                cnt[0] += 1
                if cnt[0] <= k0: return
                for _ in range(per):
                    if atoms: replay(atoms.pop(0), A0, V.V)
            A(f"""
            s_and_b32 s82, s76, 15
            s_lshr_b64 s[76:77], s[76:77], 4
            s_add_u32 s82, s82, s75
            s_and_b32 s82, s82, 15
            s_mul_i32 s83, s82, {64*6144}
            s_lshl_b32 s82, s82, 7
            s_add_u32 s82, s82, s81
            s_add_u32 s83, s83, s78
            """)
            for p in range(4):
                A(f"s_add_u32 m0, s80, {L_A + slot*16384 + p*4096}")
                V.issue(f"buffer_load_dwordx4 v{VAo}, s[8:11], s82 offen {nta}lds", ("st", s)); fill()
                A(f"s_add_u32 s82, s82, {32*2048}\ns_add_u32 m0, s80, {L_KV + slot*16384 + p*4096}")
                V.issue(f"buffer_load_dwordx4 v{VKVo}, s[12:15], s83 offen {ntb}lds", ("st", s)); fill()
                A(f"s_add_u32 s83, s83, {16*6144}")
        qpair = lambda p: self.qpair(p, VQo)
        stage(0)
        A(f"s_setprio {O['hprio']}")
        srd(A, 32, 56, 0x200000)
        srd(A, 44, 66, 0x700000)
        CF, CA, ONES, VC, T = 200, 224, 236, 240, 244
        A(f"""
        v_and_b32 v12, 15, v1
        v_lshrrev_b32 v13, 4, v1
        v_lshlrev_b32 v14, 7, v12
        v_add_u32 v14, s86, v14
        v_bfe_u32 v15, v12, 1, 3
        v_xor_b32 v10, v13, v15
        v_lshl_add_u32 v{VAS}, v10, 4, v14
        v_add_u32 v10, 4, v13
        v_xor_b32 v10, v10, v15
        v_lshl_add_u32 v{VAS+1}, v10, 4, v14
        v_bfe_u32 v10, v1, 2, 2
        v_lshlrev_b32 v10, 6, v10
        v_and_b32 v11, 3, v1
        v_lshl_add_u32 v10, v11, 3, v10
        v_and_b32 v11, 1, v13
        v_lshl_add_u32 v10, v11, 5, v10
        v_lshl_add_u32 v{VQ}, v13, 12, v10
        v_add_u32 v{VQ}, {L_KV}, v{VQ}
        v_xor_b32 v{VQ+1}, 32, v{VQ}
        s_lshl_b32 s58, s27, 8
        s_add_u32 s58, s58, {L_KV}
        v_lshl_add_u32 v{VC}, v13, 11, v10
        v_add_u32 v{VC}, s58, v{VC}
        v_xor_b32 v{VC+1}, 32, v{VC}
        s_lshr_b32 s58, s27, 1
        s_lshl_b32 s58, s58, 8
        s_add_u32 s58, s58, {L_QCS}
        s_and_b32 s59, s27, 1
        s_lshl_b32 s59, s59, 5
        v_lshl_add_u32 v{VC+2}, v13, 10, v10
        v_xor_b32 v{VC+2}, s59, v{VC+2}
        v_add_u32 v{VC+2}, s58, v{VC+2}
        v_mov_b32 v{ONES}, 0x3f803f80
        v_mov_b32 v{ONES+1}, 0x3f803f80
        v_mov_b32 v{ONES+2}, 0x3f803f80
        v_mov_b32 v{ONES+3}, 0x3f803f80
        v_mov_b32 v{VOOB}, {OOB}
        v_mov_b32 v{VM}, 0xff
        v_mov_b32 v{VF}, {L_FL}
        s_lshr_b32 s88, s3, 4
        s_and_b32 s89, s3, 15
        v_lshlrev_b32 v{VL16}, 4, v1
        s_add_u32 s85, s74, 1
        s_cmp_lt_u32 s24, 4
        s_cselect_b32 s85, 0, s85
        """)
        AH = O['ahead']
        for s in range(1, AH): stage(s)
        def early():
            A(f"""
                s_add_u32 s58, s74, 4
            s_cmp_lt_u32 s24, 4
                s_cselect_b32 s58, s74, s58
            s_add_u32 s58, s58, s75
            s_and_b32 s58, s58, 15
            s_mul_i32 s84, s58, {64*6144}
            s_add_u32 s84, s84, s79
            s_add_u32 m0, s80, {L_QCS}
            """)
            V.issue(f"buffer_load_dwordx4 v{VQo}, s[12:15], s84 offen lds", "qcs")
            A(f"s_add_u32 s84, s84, {32*6144}\ns_add_u32 m0, s80, {L_QCS + 4096}")
            V.issue(f"buffer_load_dwordx4 v{VQo}, s[12:15], s84 offen lds", "qcs")
        def wopf():
            if O["wopf"]:
                A(f"s_lshl_b32 s58, s2, 13\ns_lshl_b32 s59, s27, 11\ns_add_u32 s58, s58, s59")
                V.issue(f"buffer_load_dwordx4 v[40:43], v{VL16}, s[32:35], s58 offen", "pf")
                V.issue(f"buffer_load_dwordx4 v[44:47], v{VL16}, s[32:35], s58 offen offset:1024", "pf")
        V.need({("st", 0)})
        A("s_barrier")
        self.stamp(1)
        def aread(s, dst):
            return [f"ds_read_b128 {vr(dst+(rf*2+ks)*4,4)}, v{VAS+ks} offset:{(s%4)*16384+rf*2048}" for rf in range(2) for ks in range(2)]
        def stash(s):
            for t in aread(s, ST+16*s): A(t)
        def csum(s):
            skip = self.lab("cs")
            A(f"s_cmp_eq_u32 s85, {s}\ns_cbranch_scc0 {skip}")
            for f in range(2):
                for ks in range(2):
                    for rd in range(2):
                        A(f"ds_read_b64_tr_b16 {vr(CF+f*8+ks*4+2*rd,2)}, v{VC+f} offset:{(s%4)*16384 + (8*ks+rd)*1024}")
            A.label(skip)
        def csum_q():
            for ks in range(2):
                for rd in range(2):
                    A(f"ds_read_b64_tr_b16 {vr(CF+16+ks*4+2*rd,2)}, v{VC+2} offset:{(8*ks+rd)*512}")
        def csum_mma():
            for f in range(3):
                A(f"{MF} {vr(CA+4*f,4)}, {vr(ONES,4)}, {vr(CF+f*8,4)}, 0")
                A(f"{MF} {vr(CA+4*f,4)}, {vr(ONES,4)}, {vr(CF+f*8+4,4)}, {vr(CA+4*f,4)}")
        def nonce():
            A("v_readfirstlane_b32 s60, v11")
            self.nonce_setup()
        def get_stats():
            A(f"""
            ds_read_b128 v[12:15], v{VF} offset:{F_KEY}
            v_and_b32 v10, 7, v1
            v_lshlrev_b32 v10, 3, v10
            v_add_u32 v9, {L_FL + F_ST}, v10
            ds_read_b64 v[16:17], v9
            ds_read_b32 v11, v{VF} offset:{F_NON}
            """)
        def pub_stats():
            A(f"""
            s_lshl_b32 s58, s27, 6
            v_add_u32 v9, s58, v1
            v_cmp_gt_u32 vcc, 8, v9
            v_cndmask_b32 v10, v{VOOB}, v10, vcc
            v_cmp_eq_u32 vcc, 0, v9
            v_cndmask_b32 v9, v{VOOB}, v9, vcc
            s_and_b32 s59, s60, 0xffff
            v_or_b32 v16, s59, v16
            v_or_b32 v17, s62, v17
            s_lshl_b32 s58, s22, 4
            s_add_u32 s58, s58, s23
            s_lshl_b32 s58, s58, 6
            s_add_u32 s58, s58, {WS_STAT}
            """)
            V.issue(f"buffer_store_dwordx2 v[16:17], v10, s[16:19], s58 offen sc1")
            A(f"v_max_u32 v12, v12, v13\nv_max3_u32 v12, v12, v14, v15\nv_mov_b32 v13, s60\ns_lshl_b32 s58, s2, 3\ns_add_u32 s58, s58, {WS_KEY}")
            V.issue(f"buffer_store_dwordx2 v[12:13], v9, s[16:19], s58 offen sc1")
        def pub_cs():
            A(f"""
            v_lshrrev_b32 v8, 4, v1
            v_cmp_eq_u32 vcc, 1, v8
            v_cndmask_b32 v{CA}, v{CA}, v{CA+4}, vcc
            v_cmp_eq_u32 vcc, 2, v8
            v_cndmask_b32 v{CA}, v{CA}, v{CA+8}, vcc
            s_lshl_b32 s58, s27, 7
            v_lshl_add_u32 v9, v1, 2, s58
            s_lshl_b32 s58, s27, 6
            s_add_u32 s58, s58, {512 - 128}
            v_lshl_add_u32 v10, v1, 2, s58
            v_cndmask_b32 v9, v9, v10, vcc
            v_cmp_eq_u32 vcc, 3, v8
            v_cndmask_b32 v9, v9, v{VOOB}, vcc
            v_and_b32 v10, 3, v1
            v_lshlrev_b32 v10, 3, v10
            v_lshrrev_b32 v10, v10, s60
            v_bfi_b32 v{CA}, v{VM}, v10, v{CA}
            s_lshl_b32 s58, s23, 4
            s_add_u32 s58, s58, s22
            s_lshl_b32 s58, s58, 10
            s_add_u32 s58, s58, {WS_CSP}
            """)
            V.issue(f"buffer_store_dword v{CA}, v9, s[16:19], s58 offen sc1")
        S1R, KEYS, T = 8, 16, 24
        def s1_addr():
            A(f"""
            v_and_b32 v32, 15, v1
            v_lshlrev_b32 v32, 4, v32
            v_lshrrev_b32 v33, 4, v1
            v_lshl_add_u32 v32, v33, 10, v32
            s_lshl_b32 s90, s23, 14
            s_lshl_b32 s59, s27, 8
            s_add_u32 s90, s90, s59
            s_add_u32 s90, s90, {WS_CSP}
            s_lshl_b32 s59, s22, 10
            s_add_u32 s59, s59, {WS_STAT}
            s_sub_u32 s95, s28, s22
            s_lshl_b32 s95, s95, 10
            s_lshl_b32 s87, s28, 10
            s_sub_u32 s87, {WS_KEY - WS_STAT}, s87
            s_cmp_eq_u32 s27, 3
            s_cselect_b32 s90, s59, s90
            s_movk_i32 s59, 4096
            s_cselect_b32 s95, s95, s59
            s_cselect_b32 s87, s87, s59
            s_cselect_b32 s74, 1024, s59
            s_cselect_b64 vcc, -1, 0
            v_cndmask_b32 v32, v32, v{VL16}, vcc
            """)
        def s1_round(issue):
            A("s_mov_b32 s58, s90")
            for t in range(4):
                issue(f"buffer_load_dwordx4 {vr(S1R+4*t,4)}, v32, s[16:19], s58 offen sc1", "s1")
                if t < 3: A(f"s_add_u32 s58, s58, s{(95, 87, 74)[t]}")
        def s1_check(w3):
            def chk():
                if not w3:
                    for t in range(4):
                        c = S1R + 4*t
                        A(f"v_perm_b32 v{T+t}, v{c+1}, v{c}, s64\nv_perm_b32 v35, v{c+3}, v{c+2}, s65\nv_or_b32 v{T+t}, v{T+t}, v35")
                    A(f"v_max3_u32 v33, v{T}, v{T+1}, v{T+2}\nv_min3_u32 v34, v{T}, v{T+1}, v{T+2}\nv_max_u32 v33, v33, v{T+3}\nv_min_u32 v34, v34, v{T+3}")
                else:
                    A("s_mov_b32 s58, 0x05040100")
                    for t in range(4): A(f"v_perm_b32 v{T+t}, v{S1R+2*t+1}, v{S1R+2*t}, s58")
                    A(f"""
                    v_max3_u32 v33, v{KEYS+1}, v{KEYS+3}, v{KEYS+5}
                    v_min3_u32 v34, v{KEYS+1}, v{KEYS+3}, v{KEYS+5}
                    v_max3_u32 v33, v33, v{KEYS+7}, v{T}
                    v_min3_u32 v34, v34, v{KEYS+7}, v{T}
                    v_max3_u32 v33, v33, v{T+1}, v{T+2}
                    v_min3_u32 v34, v34, v{T+1}, v{T+2}
                    v_max_u32 v33, v33, v{T+3}
                    v_min_u32 v34, v34, v{T+3}
                    """)
                A("v_cmp_ne_u32 vcc, s60, v33\nv_cmp_ne_u32 s[66:67], s60, v34\ns_or_b64 vcc, vcc, s[66:67]")
            V.need({"s1"})
            chk()
            sl, back = f"L_s1slow{int(w3)}", f"L_s1back{int(w3)}"
            A(f"s_cbranch_scc1 {sl}\n{back}:")
            keep = A.rec
            A.rec = r = Rec()
            top = self.lab("s1t")
            A(f"{sl}:\ns_mov_b32 s57, 0\n{top}:\ns_sleep 8")
            s1_round(lambda t, tag: A(t))
            A("s_waitcnt vmcnt(0)")
            chk()
            A(f"s_cbranch_scc0 {back}\ns_add_u32 s57, s57, 1\ns_cmp_lt_u32 s57, {SPIN_MAX}\ns_cbranch_scc1 {top}\ns_branch {back}")
            self.slow.append("\n".join(it[1] for a in r.atoms for it in a))
            A.rec = keep
        def s1_tables(w3):
            if not w3:
                for k in range(16): A(f"v_and_b32 v{S1R+k}, 0xffffff00, v{S1R+k}")
                for h in (0, 2):
                    A(f"v_pk_add_f32 {vr(S1R+h,2)}, {vr(S1R+h,2)}, {vr(S1R+4+h,2)}\nv_pk_add_f32 {vr(S1R+8+h,2)}, {vr(S1R+8+h,2)}, {vr(S1R+12+h,2)}")
                for h in (0, 2): A(f"v_pk_add_f32 {vr(S1R+h,2)}, {vr(S1R+h,2)}, {vr(S1R+8+h,2)}")
                for wh in (16, 32):
                    for k in range(4): A(f"v_mov_b32 v{S1R+4+k}, v{S1R+k}")
                    for k in range(4): A(f"v_permlane{wh}_swap_b32 v{S1R+k}, v{S1R+4+k}")
                    for h in (0, 2): A(f"v_pk_add_f32 {vr(S1R+h,2)}, {vr(S1R+h,2)}, {vr(S1R+4+h,2)}")
                A(f"s_lshl_b32 s58, s27, 8\ns_add_u32 s58, s58, {L_CS}\nv_and_b32 v33, 15, v1\nv_lshl_add_u32 v33, v33, 4, s58\nds_write_b128 v33, {vr(S1R,4)}")
            else:
                for k in range(8): A(f"v_and_b32 v{S1R+k}, 0xffff0000, v{S1R+k}")
                for k in (1, 3, 5, 7): A(f"v_rcp_f32 v{S1R+k}, v{S1R+k}")
                A(f"""
                v_add_u32 v33, {L_ST2}, v{VL16}
                v_mov_b32 v{T}, v{S1R}
                v_mov_b32 v{T+1}, v{S1R+2}
                ds_write_b128 v33, {vr(S1R+4,4)}
                v_mov_b32 v{T+2}, v{S1R+1}
                v_mov_b32 v{T+3}, v{S1R+3}
                v_mul_f32 v{T+4}, {hex(LOG2E)}, v{S1R+1}
                v_mul_f32 v{T+5}, {hex(LOG2E)}, v{S1R+3}
                v_lshlrev_b32 v33, 3, v1
                v_add_u32 v33, {L_M}, v33
                ds_write_b64 v33, {vr(T,2)}
                ds_write_b64 v33, {vr(T+2,2)} offset:{L_RI-L_M}
                ds_write_b64 v33, {vr(T+4,2)} offset:{L_RL-L_M}
                v_max_u32 v{KEYS}, v{KEYS}, v{KEYS+2}
                v_max3_u32 v{KEYS}, v{KEYS}, v{KEYS+4}, v{KEYS+6}
                """)
                red_row(A, KEYS, "v_max_u32"); red_swap(A, KEYS, KEYS+1, 16, "v_max_u32"); red_swap(A, KEYS, KEYS+1, 32, "v_max_u32")
                A(f"s_mov_b64 exec, 1\nds_write_b32 v{VF}, v{KEYS} offset:{F_SEL}\ns_mov_b64 exec, -1")
        P = O["s1at"]
        extra = {s: [] for s in range(16)}
        for s in range(12): extra[s].append(lambda s=s: stash(s))
        for s in range(5): extra[s].append(lambda s=s: csum(s))
        extra[0] += [get_stats]
        extra[1] += [nonce]
        extra[2] += [pub_stats]
        extra[O['early']+3] += [csum_q]
        extra[5] += [csum_mma]
        extra[6] += [pub_cs]
        extra[7] += [s1_addr]
        for s in range(16):
            if O.get("noextra"): extra[s] = extra[s][:1] if s < 12 else []
        def iteration(s, atoms, k0=0):
            if s + AH < 16:
                stage(s + AH, atoms, k0); atoms = []
            if s == O["early"] and not O.get("noqcs"): early()
            if s == P and not O.get("nos1"): s1_round(V.issue)
            if s == O['pfat']: wopf()
            if s >= 13:
                atoms = list(atoms)
                per = -(-len(atoms) // 4)
                for pre, d, tg in qpair(s - 13):
                    A(pre); V.issue(d, tg)
                    for _ in range(per):
                        if atoms: replay(atoms.pop(0), A0, V.V)
            tags = {("st", s+1)}
            if s == O["early"] + 2: tags.add("qcs")
            if s == 15: tags.add(("q", 1))
            V.need(tags)
            A("s_waitcnt lgkmcnt(0)\ns_barrier")
        C = P + O["s1gap"]
        for s in range(C): iteration(s, A.record(extra[s]))
        A("s_cmp_eq_u32 s27, 3\ns_cbranch_scc1 L_path3")
        q0 = list(V.V.q)
        for w3 in (False, True):
            if w3: A.label("L_path3")
            V.V.q = list(q0)
            tab = A.record([lambda: s1_check(w3), lambda: s1_tables(w3)]) if not O.get("nos1") else []
            per = -(-len(tab) // (16 - C))
            for s in range(C, 16):
                iteration(s, A.record(extra[s]) + tab[:per], O["k0"] if (s == C and s+AH < 16) else 0); tab = tab[per:]
            assert not tab
            if not w3: A("s_branch L_pathj")
        A.label("L_pathj")
        V = V.V
        for pre, d, tg in qpair(3):
            A(pre); V.issue(d, tg)
        self.stamp(2)
        if O.get("stop"): A("s_endpgm")
        A(f"s_setprio {O['hprio2']}")
        A(f"v_add_u32 v1, s27, v{VF}")
        L = LgkmTracker(A)
        def wreads(g):
            u, cf = g >> 2, g & 3
            return [(f"ds_read_b64_tr_b16 {vr(BR+(g%3)*8+ks*4+2*rd,2)}, v{VQ+(cf&1)} offset:{((u>>1)&3)*16384 + (u&1)*2048 + ks*1024 + rd*512 + (cf>>1)*256}", ("W", g))
                    for ks in range(2) for rd in range(2)]
        def flag(off):
            A(f"v_mov_b32 v{VT}, 1\ns_mov_b64 exec, 1")
            L.issue(f"ds_write_b8 v1, v{VT} offset:{off}", ("F", off))
            A("s_mov_b64 exec, -1")
        GW, VD, VWO, DW = 128, 5, 6, 128
        def late_addr():
            A(f"""
            v_mbcnt_lo_u32_b32 v{VT}, -1, 0
            v_mbcnt_hi_u32_b32 v{VT}, -1, v{VT}
            v_lshrrev_b32 v{VWO}, 5, v{VT}
            v_and_b32 v{VD}, 31, v{VT}
            v_lshlrev_b32 v{VD}, 4, v{VD}
            v_lshl_add_u32 v{VD}, v{VWO}, 11, v{VD}
            v_bfe_u32 v4, v{VT}, 2, 2
            v_lshl_add_u32 v4, v{VWO}, 2, v4
            v_lshlrev_b32 v4, 11, v4
            v_lshlrev_b32 v{VWO}, 1, v{VWO}
            v_xor_b32 v{VWO}, v{VWO}, v{VT}
            v_and_b32 v{VWO}, 3, v{VWO}
            v_lshl_add_u32 v4, v{VWO}, 4, v4
            v_bfe_u32 v{VWO}, v{VT}, 4, 1
            v_lshl_add_u32 v{VWO}, v{VWO}, 6, v4
            s_lshl_b32 s93, s27, 14
            s_lshl_b32 s58, s29, 7
            s_add_u32 s93, s93, s58
            s_and_b32 s92, s29, 7
            s_lshl_b32 s58, s28, 1
            s_add_u32 s92, s92, s58
            s_lshl_b32 s92, s92, 2
            s_lshl_b32 s69, s3, 15
            s_lshl_b32 s59, s27, 9
            s_add_u32 s69, s69, s59
            s_cmp_lt_u32 s3, 224
            s_cselect_b32 s69, s69, 0
            s_cselect_b64 vcc, -1, 0
            v_cndmask_b32 v{VD}, 0, v{VD}, vcc
            """)
        dwl = [] if O.get("nomoe") else [("s_add_u32 s69, s69, 4096" if k else None, f"buffer_load_dwordx4 {vr(DW+4*k,4)}, v{VD}, s[44:47], s69 offen nt", "dw") for k in range(8)]
        wol = [(f"s_add_u32 s82, s92, {t}\ns_and_b32 s82, s82, 31\ns_lshl_b32 s82, s82, 16\ns_add_u32 s82, s82, s93\ns_add_u32 m0, s80, {(t+16)*4096}",
                f"buffer_load_dwordx4 v{VWO}, s[32:35], s82 offen lds", "wok") for t in range(16)] if O["wok"] else []
        assert not O["wok"] or (33 <= O["wok"] <= 48 and O["wok"] % 8 not in (5, 6))
        def emit(it):
            if it[0]: A(it[0])
            V.issue(it[1], it[2])
        if O["gate"]: self.spin(VF, F_PUB, VT)
        for g in range(2):
            for x in wreads(g): L.issue(*x)
        sig = {3: 2, 9: 3, 24: 4, 30: 5, 38: 6, 46: 7}
        pend = []
        for g in range(64):
            u, cf = g >> 2, g & 3
            a = ST + 16*(u if u < 12 else u-12)
            gn = g + 2
            if gn < 64 and gn % 8 == 0:
                if gn >= 16:
                    L.need({("C", gn//8)}); self.check(VF, F_QL + 4*(gn//8 - 2), VT)
                if gn == 32: A(f"v_subrev_u32 v{VQ}, {L_KV}, v{VQ}\nv_subrev_u32 v{VQ+1}, {L_KV}, v{VQ+1}")
            if g == O["wok"]:
                L.need({("C7",)}); self.check(VF, F_C7, VT)
            w = wreads(gn) if gn < 64 else []
            need = {("W", g)}
            if u >= 12 and cf == 0: need.add(("A", u))
            L.need(need)
            for j, (rf, ks) in enumerate(CH4):
                acc = ACC + (rf*4+cf)*4
                c = "0" if (u == 0 and j % 2 == 0) else vr(acc,4)
                A(f"{MF} {vr(acc,4)}, {vr(BR+(g%3)*8+ks*4,4)}, {vr(a+(rf*2+ks)*4,4)}, {c}")
                if w: L.issue(*w.pop(0))
                if j == 2 and pend: emit(pend.pop(0))
                if j == 2 and dwl and g >= O["dwat"]: emit(dwl.pop(0))
                if j == 1 and wol and g >= O["wok"]: emit(wol.pop(0))
            if 1 <= u <= 4 and cf == 0:
                for t in aread(11+u, ST+16*(u-1)): L.issue(t, ("A", 11+u))
            if 1 <= u <= 4 and cf == 2:
                L.need({("A", 11+u)}); pend += qpair(3+u)
            if g in sig:
                V.need({("q", sig[g])}); flag(F_QL + 4*(sig[g]-2))
            if g in (15, 31, 47) and O.get("p2st"): self.stamp(16 + g//16)
            if g == 23: late_addr()
            if g == 31: flag(F_C7)
            if g == O["wok"] - 1: L.issue(f"ds_read_b32 v{VT}, v{VF} offset:{F_C7}", ("C7",))
            if (g + 4) % 8 == 0 and 16 <= g + 4 < 64:
                L.issue(f"ds_read_b32 v{VT}, v{VF} offset:{F_QL + 4*((g+4)//8 - 2)}", ("C", (g+4)//8))
        ONE, VL, VM, VOOB, VL16, TMP = 112, 113, 114, 115, 116, 117
        self.sreg = 127
        if self.diag:
            A("s_nop 7")
            for sl in (1, 2, 16, 17, 18): A(f"v_writelane_b32 v127, s{self.spark[sl]}, {sl}")
        self.stamp(3)
        A(f"s_setprio {O['hprio3']}")
        QM, QL, QC, U, E, PQ, KX, ZX, NT0, OF = 8, 12, 16, 64, 68, 240, 208, 224, 192, 72
        A(f"""
        v_mov_b32 v{ONE}, 1
        s_mov_b64 exec, 1
        ds_write_b8 v1, v{ONE} offset:{F_C15}
        s_mov_b64 exec, -1
        v_mbcnt_lo_u32_b32 v{VL}, -1, 0
        v_mbcnt_hi_u32_b32 v{VL}, -1, v{VL}
        v_and_b32 v118, 15, v{VL}
        s_lshl_b32 s58, s27, 7
        s_add_u32 s58, s58, {L_M}
        v_lshl_add_u32 v118, v118, 2, s58
        v_lshrrev_b32 v119, 4, v{VL}
        v_lshlrev_b32 v119, 4, v119
        v_add_u32 v119, {L_CS + 512}, v119
        """)
        for rf in range(2):
            A(f"ds_read_b32 v{QM+2*rf}, v118 offset:{64*rf}\nds_read_b32 v{QL+2*rf}, v118 offset:{64*rf + L_RL - L_M}")
        for cf in range(4): A(f"ds_read_b128 {vr(QC+4*cf,4)}, v119 offset:{64*cf}")
        A(f"""
        v_mov_b32 v{VM}, 0xff
        v_mov_b32 v{VOOB}, {OOB}
        v_lshlrev_b32 v{VL16}, 4, v{VL}
        s_mov_b32 s52, {hex(LN2)}
        s_mov_b32 s53, {hex(LN2)}
        s_mov_b32 s54, {hex(EPSL)}
        s_waitcnt lgkmcnt(0)
        """)
        qt = lambda rf, cf: self.phi4(ACC+(rf*4+cf)*4, QM+2*rf, True, QC+4*cf, False, QL+2*rf, True, PQ + (rf*2+(cf>>1))*4 + (cf&1)*2, U+8*cf, E+8*cf, 52)
        for rf in range(2):
            if O["weave"]: self.weave([lambda cf=cf: qt(rf, cf) for cf in range(4)])
            else:
                for cf in range(4): qt(rf, cf)
        self.stamp(4)
        self.spin(VF, F_KVX, TMP)
        A(f"v_add_u32 v118, {L_KVX}, v{VL16}")
        for h in range(2):
            for eb in range(2): A(f"ds_read_b128 {vr(KX+(h*2+eb)*4,4)}, v118 offset:{h*3072+eb*1024}")
            A(f"ds_read_b128 {vr(ZX+4*h,4)}, v118 offset:{h*3072+2048}")
        A(f"""
        s_lshl_b32 s58, s22, 3
        s_lshl_b32 s59, s27, 1
        s_add_u32 s58, s58, s59
        s_lshl_b32 s58, s58, 5
        s_xor_b32 s59, s23, 1
        s_lshl_b32 s59, s59, 1
        s_add_u32 s58, s58, s59
        s_lshl_b32 s58, s58, 10
        s_add_u32 s59, s58, 32768
        s_mov_b32 s55, 0x358637bd
        s_waitcnt lgkmcnt(0)
        """)
        self.stamp(5)
        NT = lambda k, e: 8 + (k*3+e)*4
        for k in range(4):
            rf, h = k >> 1, k & 1
            for e in (2, 0, 1):
                A(f"{MF} {vr(NT(k,e),4)}, {vr(ZX+4*h,4) if e == 2 else vr(KX+(h*2+e)*4,4)}, {vr(PQ+4*k,4)}, 0")
        for k in range(4): A(f"v_add_f32 v{NT(k,2)}, s55, v{NT(k,2)}")
        for k in range(4): A(f"v_rcp_f32 v{NT(k,2)}, v{NT(k,2)}")
        def ofrag(k, e):
            d, o, n = NT(k,2), NT0 + 4*k, NT(k,e)
            for h in (0, 2): self.A(f"v_pk_mul_f32 {vr(n+h,2)}, {vr(n+h,2)}, {vr(d,2)} op_sel_hi:[1,0]")
            self.A(f"v_cvt_pk_bf16_f32 v{o+2*e}, v{n}, v{n+1}\nv_cvt_pk_bf16_f32 v{o+2*e+1}, v{n+2}, v{n+3}")
        for k in range(4):
            self.weave([lambda: ofrag(k, 0), lambda: ofrag(k, 1)])
            A(f"buffer_store_dwordx4 {vr(NT0+4*k,4)}, v{VL16}, s[16:19], s{58+(k>>1)} offen offset:{1024*(k&1)} sc1")
        A(f"""
        s_lshl_b32 s58, s22, 2
        s_add_u32 s58, s58, s27
        s_lshl_b32 s58, s58, 4
        s_add_u32 s58, s58, s23
        s_lshl_b32 s58, s58, 7
        s_add_u32 s58, s58, {WS_OF}
        v_lshlrev_b32 v118, 24, v{VL}
        v_mov_b32 v119, s60
        s_mov_b64 exec, 1
        ds_write_b8 v1, v{ONE} offset:{F_AR}
        s_mov_b64 exec, -1
        s_waitcnt vmcnt(0)
        buffer_store_dword v119, v118, s[16:19], s58 offen sc1
        """)
        V.q = []
        if O["wok"]: self.setflag(1, ONE, F_WOK)
        self.stamp(6)
        if O["opf"]:
            A(f"""
            s_and_b32 s58, s29, 7
            s_lshl_b32 s59, s28, 1
            s_add_u32 s58, s58, s59
            s_lshl_b32 s58, s58, 2
            s_and_b32 s58, s58, 31
            s_lshl_b32 s59, s28, 3
            s_lshl_b32 s57, s27, 1
            s_add_u32 s59, s59, s57
            s_lshl_b32 s59, s59, 5
            s_add_u32 s58, s58, s59
            s_lshl_b32 s58, s58, 10
            s_add_u32 s59, s58, 32768
            s_sleep {O["opf"]}
            """)
            for k in range(8): A(f"buffer_load_dwordx4 {vr(160+4*k,4)}, v{VL16}, s[16:19], s{58+(k>>2)} offen offset:{1024*(k&3)} sc1")
        if O.get("nomoe"): A("s_branch L_helper_end")
        MSK, AP, DT, BP, R = 12, 16, 24, 32, 40
        for it in dwl: emit(it)
        A(f"ds_read_b32 v118, v{VF} offset:{F_SEL}")
        self.moe_masks(VL, MSK, 119, 120, 121)
        self.col_off(VL, 122, 119)
        A(f"""
        v_lshrrev_b32 v121, 5, v{VL}
        v_lshlrev_b32 v121, 2, v121
        s_waitcnt lgkmcnt(0)
        v_readfirstlane_b32 s91, v118
        s_and_b32 s92, s91, 0x7ff
        s_sub_u32 s92, 0x7ff, s92
        s_cmp_ge_u32 s3, 224
        s_cbranch_scc1 L_moe_done
        """)
        if O["gupos"] == 2:
            self.hidden(VL, VL16, VF, ONE, 44, 118, 119, 60, 89, lambda: (self.spin(VF, F_GUP, TMP), A(f"s_sleep {O['d4']}")))
        A(f"v_add_u32 v119, {L_HT}, v121")
        self.spin(VF, F_H, TMP, 1)
        for t in range(8): A(f"ds_read_b32 v{BP+t}, v119 offset:{8*t}")
        A("s_waitcnt vmcnt(0) lgkmcnt(0)")
        for t in range(8):
            ap = AP + 4*(t & 1)
            for r in range(4): A(f"v_and_b32 v{ap+r}, v{BP+t}, v{MSK+r}")
            A(f"{MF} {vr(DT,4)}, {vr(ap,4)}, {vr(DW+4*t,4)}, {'0' if t == 0 else vr(DT,4)}")
        self.tag(DT, VM)
        A(f"""
        s_lshl_b32 s58, s3, 12
        s_add_u32 s58, s58, s80
        s_add_u32 s58, s58, {WS_YP}
        buffer_store_dwordx4 {vr(DT,4)}, v122, s[16:19], s58 offen sc1
        s_cmp_lg_u32 s27, 1
        s_cbranch_scc1 L_moe_done
        v_lshrrev_b32 v118, 3, v{VL}
        v_lshlrev_b32 v118, 12, v118
        v_and_b32 v119, 7, v{VL}
        v_lshl_add_u32 v118, v119, 4, v118
        s_lshr_b32 s58, s3, 5
        s_and_b32 s59, s3, 31
        s_lshl_b32 s59, s59, 7
        s_lshl_b32 s95, s58, 17
        s_add_u32 s95, s95, s59
        s_add_u32 s95, s95, {WS_YP}
        s_lshl_b32 s94, s58, 12
        s_add_u32 s94, s94, s59
        s_add_u32 s94, s94, {WS_Y2}
        v_cmp_gt_u32 vcc, 8, v{VL}
        v_cndmask_b32 v119, v{VOOB}, v{VL16}, vcc
        """)
        self.spin(VF, F_WOA, TMP)
        A(f"s_sleep {O['d5']}")
        def yacc(k):
            if k:
                for h in (0, 2): A(f"v_pk_add_f32 {vr(GW+h,2)}, {vr(GW+h,2)}, {vr(GW+4*k+h,2)}")
        self.gather([(f"s_add_u32 s58, s95, {8*4096*t}", f"buffer_load_dwordx4 {vr(GW+4*t,4)}, v118, s[16:19], s58 offen sc1", GW+4*t) for t in range(4)], 60, yacc)
        for k in range(4): A(f"v_add_f32_dpp v{GW+k}, v{GW+k}, v{GW+k} row_ror:8 row_mask:0xf bank_mask:0xf")
        for k in range(4):
            red_swap(A, GW+k, 60, 16); red_swap(A, GW+k, 60, 32)
        self.tag(GW, VM)
        A(f"""
        buffer_store_dwordx4 {vr(GW,4)}, v119, s[16:19], s94 offen sc1
        L_moe_done:
        """)
        self.stamp(9)
        A(f"""
        s_lshr_b32 s58, s92, 7
        s_cmp_lg_u32 s58, {"s28" if not O.get("noy") else "99"}
        s_cbranch_scc1 L_helper_end
        s_cmp_lg_u32 s27, 0
        s_cbranch_scc1 L_helper_end
        v_lshrrev_b32 v118, 4, v{VL}
        v_add_u32 v120, 4, v118
        v_min_u32 v120, 6, v120
        v_and_b32 v119, 15, v{VL}
        v_lshlrev_b32 v119, 4, v119
        v_lshl_add_u32 v118, v118, 12, v119
        v_lshl_add_u32 v120, v120, 12, v119
        s_lshl_b32 s95, s29, 8
        s_add_u32 s95, s95, {WS_Y2}
        s_waitcnt vmcnt(0)
        """)
        self.spin(VF, F_WOA, TMP)
        A(f"s_sleep {O['d6']}")
        self.gather([(None, f"buffer_load_dwordx4 {vr(R+4*t,4)}, v{(118,120)[t]}, s[16:19], s95 offen sc1", R+4*t) for t in range(2)], 60)
        A(f"v_cmp_gt_u32 vcc, 48, v{VL}")
        for k in range(4): A(f"v_cndmask_b32 v{R+4+k}, 0, v{R+4+k}, vcc")
        for h in (0, 2): A(f"v_pk_add_f32 {vr(R+h,2)}, {vr(R+h,2)}, {vr(R+4+h,2)}")
        for k in range(4):
            red_swap(A, R+k, 60, 16); red_swap(A, R+k, 60, 32)
        A(f"""
        s_and_b32 s58, s91, 0xffff0000
        s_ashr_i32 s59, s58, 31
        s_not_b32 s59, s59
        s_or_b32 s59, s59, 0x80000000
        s_xor_b32 s58, s58, s59
        s_and_b32 s58, s58, 0xffff0000
        v_mov_b32 v60, s58
        v_mul_f32 v60, {hex(LOG2E | 0x80000000)}, v60
        v_exp_f32 v60, v60
        v_add_f32 v60, 1.0, v60
        v_rcp_f32 v60, v60
        """)
        rnd_bf16(A, 60)
        for k in range(4):
            rnd_bf16(A, R+k); A(f"v_mul_f32 v{R+k}, v{R+k}, v60"); rnd_bf16(A, R+k)
        A(f"""
        v_add_u32 v118, {L_YF}, v119
        ds_write_b128 v118, {vr(R,4)}
        s_mov_b64 exec, 1
        s_waitcnt lgkmcnt(0)
        ds_write_b32 v{VF}, v{ONE} offset:{F_YF}
        s_mov_b64 exec, -1
        L_helper_end:
        """)
        self.stamp(10)
        self.stamp_out()
        A("s_endpgm")
        self.A = A0
        for t in self.slow: A0(t)
        self.slow = []

    def stat_loads(self):
        A, O = self.A, self.opt
        srd(A, 44, 60, 2048)
        A(f"""
        v_and_b32 v2, 31, v1
        v_lshlrev_b32 v2, 4, v2
        v_lshrrev_b32 v3, 5, v1
        v_lshl_add_u32 v4, v3, 11, v2
        s_lshl_b32 s85, s22, 7
        s_lshl_b32 s58, s23, 3
        s_add_u32 s85, s85, s58
        s_lshl_b32 s58, s27, 1
        s_add_u32 s85, s85, s58
        s_lshl_b32 s58, s85, 11
        {"s_sleep %d" % O["sxd"] if O["stat_beg"] >= 0 else ""}
        """)
        for t in range(4): A(f"buffer_load_dwordx4 {vr(192+4*t,4)}, v4, s[8:11], s58 offen offset:{512*t}{' nt' if O.get('ntsx') else ''}")
        for t in range(4): A(f"buffer_load_dwordx4 {vr(208+4*t,4)}, v2, s[44:47], 0 offen offset:{512*t}")

    def stats(self):
        A = self.A
        X, WR, S1, S2, SR, SW, ON, T, MB = 192, 208, 224, 226, 228, 230, 232, 233, 236
        A("s_waitcnt vmcnt(0)")
        A(f"v_mov_b32 v{ON}, 0x3f803f80")
        for k in range(16):
            for d, a, b in ((S1, X+k, ON), (S2, X+k, X+k), (SR, X+k, WR+k), (SW, WR+k, ON)):
                A(f"v_dot2_f32_bf16 v{d+(k&1)}, v{a}, v{b}, {'0' if k < 2 else 'v%d' % (d+(k&1))}")
        A("s_nop 2")
        for d in (S1, S2, SR, SW): A(f"v_add_f32 v{d}, v{d}, v{d+1}")
        for r in (8, 4, 2, 1):
            for d in (S1, S2, SR, SW): A(f"v_add_f32_dpp v{d}, v{d}, v{d} row_ror:{r} row_mask:0xf bank_mask:0xf")
        for d in (S1, S2, SR, SW): A(f"v_mov_b32 v{d+1}, v{d}")
        for d in (S1, S2, SR, SW): A(f"v_permlane16_swap_b32 v{d}, v{d+1}")
        for d in (S1, S2, SR, SW): A(f"v_add_f32 v{d}, v{d}, v{d+1}")
        A(f"""
        v_mul_f32 v{S1}, 0x3a800000, v{S1}
        v_mul_f32 v{S2}, 0x3a800000, v{S2}
        v_cvt_pk_bf16_f32 v{MB}, v{S1}, v{S1}
        v_fma_f32 v{S2}, -v{S1}, v{S1}, v{S2}
        v_lshlrev_b32 v{MB}, 16, v{MB}
        v_max_f32 v{S2}, 0, v{S2}
        v_fma_f32 v{SR}, -v{MB}, v{SW}, v{SR}
        """)
        rnd_bf16(A, S2)
        A(f"v_add_f32 v{S2}, 0x3727c5ac, v{S2}")
        rnd_bf16(A, S2)
        A(f"v_sqrt_f32 v{S2}, v{S2}\nv_lshrrev_b32 v{T}, 5, v1\nv_cvt_pk_bf16_f32 v{S2}, v{S2}, v{S2}\nv_lshlrev_b32 v{MB+1}, 16, v{S2}")
        A(f"""
        v_rcp_f32 v{S2}, v{MB+1}
        v_add_u32 v{T+1}, s85, v{T}
        v_sub_u32 v{T+1}, 0x7ff, v{T+1}
        v_mul_f32 v{SR}, v{SR}, v{S2}
        s_lshl_b32 s58, s27, 4
        s_add_u32 s58, s58, {L_FL + F_ST}
        v_lshl_add_u32 v{T}, v{T}, 3, s58
        """)
        rnd_bf16(A, SR)
        A(f"""
        s_mov_b32 exec_lo, 1
        s_mov_b32 exec_hi, 1
        ds_write_b64 v{T}, {vr(MB,2)}
        s_mov_b64 exec, -1
        v_ashrrev_i32 v{T}, 31, v{SR}
        v_or_b32 v{T}, 0x80000000, v{T}
        v_xor_b32 v{T}, v{T}, v{SR}
        v_and_b32 v{T}, 0xffff0000, v{T}
        v_or_b32 v{T}, v{T}, v{T+1}
        """)
        red_swap(A, T, T+1, 32, "v_max_u32")
        A(f"s_lshl_b32 s58, s27, 2\ns_add_u32 s58, s58, {L_FL + F_KEY}\nv_mov_b32 v{T+1}, s58\ns_mov_b64 exec, 1\nds_write_b32 v{T+1}, v{T}\ns_mov_b64 exec, -1")

    def kwave(self):
        A = self.A
        O = self.opt
        A.label("L_kwave")
        self.sreg = 127
        self.stamp(0)
        A("s_mov_b32 s74, s70\ns_mov_b32 s75, s71")
        self.dbg_max(1, True)
        ACC = 128
        FA = lambda st, rf, ks: 16 + st*32 + (rf*2+ks)*4
        FB = lambda slot, ks: 80 + slot*8 + ks*4
        VA, VKV, N15, Q4, VM, VF, VFB, ONE = 112, 114, 12, 13, 11, 122, 123, 124
        A(f"""
        s_lshr_b32 s36, s27, 1
        s_and_b32 s37, s27, 1
        v_and_b32 v{N15}, 15, v1
        v_lshrrev_b32 v{Q4}, 4, v1
        v_mov_b32 v{VF}, {L_FL}
        v_add_u32 v{VFB}, s27, v{VF}
        v_mov_b32 v{ONE}, 1
        v_lshl_add_u32 v2, v1, 2, v{VF}
        v_mov_b32 v3, 0
        s_mov_b64 exec, 0x3ffff
        ds_write_b32 v2, v3
        ds_write_b32 v2, v3 offset:{F_AR}
        s_mov_b64 exec, -1
        s_lshl_b32 s58, s36, 13
        v_lshlrev_b32 v14, 7, v{N15}
        v_add_u32 v14, s58, v14
        v_bfe_u32 v15, v{N15}, 1, 3
        """)
        for ks in range(2):
            A(f"v_add_u32 v2, {4*ks}, v{Q4}\nv_xor_b32 v2, v2, v15\nv_lshl_add_u32 v{VA+ks}, v2, 4, v14")
        A(f"""
        v_bfe_u32 v2, v1, 2, 2
        v_lshlrev_b32 v2, 6, v2
        v_and_b32 v3, 3, v1
        v_lshl_add_u32 v2, v3, 3, v2
        v_and_b32 v3, 1, v{Q4}
        v_lshl_add_u32 v10, v3, 5, v2
        s_lshl_b32 s58, s37, 8
        v_add_u32 v4, s58, v10
        v_lshl_add_u32 v{VKV}, v{Q4}, 11, v4
        v_add_u32 v{VKV}, {L_KV}, v{VKV}
        s_lshl_b32 s58, s36, 5
        v_xor_b32 v{VKV}, s58, v{VKV}
        v_xor_b32 v{VKV+1}, 32, v{VKV}
        """)
        VD, VWO, VG, GW = 125, 126, 9, 192
        srd(A, 92, 56, 0x200000)
        srd(A, 52, 62, 0x700000)
        srd(A, 88, 64, 0x700000)
        A(f"""
        s_lshl_b32 s80, s27, 10
        v_and_b32 v2, 3, v1
        v_bfe_u32 v3, v1, 4, 1
        v_lshlrev_b32 v3, 6, v3
        v_bfe_u32 v4, v1, 2, 2
        v_lshrrev_b32 v5, 5, v1
        v_lshl_add_u32 v4, v5, 2, v4
        v_lshlrev_b32 v6, 1, v5
        v_xor_b32 v2, v2, v6
        v_lshl_add_u32 v7, v2, 4, v3
        v_lshl_add_u32 v{VWO}, v4, 11, v7
        v_and_b32 v2, 31, v1
        v_lshlrev_b32 v2, 4, v2
        v_mul_u32_u24 v{VG}, 7168, v5
        v_add_u32 v{VG}, v{VG}, v2
        s_lshl_b32 s81, s27, 14
        s_lshl_b32 s58, s29, 7
        s_add_u32 s81, s81, s58
        s_and_b32 s48, s29, 7
        s_lshl_b32 s58, s28, 1
        s_add_u32 s48, s48, s58
        s_lshl_b32 s48, s48, 2
        s_lshr_b32 s34, s3, 4
        s_and_b32 s87, s3, 15
        s_lshl_b32 s78, s87, 6
        s_lshl_b32 s59, s27, 4
        s_add_u32 s78, s78, s59
        s_mul_i32 s78, s78, 7168
        s_lshl_b32 s59, s34, 9
        s_add_u32 s78, s78, s59
        s_and_b32 s71, s21, {O["ngroups"]-1}
        s_cmp_lt_u32 s3, 224
        s_cselect_b32 s78, s78, 0
        s_cselect_b32 s71, s71, -1
        s_cselect_b64 vcc, -1, 0
        v_cndmask_b32 v{VG}, 0, v{VG}, vcc
        """)
        srd(A, 32, 68, 0x400000)
        if O['stat_beg'] >= 0: self.stat_loads()
        sw = self.A = Switch(A)
        stq = sw.record([self.stats])
        self.A = A
        if O["stat_beg"] < 0:
            for a_ in stq:
                if not O.get("nostat"): replay(a_, A, None)
            stq = []
        A(f"""
        s_cmp_lg_u32 s27, 0
        s_cbranch_scc1 L_tagdone
        s_load_dword s60, s[74:75], 0
        s_mov_b32 s57, 0
        L_tagspin:
        s_waitcnt lgkmcnt(0)
        s_cmp_lg_u32 s60, 0
        s_cbranch_scc1 L_tagok
        s_sleep 8
        s_load_dword s60, s[74:75], 0 glc
        s_add_u32 s57, s57, 1
        s_cmp_lt_u32 s57, {SPIN_MAX}
        s_cbranch_scc1 L_tagspin
        s_waitcnt lgkmcnt(0)
        L_tagok:
        v_mov_b32 v2, s60
        s_mov_b64 exec, 1
        ds_write_b32 v{VF}, v2 offset:{F_NON}
        s_mov_b64 exec, -1
        L_tagdone:
        """)
        self.stamp(11)
        A(f"s_setprio {O['kprio']}\ns_waitcnt lgkmcnt(0)\ns_barrier")
        self.stamp(1)
        L = LgkmTracker(A)
        def areads(s_):
            return [(f"ds_read_b128 {vr(FA(s_&1,rf,ks),4)}, v{VA+ks} offset:{(s_%4)*16384+rf*2048}", ("A",s_)) for rf in range(4) for ks in range(2)]
        def breads(s_, cf):
            return [(f"ds_read_b64_tr_b16 {vr(FB(cf,ks)+2*rd,2)}, v{VKV+(cf&1)} offset:{(s_%4)*16384+(8*ks+rd)*1024+(cf>>1)*512}", ("B",s_,cf)) for ks in range(2) for rd in range(2)]
        for x in areads(0) + breads(0,0) + breads(0,1): L.issue(*x)
        def gu_items(ks):
            return [] if O.get("nomoe") else [(f"s_add_u32 s78, s78, {2*7168}" if (k & 1 == 0 and k) else None,
                     f"buffer_load_dwordx4 {vr(GW+4*k,4)}, v{VG}, s[{(52,88)[k&1]}:{(55,91)[k&1]}], s78 offen nt") for k in ks]
        runs = [] if O.get("nomoe") else O["runs"]
        n0 = sum(n for _, n in runs)
        P1 = [1,1,1,0,1,1,1,0,1,1,0,0]
        P2 = [1,1,1,1,0,1,1,1,1,0,1,1,1,1,0,1,1,1,1,0]
        for s_ in range(16):
            st = s_ & 1
            w1 = breads(s_,2) + breads(s_,3)
            w2 = (areads(s_+1) + breads(s_+1,0) + breads(s_+1,1)) if s_ < 15 else []
            g = 0
            for cf in range(4):
                for j,(rf,ks) in enumerate([(rf,ks) for rf in range(4) for ks in ((0,1) if rf % 2 == 0 else (1,0))]):
                    if g == 12:
                        if s_ == O["stat_end"]:
                            assert not stq
                            A("s_waitcnt lgkmcnt(0)"); L.q = []
                        L.drain(); A("s_barrier")
                    if g == O["runpos"]:
                        k0 = 0
                        for first, n in runs:
                            for grp in range(O["ngroups"]):
                                if first + grp*O["gstep"] == s_:
                                    sk = self.lab("run")
                                    A(f"s_cmp_eq_u32 s71, {grp}\ns_cbranch_scc0 {sk}")
                                    for pre, txt in gu_items(range(k0, k0+n)):
                                        if pre: A(pre)
                                        A(txt)
                                    A.label(sk)
                            k0 += n
                    if g == 12 and O.get("iters"): self.stamp(16 + s_)
                    elif j == 0: L.need({("A",s_), ("B",s_,cf)})
                    acc = ACC + (rf*4+cf)*4
                    c = "0" if (s_ == 0 and j % 2 == 0) else vr(acc,4)
                    A(f"{MF} {vr(acc,4)}, {vr(FA(st,rf,ks),4)}, {vr(FB(cf,ks),4)}, {c}")
                    if g < 12:
                        if w1 and P1[g]: L.issue(*w1.pop(0))
                    elif w2 and P2[g-12]: L.issue(*w2.pop(0))
                    if O["stat_beg"] <= s_ <= O["stat_end"] and stq:
                        left = (O["stat_end"] - s_ + 1)*32 - g - 20
                        n = 1 if (len(stq) >= left or not (P1+P2)[g] or g % 2 == 0) else 0
                        if len(stq) > left: n = 2
                        for _ in range(n):
                            if stq: replay(stq.pop(0), A, None)
                    if s_ == 15 and g == 12: tabq = self.k_tables()
                    if s_ == 15 and g >= 13 and tabq: A(tabq.pop(0))
                    g += 1
            assert not w1 and not w2
        for t in tabq: A(t)
        for pre, txt in gu_items(range(n0, min(16, n0 + O["gue"]))):
            if pre: A(pre)
            A(txt)
        n0 = min(16, n0 + O["gue"])
        A(f"s_setprio {O['kprio2']}")
        A("v_mov_b32 v8, v2") if O.get("span") else None
        self.dbg_max(2)
        A("v_mov_b32 v2, v8") if O.get("span") else None
        self.stamp(2)
        if O.get("stop"):
            self.stamp_out(); A("s_endpgm")
        TB = lambda rf: (16, 28, 48, 60)[rf]
        CS, ON, U, E = 40, 72, 96, 100
        PK = lambda ks2, db: (80, 128)[ks2] + 4*db
        VV = lambda ks2, eb: (88, 136)[ks2] + 4*eb
        T = lambda eb, db: (144, 148, 152, 156, 16, 20)[eb*2+db]
        for rf in (2, 3):
            for k, off in enumerate((0, L_RL - L_M, L_RI - L_M)): A(f"ds_read_b128 {vr(TB(rf)+4*k,4)}, v2 offset:{64*rf + off}")
        for k in range(4): A(f"v_mov_b32 v{ON+k}, 0x3f803f80")
        A(f"""
        s_mov_b32 s40, {hex(LN2)}
        s_mov_b32 s41, {hex(LN2)}
        s_mov_b32 s42, {hex(EPSL)}
        v_mov_b32 v{VM}, 0xff
        s_waitcnt lgkmcnt(6)
        v_readfirstlane_b32 s60, v41
        v_readfirstlane_b32 s49, v43
        """)
        self.nonce_setup()
        for rf in range(4):
            if rf == 2: A("s_waitcnt lgkmcnt(0)")
            def vtile(cf):
                B = self.A
                a = ACC+(rf*4+cf)*4
                for h in (0, 2): B(f"v_pk_fma_f32 {vr(a+h,2)}, {vr(TB(rf)+h,2)}, {vr(CS+2*cf,2)}, {vr(a+h,2)} op_sel_hi:[1,0,1] neg_lo:[1,0,0] neg_hi:[1,0,0]")
                for h in (0, 2): B(f"v_pk_mul_f32 {vr(a+h,2)}, {vr(a+h,2)}, {vr(TB(rf)+8+h,2)}")
                d = VV(rf>>1, cf-2) + (rf&1)*2
                B(f"v_cvt_pk_bf16_f32 v{d}, v{a}, v{a+1}\nv_cvt_pk_bf16_f32 v{d+1}, v{a+2}, v{a+3}")
            ktile = lambda cf: self.phi4(ACC+(rf*4+cf)*4, TB(rf), False, CS+2*cf, True, TB(rf)+4, False, PK(rf>>1, cf) + (rf&1)*2, U + 8*cf, E + 8*cf)
            if O["weave"]: self.weave([lambda: ktile(0), lambda: ktile(1), lambda: (vtile(2), vtile(3))])
            else:
                ktile(0); ktile(1); vtile(2); vtile(3)
            if rf & 1:
                ks2 = rf >> 1
                for eb in range(3):
                    for db in range(2):
                        A(f"{MF} {vr(T(eb,db),4)}, {vr(PK(ks2,db),4)}, {vr(VV(ks2,eb),4) if eb < 2 else vr(ON,4)}, {'0' if ks2 == 0 else vr(T(eb,db),4)}")
        if not O["latepub"]: self.setflag(VFB, ONE, F_PUB)
        A(f"""
        v_lshlrev_b32 v120, 4, v1
        s_mul_i32 s58, s27, 3072
        s_add_u32 s58, s58, {L_GUS}
        v_add_u32 v2, s58, v120
        s_lshl_b32 s59, s36, 10
        v_add_u32 v3, s59, v2
        v_subrev_u32 v4, s59, v2
        ds_write_b128 v3, {vr(T(1,0),4)}
        ds_write_b128 v4, {vr(T(1,1),4)} offset:1024
        ds_write_b128 v2, {vr(T(2,1),4)} offset:2048
        s_xor_b32 s58, s27, 2
        v_add_u32 v5, s58, v{VF}
        s_mul_i32 s58, s58, 3072
        s_add_u32 s58, s58, {L_GUS}
        v_add_u32 v2, s58, v120
        v_add_u32 v3, s59, v2
        v_subrev_u32 v4, s59, v2
        s_waitcnt lgkmcnt(0)
        """)
        self.setflag(VFB, ONE, F_PR)
        A(f"""
        s_lshl_b32 s43, s23, 1
        s_add_u32 s43, s43, s37
        s_lshl_b32 s58, s43, 4
        s_add_u32 s58, s58, s22
        s_lshl_b32 s44, s58, 7
        s_lshl_b32 s45, s36, 6
        s_add_u32 s44, s44, s45
        s_add_u32 s44, s44, {WS_ZP}
        s_mul_i32 s58, s58, {KVS}
        s_lshl_b32 s45, s36, 11
        s_add_u32 s58, s58, s45
        s_add_u32 s58, s58, {WS_KVP}
        s_add_u32 s45, s58, s59
        s_sub_u32 s46, s58, s59
        v_mov_b32 v121, {OOB}
        v_lshlrev_b32 v6, 4, v{Q4}
        v_cmp_eq_u32 vcc, 0, v{N15}
        v_cndmask_b32 v6, v121, v6, vcc
        s_mov_b32 s57, 0
        L_pr:
        ds_read_u8 v7, v5 offset:{F_PR}
        ds_read_b128 v[96:99], v3
        ds_read_b128 v[100:103], v4 offset:1024
        ds_read_b128 v[104:107], v2 offset:2048
        s_waitcnt lgkmcnt(3)
        v_cmp_ne_u32 vcc, 1, v7
        s_add_u32 s57, s57, 1
        s_waitcnt lgkmcnt(0)
        s_cbranch_vccz L_prd
        s_cmp_lt_u32 s57, {SPIN_MAX*16}
        s_cbranch_scc1 L_pr
        L_prd:
        """)
        for k, (t, txt) in enumerate(((T(0,0), "v120, s[16:19], s45 offen sc1"), (T(0,1), "v120, s[16:19], s46 offen offset:1024 sc1"), (T(2,0), "v6, s[16:19], s44 offen sc1"))):
            for h in (0, 2): A(f"v_pk_add_f32 {vr(t+h,2)}, {vr(t+h,2)}, {vr(96+4*k+h,2)}")
            self.tag(t, VM)
            A(f"buffer_store_dwordx4 {vr(t,4)}, {txt}")
        if O["latepub"]: self.setflag(VFB, ONE, F_PUB)
        self.stamp(3)
        H1, XSV, XST, MSK, AP, DT, BP, R, DW = 24, 60, 62, 64, 68, 76, 84, 92, 160
        A(f"""
        v_lshrrev_b32 v2, 3, v1
        v_and_b32 v3, 7, v1
        v_lshlrev_b32 v118, 11, v2
        v_lshl_add_u32 v118, v3, 4, v118
        s_lshl_b32 s58, s27, 8
        s_add_u32 s58, s58, {L_ST2}
        v_lshl_add_u32 v119, v2, 3, s58
        v_lshlrev_b32 v3, 4, v3
        v_mul_u32_u24 v4, {KVS}, v2
        v_add_u32 v4, v4, v3
        v_lshl_add_u32 v5, v2, 7, v3
        s_lshr_b32 s58, s22, 3
        s_lshl_b32 s59, s23, 1
        s_add_u32 s45, s58, s59
        s_mul_i32 s44, s45, {16*KVS}
        s_lshl_b32 s58, s22, 9
        s_and_b32 s58, s58, 0xfff
        s_add_u32 s44, s44, s58
        s_lshl_b32 s58, s27, 7
        s_add_u32 s44, s44, s58
        s_add_u32 s44, s44, {WS_KVP}
        s_lshl_b32 s58, s23, 4
        s_add_u32 s58, s58, s22
        s_lshl_b32 s46, s58, 9
        s_lshl_b32 s59, s27, 7
        s_add_u32 s46, s46, s59
        s_add_u32 s46, s46, {WS_KVF}
        v_cmp_gt_u32 vcc, 8, v1
        v_cndmask_b32 v6, v121, v120, vcc
        s_and_b32 s72, s49, 0x7ff
        s_sub_u32 s72, 0x7ff, s72
        s_lshl_b32 s49, s72, 3
        s_add_u32 s49, s49, {WS_STAT}
        s_lshl_b32 s73, s72, 11
        s_lshl_b32 s59, s87, 7
        s_add_u32 s73, s73, s59
        s_lshl_b32 s59, s27, 5
        s_add_u32 s73, s73, s59
        v_lshlrev_b32 v7, 1, v{N15}
        v_mov_b32 v8, 0
        buffer_load_ushort v{XSV}, v7, s[8:11], s73 offen
        buffer_load_dwordx2 {vr(XST,2)}, v8, s[16:19], s49 offen sc1
        """)
        self.moe_masks(1, MSK, 2, 3, 7)
        self.col_off(1, 117, 2)
        def acc(b):
            def f(k):
                if k:
                    for h in (0, 2): A(f"v_pk_add_f32 {vr(b+h,2)}, {vr(b+h,2)}, {vr(b+4*k+h,2)}")
            return f
        def red81632(b):
            for k in range(4): A(f"v_add_f32_dpp v{b+k}, v{b+k}, v{b+k} row_ror:8 row_mask:0xf bank_mask:0xf")
            for wh in (16, 32):
                for k in range(4): A(f"v_mov_b32 v{b+4+k}, v{b+k}")
                for k in range(4): A(f"v_permlane{wh}_swap_b32 v{b+k}, v{b+4+k}")
                for h in (0, 2): A(f"v_pk_add_f32 {vr(b+h,2)}, {vr(b+h,2)}, {vr(b+4+h,2)}")
            self.tag(b, VM)
        def wo_items(ts):
            return [(f"s_add_u32 s82, s48, {t}\ns_and_b32 s82, s82, 31\ns_lshl_b32 s82, s82, 16\ns_add_u32 s82, s82, s81\ns_add_u32 m0, s80, {((t+16)%32)*4096}",
                     f"buffer_load_dwordx4 v{VWO}, s[92:95], s82 offen {'nt ' if O.get('ntwo') else ''}lds") for t in ts]
        def gu_compute():
            sk, xt, xk = self.lab("ng"), self.lab("xt"), self.lab("xk")
            A(f"""
            s_cmp_ge_u32 s3, {0 if O.get('nomoe') else 224}
            s_cbranch_scc1 {sk}
            s_mov_b32 s57, 0
            s_mov_b32 s58, 0x05040100
            {xt}:
            v_perm_b32 v2, v{XST+1}, v{XST}, s58
            v_cmp_ne_u32 vcc, s60, v2
            s_add_u32 s57, s57, 1
            s_nop 0
            s_cbranch_vccz {xk}
            s_cmp_ge_u32 s57, {SPIN_MAX}
            s_cbranch_scc1 {xk}
            v_mov_b32 v2, 0
            buffer_load_dwordx2 {vr(XST,2)}, v2, s[16:19], s49 offen sc1
            s_waitcnt vmcnt(0)
            s_branch {xt}
            {xk}:
            v_and_b32 v{XST}, 0xffff0000, v{XST}
            v_and_b32 v{XST+1}, 0xffff0000, v{XST+1}
            v_rcp_f32 v{XST+1}, v{XST+1}
            v_lshlrev_b32 v{XSV}, 16, v{XSV}
            v_sub_f32 v{XSV}, v{XSV}, v{XST}
            """)
            rnd_bf16(A, XSV)
            A(f"v_mul_f32 v{XSV}, v{XSV}, v{XST+1}\nv_cvt_pk_bf16_f32 v{XSV}, v{XSV}, v{XSV}\nv_lshrrev_b32 v2, 5, v1\nv_lshlrev_b32 v2, 2, v2")
            for t in range(8): A(f"ds_bpermute_b32 v{BP+t}, v2, v{XSV} offset:{8*t}")
            A(f"s_lshl_b32 s58, s27, 11\ns_add_u32 s58, s58, {L_GUS}\nv_add_u32 v3, s58, v117\ns_waitcnt lgkmcnt(0)")
            for t in range(8):
                ap = AP + 4*(t & 1)
                for r in range(4): A(f"v_and_b32 v{ap+r}, v{BP+t}, v{MSK+r}")
                for m in range(2):
                    A(f"{MF} {vr(DT+4*m,4)}, {vr(ap,4)}, {vr(GW+8*t+4*m,4)}, {'0' if t == 0 else vr(DT+4*m,4)}")
            A(f"""
            ds_write_b128 v3, {vr(DT,4)}
            ds_write_b128 v3, {vr(DT+4,4)} offset:1024
            v_and_b32 v2, 31, v1
            v_lshlrev_b32 v2, 4, v2
            s_lshl_b32 s58, s27, 9
            v_add_u32 v2, s58, v2
            v_add_u32 v3, {L_GUS}, v2
            s_waitcnt lgkmcnt(0)
            """)
            self.setflag(VFB, ONE, F_GU)
            self.spin(VF, F_GU, 7)
            for w in range(4): A(f"ds_read_b128 {vr(R+4*w,4)}, v3 offset:{2048*w}")
            A("s_waitcnt lgkmcnt(0)")
            for h in (0, 2): A(f"v_pk_add_f32 {vr(R+h,2)}, {vr(R+h,2)}, {vr(R+4+h,2)}\nv_pk_add_f32 {vr(R+8+h,2)}, {vr(R+8+h,2)}, {vr(R+12+h,2)}")
            for h in (0, 2): A(f"v_pk_add_f32 {vr(R+h,2)}, {vr(R+h,2)}, {vr(R+8+h,2)}")
            self.tag(R, VM)
            A(f"""
            v_cmp_gt_u32 vcc, 32, v1
            v_cndmask_b32 v2, v121, v2, vcc
            s_lshl_b32 s58, s3, 11
            s_add_u32 s58, s58, {WS_GUP}
            buffer_store_dwordx4 {vr(R,4)}, v2, s[16:19], s58 offen sc1
            s_mov_b64 exec, 1
            ds_write_b8 v{VFB}, v{ONE} offset:{F_GUP}
            s_mov_b64 exec, -1
            {sk}:
            """)
        gupos = O["gupos"]
        assert n0 == 16 or gupos == 2 or O.get("nomoe")
        if gupos == 0:
            A("s_waitcnt vmcnt(0)"); gu_compute()
        self.stamp(4)
        if O["d1"]: A(f"s_sleep {O['d1']}")
        post1 = gu_items(range(n0, 16))
        kvl = [(f"s_add_u32 s58, s44, {8*KVS*t}", f"buffer_load_dwordx4 {vr(H1+4*t,4)}, v4, s[16:19], s58 offen sc1", H1+4*t) for t in range(2)]
        zl = [(None, f"buffer_load_dwordx4 {vr(H1+16+4*t,4)}, v5, s[16:19], s47 offen offset:{1024*t} sc1", H1+16+4*t) for t in range(2)]
        A(f"""
        s_and_b32 s58, s22, 7
        s_lshl_b32 s58, s58, 2
        s_add_u32 s58, s58, s27
        s_cmp_eq_u32 s58, 29
        s_cbranch_scc1 L_zwave
        """)
        self.gather(kvl, 56, acc(H1), post1)
        red81632(H1)
        A(f"""
        buffer_store_dwordx4 {vr(H1,4)}, v6, s[16:19], s46 offen sc1
        s_branch L_noz
        L_zwave:
        s_lshl_b32 s47, s45, 11
        s_add_u32 s47, s47, {WS_ZP}
        s_lshl_b32 s45, s45, 7
        s_add_u32 s45, s45, {WS_ZF}
        """)
        def both(k):
            if k < 2: acc(H1+16)(k)
            else: acc(H1)(k-2)
            if k == 1:
                red81632(H1+16); A(f"buffer_store_dwordx4 {vr(H1+16,4)}, v6, s[16:19], s45 offen sc1")
        self.gather(zl + kvl, 56, both, post1, 1)
        red81632(H1)
        A(f"buffer_store_dwordx4 {vr(H1,4)}, v6, s[16:19], s46 offen sc1\nL_noz:")
        if self.diag: A("v_writelane_b32 v127, s31, 12")
        self.stamp(5)
        def wok_now():
            self.spin(VF, F_C7, 56)
            for pre, txt in wo_items(range(16)): A(pre); A(txt)
        if O["wokpos"] == 1: wok_now()
        if gupos == 1: gu_compute()
        if O["wokpos"] == 2: wok_now()
        H2, FR = 128, 144
        A(f"""
        s_xor_b32 s43, s43, 2
        s_lshl_b32 s46, s43, 12
        s_lshl_b32 s58, s36, 11
        s_add_u32 s46, s46, s58
        s_add_u32 s46, s46, {WS_KVF}
        s_lshl_b32 s45, s43, 7
        s_add_u32 s45, s45, {WS_ZF}
        v_lshlrev_b32 v4, 4, v{Q4}
        s_mul_i32 s58, s37, 3072
        s_add_u32 s58, s58, {L_KVX}
        v_add_u32 v5, s58, v120
        s_lshl_b32 s58, s36, 10
        v_add_u32 v6, s58, v5
        s_lshl_b32 s38, s28, 7
        s_lshl_b32 s58, s27, 5
        s_add_u32 s38, s38, s58
        s_lshl_b32 s39, s38, 11
        s_lshl_b32 s58, s29, 7
        s_add_u32 s39, s39, s58
        """)
        def cv(k):
            A(f"v_cvt_pk_bf16_f32 v{FR+2*k}, v{H2+4*k}, v{H2+4*k+1}\nv_cvt_pk_bf16_f32 v{FR+2*k+1}, v{H2+4*k+2}, v{H2+4*k+3}")
            if k == 1: A(f"ds_write_b128 v6, {vr(FR,4)}")
            if k == 3: A(f"ds_write_b128 v5, {vr(FR+4,4)} offset:2048")
        d2 = O["d2"] if gupos != 1 or O.get("nomoe") else O["d2g"]
        if d2: A(f"s_sleep {d2}")
        XR, ST2, S, U, E = 96, 16, 128, 24, 26
        xl = [(f"s_add_u32 s59, s39, {8*2048*t}", f"buffer_load_dwordx4 {vr(XR+4*t,4)}, v118, s[8:11], s59 offen") for t in range(4)]
        if gupos == 2: XR = 40; xl = [(p, t.replace(vr(96+4*k,4), vr(40+4*k,4))) for k, (p, t) in enumerate(xl)]
        tail2 = [] if (O["wok"] or O["wokpos"]) else wo_items(range(16))
        self.gather([(None, f"buffer_load_dwordx4 {vr(H2+4*k,4)}, v120, s[16:19], s46 offen offset:{1024*k} sc1", H2+4*k) for k in range(2)] +
                    [(None, f"buffer_load_dwordx4 {vr(H2+8+4*k,4)}, v4, s[16:19], s45 offen offset:{64*k} sc1", H2+8+4*k) for k in range(2)], 56, cv, xl)
        A("s_waitcnt lgkmcnt(0)")
        self.setflag(VFB, ONE, F_KVX)
        if O["wokpos"]: self.setflag(VFB, ONE, F_WOK)
        if self.diag: A("v_writelane_b32 v127, s31, 13")
        self.stamp(6)
        self.dbg_max(3)
        A("s_setprio 0")
        if gupos != 2: self.hidden(1, 120, VF, ONE, 32, 2, 3, 56, 87)
        if tail2: self.spin(VF, F_C7, 56)
        for pre, txt in tail2:
            if pre: A(pre)
            A(txt)
        if gupos == 2: gu_compute()
        for t in range(4): A(f"ds_read_b64 {vr(ST2+2*t,2)}, v119 offset:{64*t}")
        A(f"s_waitcnt vmcnt({len(tail2)}) lgkmcnt(0)")
        def resid(t):
            B = self.A
            m, u_, e_ = ST2 + 2*t, 24 + 4*t, 26 + 4*t
            B(f"v_mov_b32 v{e_}, v{m+1}")
            for k in range(4):
                x = XR + 4*t + k; d = S + 8*t + 2*k
                B(f"""
                v_lshlrev_b32 v{d}, 16, v{x}
                v_and_b32 v{d+1}, 0xffff0000, v{x}
                v_pk_add_f32 {vr(u_,2)}, {vr(d,2)}, {vr(m,2)} op_sel_hi:[1,0] neg_lo:[0,1] neg_hi:[0,1]
                v_cvt_pk_bf16_f32 v{u_+1}, v{u_}, v{u_+1}
                v_lshlrev_b32 v{u_}, 16, v{u_+1}
                v_and_b32 v{u_+1}, 0xffff0000, v{u_+1}
                v_pk_mul_f32 {vr(u_,2)}, {vr(u_,2)}, {vr(e_,2)} op_sel_hi:[1,0]
                v_cvt_pk_bf16_f32 v{u_+1}, v{u_}, v{u_+1}
                v_lshlrev_b32 v{u_}, 16, v{u_+1}
                v_and_b32 v{u_+1}, 0xffff0000, v{u_+1}
                v_pk_add_f32 {vr(d,2)}, {vr(d,2)}, {vr(u_,2)}
                """)
        self.weave([lambda t=t: resid(t) for t in range(4)])
        if tail2:
            A("s_waitcnt vmcnt(0)"); self.setflag(VFB, ONE, F_WOK)
        self.stamp(14)
        self.spin(VF, F_AR, 7)
        for pre, txt in wo_items(range(16, 32)): A(pre); A(txt)
        G2 = 160
        B2 = lambda slot, ks: 80 + slot*8 + ks*4
        NW = O["nw"]
        OW = ([16 + 8*k for k in range(8)] + [192 + 8*k for k in range(7)])[:NW]
        VW = 112
        A(f"""
        v_lshl_add_u32 v{VW+2}, v{Q4}, 9, v10
        v_xor_b32 v{VW+3}, 32, v{VW+2}
        v_add_u32 v{VW}, 0x10000, v{VW+2}
        v_add_u32 v{VW+1}, 0x10000, v{VW+3}
        v_add_u32 v116, 32768, v120
        s_lshl_b32 s47, s28, 3
        s_lshl_b32 s58, s27, 1
        s_add_u32 s47, s47, s58
        s_lshl_b32 s47, s47, 15
        v_lshlrev_b32 v117, 7, v{N15}
        s_lshl_b32 s50, s28, 2
        s_add_u32 s50, s50, s27
        s_lshl_b32 s50, s50, 11
        s_add_u32 s50, s50, {WS_OF}
        """)
        self.spin(VF, F_WOK, 4)
        A("s_setprio 3")
        self.stamp(7)
        A(f"""
        s_sleep {O["d3"]}
        s_mov_b32 s57, 0
        L_s3:
        buffer_load_dword v4, v117, s[16:19], s50 offen sc1
        s_waitcnt vmcnt(0)
        v_cmp_ne_u32 vcc, s60, v4
        s_add_u32 s57, s57, 1
        s_nop 0
        s_cbranch_vccz L_s3d
        s_sleep {O["sleep3"]}
        s_cmp_lt_u32 s57, {SPIN_MAX}
        s_cbranch_scc1 L_s3
        L_s3d:
        """)
        self.setflag(VFB, ONE, F_WOA)
        self.stamp(8)
        self.dbg_max(4)
        V = VmTracker(A)
        def oload(u):
            t, rf = u >> 1, u & 1
            if u % 8 == 0:
                A(f"s_add_u32 s58, s48, {t}\ns_and_b32 s58, s58, 31\ns_lshl_b32 s58, s58, 10\ns_add_u32 s51, s58, s47")
            V.issue(f"buffer_load_dwordx4 {vr(OW[t % NW]+4*rf,4)}, v{116 if rf else 120}, s[16:19], s51 offen offset:{(t&3)*1024} sc1", ("o", t))
        PRE = O["pre"]
        for u in range(2*PRE): oload(u)
        L = LgkmTracker(A)
        def wreads(pr, nf):
            return [(f"ds_read_b64_tr_b16 {vr(B2(nf,ks)+2*rd,2)}, v{VW + (nf&1) + 2*((2*pr+ks)>>4)} offset:{((2*pr+ks)&15)*4096 + rd*2048 + (nf>>1)*256}", ("W",pr,nf))
                    for ks in range(2) for rd in range(2)]
        for nf in range(3):
            for x in wreads(0, nf): L.issue(*x)
        nxt = 2*PRE
        for pr in range(16):
            for nf in range(4):
                g = pr*4 + nf + 3
                if g == 32:
                    L.need({("CA",)}); self.check(VF, F_WOA, 4)
                w = wreads(g//4, g % 4) if g < 64 else []
                if nf == 0: V.need({("o", 2*pr), ("o", 2*pr+1)})
                L.need({("W",pr,nf)})
                for j,(rf,ks) in enumerate(CH4):
                    acc_ = G2 + (rf*4+nf)*4
                    c = "0" if (pr == 0 and j % 2 == 0) else vr(acc_,4)
                    A(f"{MF} {vr(acc_,4)}, {vr(B2(nf,ks),4)}, {vr(OW[(2*pr+ks) % NW]+4*rf,4)}, {c}")
                    if w: L.issue(*w.pop(0))
                    if j == 1:
                        for _ in range(2 if (nxt >> 1) < 2*pr + NW - 2 else 1):
                            if nxt < 64 and (nxt >> 1) - NW <= 2*pr - 1:
                                oload(nxt); nxt += 1
                if g == 30: L.issue(f"ds_read_b32 v4, v{VF} offset:{F_WOA}", ("CA",))
                if pr == 3 and nf == 0:
                    A("s_mov_b64 exec, 1"); L.issue(f"ds_write_b8 v{VFB}, v{ONE} offset:{F_G8}", ("F",)); A("s_mov_b64 exec, -1")
                if pr == 14 and nf == 0:
                    L.issue(f"ds_read_b32 v4, v{VF} offset:{F_G8}", ("CG",))
        assert nxt == 64
        self.stamp(9)
        A(f"""
        s_mul_i32 s58, s27, 4608
        s_add_u32 s58, s58, {L_TR}
        v_mul_u32_u24 v2, 144, v{N15}
        v_lshl_add_u32 v2, v{Q4}, 3, v2
        v_add_u32 v2, s58, v2
        v_lshrrev_b32 v3, 3, v1
        v_mul_u32_u24 v3, 144, v3
        v_and_b32 v7, 7, v1
        v_lshl_add_u32 v3, v7, 4, v3
        v_add_u32 v3, s58, v3
        """)
        L.drain()
        self.check(VF, F_G8, 4)
        for rf in range(2):
            for nf in range(4):
                a = G2 + (rf*4+nf)*4; d = 16 + (rf*4+nf)*2
                A(f"v_cvt_pk_bf16_f32 v{d}, v{a}, v{a+1}\nv_cvt_pk_bf16_f32 v{d+1}, v{a+2}, v{a+3}")
                A(f"ds_write_b64 v2, {vr(d,2)} offset:{rf*16*144 + nf*32}")
        A("s_waitcnt lgkmcnt(0)")
        for t in range(4): A(f"ds_read_b128 {vr(32+4*t,4)}, v3 offset:{t*8*144}")
        A(f"""
        s_sub_u32 s52, s72, s38
        s_cmp_lt_u32 s52, {0 if O.get("nomoe") or O.get("noy") else 32}
        s_cbranch_scc0 L_no_moe
        """)
        self.spin(VF, F_YF, 5, 1)
        A(f"v_lshlrev_b32 v4, 5, v7\nv_add_u32 v4, {L_YF}, v4\nds_read_b128 v[48:51], v4\nds_read_b128 v[52:55], v4 offset:16\nv_lshrrev_b32 v5, 3, v1\ns_waitcnt lgkmcnt(0)")
        for t in range(4):
            A(f"v_add_u32 v7, {8*t}, v5\nv_cmp_eq_u32 vcc, s52, v7")
            for k in range(8): A(f"v_cndmask_b32 v56, 0, v{48+k}, vcc\nv_add_f32 v{S+8*t+k}, v{S+8*t+k}, v56")
        A("L_no_moe:\ns_waitcnt lgkmcnt(0)")
        for t in range(4):
            def fin(k):
                a = 32 + 4*t + k; s_ = S + 8*t + 2*k; u_ = 60 + 2*k
                self.A(f"v_lshlrev_b32 v{u_}, 16, v{a}\nv_and_b32 v{u_+1}, 0xffff0000, v{a}\nv_pk_add_f32 {vr(u_,2)}, {vr(u_,2)}, {vr(s_,2)}\nv_cvt_pk_bf16_f32 v{a}, v{u_}, v{u_+1}")
            self.weave([lambda k=k: fin(k) for k in range(4)])
            A(f"buffer_store_dwordx4 {vr(32+4*t,4)}, v118, s[32:35], s39 offen {O['ost']}")
            if t < 3: A(f"s_add_u32 s39, s39, {8*2048}")
        self.stamp(10)
        self.dbg_max(5)
        self.stamp_out()
        A("L_end:\ns_endpgm")
        for t in self.slow: A(t)
        self.slow = []

    def k_tables(self):
        q = [f"s_lshl_b32 s58, s36, 8\nv_lshl_add_u32 v2, v13, 4, s58", f"v_add_u32 v2, {L_M}, v2", f"s_lshl_b32 s58, s37, 7\nv_lshl_add_u32 v3, v12, 2, s58", f"s_lshl_b32 s58, s36, 6\nv_xor_b32 v3, s58, v3", f"v_add_u32 v3, {L_CS}, v3", "v_xor_b32 v4, 64, v3"]
        q += [f"ds_read_b32 v{40+2*cf}, v{3+(cf&1)} offset:{(cf>>1)*256}" for cf in range(4)]
        q += [f"ds_read_b32 v41, v122 offset:{F_NON}", f"ds_read_b32 v43, v122 offset:{F_SEL}"]
        for rf in range(2):
            q += [f"ds_read_b128 {vr((16,28)[rf]+4*k,4)}, v2 offset:{64*rf + off}" for k, off in enumerate((0, L_RL - L_M, L_RI - L_M))]
        return q

    def build(self):
        self.prologue()
        self.helper()
        self.kwave()
        body = hazard.fix(self.A.lines)
        hdr = open(os.path.join(os.path.dirname(os.path.abspath(__file__)), "header.txt")).read()
        out = hdr + f"; @launch grid=(256,1,1) block=(512,1,1) lds={LDS_SIZE}\n"
        out += f""".amdgcn_target "amdgcn-amd-amdhsa--gfx950"
.text
.globl {NAME}_kernel
.p2align 8
.type {NAME}_kernel,@function
{NAME}_kernel:
"""
        out += "\n".join(body) + "\n"
        out += f""".section .rodata,"a"
.p2align 6
.amdhsa_kernel {NAME}_kernel
  .amdhsa_next_free_vgpr 256
  .amdhsa_next_free_sgpr 102
  .amdhsa_accum_offset 256
  .amdhsa_group_segment_fixed_size 0
  .amdhsa_kernarg_size 88
  .amdhsa_user_sgpr_count 2
  .amdhsa_user_sgpr_kernarg_segment_ptr 1
  .amdhsa_system_sgpr_workgroup_id_x 1
  .amdhsa_float_denorm_mode_32 3
.end_amdhsa_kernel
"""
        return out

if __name__ == "__main__":
    diag = "--diag" in sys.argv
    out = [a for a in sys.argv[1:] if not a.startswith("--")]
    path = out[0] if out else f"cdna_kernels/{NAME}.s"
    kw = {}
    for a in sys.argv[1:]:
        if a.startswith("--") and "=" in a:
            k_, v_ = a[2:].split("="); kw[k_] = eval(v_)
    open(path, "w").write(Gen(diag=diag, **kw).build())
    print("wrote", path)
```

```python
import sys, os
sys.path.insert(0, os.path.dirname(os.path.abspath(__file__)))
from asmlib import *
import hazard

NAME = "parallel_sum__linear_attn_block__moe_arch_mod__prompt"
WS_O, WS_ZP, WS_STAT, WS_KEY, WS_OF = 0x000000, 0x800000, 0x830000, 0x834000, 0x840000
WS_KVF, WS_ZF, WS_CSP, WS_YP, WS_DIAG, WS_GUP, WS_KVP = 0x860000, 0x880000, 0x8A0000, 0x900000, 0xA00000, 0xA80000, 0xB00000
WS_Y2 = 0x9F0000
KVS = 4096 + 128
WS_SIZE = 0x1000000
OOB = 0x40000000
L_A, L_KV = 0, 65536
L_M, L_RI, L_RL, L_CS, L_FL = 131072, 131584, 132096, 132608, 133376
L_HT, L_YT, L_YF, L_ST2, L_KVX = 133632, 133888, 134912, 135168, 136192
L_GUS = L_KVX + 6144
L_QCS = L_GUS + 8192
LDS_SIZE = L_QCS + 8192
L_TR = L_KVX
F_WOA, F_WOK, F_GU, F_PR, F_GUP, F_KVX, F_G8, F_QL, F_C7, F_C15, F_PUB, F_YF, F_H, F_SEL, F_NON, F_KEY, F_ST, F_AR = 0, 4, 8, 12, 16, 20, 24, 28, 52, 56, 60, 64, 68, 72, 76, 80, 96, 160
ALL4 = 0x01010101
SPIN_MAX = 1 << 15
LOG2E, LN2, EPSL = 0x3fb8aa3b, 0x3f317218, 0x35c1a2a0

def order_tables():
    out = []
    for q in range(4):
        seq = [q]
        for g in range(4):
            others = [4*g + p for p in range(4) if p != q]
            oi = 0
            for sl in range(4):
                if sl == q and g < 3: seq.append(4*(g+1)+q)
                elif oi < 3: seq.append(others[oi]); oi += 1
        assert sorted(seq) == list(range(16))
        out.append(seq)
    return out
def pack4(seq):
    v = 0
    for i, c in enumerate(seq): v |= c << (4*i)
    return v
def srd(A, d, lo, size):
    A(f"s_mov_b32 s{d}, s{lo}\ns_mov_b32 s{d+1}, s{lo+1}\ns_mov_b32 s{d+2}, {hex(size)}\ns_mov_b32 s{d+3}, 0x20000")
def red_row(A, v, op="v_add_f32"):
    for r in (8, 4, 2, 1):
        A(f"{op}_dpp v{v}, v{v}, v{v} row_ror:{r} row_mask:0xf bank_mask:0xf")
def red_swap(A, v, t, which, op="v_add_f32"):
    A(f"v_mov_b32 v{t}, v{v}\nv_permlane{which}_swap_b32 v{v}, v{t}\n{op} v{v}, v{v}, v{t}")
def unpack(A, dlo, dhi, s):
    A(f"v_lshlrev_b32 v{dlo}, 16, v{s}\nv_and_b32 v{dhi}, 0xffff0000, v{s}")
def rnd_bf16(A, v):
    A(f"v_cvt_pk_bf16_f32 v{v}, v{v}, v{v}\nv_lshlrev_b32 v{v}, 16, v{v}")
MF = "v_mfma_f32_16x16x32_bf16"
CH4 = ((0,0),(0,1),(1,1),(1,0))

class Gen:
    def __init__(self, diag=False, **kw):
        self.A = Asm()
        self.diag = diag
        self.nlab = 0
        self.opt = dict(gate=1, d1=20, d2=12, d3=8, d4=8, sleep=6, sleep3=4, kprio=0, hprio=3, kprio2=3, hprio2=0, hprio3=3, nw=8, pre=4, ost="sc1", wopf=1,
                        ahead=3, pfat=13, early=1, sxd=4, stat_beg=-1, stat_end=0, runs=[(3, 8)], ngroups=4, gstep=2, runpos=13, opf=0, np=4, prep=2, repoll=(2,4,6,8,10,12), yslot=4, weave=1, gupos=1, gue=8, dwat=26, wok=0, wokpos=0, latepub=1, d2g=0, d5=0, d6=28, s1at=10, s1gap=2, k0=0)
        self.opt.update(kw)
        self.slow = []
    def lab(self, p):
        self.nlab += 1
        return f"L_{p}{self.nlab}"
    def stamp(self, slot):
        if not self.diag: return
        if self.sreg is None:
            self.A(f"s_memrealtime s[98:99]\ns_waitcnt lgkmcnt(0)\ns_mov_b32 s{self.spark[slot]}, s98"); return
        self.A(f"s_memrealtime s[100:101]\ns_waitcnt lgkmcnt(0)\nv_writelane_b32 v{self.sreg}, s100, {slot}")
    def dbg_max(self, word, inv=False):
        if not self.opt.get("span"): return
        sk = self.lab("dm")
        self.A(f"""
        s_and_b32 s96, s2, 0x31
        s_add_u32 s96, s96, s27
        s_cmp_eq_u32 s96, 0
        s_cbranch_scc0 {sk}
        s_memrealtime s[100:101]
        v_lshlrev_b32 v2, 20, v1
        s_mov_b32 s96, s74
        s_mov_b32 s97, s75
        s_mov_b32 s98, 256
        s_mov_b32 s99, 0x20000
        s_waitcnt lgkmcnt(0)
        {"s_not_b32 s100, s100" if inv else ""}
        v_mov_b32 v3, s100
        buffer_atomic_umax v3, v2, s[96:99], 0 offen offset:{4*word}
        {sk}:
        """)
    def stamp_out(self):
        if not self.diag: return
        self.A(f"""
        s_lshl_b32 s56, s2, 3
        s_xor_b32 s57, s26, 4
        s_add_u32 s56, s56, s57
        s_lshl_b32 s56, s56, 8
        s_add_u32 s56, s56, {WS_DIAG}
        v_mbcnt_lo_u32_b32 v2, -1, 0
        v_mbcnt_hi_u32_b32 v2, -1, v2
        v_lshlrev_b32 v3, 2, v2
        buffer_store_dword v{self.sreg}, v3, s[16:19], s56 offen
        """)
    def nonce_setup(self):
        self.A("s_lshr_b32 s61, s60, 8\ns_lshr_b32 s62, s60, 16\ns_lshr_b32 s63, s60, 24\ns_mov_b32 s64, 0x0c0c0400\ns_mov_b32 s65, 0x04000c0c")
    def tag(self, base, vmask):
        for k in range(4): self.A(f"v_bfi_b32 v{base+k}, v{vmask}, s{60+k}, v{base+k}")
    def setflag(self, vaddr, vone, off):
        self.A(f"s_mov_b64 exec, 1\nds_write_b8 v{vaddr}, v{vone} offset:{off}\ns_mov_b64 exec, -1")
    def spin(self, vbase, off, tmp, want=ALL4):
        A = self.A
        top, done = self.lab("sl"), self.lab("sld")
        A(f"""
        s_mov_b32 s57, 0
        {top}:
        ds_read_b32 v{tmp}, v{vbase} offset:{off}
        s_waitcnt lgkmcnt(0)
        v_cmp_ne_u32 vcc, {hex(want)}, v{tmp}
        s_add_u32 s57, s57, 1
        s_nop 0
        s_cbranch_vccz {done}
        s_sleep 1
        s_cmp_lt_u32 s57, {SPIN_MAX*8}
        s_cbranch_scc1 {top}
        {done}:
        """)
    def check(self, vbase, off, tmp):
        A = self.A
        sl, bk, sp = self.lab("cs"), self.lab("cb"), self.lab("cp")
        A(f"v_cmp_ne_u32 vcc, {hex(ALL4)}, v{tmp}\ns_nop 1\ns_cbranch_vccnz {sl}\n{bk}:")
        self.slow.append(f"""
        {sl}:
        s_mov_b32 s57, 0
        {sp}:
        ds_read_b32 v{tmp}, v{vbase} offset:{off}
        s_waitcnt lgkmcnt(0)
        v_cmp_ne_u32 vcc, {hex(ALL4)}, v{tmp}
        s_add_u32 s57, s57, 1
        s_nop 0
        s_cbranch_vccz {bk}
        s_cmp_lt_u32 s57, {SPIN_MAX*16}
        s_cbranch_scc1 {sp}
        s_branch {bk}
        """)
    def gather(self, loads, tmp, after=None, post=(), store_after=None, light=False):
        A = self.A
        n = len(loads)
        for pre, txt, c in loads:
            if pre: A(pre)
            A(txt)
        for pre, txt in post:
            if pre: A(pre)
            A(txt)
        if self.diag: A("s_mov_b32 s31, 0")
        for k, (pre, txt, c) in enumerate(loads):
            ok, top, re_ = self.lab("gk"), self.lab("gt"), self.lab("gr")
            chk = f"""
            v_perm_b32 v{tmp}, v{c+1}, v{c}, s64
            v_perm_b32 v{tmp+1}, v{c+3}, v{c+2}, s65
            v_or_b32 v{tmp}, v{tmp}, v{tmp+1}
            v_cmp_ne_u32 vcc, s60, v{tmp}
            """
            A(f"s_waitcnt vmcnt({n-1-k+len(post)+(1 if store_after is not None and k > store_after else 0)})")
            A(chk)
            A(f"s_mov_b32 s57, 0\ns_nop 0\ns_cbranch_vccz {ok}\n{top}:\ns_sleep {self.opt['sleep']}")
            for pre2, txt2, c2 in (loads[k:k+1] if light else loads[k:]):
                if pre2: A(pre2)
                A(txt2)
            A("s_waitcnt vmcnt(0)")
            if self.diag: A("s_add_u32 s31, s31, 1")
            A(chk)
            A(f"s_add_u32 s57, s57, 1\ns_nop 0\ns_cbranch_vccz {re_ if light else ok}\ns_cmp_lt_u32 s57, {SPIN_MAX}\ns_cbranch_scc1 {top}")
            if light:
                A.label(re_)
                for pre2, txt2, c2 in loads[k+1:]:
                    if pre2: A(pre2)
                    A(txt2)
            A.label(ok)
            for r in range(4): A(f"v_and_b32 v{c+r}, 0xffffff00, v{c+r}")
            if after: after(k)
    def phi4(self, a, m, m_b, c, c_b, rl, rl_b, dst, U, E, sc=40):
        A = self.A
        def o(r, b, h): return (vr(r,2), 0) if b else (vr(r+h,2), 1)
        for h in (0, 2):
            (pm, mh), (pc, ch) = o(m, m_b, h), o(c, c_b, h)
            A(f"v_pk_fma_f32 {vr(U+h,2)}, {pm}, {pc}, {vr(a+h,2)} op_sel_hi:[{mh},{ch},1] neg_lo:[1,0,0] neg_hi:[1,0,0]")
        for h in (0, 2):
            p, hi = o(rl, rl_b, h)
            A(f"v_pk_mul_f32 {vr(U+h,2)}, {vr(U+h,2)}, {p} op_sel_hi:[1,{hi}]")
        for k in range(4): A(f"v_exp_f32 v{E+k}, v{U+k} clamp")
        for k in range(4): A(f"v_max_f32 v{U+k}, s{sc+2}, v{U+k}")
        for h in (0, 2): A(f"v_pk_fma_f32 {vr(U+h,2)}, {vr(U+h,2)}, s[{sc}:{sc+1}], {vr(E+h,2)}")
        A(f"v_cvt_pk_bf16_f32 v{dst}, v{U}, v{U+1}\nv_cvt_pk_bf16_f32 v{dst+1}, v{U+2}, v{U+3}")

    def hidden(self, VL, VL16, VF, ONE, G, a, b, tmp, sp, gate=None):
        A, O = self.A, self.opt
        sk = self.lab("nh")
        A(f"""
        s_cmp_ge_u32 s3, {0 if O.get('nomoe') else 224}
        s_cbranch_scc1 {sk}
        s_cmp_lg_u32 s27, 0
        s_cbranch_scc1 {sk}
        v_lshrrev_b32 v{a}, 2, v{VL}
        v_lshlrev_b32 v{a}, 11, v{a}
        v_and_b32 v{b}, 3, v{VL}
        v_lshl_add_u32 v{a}, v{b}, 4, v{a}
        """)
        if gate: gate()
        A(f"""
        s_lshr_b32 s58, s3, 4
        s_lshl_b32 s58, s58, 15
        s_lshl_b32 s59, s{sp}, 6
        s_add_u32 s58, s58, s59
        s_add_u32 s58, s58, {WS_GUP}
        """)
        self.gather([(None, f"buffer_load_dwordx4 {vr(G+4*k,4)}, v{a}, s[16:19], s58 offen offset:{1024*k} sc1", G+4*k) for k in range(2)], tmp)
        for r in (8, 4):
            for k in range(8): A(f"v_add_f32_dpp v{G+k}, v{G+k}, v{G+k} row_ror:{r} row_mask:0xf bank_mask:0xf")
        for wh in (16, 32):
            for k in range(8): A(f"v_mov_b32 v{G+8+k}, v{G+k}")
            for k in range(8): A(f"v_permlane{wh}_swap_b32 v{G+k}, v{G+8+k}")
            for h in range(0, 8, 2): A(f"v_pk_add_f32 {vr(G+h,2)}, {vr(G+h,2)}, {vr(G+8+h,2)}")
        for k in range(8): A(f"v_cvt_pk_bf16_f32 v{G+k}, v{G+k}, v{G+k}")
        for k in range(8): A(f"v_lshlrev_b32 v{G+k}, 16, v{G+k}")
        for k in range(4): A(f"v_mul_f32 v{G+8+k}, {hex(LOG2E | 0x80000000)}, v{G+k}")
        for k in range(4): A(f"v_exp_f32 v{G+8+k}, v{G+8+k}")
        for k in range(4): A(f"v_add_f32 v{G+8+k}, 1.0, v{G+8+k}")
        for k in range(4): A(f"v_rcp_f32 v{G+8+k}, v{G+8+k}")
        for k in range(4): A(f"v_mul_f32 v{G+k}, v{G+k}, v{G+8+k}")
        for k in range(4): A(f"v_cvt_pk_bf16_f32 v{G+k}, v{G+k}, v{G+k}")
        for k in range(4): A(f"v_lshlrev_b32 v{G+k}, 16, v{G+k}")
        for k in range(4): A(f"v_mul_f32 v{G+k}, v{G+k}, v{G+4+k}")
        for k in range(4): A(f"v_cvt_pk_bf16_f32 v{G+k}, v{G+k}, v{G+k}")
        A(f"""
        v_add_u32 v{a}, {L_HT}, v{VL16}
        s_mov_b64 exec, 15
        ds_write_b128 v{a}, {vr(G,4)}
        s_mov_b64 exec, 1
        s_waitcnt lgkmcnt(0)
        ds_write_b32 v{VF}, v{ONE} offset:{F_H}
        s_mov_b64 exec, -1
        {sk}:
        """)
    def weave(self, fns):
        real = self.A
        streams = []
        for f in fns:
            self.A = r = Rec(); f()
            streams.append([it[1] for a in r.atoms for it in a])
        self.A = real
        while any(streams):
            for st in streams:
                if st: real(st.pop(0))
    def order_setup(self):
        A = self.A
        tabs = [pack4(o) for o in order_tables()]
        A(f"s_sub_u32 s74, s24, s25\ns_and_b32 s74, s74, 3\ns_mov_b32 s76, {tabs[0] & 0xffffffff}\ns_mov_b32 s77, {tabs[0] >> 32}")
        for q in range(1, 4):
            A(f"s_cmp_eq_u32 s74, {q}\ns_cselect_b32 s76, {tabs[q] & 0xffffffff}, s76\ns_cselect_b32 s77, {tabs[q] >> 32}, s77")
        A(f"""
        s_lshl_b32 s75, s30, 1
        {"s_add_u32 s75, s75, s31" if self.opt.get("rot", 1) else ""}
        {"s_add_u32 s75, s75, %d" % self.opt["radd"] if self.opt.get("radd") else ""}
        s_lshl_b32 s75, s75, 2
        s_lshl_b32 s58, s23, 7
        s_xor_b32 s58, s58, 128
        s_mul_i32 s79, s27, {8*6144}
        s_add_u32 s79, s79, s58
        s_lshl_b32 s80, s27, 10
        """)
    def qpair(self, p, vq):
        base = (L_KV + p*16384) if p < 4 else (L_A + (p-4)*16384)
        out = []
        for par in range(2):
            pre = f"s_and_b32 s84, s72, 15\ns_lshr_b64 s[72:73], s[72:73], 4\ns_add_u32 s84, s84, s75\ns_and_b32 s84, s84, 15\ns_mul_i32 s84, s84, {64*6144}\ns_add_u32 s84, s84, s79"
            for pc in range(2):
                out.append(((pre if pc == 0 else f"s_add_u32 s84, s84, {32*6144}") + f"\ns_add_u32 m0, s86, {base + par*2048 + pc*1024}",
                            f"buffer_load_dwordx4 v{vq}, s[12:15], s84 offen {'nt ' if self.opt.get('ntq') else ''}lds", ("q", p)))
        return out
    def moe_masks(self, VL, MSK, a, b, c):
        A = self.A
        A(f"""
        v_and_b32 v{a}, 1, v{VL}
        v_mov_b32 v{b}, 0xffff
        v_mov_b32 v{c}, 0xffff0000
        v_cmp_eq_u32 vcc, 1, v{a}
        v_cndmask_b32 v{b}, v{b}, v{c}, vcc
        v_lshrrev_b32 v{a}, 1, v{VL}
        v_xor_b32 v{a}, v{a}, v{VL}
        v_and_b32 v{a}, 8, v{a}
        v_cmp_eq_u32 vcc, 0, v{a}
        v_cndmask_b32 v{b}, 0, v{b}, vcc
        v_bfe_u32 v{a}, v{VL}, 1, 2
        """)
        for r in range(4): A(f"v_cmp_eq_u32 vcc, {r}, v{a}\nv_cndmask_b32 v{MSK+r}, 0, v{b}, vcc")
    def col_off(self, VL, d, a):
        self.A(f"""
        v_and_b32 v{a}, 15, v{VL}
        v_lshlrev_b32 v{d}, 5, v{a}
        v_bfe_u32 v{a}, v{VL}, 4, 1
        v_lshl_add_u32 v{d}, v{a}, 4, v{d}
        v_lshrrev_b32 v{a}, 5, v{VL}
        v_lshl_add_u32 v{d}, v{a}, 9, v{d}
        """)

    def prologue(self):
        A = self.A
        A(f"""
        s_cmp_ge_u32 s2, 256
        s_cbranch_scc1 L_end
        s_load_dwordx4 s[4:7], s[0:1], 0
        s_load_dwordx2 s[56:57], s[0:1], 16
        s_load_dwordx8 s[60:67], s[0:1], 32
        s_load_dwordx4 s[68:71], s[0:1], 64
        s_load_dwordx2 s[72:73], s[0:1], 80
        v_lshrrev_b32 v2, 6, v0
        v_and_b32 v1, 63, v0
        s_and_b32 s20, s2, 7
        v_readfirstlane_b32 s26, v2
        s_lshr_b32 s21, s2, 3
        s_and_b32 s24, s21, 7
        s_lshr_b32 s25, s21, 3
        s_and_b32 s30, s20, 1
        s_lshl_b32 s22, s30, 3
        s_add_u32 s22, s22, s24
        s_lshr_b32 s31, s20, 1
        s_lshl_b32 s23, s31, 2
        s_add_u32 s23, s23, s25
        s_and_b32 s27, s26, 3
        s_lshl_b32 s28, s30, 3
        s_and_b32 s58, s31, 1
        s_lshl_b32 s58, s58, 2
        s_add_u32 s28, s28, s58
        s_and_b32 s58, s21, 3
        s_add_u32 s28, s28, s58
        s_lshr_b32 s29, s20, 2
        s_lshl_b32 s29, s29, 3
        s_lshr_b32 s58, s21, 2
        s_add_u32 s29, s29, s58
        s_cmp_gt_u32 s23, 3
        s_subb_u32 s33, s23, 0
        s_cmp_gt_u32 s23, 11
        s_subb_u32 s33, s33, 0
        s_lshl_b32 s33, s33, 4
        s_add_u32 s33, s33, s22
        s_and_b32 s58, s23, 7
        s_cmp_eq_u32 s58, 3
        s_cselect_b32 s3, 255, s33
        s_waitcnt lgkmcnt(0)
        """)
        srd(A, 8, 4, 0x400000)
        srd(A, 12, 6, 0x600000)
        srd(A, 16, 72, WS_SIZE)
        if self.opt["stat_beg"] < 0:
            A("s_cmp_ge_u32 s26, 4\ns_cbranch_scc1 L_helper")
            if not self.opt.get("nostat"): self.stat_loads()
            A("s_branch L_kwave\nL_helper:")
        else:
            A("s_cmp_lt_u32 s26, 4\ns_cbranch_scc1 L_kwave")

    def helper(self):
        A0 = self.A
        A = V = self.A = Switch(A0)
        O = self.opt
        self.sreg, self.spark = None, {1: 96, 2: 94, 16: 97, 17: 20, 18: 21}
        VF, VQ, VAS, VQo, VT = 0, 2, 4, 6, 7
        BR, ACC, ST = 8, 32, 64
        VAo, VKVo, VL16, VOOB, VM = 62, 63, 61, 60, 59
        srd(A, 48, 70, 256)
        A(f"""
        s_or_b32 s58, s2, s27
        s_cmp_eq_u32 s58, 0
        s_cbranch_scc0 L_notag
        s_memrealtime s[58:59]
        v_lshlrev_b32 v2, 20, v1
        s_waitcnt lgkmcnt(0)
        s_lshl_b32 s58, s58, 1
        s_or_b32 s58, s58, 1
        v_mov_b32 v3, s58
        buffer_store_dword v3, v2, s[48:51], 0 offen sc1
        L_notag:
        v_lshrrev_b32 v10, 3, v1
        v_lshrrev_b32 v11, 4, v1
        s_and_b32 s58, s27, 1
        s_lshl_b32 s59, s58, 2
        v_add_u32 v12, s59, v11
        v_and_b32 v13, 7, v1
        v_xor_b32 v12, v12, v13
        v_lshlrev_b32 v10, 11, v10
        v_lshl_add_u32 v{VAo}, v12, 4, v10
        v_and_b32 v14, 3, v1
        v_lshlrev_b32 v14, 4, v14
        v_bfe_u32 v15, v1, 4, 1
        v_lshl_add_u32 v14, v15, 6, v14
        v_bfe_u32 v15, v1, 2, 2
        v_lshrrev_b32 v16, 5, v1
        v_mul_u32_u24 v17, 6144, v15
        v_add_u32 v17, v17, v14
        v_lshl_add_u32 v{VKVo}, v16, 11, v17
        v_mul_u32_u24 v16, {4*6144}, v16
        v_add_u32 v{VQo}, v16, v17
        s_lshr_b32 s59, s27, 1
        s_lshl_b32 s59, s59, 5
        v_xor_b32 v{VKVo}, s59, v{VKVo}
        s_lshl_b32 s59, s58, 5
        v_xor_b32 v{VQo}, s59, v{VQo}
        """)
        self.order_setup()
        A(f"""
        s_mov_b64 s[72:73], s[76:77]
        s_lshl_b32 s58, s23, 7
        s_mul_i32 s78, s27, {4*6144}
        s_add_u32 s78, s78, s58
        s_add_u32 s78, s78, 2048
        s_lshl_b32 s86, s27, 12
        s_lshl_b32 s81, s22, 7
        s_lshl_b32 s58, s27, 3
        s_add_u32 s81, s81, s58
        s_lshl_b32 s81, s81, 11
        """)
        def stage(s, atoms=(), k0=0):
            slot = s % 4
            atoms = list(atoms)
            per = -(-len(atoms) // (8 - k0))
            cnt = [0]
            nta = "nt " if s < O.get("nta", 0) else ""
            ntb = "nt " if s < O.get("ntb", 0) else ""
            def fill():
                cnt[0] += 1
                if cnt[0] <= k0: return
                for _ in range(per):
                    if atoms: replay(atoms.pop(0), A0, V.V)
            A(f"""
            s_and_b32 s82, s76, 15
            s_lshr_b64 s[76:77], s[76:77], 4
            s_add_u32 s82, s82, s75
            s_and_b32 s82, s82, 15
            s_mul_i32 s83, s82, {64*6144}
            s_lshl_b32 s82, s82, 7
            s_add_u32 s82, s82, s81
            s_add_u32 s83, s83, s78
            """)
            for p in range(4):
                A(f"s_add_u32 m0, s80, {L_A + slot*16384 + p*4096}")
                V.issue(f"buffer_load_dwordx4 v{VAo}, s[8:11], s82 offen {nta}lds", ("st", s)); fill()
                A(f"s_add_u32 s82, s82, {32*2048}\ns_add_u32 m0, s80, {L_KV + slot*16384 + p*4096}")
                V.issue(f"buffer_load_dwordx4 v{VKVo}, s[12:15], s83 offen {ntb}lds", ("st", s)); fill()
                A(f"s_add_u32 s83, s83, {16*6144}")
        qpair = lambda p: self.qpair(p, VQo)
        stage(0)
        A(f"s_setprio {O['hprio']}")
        srd(A, 32, 56, 0x200000)
        srd(A, 44, 66, 0x700000)
        CF, CA, ONES, VC, T = 200, 224, 236, 240, 244
        A(f"""
        v_and_b32 v12, 15, v1
        v_lshrrev_b32 v13, 4, v1
        v_lshlrev_b32 v14, 7, v12
        v_add_u32 v14, s86, v14
        v_bfe_u32 v15, v12, 1, 3
        v_xor_b32 v10, v13, v15
        v_lshl_add_u32 v{VAS}, v10, 4, v14
        v_add_u32 v10, 4, v13
        v_xor_b32 v10, v10, v15
        v_lshl_add_u32 v{VAS+1}, v10, 4, v14
        v_bfe_u32 v10, v1, 2, 2
        v_lshlrev_b32 v10, 6, v10
        v_and_b32 v11, 3, v1
        v_lshl_add_u32 v10, v11, 3, v10
        v_and_b32 v11, 1, v13
        v_lshl_add_u32 v10, v11, 5, v10
        v_lshl_add_u32 v{VQ}, v13, 12, v10
        v_add_u32 v{VQ}, {L_KV}, v{VQ}
        v_xor_b32 v{VQ+1}, 32, v{VQ}
        s_lshl_b32 s58, s27, 8
        s_add_u32 s58, s58, {L_KV}
        v_lshl_add_u32 v{VC}, v13, 11, v10
        v_add_u32 v{VC}, s58, v{VC}
        v_xor_b32 v{VC+1}, 32, v{VC}
        s_lshr_b32 s58, s27, 1
        s_lshl_b32 s58, s58, 8
        s_add_u32 s58, s58, {L_QCS}
        s_and_b32 s59, s27, 1
        s_lshl_b32 s59, s59, 5
        v_lshl_add_u32 v{VC+2}, v13, 10, v10
        v_xor_b32 v{VC+2}, s59, v{VC+2}
        v_add_u32 v{VC+2}, s58, v{VC+2}
        v_mov_b32 v{ONES}, 0x3f803f80
        v_mov_b32 v{ONES+1}, 0x3f803f80
        v_mov_b32 v{ONES+2}, 0x3f803f80
        v_mov_b32 v{ONES+3}, 0x3f803f80
        v_mov_b32 v{VOOB}, {OOB}
        v_mov_b32 v{VM}, 0xff
        v_mov_b32 v{VF}, {L_FL}
        s_lshr_b32 s88, s3, 4
        s_and_b32 s89, s3, 15
        v_lshlrev_b32 v{VL16}, 4, v1
        s_add_u32 s85, s74, 1
        s_cmp_lt_u32 s24, 4
        s_cselect_b32 s85, 0, s85
        """)
        AH = O['ahead']
        for s in range(1, AH): stage(s)
        def early():
            A(f"""
                s_add_u32 s58, s74, 4
            s_cmp_lt_u32 s24, 4
                s_cselect_b32 s58, s74, s58
            s_add_u32 s58, s58, s75
            s_and_b32 s58, s58, 15
            s_mul_i32 s84, s58, {64*6144}
            s_add_u32 s84, s84, s79
            s_add_u32 m0, s80, {L_QCS}
            """)
            V.issue(f"buffer_load_dwordx4 v{VQo}, s[12:15], s84 offen lds", "qcs")
            A(f"s_add_u32 s84, s84, {32*6144}\ns_add_u32 m0, s80, {L_QCS + 4096}")
            V.issue(f"buffer_load_dwordx4 v{VQo}, s[12:15], s84 offen lds", "qcs")
        def wopf():
            if O["wopf"]:
                A(f"s_lshl_b32 s58, s2, 13\ns_lshl_b32 s59, s27, 11\ns_add_u32 s58, s58, s59")
                V.issue(f"buffer_load_dwordx4 v[40:43], v{VL16}, s[32:35], s58 offen", "pf")
                V.issue(f"buffer_load_dwordx4 v[44:47], v{VL16}, s[32:35], s58 offen offset:1024", "pf")
        V.need({("st", 0)})
        A("s_barrier")
        self.stamp(1)
        def aread(s, dst):
            return [f"ds_read_b128 {vr(dst+(rf*2+ks)*4,4)}, v{VAS+ks} offset:{(s%4)*16384+rf*2048}" for rf in range(2) for ks in range(2)]
        def stash(s):
            for t in aread(s, ST+16*s): A(t)
        def csum(s):
            skip = self.lab("cs")
            A(f"s_cmp_eq_u32 s85, {s}\ns_cbranch_scc0 {skip}")
            for f in range(2):
                for ks in range(2):
                    for rd in range(2):
                        A(f"ds_read_b64_tr_b16 {vr(CF+f*8+ks*4+2*rd,2)}, v{VC+f} offset:{(s%4)*16384 + (8*ks+rd)*1024}")
            A.label(skip)
        def csum_q():
            for ks in range(2):
                for rd in range(2):
                    A(f"ds_read_b64_tr_b16 {vr(CF+16+ks*4+2*rd,2)}, v{VC+2} offset:{(8*ks+rd)*512}")
        def csum_mma():
            for f in range(3):
                A(f"{MF} {vr(CA+4*f,4)}, {vr(ONES,4)}, {vr(CF+f*8,4)}, 0")
                A(f"{MF} {vr(CA+4*f,4)}, {vr(ONES,4)}, {vr(CF+f*8+4,4)}, {vr(CA+4*f,4)}")
        def nonce():
            A("v_readfirstlane_b32 s60, v11")
            self.nonce_setup()
        def get_stats():
            A(f"""
            ds_read_b128 v[12:15], v{VF} offset:{F_KEY}
            v_and_b32 v10, 7, v1
            v_lshlrev_b32 v10, 3, v10
            v_add_u32 v9, {L_FL + F_ST}, v10
            ds_read_b64 v[16:17], v9
            ds_read_b32 v11, v{VF} offset:{F_NON}
            """)
        def pub_stats():
            A(f"""
            s_lshl_b32 s58, s27, 6
            v_add_u32 v9, s58, v1
            v_cmp_gt_u32 vcc, 8, v9
            v_cndmask_b32 v10, v{VOOB}, v10, vcc
            v_cmp_eq_u32 vcc, 0, v9
            v_cndmask_b32 v9, v{VOOB}, v9, vcc
            s_and_b32 s59, s60, 0xffff
            v_or_b32 v16, s59, v16
            v_or_b32 v17, s62, v17
            s_lshl_b32 s58, s22, 4
            s_add_u32 s58, s58, s23
            s_lshl_b32 s58, s58, 6
            s_add_u32 s58, s58, {WS_STAT}
            """)
            V.issue(f"buffer_store_dwordx2 v[16:17], v10, s[16:19], s58 offen sc1")
            A(f"v_max_u32 v12, v12, v13\nv_max3_u32 v12, v12, v14, v15\nv_mov_b32 v13, s60\ns_lshl_b32 s58, s2, 3\ns_add_u32 s58, s58, {WS_KEY}")
            V.issue(f"buffer_store_dwordx2 v[12:13], v9, s[16:19], s58 offen sc1")
        def pub_cs():
            A(f"""
            v_lshrrev_b32 v8, 4, v1
            v_cmp_eq_u32 vcc, 1, v8
            v_cndmask_b32 v{CA}, v{CA}, v{CA+4}, vcc
            v_cmp_eq_u32 vcc, 2, v8
            v_cndmask_b32 v{CA}, v{CA}, v{CA+8}, vcc
            s_lshl_b32 s58, s27, 7
            v_lshl_add_u32 v9, v1, 2, s58
            s_lshl_b32 s58, s27, 6
            s_add_u32 s58, s58, {512 - 128}
            v_lshl_add_u32 v10, v1, 2, s58
            v_cndmask_b32 v9, v9, v10, vcc
            v_cmp_eq_u32 vcc, 3, v8
            v_cndmask_b32 v9, v9, v{VOOB}, vcc
            v_and_b32 v10, 3, v1
            v_lshlrev_b32 v10, 3, v10
            v_lshrrev_b32 v10, v10, s60
            v_bfi_b32 v{CA}, v{VM}, v10, v{CA}
            s_lshl_b32 s58, s23, 4
            s_add_u32 s58, s58, s22
            s_lshl_b32 s58, s58, 10
            s_add_u32 s58, s58, {WS_CSP}
            """)
            V.issue(f"buffer_store_dword v{CA}, v9, s[16:19], s58 offen sc1")
        S1R, KEYS, T = 8, 16, 24
        def s1_addr():
            A(f"""
            v_and_b32 v32, 15, v1
            v_lshlrev_b32 v32, 4, v32
            v_lshrrev_b32 v33, 4, v1
            v_lshl_add_u32 v32, v33, 10, v32
            s_lshl_b32 s90, s23, 14
            s_lshl_b32 s59, s27, 8
            s_add_u32 s90, s90, s59
            s_add_u32 s90, s90, {WS_CSP}
            s_lshl_b32 s59, s22, 10
            s_add_u32 s59, s59, {WS_STAT}
            s_sub_u32 s95, s28, s22
            s_lshl_b32 s95, s95, 10
            s_lshl_b32 s87, s28, 10
            s_sub_u32 s87, {WS_KEY - WS_STAT}, s87
            s_cmp_eq_u32 s27, 3
            s_cselect_b32 s90, s59, s90
            s_movk_i32 s59, 4096
            s_cselect_b32 s95, s95, s59
            s_cselect_b32 s87, s87, s59
            s_cselect_b32 s74, 1024, s59
            s_cselect_b64 vcc, -1, 0
            v_cndmask_b32 v32, v32, v{VL16}, vcc
            """)
        def s1_round(issue):
            A("s_mov_b32 s58, s90")
            for t in range(4):
                issue(f"buffer_load_dwordx4 {vr(S1R+4*t,4)}, v32, s[16:19], s58 offen sc1", "s1")
                if t < 3: A(f"s_add_u32 s58, s58, s{(95, 87, 74)[t]}")
        def s1_check(w3):
            def chk():
                if not w3:
                    for t in range(4):
                        c = S1R + 4*t
                        A(f"v_perm_b32 v{T+t}, v{c+1}, v{c}, s64\nv_perm_b32 v35, v{c+3}, v{c+2}, s65\nv_or_b32 v{T+t}, v{T+t}, v35")
                    A(f"v_max3_u32 v33, v{T}, v{T+1}, v{T+2}\nv_min3_u32 v34, v{T}, v{T+1}, v{T+2}\nv_max_u32 v33, v33, v{T+3}\nv_min_u32 v34, v34, v{T+3}")
                else:
                    A("s_mov_b32 s58, 0x05040100")
                    for t in range(4): A(f"v_perm_b32 v{T+t}, v{S1R+2*t+1}, v{S1R+2*t}, s58")
                    A(f"""
                    v_max3_u32 v33, v{KEYS+1}, v{KEYS+3}, v{KEYS+5}
                    v_min3_u32 v34, v{KEYS+1}, v{KEYS+3}, v{KEYS+5}
                    v_max3_u32 v33, v33, v{KEYS+7}, v{T}
                    v_min3_u32 v34, v34, v{KEYS+7}, v{T}
                    v_max3_u32 v33, v33, v{T+1}, v{T+2}
                    v_min3_u32 v34, v34, v{T+1}, v{T+2}
                    v_max_u32 v33, v33, v{T+3}
                    v_min_u32 v34, v34, v{T+3}
                    """)
                A("v_cmp_ne_u32 vcc, s60, v33\nv_cmp_ne_u32 s[66:67], s60, v34\ns_or_b64 vcc, vcc, s[66:67]")
            V.need({"s1"})
            chk()
            sl, back = f"L_s1slow{int(w3)}", f"L_s1back{int(w3)}"
            A(f"s_cbranch_scc1 {sl}\n{back}:")
            keep = A.rec
            A.rec = r = Rec()
            top = self.lab("s1t")
            A(f"{sl}:\ns_mov_b32 s57, 0\n{top}:\ns_sleep 8")
            s1_round(lambda t, tag: A(t))
            A("s_waitcnt vmcnt(0)")
            chk()
            A(f"s_cbranch_scc0 {back}\ns_add_u32 s57, s57, 1\ns_cmp_lt_u32 s57, {SPIN_MAX}\ns_cbranch_scc1 {top}\ns_branch {back}")
            self.slow.append("\n".join(it[1] for a in r.atoms for it in a))
            A.rec = keep
        def s1_tables(w3):
            if not w3:
                for k in range(16): A(f"v_and_b32 v{S1R+k}, 0xffffff00, v{S1R+k}")
                for h in (0, 2):
                    A(f"v_pk_add_f32 {vr(S1R+h,2)}, {vr(S1R+h,2)}, {vr(S1R+4+h,2)}\nv_pk_add_f32 {vr(S1R+8+h,2)}, {vr(S1R+8+h,2)}, {vr(S1R+12+h,2)}")
                for h in (0, 2): A(f"v_pk_add_f32 {vr(S1R+h,2)}, {vr(S1R+h,2)}, {vr(S1R+8+h,2)}")
                for wh in (16, 32):
                    for k in range(4): A(f"v_mov_b32 v{S1R+4+k}, v{S1R+k}")
                    for k in range(4): A(f"v_permlane{wh}_swap_b32 v{S1R+k}, v{S1R+4+k}")
                    for h in (0, 2): A(f"v_pk_add_f32 {vr(S1R+h,2)}, {vr(S1R+h,2)}, {vr(S1R+4+h,2)}")
                A(f"s_lshl_b32 s58, s27, 8\ns_add_u32 s58, s58, {L_CS}\nv_and_b32 v33, 15, v1\nv_lshl_add_u32 v33, v33, 4, s58\nds_write_b128 v33, {vr(S1R,4)}")
            else:
                for k in range(8): A(f"v_and_b32 v{S1R+k}, 0xffff0000, v{S1R+k}")
                for k in (1, 3, 5, 7): A(f"v_rcp_f32 v{S1R+k}, v{S1R+k}")
                A(f"""
                v_add_u32 v33, {L_ST2}, v{VL16}
                v_mov_b32 v{T}, v{S1R}
                v_mov_b32 v{T+1}, v{S1R+2}
                ds_write_b128 v33, {vr(S1R+4,4)}
                v_mov_b32 v{T+2}, v{S1R+1}
                v_mov_b32 v{T+3}, v{S1R+3}
                v_mul_f32 v{T+4}, {hex(LOG2E)}, v{S1R+1}
                v_mul_f32 v{T+5}, {hex(LOG2E)}, v{S1R+3}
                v_lshlrev_b32 v33, 3, v1
                v_add_u32 v33, {L_M}, v33
                ds_write_b64 v33, {vr(T,2)}
                ds_write_b64 v33, {vr(T+2,2)} offset:{L_RI-L_M}
                ds_write_b64 v33, {vr(T+4,2)} offset:{L_RL-L_M}
                v_max_u32 v{KEYS}, v{KEYS}, v{KEYS+2}
                v_max3_u32 v{KEYS}, v{KEYS}, v{KEYS+4}, v{KEYS+6}
                """)
                red_row(A, KEYS, "v_max_u32"); red_swap(A, KEYS, KEYS+1, 16, "v_max_u32"); red_swap(A, KEYS, KEYS+1, 32, "v_max_u32")
                A(f"s_mov_b64 exec, 1\nds_write_b32 v{VF}, v{KEYS} offset:{F_SEL}\ns_mov_b64 exec, -1")
        P = O["s1at"]
        extra = {s: [] for s in range(16)}
        for s in range(12): extra[s].append(lambda s=s: stash(s))
        for s in range(5): extra[s].append(lambda s=s: csum(s))
        extra[0] += [get_stats]
        extra[1] += [nonce]
        extra[2] += [pub_stats]
        extra[O['early']+3] += [csum_q]
        extra[5] += [csum_mma]
        extra[6] += [pub_cs]
        extra[7] += [s1_addr]
        for s in range(16):
            if O.get("noextra"): extra[s] = extra[s][:1] if s < 12 else []
        def iteration(s, atoms, k0=0):
            if s + AH < 16:
                stage(s + AH, atoms, k0); atoms = []
            if s == O["early"] and not O.get("noqcs"): early()
            if s == P and not O.get("nos1"): s1_round(V.issue)
            if s == O['pfat']: wopf()
            if s >= 13:
                atoms = list(atoms)
                per = -(-len(atoms) // 4)
                for pre, d, tg in qpair(s - 13):
                    A(pre); V.issue(d, tg)
                    for _ in range(per):
                        if atoms: replay(atoms.pop(0), A0, V.V)
            tags = {("st", s+1)}
            if s == O["early"] + 2: tags.add("qcs")
            if s == 15: tags.add(("q", 1))
            V.need(tags)
            A("s_waitcnt lgkmcnt(0)\ns_barrier")
        C = P + O["s1gap"]
        for s in range(C): iteration(s, A.record(extra[s]))
        A("s_cmp_eq_u32 s27, 3\ns_cbranch_scc1 L_path3")
        q0 = list(V.V.q)
        for w3 in (False, True):
            if w3: A.label("L_path3")
            V.V.q = list(q0)
            tab = A.record([lambda: s1_check(w3), lambda: s1_tables(w3)]) if not O.get("nos1") else []
            per = -(-len(tab) // (16 - C))
            for s in range(C, 16):
                iteration(s, A.record(extra[s]) + tab[:per], O["k0"] if (s == C and s+AH < 16) else 0); tab = tab[per:]
            assert not tab
            if not w3: A("s_branch L_pathj")
        A.label("L_pathj")
        V = V.V
        for pre, d, tg in qpair(3):
            A(pre); V.issue(d, tg)
        self.stamp(2)
        if O.get("stop"): A("s_endpgm")
        A(f"s_setprio {O['hprio2']}")
        A(f"v_add_u32 v1, s27, v{VF}")
        L = LgkmTracker(A)
        def wreads(g):
            u, cf = g >> 2, g & 3
            return [(f"ds_read_b64_tr_b16 {vr(BR+(g%3)*8+ks*4+2*rd,2)}, v{VQ+(cf&1)} offset:{((u>>1)&3)*16384 + (u&1)*2048 + ks*1024 + rd*512 + (cf>>1)*256}", ("W", g))
                    for ks in range(2) for rd in range(2)]
        def flag(off):
            A(f"v_mov_b32 v{VT}, 1\ns_mov_b64 exec, 1")
            L.issue(f"ds_write_b8 v1, v{VT} offset:{off}", ("F", off))
            A("s_mov_b64 exec, -1")
        GW, VD, VWO, DW = 128, 5, 6, 128
        def late_addr():
            A(f"""
            v_mbcnt_lo_u32_b32 v{VT}, -1, 0
            v_mbcnt_hi_u32_b32 v{VT}, -1, v{VT}
            v_lshrrev_b32 v{VWO}, 5, v{VT}
            v_and_b32 v{VD}, 31, v{VT}
            v_lshlrev_b32 v{VD}, 4, v{VD}
            v_lshl_add_u32 v{VD}, v{VWO}, 11, v{VD}
            v_bfe_u32 v4, v{VT}, 2, 2
            v_lshl_add_u32 v4, v{VWO}, 2, v4
            v_lshlrev_b32 v4, 11, v4
            v_lshlrev_b32 v{VWO}, 1, v{VWO}
            v_xor_b32 v{VWO}, v{VWO}, v{VT}
            v_and_b32 v{VWO}, 3, v{VWO}
            v_lshl_add_u32 v4, v{VWO}, 4, v4
            v_bfe_u32 v{VWO}, v{VT}, 4, 1
            v_lshl_add_u32 v{VWO}, v{VWO}, 6, v4
            s_lshl_b32 s93, s27, 14
            s_lshl_b32 s58, s29, 7
            s_add_u32 s93, s93, s58
            s_and_b32 s92, s29, 7
            s_lshl_b32 s58, s28, 1
            s_add_u32 s92, s92, s58
            s_lshl_b32 s92, s92, 2
            s_lshl_b32 s69, s3, 15
            s_lshl_b32 s59, s27, 9
            s_add_u32 s69, s69, s59
            s_cmp_lt_u32 s3, 224
            s_cselect_b32 s69, s69, 0
            s_cselect_b64 vcc, -1, 0
            v_cndmask_b32 v{VD}, 0, v{VD}, vcc
            """)
        dwl = [] if O.get("nomoe") else [("s_add_u32 s69, s69, 4096" if k else None, f"buffer_load_dwordx4 {vr(DW+4*k,4)}, v{VD}, s[44:47], s69 offen nt", "dw") for k in range(8)]
        wol = [(f"s_add_u32 s82, s92, {t}\ns_and_b32 s82, s82, 31\ns_lshl_b32 s82, s82, 16\ns_add_u32 s82, s82, s93\ns_add_u32 m0, s80, {(t+16)*4096}",
                f"buffer_load_dwordx4 v{VWO}, s[32:35], s82 offen lds", "wok") for t in range(16)] if O["wok"] else []
        assert not O["wok"] or (33 <= O["wok"] <= 48 and O["wok"] % 8 not in (5, 6))
        def emit(it):
            if it[0]: A(it[0])
            V.issue(it[1], it[2])
        if O["gate"]: self.spin(VF, F_PUB, VT)
        for g in range(2):
            for x in wreads(g): L.issue(*x)
        sig = {3: 2, 9: 3, 24: 4, 30: 5, 38: 6, 46: 7}
        pend = []
        for g in range(64):
            u, cf = g >> 2, g & 3
            a = ST + 16*(u if u < 12 else u-12)
            gn = g + 2
            if gn < 64 and gn % 8 == 0:
                if gn >= 16:
                    L.need({("C", gn//8)}); self.check(VF, F_QL + 4*(gn//8 - 2), VT)
                if gn == 32: A(f"v_subrev_u32 v{VQ}, {L_KV}, v{VQ}\nv_subrev_u32 v{VQ+1}, {L_KV}, v{VQ+1}")
            if g == O["wok"]:
                L.need({("C7",)}); self.check(VF, F_C7, VT)
            w = wreads(gn) if gn < 64 else []
            need = {("W", g)}
            if u >= 12 and cf == 0: need.add(("A", u))
            L.need(need)
            for j, (rf, ks) in enumerate(CH4):
                acc = ACC + (rf*4+cf)*4
                c = "0" if (u == 0 and j % 2 == 0) else vr(acc,4)
                A(f"{MF} {vr(acc,4)}, {vr(BR+(g%3)*8+ks*4,4)}, {vr(a+(rf*2+ks)*4,4)}, {c}")
                if w: L.issue(*w.pop(0))
                if j == 2 and pend: emit(pend.pop(0))
                if j == 2 and dwl and g >= O["dwat"]: emit(dwl.pop(0))
                if j == 1 and wol and g >= O["wok"]: emit(wol.pop(0))
            if 1 <= u <= 4 and cf == 0:
                for t in aread(11+u, ST+16*(u-1)): L.issue(t, ("A", 11+u))
            if 1 <= u <= 4 and cf == 2:
                L.need({("A", 11+u)}); pend += qpair(3+u)
            if g in sig:
                V.need({("q", sig[g])}); flag(F_QL + 4*(sig[g]-2))
            if g in (15, 31, 47) and O.get("p2st"): self.stamp(16 + g//16)
            if g == 23: late_addr()
            if g == 31: flag(F_C7)
            if g == O["wok"] - 1: L.issue(f"ds_read_b32 v{VT}, v{VF} offset:{F_C7}", ("C7",))
            if (g + 4) % 8 == 0 and 16 <= g + 4 < 64:
                L.issue(f"ds_read_b32 v{VT}, v{VF} offset:{F_QL + 4*((g+4)//8 - 2)}", ("C", (g+4)//8))
        ONE, VL, VM, VOOB, VL16, TMP = 112, 113, 114, 115, 116, 117
        self.sreg = 127
        if self.diag:
            A("s_nop 7")
            for sl in (1, 2, 16, 17, 18): A(f"v_writelane_b32 v127, s{self.spark[sl]}, {sl}")
        self.stamp(3)
        A(f"s_setprio {O['hprio3']}")
        QM, QL, QC, U, E, PQ, KX, ZX, NT0, OF = 8, 12, 16, 64, 68, 240, 208, 224, 192, 72
        A(f"""
        v_mov_b32 v{ONE}, 1
        s_mov_b64 exec, 1
        ds_write_b8 v1, v{ONE} offset:{F_C15}
        s_mov_b64 exec, -1
        v_mbcnt_lo_u32_b32 v{VL}, -1, 0
        v_mbcnt_hi_u32_b32 v{VL}, -1, v{VL}
        v_and_b32 v118, 15, v{VL}
        s_lshl_b32 s58, s27, 7
        s_add_u32 s58, s58, {L_M}
        v_lshl_add_u32 v118, v118, 2, s58
        v_lshrrev_b32 v119, 4, v{VL}
        v_lshlrev_b32 v119, 4, v119
        v_add_u32 v119, {L_CS + 512}, v119
        """)
        for rf in range(2):
            A(f"ds_read_b32 v{QM+2*rf}, v118 offset:{64*rf}\nds_read_b32 v{QL+2*rf}, v118 offset:{64*rf + L_RL - L_M}")
        for cf in range(4): A(f"ds_read_b128 {vr(QC+4*cf,4)}, v119 offset:{64*cf}")
        A(f"""
        v_mov_b32 v{VM}, 0xff
        v_mov_b32 v{VOOB}, {OOB}
        v_lshlrev_b32 v{VL16}, 4, v{VL}
        s_mov_b32 s52, {hex(LN2)}
        s_mov_b32 s53, {hex(LN2)}
        s_mov_b32 s54, {hex(EPSL)}
        s_waitcnt lgkmcnt(0)
        """)
        qt = lambda rf, cf: self.phi4(ACC+(rf*4+cf)*4, QM+2*rf, True, QC+4*cf, False, QL+2*rf, True, PQ + (rf*2+(cf>>1))*4 + (cf&1)*2, U+8*cf, E+8*cf, 52)
        for rf in range(2):
            if O["weave"]: self.weave([lambda cf=cf: qt(rf, cf) for cf in range(4)])
            else:
                for cf in range(4): qt(rf, cf)
        self.stamp(4)
        self.spin(VF, F_KVX, TMP)
        A(f"v_add_u32 v118, {L_KVX}, v{VL16}")
        for h in range(2):
            for eb in range(2): A(f"ds_read_b128 {vr(KX+(h*2+eb)*4,4)}, v118 offset:{h*3072+eb*1024}")
            A(f"ds_read_b128 {vr(ZX+4*h,4)}, v118 offset:{h*3072+2048}")
        A(f"""
        s_lshl_b32 s58, s22, 3
        s_lshl_b32 s59, s27, 1
        s_add_u32 s58, s58, s59
        s_lshl_b32 s58, s58, 5
        s_xor_b32 s59, s23, 1
        s_lshl_b32 s59, s59, 1
        s_add_u32 s58, s58, s59
        s_lshl_b32 s58, s58, 10
        s_add_u32 s59, s58, 32768
        s_mov_b32 s55, 0x358637bd
        s_waitcnt lgkmcnt(0)
        """)
        self.stamp(5)
        NT = lambda k, e: 8 + (k*3+e)*4
        for k in range(4):
            rf, h = k >> 1, k & 1
            for e in (2, 0, 1):
                A(f"{MF} {vr(NT(k,e),4)}, {vr(ZX+4*h,4) if e == 2 else vr(KX+(h*2+e)*4,4)}, {vr(PQ+4*k,4)}, 0")
        for k in range(4): A(f"v_add_f32 v{NT(k,2)}, s55, v{NT(k,2)}")
        for k in range(4): A(f"v_rcp_f32 v{NT(k,2)}, v{NT(k,2)}")
        def ofrag(k, e):
            d, o, n = NT(k,2), NT0 + 4*k, NT(k,e)
            for h in (0, 2): self.A(f"v_pk_mul_f32 {vr(n+h,2)}, {vr(n+h,2)}, {vr(d,2)} op_sel_hi:[1,0]")
            self.A(f"v_cvt_pk_bf16_f32 v{o+2*e}, v{n}, v{n+1}\nv_cvt_pk_bf16_f32 v{o+2*e+1}, v{n+2}, v{n+3}")
        for k in range(4):
            self.weave([lambda: ofrag(k, 0), lambda: ofrag(k, 1)])
            A(f"buffer_store_dwordx4 {vr(NT0+4*k,4)}, v{VL16}, s[16:19], s{58+(k>>1)} offen offset:{1024*(k&1)} sc1")
        A(f"""
        s_lshl_b32 s58, s22, 2
        s_add_u32 s58, s58, s27
        s_lshl_b32 s58, s58, 4
        s_add_u32 s58, s58, s23
        s_lshl_b32 s58, s58, 7
        s_add_u32 s58, s58, {WS_OF}
        v_lshlrev_b32 v118, 24, v{VL}
        v_mov_b32 v119, s60
        s_mov_b64 exec, 1
        ds_write_b8 v1, v{ONE} offset:{F_AR}
        s_mov_b64 exec, -1
        s_waitcnt vmcnt(0)
        buffer_store_dword v119, v118, s[16:19], s58 offen sc1
        """)
        V.q = []
        if O["wok"]: self.setflag(1, ONE, F_WOK)
        self.stamp(6)
        if O["opf"]:
            A(f"""
            s_and_b32 s58, s29, 7
            s_lshl_b32 s59, s28, 1
            s_add_u32 s58, s58, s59
            s_lshl_b32 s58, s58, 2
            s_and_b32 s58, s58, 31
            s_lshl_b32 s59, s28, 3
            s_lshl_b32 s57, s27, 1
            s_add_u32 s59, s59, s57
            s_lshl_b32 s59, s59, 5
            s_add_u32 s58, s58, s59
            s_lshl_b32 s58, s58, 10
            s_add_u32 s59, s58, 32768
            s_sleep {O["opf"]}
            """)
            for k in range(8): A(f"buffer_load_dwordx4 {vr(160+4*k,4)}, v{VL16}, s[16:19], s{58+(k>>2)} offen offset:{1024*(k&3)} sc1")
        if O.get("nomoe"): A("s_branch L_helper_end")
        MSK, AP, DT, BP, R = 12, 16, 24, 32, 40
        for it in dwl: emit(it)
        A(f"ds_read_b32 v118, v{VF} offset:{F_SEL}")
        self.moe_masks(VL, MSK, 119, 120, 121)
        self.col_off(VL, 122, 119)
        A(f"""
        v_lshrrev_b32 v121, 5, v{VL}
        v_lshlrev_b32 v121, 2, v121
        s_waitcnt lgkmcnt(0)
        v_readfirstlane_b32 s91, v118
        s_and_b32 s92, s91, 0x7ff
        s_sub_u32 s92, 0x7ff, s92
        s_cmp_ge_u32 s3, 224
        s_cbranch_scc1 L_moe_done
        """)
        if O["gupos"] == 2:
            self.hidden(VL, VL16, VF, ONE, 44, 118, 119, 60, 89, lambda: (self.spin(VF, F_GUP, TMP), A(f"s_sleep {O['d4']}")))
        A(f"v_add_u32 v119, {L_HT}, v121")
        self.spin(VF, F_H, TMP, 1)
        for t in range(8): A(f"ds_read_b32 v{BP+t}, v119 offset:{8*t}")
        A("s_waitcnt vmcnt(0) lgkmcnt(0)")
        for t in range(8):
            ap = AP + 4*(t & 1)
            for r in range(4): A(f"v_and_b32 v{ap+r}, v{BP+t}, v{MSK+r}")
            A(f"{MF} {vr(DT,4)}, {vr(ap,4)}, {vr(DW+4*t,4)}, {'0' if t == 0 else vr(DT,4)}")
        self.tag(DT, VM)
        A(f"""
        s_lshl_b32 s58, s3, 12
        s_add_u32 s58, s58, s80
        s_add_u32 s58, s58, {WS_YP}
        buffer_store_dwordx4 {vr(DT,4)}, v122, s[16:19], s58 offen sc1
        s_cmp_lg_u32 s27, 1
        s_cbranch_scc1 L_moe_done
        v_lshrrev_b32 v118, 3, v{VL}
        v_lshlrev_b32 v118, 12, v118
        v_and_b32 v119, 7, v{VL}
        v_lshl_add_u32 v118, v119, 4, v118
        s_lshr_b32 s58, s3, 5
        s_and_b32 s59, s3, 31
        s_lshl_b32 s59, s59, 7
        s_lshl_b32 s95, s58, 17
        s_add_u32 s95, s95, s59
        s_add_u32 s95, s95, {WS_YP}
        s_lshl_b32 s94, s58, 12
        s_add_u32 s94, s94, s59
        s_add_u32 s94, s94, {WS_Y2}
        v_cmp_gt_u32 vcc, 8, v{VL}
        v_cndmask_b32 v119, v{VOOB}, v{VL16}, vcc
        """)
        self.spin(VF, F_G8, TMP)
        A(f"s_sleep {O['d5']}")
        def yacc(k):
            if k:
                for h in (0, 2): A(f"v_pk_add_f32 {vr(GW+h,2)}, {vr(GW+h,2)}, {vr(GW+4*k+h,2)}")
        self.gather([(f"s_add_u32 s58, s95, {8*4096*t}", f"buffer_load_dwordx4 {vr(GW+4*t,4)}, v118, s[16:19], s58 offen sc1", GW+4*t) for t in range(4)], 60, yacc)
        for k in range(4): A(f"v_add_f32_dpp v{GW+k}, v{GW+k}, v{GW+k} row_ror:8 row_mask:0xf bank_mask:0xf")
        for k in range(4):
            red_swap(A, GW+k, 60, 16); red_swap(A, GW+k, 60, 32)
        self.tag(GW, VM)
        A(f"""
        buffer_store_dwordx4 {vr(GW,4)}, v119, s[16:19], s94 offen sc1
        L_moe_done:
        """)
        self.stamp(9)
        A(f"""
        s_lshr_b32 s58, s92, 7
        s_cmp_lg_u32 s58, {"s28" if not O.get("noy") else "99"}
        s_cbranch_scc1 L_helper_end
        s_cmp_lg_u32 s27, 0
        s_cbranch_scc1 L_helper_end
        v_lshrrev_b32 v118, 4, v{VL}
        v_add_u32 v120, 4, v118
        v_min_u32 v120, 6, v120
        v_and_b32 v119, 15, v{VL}
        v_lshlrev_b32 v119, 4, v119
        v_lshl_add_u32 v118, v118, 12, v119
        v_lshl_add_u32 v120, v120, 12, v119
        s_lshl_b32 s95, s29, 8
        s_add_u32 s95, s95, {WS_Y2}
        s_waitcnt vmcnt(0)
        """)
        self.spin(VF, F_G8, TMP)
        A(f"s_sleep {O['d6']}")
        self.gather([(None, f"buffer_load_dwordx4 {vr(R+4*t,4)}, v{(118,120)[t]}, s[16:19], s95 offen sc1", R+4*t) for t in range(2)], 60)
        A(f"v_cmp_gt_u32 vcc, 48, v{VL}")
        for k in range(4): A(f"v_cndmask_b32 v{R+4+k}, 0, v{R+4+k}, vcc")
        for h in (0, 2): A(f"v_pk_add_f32 {vr(R+h,2)}, {vr(R+h,2)}, {vr(R+4+h,2)}")
        for k in range(4):
            red_swap(A, R+k, 60, 16); red_swap(A, R+k, 60, 32)
        A(f"""
        s_and_b32 s58, s91, 0xffff0000
        s_ashr_i32 s59, s58, 31
        s_not_b32 s59, s59
        s_or_b32 s59, s59, 0x80000000
        s_xor_b32 s58, s58, s59
        s_and_b32 s58, s58, 0xffff0000
        v_mov_b32 v60, s58
        v_mul_f32 v60, {hex(LOG2E | 0x80000000)}, v60
        v_exp_f32 v60, v60
        v_add_f32 v60, 1.0, v60
        v_rcp_f32 v60, v60
        """)
        rnd_bf16(A, 60)
        for k in range(4):
            rnd_bf16(A, R+k); A(f"v_mul_f32 v{R+k}, v{R+k}, v60"); rnd_bf16(A, R+k)
        A(f"""
        v_add_u32 v118, {L_YF}, v119
        ds_write_b128 v118, {vr(R,4)}
        s_mov_b64 exec, 1
        s_waitcnt lgkmcnt(0)
        ds_write_b32 v{VF}, v{ONE} offset:{F_YF}
        s_mov_b64 exec, -1
        L_helper_end:
        """)
        self.stamp(10)
        self.stamp_out()
        A("s_endpgm")
        self.A = A0
        for t in self.slow: A0(t)
        self.slow = []

    def stat_loads(self):
        A, O = self.A, self.opt
        srd(A, 44, 60, 2048)
        A(f"""
        v_and_b32 v2, 31, v1
        v_lshlrev_b32 v2, 4, v2
        v_lshrrev_b32 v3, 5, v1
        v_lshl_add_u32 v4, v3, 11, v2
        s_lshl_b32 s85, s22, 7
        s_lshl_b32 s58, s23, 3
        s_add_u32 s85, s85, s58
        s_lshl_b32 s58, s27, 1
        s_add_u32 s85, s85, s58
        s_lshl_b32 s58, s85, 11
        {"s_sleep %d" % O["sxd"] if O["stat_beg"] >= 0 else ""}
        """)
        for t in range(4): A(f"buffer_load_dwordx4 {vr(192+4*t,4)}, v4, s[8:11], s58 offen offset:{512*t}{' nt' if O.get('ntsx') else ''}")
        for t in range(4): A(f"buffer_load_dwordx4 {vr(208+4*t,4)}, v2, s[44:47], 0 offen offset:{512*t}")

    def stats(self):
        A = self.A
        X, WR, S1, S2, SR, SW, ON, T, MB = 192, 208, 224, 226, 228, 230, 232, 233, 236
        A("s_waitcnt vmcnt(0)")
        A(f"v_mov_b32 v{ON}, 0x3f803f80")
        for k in range(16):
            for d, a, b in ((S1, X+k, ON), (S2, X+k, X+k), (SR, X+k, WR+k), (SW, WR+k, ON)):
                A(f"v_dot2_f32_bf16 v{d+(k&1)}, v{a}, v{b}, {'0' if k < 2 else 'v%d' % (d+(k&1))}")
        A("s_nop 2")
        for d in (S1, S2, SR, SW): A(f"v_add_f32 v{d}, v{d}, v{d+1}")
        for r in (8, 4, 2, 1):
            for d in (S1, S2, SR, SW): A(f"v_add_f32_dpp v{d}, v{d}, v{d} row_ror:{r} row_mask:0xf bank_mask:0xf")
        for d in (S1, S2, SR, SW): A(f"v_mov_b32 v{d+1}, v{d}")
        for d in (S1, S2, SR, SW): A(f"v_permlane16_swap_b32 v{d}, v{d+1}")
        for d in (S1, S2, SR, SW): A(f"v_add_f32 v{d}, v{d}, v{d+1}")
        A(f"""
        v_mul_f32 v{S1}, 0x3a800000, v{S1}
        v_mul_f32 v{S2}, 0x3a800000, v{S2}
        v_cvt_pk_bf16_f32 v{MB}, v{S1}, v{S1}
        v_fma_f32 v{S2}, -v{S1}, v{S1}, v{S2}
        v_lshlrev_b32 v{MB}, 16, v{MB}
        v_max_f32 v{S2}, 0, v{S2}
        v_fma_f32 v{SR}, -v{MB}, v{SW}, v{SR}
        """)
        rnd_bf16(A, S2)
        A(f"v_add_f32 v{S2}, 0x3727c5ac, v{S2}")
        rnd_bf16(A, S2)
        A(f"v_sqrt_f32 v{S2}, v{S2}\nv_lshrrev_b32 v{T}, 5, v1\nv_cvt_pk_bf16_f32 v{S2}, v{S2}, v{S2}\nv_lshlrev_b32 v{MB+1}, 16, v{S2}")
        A(f"""
        v_rcp_f32 v{S2}, v{MB+1}
        v_add_u32 v{T+1}, s85, v{T}
        v_sub_u32 v{T+1}, 0x7ff, v{T+1}
        v_mul_f32 v{SR}, v{SR}, v{S2}
        s_lshl_b32 s58, s27, 4
        s_add_u32 s58, s58, {L_FL + F_ST}
        v_lshl_add_u32 v{T}, v{T}, 3, s58
        """)
        rnd_bf16(A, SR)
        A(f"""
        s_mov_b32 exec_lo, 1
        s_mov_b32 exec_hi, 1
        ds_write_b64 v{T}, {vr(MB,2)}
        s_mov_b64 exec, -1
        v_ashrrev_i32 v{T}, 31, v{SR}
        v_or_b32 v{T}, 0x80000000, v{T}
        v_xor_b32 v{T}, v{T}, v{SR}
        v_and_b32 v{T}, 0xffff0000, v{T}
        v_or_b32 v{T}, v{T}, v{T+1}
        """)
        red_swap(A, T, T+1, 32, "v_max_u32")
        A(f"s_lshl_b32 s58, s27, 2\ns_add_u32 s58, s58, {L_FL + F_KEY}\nv_mov_b32 v{T+1}, s58\ns_mov_b64 exec, 1\nds_write_b32 v{T+1}, v{T}\ns_mov_b64 exec, -1")

    def kwave(self):
        A = self.A
        O = self.opt
        A.label("L_kwave")
        self.sreg = 127
        self.stamp(0)
        A("s_mov_b32 s74, s70\ns_mov_b32 s75, s71")
        self.dbg_max(1, True)
        ACC = 128
        FA = lambda st, rf, ks: 16 + st*32 + (rf*2+ks)*4
        FB = lambda slot, ks: 80 + slot*8 + ks*4
        VA, VKV, N15, Q4, VM, VF, VFB, ONE = 112, 114, 12, 13, 11, 122, 123, 124
        A(f"""
        s_lshr_b32 s36, s27, 1
        s_and_b32 s37, s27, 1
        v_and_b32 v{N15}, 15, v1
        v_lshrrev_b32 v{Q4}, 4, v1
        v_mov_b32 v{VF}, {L_FL}
        v_add_u32 v{VFB}, s27, v{VF}
        v_mov_b32 v{ONE}, 1
        v_lshl_add_u32 v2, v1, 2, v{VF}
        v_mov_b32 v3, 0
        s_mov_b64 exec, 0x3ffff
        ds_write_b32 v2, v3
        ds_write_b32 v2, v3 offset:{F_AR}
        s_mov_b64 exec, -1
        s_lshl_b32 s58, s36, 13
        v_lshlrev_b32 v14, 7, v{N15}
        v_add_u32 v14, s58, v14
        v_bfe_u32 v15, v{N15}, 1, 3
        """)
        for ks in range(2):
            A(f"v_add_u32 v2, {4*ks}, v{Q4}\nv_xor_b32 v2, v2, v15\nv_lshl_add_u32 v{VA+ks}, v2, 4, v14")
        A(f"""
        v_bfe_u32 v2, v1, 2, 2
        v_lshlrev_b32 v2, 6, v2
        v_and_b32 v3, 3, v1
        v_lshl_add_u32 v2, v3, 3, v2
        v_and_b32 v3, 1, v{Q4}
        v_lshl_add_u32 v10, v3, 5, v2
        s_lshl_b32 s58, s37, 8
        v_add_u32 v4, s58, v10
        v_lshl_add_u32 v{VKV}, v{Q4}, 11, v4
        v_add_u32 v{VKV}, {L_KV}, v{VKV}
        s_lshl_b32 s58, s36, 5
        v_xor_b32 v{VKV}, s58, v{VKV}
        v_xor_b32 v{VKV+1}, 32, v{VKV}
        """)
        VD, VWO, VG, GW = 125, 126, 9, 192
        srd(A, 92, 56, 0x200000)
        srd(A, 52, 62, 0x700000)
        srd(A, 88, 64, 0x700000)
        A(f"""
        s_lshl_b32 s80, s27, 10
        v_and_b32 v2, 3, v1
        v_bfe_u32 v3, v1, 4, 1
        v_lshlrev_b32 v3, 6, v3
        v_bfe_u32 v4, v1, 2, 2
        v_lshrrev_b32 v5, 5, v1
        v_lshl_add_u32 v4, v5, 2, v4
        v_lshlrev_b32 v6, 1, v5
        v_xor_b32 v2, v2, v6
        v_lshl_add_u32 v7, v2, 4, v3
        v_lshl_add_u32 v{VWO}, v4, 11, v7
        v_and_b32 v2, 31, v1
        v_lshlrev_b32 v2, 4, v2
        v_mul_u32_u24 v{VG}, 7168, v5
        v_add_u32 v{VG}, v{VG}, v2
        s_lshl_b32 s81, s27, 14
        s_lshl_b32 s58, s29, 7
        s_add_u32 s81, s81, s58
        s_and_b32 s48, s29, 7
        s_lshl_b32 s58, s28, 1
        s_add_u32 s48, s48, s58
        s_lshl_b32 s48, s48, 2
        s_lshr_b32 s34, s3, 4
        s_and_b32 s87, s3, 15
        s_lshl_b32 s78, s87, 6
        s_lshl_b32 s59, s27, 4
        s_add_u32 s78, s78, s59
        s_mul_i32 s78, s78, 7168
        s_lshl_b32 s59, s34, 9
        s_add_u32 s78, s78, s59
        s_and_b32 s71, s21, {O["ngroups"]-1}
        s_cmp_lt_u32 s3, 224
        s_cselect_b32 s78, s78, 0
        s_cselect_b32 s71, s71, -1
        s_cselect_b64 vcc, -1, 0
        v_cndmask_b32 v{VG}, 0, v{VG}, vcc
        """)
        srd(A, 32, 68, 0x400000)
        if O['stat_beg'] >= 0: self.stat_loads()
        sw = self.A = Switch(A)
        stq = sw.record([self.stats])
        self.A = A
        if O["stat_beg"] < 0:
            for a_ in stq:
                if not O.get("nostat"): replay(a_, A, None)
            stq = []
        A(f"""
        s_cmp_lg_u32 s27, 0
        s_cbranch_scc1 L_tagdone
        s_load_dword s60, s[74:75], 0
        s_mov_b32 s57, 0
        L_tagspin:
        s_waitcnt lgkmcnt(0)
        s_cmp_lg_u32 s60, 0
        s_cbranch_scc1 L_tagok
        s_sleep 8
        s_load_dword s60, s[74:75], 0 glc
        s_add_u32 s57, s57, 1
        s_cmp_lt_u32 s57, {SPIN_MAX}
        s_cbranch_scc1 L_tagspin
        s_waitcnt lgkmcnt(0)
        L_tagok:
        v_mov_b32 v2, s60
        s_mov_b64 exec, 1
        ds_write_b32 v{VF}, v2 offset:{F_NON}
        s_mov_b64 exec, -1
        L_tagdone:
        """)
        self.stamp(11)
        A(f"s_setprio {O['kprio']}\ns_waitcnt lgkmcnt(0)\ns_barrier")
        self.stamp(1)
        L = LgkmTracker(A)
        def areads(s_):
            return [(f"ds_read_b128 {vr(FA(s_&1,rf,ks),4)}, v{VA+ks} offset:{(s_%4)*16384+rf*2048}", ("A",s_)) for rf in range(4) for ks in range(2)]
        def breads(s_, cf):
            return [(f"ds_read_b64_tr_b16 {vr(FB(cf,ks)+2*rd,2)}, v{VKV+(cf&1)} offset:{(s_%4)*16384+(8*ks+rd)*1024+(cf>>1)*512}", ("B",s_,cf)) for ks in range(2) for rd in range(2)]
        for x in areads(0) + breads(0,0) + breads(0,1): L.issue(*x)
        def gu_items(ks):
            return [] if O.get("nomoe") else [(f"s_add_u32 s78, s78, {2*7168}" if (k & 1 == 0 and k) else None,
                     f"buffer_load_dwordx4 {vr(GW+4*k,4)}, v{VG}, s[{(52,88)[k&1]}:{(55,91)[k&1]}], s78 offen nt") for k in ks]
        runs = [] if O.get("nomoe") else O["runs"]
        n0 = sum(n for _, n in runs)
        P1 = [1,1,1,0,1,1,1,0,1,1,0,0]
        P2 = [1,1,1,1,0,1,1,1,1,0,1,1,1,1,0,1,1,1,1,0]
        for s_ in range(16):
            st = s_ & 1
            w1 = breads(s_,2) + breads(s_,3)
            w2 = (areads(s_+1) + breads(s_+1,0) + breads(s_+1,1)) if s_ < 15 else []
            g = 0
            for cf in range(4):
                for j,(rf,ks) in enumerate([(rf,ks) for rf in range(4) for ks in ((0,1) if rf % 2 == 0 else (1,0))]):
                    if g == 12:
                        if s_ == O["stat_end"]:
                            assert not stq
                            A("s_waitcnt lgkmcnt(0)"); L.q = []
                        L.drain(); A("s_barrier")
                    if g == O["runpos"]:
                        k0 = 0
                        for first, n in runs:
                            for grp in range(O["ngroups"]):
                                if first + grp*O["gstep"] == s_:
                                    sk = self.lab("run")
                                    A(f"s_cmp_eq_u32 s71, {grp}\ns_cbranch_scc0 {sk}")
                                    for pre, txt in gu_items(range(k0, k0+n)):
                                        if pre: A(pre)
                                        A(txt)
                                    A.label(sk)
                            k0 += n
                    if g == 12 and O.get("iters"): self.stamp(16 + s_)
                    elif j == 0: L.need({("A",s_), ("B",s_,cf)})
                    acc = ACC + (rf*4+cf)*4
                    c = "0" if (s_ == 0 and j % 2 == 0) else vr(acc,4)
                    A(f"{MF} {vr(acc,4)}, {vr(FA(st,rf,ks),4)}, {vr(FB(cf,ks),4)}, {c}")
                    if g < 12:
                        if w1 and P1[g]: L.issue(*w1.pop(0))
                    elif w2 and P2[g-12]: L.issue(*w2.pop(0))
                    if O["stat_beg"] <= s_ <= O["stat_end"] and stq:
                        left = (O["stat_end"] - s_ + 1)*32 - g - 20
                        n = 1 if (len(stq) >= left or not (P1+P2)[g] or g % 2 == 0) else 0
                        if len(stq) > left: n = 2
                        for _ in range(n):
                            if stq: replay(stq.pop(0), A, None)
                    if s_ == 15 and g == 12: tabq = self.k_tables()
                    if s_ == 15 and g >= 13 and tabq: A(tabq.pop(0))
                    g += 1
            assert not w1 and not w2
        for t in tabq: A(t)
        for pre, txt in gu_items(range(n0, min(16, n0 + O["gue"]))):
            if pre: A(pre)
            A(txt)
        n0 = min(16, n0 + O["gue"])
        A(f"s_setprio {O['kprio2']}")
        A("v_mov_b32 v8, v2") if O.get("span") else None
        self.dbg_max(2)
        A("v_mov_b32 v2, v8") if O.get("span") else None
        self.stamp(2)
        if O.get("stop"):
            self.stamp_out(); A("s_endpgm")
        TB = lambda rf: (16, 28, 48, 60)[rf]
        CS, ON, U, E = 40, 72, 96, 100
        PK = lambda ks2, db: (80, 128)[ks2] + 4*db
        VV = lambda ks2, eb: (88, 136)[ks2] + 4*eb
        T = lambda eb, db: (144, 148, 152, 156, 16, 20)[eb*2+db]
        for rf in (2, 3):
            for k, off in enumerate((0, L_RL - L_M, L_RI - L_M)): A(f"ds_read_b128 {vr(TB(rf)+4*k,4)}, v2 offset:{64*rf + off}")
        for k in range(4): A(f"v_mov_b32 v{ON+k}, 0x3f803f80")
        A(f"""
        s_mov_b32 s40, {hex(LN2)}
        s_mov_b32 s41, {hex(LN2)}
        s_mov_b32 s42, {hex(EPSL)}
        v_mov_b32 v{VM}, 0xff
        s_waitcnt lgkmcnt(6)
        v_readfirstlane_b32 s60, v41
        v_readfirstlane_b32 s49, v43
        """)
        self.nonce_setup()
        for rf in range(4):
            if rf == 2: A("s_waitcnt lgkmcnt(0)")
            def vtile(cf):
                B = self.A
                a = ACC+(rf*4+cf)*4
                for h in (0, 2): B(f"v_pk_fma_f32 {vr(a+h,2)}, {vr(TB(rf)+h,2)}, {vr(CS+2*cf,2)}, {vr(a+h,2)} op_sel_hi:[1,0,1] neg_lo:[1,0,0] neg_hi:[1,0,0]")
                for h in (0, 2): B(f"v_pk_mul_f32 {vr(a+h,2)}, {vr(a+h,2)}, {vr(TB(rf)+8+h,2)}")
                d = VV(rf>>1, cf-2) + (rf&1)*2
                B(f"v_cvt_pk_bf16_f32 v{d}, v{a}, v{a+1}\nv_cvt_pk_bf16_f32 v{d+1}, v{a+2}, v{a+3}")
            ktile = lambda cf: self.phi4(ACC+(rf*4+cf)*4, TB(rf), False, CS+2*cf, True, TB(rf)+4, False, PK(rf>>1, cf) + (rf&1)*2, U + 8*cf, E + 8*cf)
            if O["weave"]: self.weave([lambda: ktile(0), lambda: ktile(1), lambda: (vtile(2), vtile(3))])
            else:
                ktile(0); ktile(1); vtile(2); vtile(3)
            if rf & 1:
                ks2 = rf >> 1
                for eb in range(3):
                    for db in range(2):
                        A(f"{MF} {vr(T(eb,db),4)}, {vr(PK(ks2,db),4)}, {vr(VV(ks2,eb),4) if eb < 2 else vr(ON,4)}, {'0' if ks2 == 0 else vr(T(eb,db),4)}")
        if not O["latepub"]: self.setflag(VFB, ONE, F_PUB)
        A(f"""
        v_lshlrev_b32 v120, 4, v1
        s_mul_i32 s58, s27, 3072
        s_add_u32 s58, s58, {L_GUS}
        v_add_u32 v2, s58, v120
        s_lshl_b32 s59, s36, 10
        v_add_u32 v3, s59, v2
        v_subrev_u32 v4, s59, v2
        ds_write_b128 v3, {vr(T(1,0),4)}
        ds_write_b128 v4, {vr(T(1,1),4)} offset:1024
        ds_write_b128 v2, {vr(T(2,1),4)} offset:2048
        s_xor_b32 s58, s27, 2
        v_add_u32 v5, s58, v{VF}
        s_mul_i32 s58, s58, 3072
        s_add_u32 s58, s58, {L_GUS}
        v_add_u32 v2, s58, v120
        v_add_u32 v3, s59, v2
        v_subrev_u32 v4, s59, v2
        s_waitcnt lgkmcnt(0)
        """)
        self.setflag(VFB, ONE, F_PR)
        A(f"""
        s_lshl_b32 s43, s23, 1
        s_add_u32 s43, s43, s37
        s_lshl_b32 s58, s43, 4
        s_add_u32 s58, s58, s22
        s_lshl_b32 s44, s58, 7
        s_lshl_b32 s45, s36, 6
        s_add_u32 s44, s44, s45
        s_add_u32 s44, s44, {WS_ZP}
        s_mul_i32 s58, s58, {KVS}
        s_lshl_b32 s45, s36, 11
        s_add_u32 s58, s58, s45
        s_add_u32 s58, s58, {WS_KVP}
        s_add_u32 s45, s58, s59
        s_sub_u32 s46, s58, s59
        v_mov_b32 v121, {OOB}
        v_lshlrev_b32 v6, 4, v{Q4}
        v_cmp_eq_u32 vcc, 0, v{N15}
        v_cndmask_b32 v6, v121, v6, vcc
        s_mov_b32 s57, 0
        L_pr:
        ds_read_u8 v7, v5 offset:{F_PR}
        ds_read_b128 v[96:99], v3
        ds_read_b128 v[100:103], v4 offset:1024
        ds_read_b128 v[104:107], v2 offset:2048
        s_waitcnt lgkmcnt(3)
        v_cmp_ne_u32 vcc, 1, v7
        s_add_u32 s57, s57, 1
        s_waitcnt lgkmcnt(0)
        s_cbranch_vccz L_prd
        s_cmp_lt_u32 s57, {SPIN_MAX*16}
        s_cbranch_scc1 L_pr
        L_prd:
        """)
        for k, (t, txt) in enumerate(((T(0,0), "v120, s[16:19], s45 offen sc1"), (T(0,1), "v120, s[16:19], s46 offen offset:1024 sc1"), (T(2,0), "v6, s[16:19], s44 offen sc1"))):
            for h in (0, 2): A(f"v_pk_add_f32 {vr(t+h,2)}, {vr(t+h,2)}, {vr(96+4*k+h,2)}")
            self.tag(t, VM)
            A(f"buffer_store_dwordx4 {vr(t,4)}, {txt}")
        if O["latepub"]: self.setflag(VFB, ONE, F_PUB)
        self.stamp(3)
        H1, XSV, XST, MSK, AP, DT, BP, R, DW = 24, 60, 62, 64, 68, 76, 84, 92, 160
        A(f"""
        v_lshrrev_b32 v2, 3, v1
        v_and_b32 v3, 7, v1
        v_lshlrev_b32 v118, 11, v2
        v_lshl_add_u32 v118, v3, 4, v118
        s_lshl_b32 s58, s27, 8
        s_add_u32 s58, s58, {L_ST2}
        v_lshl_add_u32 v119, v2, 3, s58
        v_lshlrev_b32 v3, 4, v3
        v_mul_u32_u24 v4, {KVS}, v2
        v_add_u32 v4, v4, v3
        v_lshl_add_u32 v5, v2, 7, v3
        s_lshr_b32 s58, s22, 3
        s_lshl_b32 s59, s23, 1
        s_add_u32 s45, s58, s59
        s_mul_i32 s44, s45, {16*KVS}
        s_lshl_b32 s58, s22, 9
        s_and_b32 s58, s58, 0xfff
        s_add_u32 s44, s44, s58
        s_lshl_b32 s58, s27, 7
        s_add_u32 s44, s44, s58
        s_add_u32 s44, s44, {WS_KVP}
        s_lshl_b32 s58, s23, 4
        s_add_u32 s58, s58, s22
        s_lshl_b32 s46, s58, 9
        s_lshl_b32 s59, s27, 7
        s_add_u32 s46, s46, s59
        s_add_u32 s46, s46, {WS_KVF}
        v_cmp_gt_u32 vcc, 8, v1
        v_cndmask_b32 v6, v121, v120, vcc
        s_and_b32 s72, s49, 0x7ff
        s_sub_u32 s72, 0x7ff, s72
        s_lshl_b32 s49, s72, 3
        s_add_u32 s49, s49, {WS_STAT}
        s_lshl_b32 s73, s72, 11
        s_lshl_b32 s59, s87, 7
        s_add_u32 s73, s73, s59
        s_lshl_b32 s59, s27, 5
        s_add_u32 s73, s73, s59
        v_lshlrev_b32 v7, 1, v{N15}
        v_mov_b32 v8, 0
        buffer_load_ushort v{XSV}, v7, s[8:11], s73 offen
        buffer_load_dwordx2 {vr(XST,2)}, v8, s[16:19], s49 offen sc1
        """)
        self.moe_masks(1, MSK, 2, 3, 7)
        self.col_off(1, 117, 2)
        def acc(b):
            def f(k):
                if k:
                    for h in (0, 2): A(f"v_pk_add_f32 {vr(b+h,2)}, {vr(b+h,2)}, {vr(b+4*k+h,2)}")
            return f
        def red81632(b):
            for k in range(4): A(f"v_add_f32_dpp v{b+k}, v{b+k}, v{b+k} row_ror:8 row_mask:0xf bank_mask:0xf")
            for wh in (16, 32):
                for k in range(4): A(f"v_mov_b32 v{b+4+k}, v{b+k}")
                for k in range(4): A(f"v_permlane{wh}_swap_b32 v{b+k}, v{b+4+k}")
                for h in (0, 2): A(f"v_pk_add_f32 {vr(b+h,2)}, {vr(b+h,2)}, {vr(b+4+h,2)}")
            self.tag(b, VM)
        def wo_items(ts):
            return [(f"s_add_u32 s82, s48, {t}\ns_and_b32 s82, s82, 31\ns_lshl_b32 s82, s82, 16\ns_add_u32 s82, s82, s81\ns_add_u32 m0, s80, {((t+16)%32)*4096}",
                     f"buffer_load_dwordx4 v{VWO}, s[92:95], s82 offen {'nt ' if O.get('ntwo') else ''}lds") for t in ts]
        def gu_compute():
            sk, xt, xk = self.lab("ng"), self.lab("xt"), self.lab("xk")
            A(f"""
            s_cmp_ge_u32 s3, {0 if O.get('nomoe') else 224}
            s_cbranch_scc1 {sk}
            s_mov_b32 s57, 0
            s_mov_b32 s58, 0x05040100
            {xt}:
            v_perm_b32 v2, v{XST+1}, v{XST}, s58
            v_cmp_ne_u32 vcc, s60, v2
            s_add_u32 s57, s57, 1
            s_nop 0
            s_cbranch_vccz {xk}
            s_cmp_ge_u32 s57, {SPIN_MAX}
            s_cbranch_scc1 {xk}
            v_mov_b32 v2, 0
            buffer_load_dwordx2 {vr(XST,2)}, v2, s[16:19], s49 offen sc1
            s_waitcnt vmcnt(0)
            s_branch {xt}
            {xk}:
            v_and_b32 v{XST}, 0xffff0000, v{XST}
            v_and_b32 v{XST+1}, 0xffff0000, v{XST+1}
            v_rcp_f32 v{XST+1}, v{XST+1}
            v_lshlrev_b32 v{XSV}, 16, v{XSV}
            v_sub_f32 v{XSV}, v{XSV}, v{XST}
            """)
            rnd_bf16(A, XSV)
            A(f"v_mul_f32 v{XSV}, v{XSV}, v{XST+1}\nv_cvt_pk_bf16_f32 v{XSV}, v{XSV}, v{XSV}\nv_lshrrev_b32 v2, 5, v1\nv_lshlrev_b32 v2, 2, v2")
            for t in range(8): A(f"ds_bpermute_b32 v{BP+t}, v2, v{XSV} offset:{8*t}")
            A(f"s_lshl_b32 s58, s27, 11\ns_add_u32 s58, s58, {L_GUS}\nv_add_u32 v3, s58, v117\ns_waitcnt lgkmcnt(0)")
            for t in range(8):
                ap = AP + 4*(t & 1)
                for r in range(4): A(f"v_and_b32 v{ap+r}, v{BP+t}, v{MSK+r}")
                for m in range(2):
                    A(f"{MF} {vr(DT+4*m,4)}, {vr(ap,4)}, {vr(GW+8*t+4*m,4)}, {'0' if t == 0 else vr(DT+4*m,4)}")
            A(f"""
            ds_write_b128 v3, {vr(DT,4)}
            ds_write_b128 v3, {vr(DT+4,4)} offset:1024
            v_and_b32 v2, 31, v1
            v_lshlrev_b32 v2, 4, v2
            s_lshl_b32 s58, s27, 9
            v_add_u32 v2, s58, v2
            v_add_u32 v3, {L_GUS}, v2
            s_waitcnt lgkmcnt(0)
            """)
            self.setflag(VFB, ONE, F_GU)
            self.spin(VF, F_GU, 7)
            for w in range(4): A(f"ds_read_b128 {vr(R+4*w,4)}, v3 offset:{2048*w}")
            A("s_waitcnt lgkmcnt(0)")
            for h in (0, 2): A(f"v_pk_add_f32 {vr(R+h,2)}, {vr(R+h,2)}, {vr(R+4+h,2)}\nv_pk_add_f32 {vr(R+8+h,2)}, {vr(R+8+h,2)}, {vr(R+12+h,2)}")
            for h in (0, 2): A(f"v_pk_add_f32 {vr(R+h,2)}, {vr(R+h,2)}, {vr(R+8+h,2)}")
            self.tag(R, VM)
            A(f"""
            v_cmp_gt_u32 vcc, 32, v1
            v_cndmask_b32 v2, v121, v2, vcc
            s_lshl_b32 s58, s3, 11
            s_add_u32 s58, s58, {WS_GUP}
            buffer_store_dwordx4 {vr(R,4)}, v2, s[16:19], s58 offen sc1
            s_mov_b64 exec, 1
            ds_write_b8 v{VFB}, v{ONE} offset:{F_GUP}
            s_mov_b64 exec, -1
            {sk}:
            """)
        gupos = O["gupos"]
        assert n0 == 16 or gupos == 2 or O.get("nomoe")
        if gupos == 0:
            A("s_waitcnt vmcnt(0)"); gu_compute()
        self.stamp(4)
        if O["d1"]: A(f"s_sleep {O['d1']}")
        post1 = gu_items(range(n0, 16))
        kvl = [(f"s_add_u32 s58, s44, {8*KVS*t}", f"buffer_load_dwordx4 {vr(H1+4*t,4)}, v4, s[16:19], s58 offen sc1", H1+4*t) for t in range(2)]
        zl = [(None, f"buffer_load_dwordx4 {vr(H1+16+4*t,4)}, v5, s[16:19], s47 offen offset:{1024*t} sc1", H1+16+4*t) for t in range(2)]
        A(f"""
        s_and_b32 s58, s22, 7
        s_lshl_b32 s58, s58, 2
        s_add_u32 s58, s58, s27
        s_cmp_eq_u32 s58, 29
        s_cbranch_scc1 L_zwave
        """)
        self.gather(kvl, 56, acc(H1), post1)
        red81632(H1)
        A(f"""
        buffer_store_dwordx4 {vr(H1,4)}, v6, s[16:19], s46 offen sc1
        s_branch L_noz
        L_zwave:
        s_lshl_b32 s47, s45, 11
        s_add_u32 s47, s47, {WS_ZP}
        s_lshl_b32 s45, s45, 7
        s_add_u32 s45, s45, {WS_ZF}
        """)
        def both(k):
            if k < 2: acc(H1+16)(k)
            else: acc(H1)(k-2)
            if k == 1:
                red81632(H1+16); A(f"buffer_store_dwordx4 {vr(H1+16,4)}, v6, s[16:19], s45 offen sc1")
        self.gather(zl + kvl, 56, both, post1, 1)
        red81632(H1)
        A(f"buffer_store_dwordx4 {vr(H1,4)}, v6, s[16:19], s46 offen sc1\nL_noz:")
        if self.diag: A("v_writelane_b32 v127, s31, 12")
        self.stamp(5)
        def wok_now():
            self.spin(VF, F_C7, 56)
            for pre, txt in wo_items(range(16)): A(pre); A(txt)
        if O["wokpos"] == 1: wok_now()
        if gupos == 1: gu_compute()
        if O["wokpos"] == 2: wok_now()
        H2, FR = 128, 144
        A(f"""
        s_xor_b32 s43, s43, 2
        s_lshl_b32 s46, s43, 12
        s_lshl_b32 s58, s36, 11
        s_add_u32 s46, s46, s58
        s_add_u32 s46, s46, {WS_KVF}
        s_lshl_b32 s45, s43, 7
        s_add_u32 s45, s45, {WS_ZF}
        v_lshlrev_b32 v4, 4, v{Q4}
        s_mul_i32 s58, s37, 3072
        s_add_u32 s58, s58, {L_KVX}
        v_add_u32 v5, s58, v120
        s_lshl_b32 s58, s36, 10
        v_add_u32 v6, s58, v5
        s_lshl_b32 s38, s28, 7
        s_lshl_b32 s58, s27, 5
        s_add_u32 s38, s38, s58
        s_lshl_b32 s39, s38, 11
        s_lshl_b32 s58, s29, 7
        s_add_u32 s39, s39, s58
        """)
        def cv(k):
            A(f"v_cvt_pk_bf16_f32 v{FR+2*k}, v{H2+4*k}, v{H2+4*k+1}\nv_cvt_pk_bf16_f32 v{FR+2*k+1}, v{H2+4*k+2}, v{H2+4*k+3}")
            if k == 1: A(f"ds_write_b128 v6, {vr(FR,4)}")
            if k == 3: A(f"ds_write_b128 v5, {vr(FR+4,4)} offset:2048")
        d2 = O["d2"] if gupos != 1 or O.get("nomoe") else O["d2g"]
        if d2: A(f"s_sleep {d2}")
        XR, ST2, S, U, E = 96, 16, 128, 24, 26
        xl = [(f"s_add_u32 s59, s39, {8*2048*t}", f"buffer_load_dwordx4 {vr(XR+4*t,4)}, v118, s[8:11], s59 offen") for t in range(4)]
        if gupos == 2: XR = 40; xl = [(p, t.replace(vr(96+4*k,4), vr(40+4*k,4))) for k, (p, t) in enumerate(xl)]
        tail2 = [] if (O["wok"] or O["wokpos"]) else wo_items(range(16))
        self.gather([(None, f"buffer_load_dwordx4 {vr(H2+4*k,4)}, v120, s[16:19], s46 offen offset:{1024*k} sc1", H2+4*k) for k in range(2)] +
                    [(None, f"buffer_load_dwordx4 {vr(H2+8+4*k,4)}, v4, s[16:19], s45 offen offset:{64*k} sc1", H2+8+4*k) for k in range(2)], 56, cv, xl)
        A("s_waitcnt lgkmcnt(0)")
        self.setflag(VFB, ONE, F_KVX)
        if O["wokpos"]: self.setflag(VFB, ONE, F_WOK)
        if self.diag: A("v_writelane_b32 v127, s31, 13")
        self.stamp(6)
        self.dbg_max(3)
        A("s_setprio 0")
        if gupos != 2: self.hidden(1, 120, VF, ONE, 32, 2, 3, 56, 87)
        if tail2: self.spin(VF, F_C7, 56)
        for pre, txt in tail2:
            if pre: A(pre)
            A(txt)
        if gupos == 2: gu_compute()
        for t in range(4): A(f"ds_read_b64 {vr(ST2+2*t,2)}, v119 offset:{64*t}")
        A(f"s_waitcnt vmcnt({len(tail2)}) lgkmcnt(0)")
        def resid(t):
            B = self.A
            m, u_, e_ = ST2 + 2*t, 24 + 4*t, 26 + 4*t
            B(f"v_mov_b32 v{e_}, v{m+1}")
            for k in range(4):
                x = XR + 4*t + k; d = S + 8*t + 2*k
                B(f"""
                v_lshlrev_b32 v{d}, 16, v{x}
                v_and_b32 v{d+1}, 0xffff0000, v{x}
                v_pk_add_f32 {vr(u_,2)}, {vr(d,2)}, {vr(m,2)} op_sel_hi:[1,0] neg_lo:[0,1] neg_hi:[0,1]
                v_cvt_pk_bf16_f32 v{u_+1}, v{u_}, v{u_+1}
                v_lshlrev_b32 v{u_}, 16, v{u_+1}
                v_and_b32 v{u_+1}, 0xffff0000, v{u_+1}
                v_pk_mul_f32 {vr(u_,2)}, {vr(u_,2)}, {vr(e_,2)} op_sel_hi:[1,0]
                v_cvt_pk_bf16_f32 v{u_+1}, v{u_}, v{u_+1}
                v_lshlrev_b32 v{u_}, 16, v{u_+1}
                v_and_b32 v{u_+1}, 0xffff0000, v{u_+1}
                v_pk_add_f32 {vr(d,2)}, {vr(d,2)}, {vr(u_,2)}
                """)
        self.weave([lambda t=t: resid(t) for t in range(4)])
        if tail2:
            A("s_waitcnt vmcnt(0)"); self.setflag(VFB, ONE, F_WOK)
        self.stamp(14)
        self.spin(VF, F_AR, 7)
        for pre, txt in wo_items(range(16, 32)): A(pre); A(txt)
        G2 = 160
        B2 = lambda slot, ks: 80 + slot*8 + ks*4
        NP = O["np"]
        OW = lambda p, ks, rf: ([16, 32, 48, 64, 192, 208][p % NP]) + ks*8 + rf*4
        VL0, VW = 118 + 0, 112
        A(f"""
        v_lshl_add_u32 v5, v{Q4}, 9, v10
        v_xor_b32 v6, 32, v5
        v_add_u32 v116, 32768, v120
        s_lshl_b32 s47, s28, 3
        s_lshl_b32 s58, s27, 1
        s_add_u32 s47, s47, s58
        s_lshl_b32 s47, s47, 15
        s_lshr_b32 s49, s48, 1
        v_add_u32 v117, s49, v{N15}
        v_and_b32 v117, 15, v117
        v_xor_b32 v117, 1, v117
        v_lshlrev_b32 v117, 7, v117
        s_lshl_b32 s50, s28, 2
        s_add_u32 s50, s50, s27
        s_lshl_b32 s50, s50, 11
        s_add_u32 s50, s50, {WS_OF}
        s_mov_b32 s45, 0xffff
        """)
        self.spin(VF, F_WOK, 4)
        A("s_setprio 3")
        self.stamp(7)
        if O["d3"]: A(f"s_sleep {O['d3']}")
        poll = "buffer_load_dword v4, v117, s[16:19], s50 offen sc1"
        seen = "v_cmp_eq_u32 vcc, s60, v4\ns_and_b32 s44, vcc_lo, 0xffff"
        A(poll + "\ns_waitcnt vmcnt(0)\n" + seen)
        self.setflag(VFB, ONE, F_WOA)
        self.spin(VF, F_WOA, 7)
        V = VmTracker(A)
        SW = lambda p: 52 + (p % 4)
        def pick(p):
            sl, bk, tp = self.lab("pk"), self.lab("pb"), self.lab("pt")
            A(f"""
            s_and_b32 s58, s44, s45
            s_cbranch_scc0 {sl}
            {bk}:
            s_ff1_i32_b32 s58, s58
            s_bitset0_b32 s45, s58
            s_add_u32 s59, s58, s49
            s_and_b32 s59, s59, 15
            s_lshl_b32 s59, s59, 11
            s_add_u32 s51, s59, s47
            s_xor_b32 s58, s58, 8
            s_lshl_b32 s{SW(p)}, s58, 13
            """)
            self.slow.append(f"""
            {sl}:
            s_mov_b32 s57, 0
            {tp}:
            {poll}
            s_waitcnt vmcnt(0)
            v_cmp_eq_u32 vcc, s60, v4
            s_add_u32 s57, s57, 1
            s_and_b32 s44, vcc_lo, 0xffff
            s_and_b32 s58, s44, s45
            s_cbranch_scc1 {bk}
            s_sleep {O["sleep3"]}
            s_cmp_lt_u32 s57, {SPIN_MAX}
            s_cbranch_scc1 {tp}
            s_mov_b32 s58, s45
            s_branch {bk}
            """)
        def oload(u):
            p, ks, rf = u >> 2, (u >> 1) & 1, u & 1
            if u % 4 == 0: pick(p)
            V.issue(f"buffer_load_dwordx4 {vr(OW(p,ks,rf),4)}, v{116 if rf else 120}, s[16:19], s51 offen offset:{ks*1024} sc1", ("o", p))
        def wbase(p):
            A(f"v_add_u32 v{VW+2*(p&1)}, s{SW(p)}, v5\nv_add_u32 v{VW+2*(p&1)+1}, s{SW(p)}, v6")
        PRE = O["prep"]
        for u in range(4): oload(u)
        self.stamp(8)
        self.dbg_max(4)
        wbase(0)
        for u in range(4, 4*PRE): oload(u)
        L = LgkmTracker(A)
        def wreads(pr, nf):
            return [(f"ds_read_b64_tr_b16 {vr(B2(nf,ks)+2*rd,2)}, v{VW + 2*(pr&1) + (nf&1)} offset:{ks*4096 + rd*2048 + (nf>>1)*256}", ("W",pr,nf))
                    for ks in range(2) for rd in range(2)]
        for nf in range(3):
            for x in wreads(0, nf): L.issue(*x)
        nxt = 4*PRE
        for pr in range(16):
            for nf in range(4):
                g = pr*4 + nf + 3
                w = wreads(g//4, g % 4) if g < 64 else []
                if nf == 0:
                    V.need({("o", pr)})
                    if pr in O["repoll"]: V.need({("p", pr)}); A(seen)
                L.need({("W",pr,nf)})
                for j,(rf,ks) in enumerate(CH4):
                    acc_ = G2 + (rf*4+nf)*4
                    c = "0" if (pr == 0 and j % 2 == 0) else vr(acc_,4)
                    A(f"{MF} {vr(acc_,4)}, {vr(B2(nf,ks),4)}, {vr(OW(pr,ks,rf),4)}, {c}")
                    if w: L.issue(*w.pop(0))
                    if j == 1:
                        for _ in range(2 if (nxt >> 2) < pr + NP - 1 else 1):
                            if nxt < 64 and (nxt >> 2) - NP <= pr - 1:
                                oload(nxt); nxt += 1
                    if j == 3 and nf == 0 and pr < 15:
                        assert nxt > 4*(pr+1)
                        wbase(pr+1)
                if nf == 0 and pr + 1 in O["repoll"]: V.issue(poll, ("p", pr+1))
                if pr == O["yslot"] and nf == 0:
                    A("s_mov_b64 exec, 1"); L.issue(f"ds_write_b8 v{VFB}, v{ONE} offset:{F_G8}", ("F",)); A("s_mov_b64 exec, -1")
        assert nxt == 64
        self.stamp(9)
        A(f"""
        s_mul_i32 s58, s27, 4608
        s_add_u32 s58, s58, {L_TR}
        v_mul_u32_u24 v2, 144, v{N15}
        v_lshl_add_u32 v2, v{Q4}, 3, v2
        v_add_u32 v2, s58, v2
        v_lshrrev_b32 v3, 3, v1
        v_mul_u32_u24 v3, 144, v3
        v_and_b32 v7, 7, v1
        v_lshl_add_u32 v3, v7, 4, v3
        v_add_u32 v3, s58, v3
        """)
        for rf in range(2):
            for nf in range(4):
                a = G2 + (rf*4+nf)*4; d = 16 + (rf*4+nf)*2
                A(f"v_cvt_pk_bf16_f32 v{d}, v{a}, v{a+1}\nv_cvt_pk_bf16_f32 v{d+1}, v{a+2}, v{a+3}")
                A(f"ds_write_b64 v2, {vr(d,2)} offset:{rf*16*144 + nf*32}")
        A("s_waitcnt lgkmcnt(0)")
        for t in range(4): A(f"ds_read_b128 {vr(32+4*t,4)}, v3 offset:{t*8*144}")
        A(f"""
        s_sub_u32 s52, s72, s38
        s_cmp_lt_u32 s52, {0 if O.get("nomoe") or O.get("noy") else 32}
        s_cbranch_scc0 L_no_moe
        """)
        self.spin(VF, F_YF, 5, 1)
        A(f"v_lshlrev_b32 v4, 5, v7\nv_add_u32 v4, {L_YF}, v4\nds_read_b128 v[48:51], v4\nds_read_b128 v[52:55], v4 offset:16\nv_lshrrev_b32 v5, 3, v1\ns_waitcnt lgkmcnt(0)")
        for t in range(4):
            A(f"v_add_u32 v7, {8*t}, v5\nv_cmp_eq_u32 vcc, s52, v7")
            for k in range(8): A(f"v_cndmask_b32 v56, 0, v{48+k}, vcc\nv_add_f32 v{S+8*t+k}, v{S+8*t+k}, v56")
        A("L_no_moe:\ns_waitcnt lgkmcnt(0)")
        for t in range(4):
            def fin(k):
                a = 32 + 4*t + k; s_ = S + 8*t + 2*k; u_ = 60 + 2*k
                self.A(f"v_lshlrev_b32 v{u_}, 16, v{a}\nv_and_b32 v{u_+1}, 0xffff0000, v{a}\nv_pk_add_f32 {vr(u_,2)}, {vr(u_,2)}, {vr(s_,2)}\nv_cvt_pk_bf16_f32 v{a}, v{u_}, v{u_+1}")
            self.weave([lambda k=k: fin(k) for k in range(4)])
            A(f"buffer_store_dwordx4 {vr(32+4*t,4)}, v118, s[32:35], s39 offen {O['ost']}")
            if t < 3: A(f"s_add_u32 s39, s39, {8*2048}")
        self.stamp(10)
        self.dbg_max(5)
        self.stamp_out()
        A("L_end:\ns_endpgm")
        for t in self.slow: A(t)
        self.slow = []

    def k_tables(self):
        q = [f"s_lshl_b32 s58, s36, 8\nv_lshl_add_u32 v2, v13, 4, s58", f"v_add_u32 v2, {L_M}, v2", f"s_lshl_b32 s58, s37, 7\nv_lshl_add_u32 v3, v12, 2, s58", f"s_lshl_b32 s58, s36, 6\nv_xor_b32 v3, s58, v3", f"v_add_u32 v3, {L_CS}, v3", "v_xor_b32 v4, 64, v3"]
        q += [f"ds_read_b32 v{40+2*cf}, v{3+(cf&1)} offset:{(cf>>1)*256}" for cf in range(4)]
        q += [f"ds_read_b32 v41, v122 offset:{F_NON}", f"ds_read_b32 v43, v122 offset:{F_SEL}"]
        for rf in range(2):
            q += [f"ds_read_b128 {vr((16,28)[rf]+4*k,4)}, v2 offset:{64*rf + off}" for k, off in enumerate((0, L_RL - L_M, L_RI - L_M))]
        return q

    def build(self):
        self.prologue()
        self.helper()
        self.kwave()
        body = hazard.fix(self.A.lines)
        hdr = open(os.path.join(os.path.dirname(os.path.abspath(__file__)), "header.txt")).read()
        out = hdr + f"; @launch grid=(256,1,1) block=(512,1,1) lds={LDS_SIZE}\n"
        out += f""".amdgcn_target "amdgcn-amd-amdhsa--gfx950"
.text
.globl {NAME}_kernel
.p2align 8
.type {NAME}_kernel,@function
{NAME}_kernel:
"""
        out += "\n".join(body) + "\n"
        out += f""".section .rodata,"a"
.p2align 6
.amdhsa_kernel {NAME}_kernel
  .amdhsa_next_free_vgpr 256
  .amdhsa_next_free_sgpr 102
  .amdhsa_accum_offset 256
  .amdhsa_group_segment_fixed_size 0
  .amdhsa_kernarg_size 88
  .amdhsa_user_sgpr_count 2
  .amdhsa_user_sgpr_kernarg_segment_ptr 1
  .amdhsa_system_sgpr_workgroup_id_x 1
  .amdhsa_float_denorm_mode_32 3
.end_amdhsa_kernel
"""
        return out

if __name__ == "__main__":
    diag = "--diag" in sys.argv
    out = [a for a in sys.argv[1:] if not a.startswith("--")]
    path = out[0] if out else f"cdna_kernels/{NAME}.s"
    kw = {}
    for a in sys.argv[1:]:
        if a.startswith("--") and "=" in a:
            k_, v_ = a[2:].split("="); kw[k_] = eval(v_)
    open(path, "w").write(Gen(diag=diag, **kw).build())
    print("wrote", path)
```
